```python
import torch

def _softmax(x, axis=-1):
    return torch.softmax(x, dim=axis)

def _gelu(x):
    return torch.nn.functional.gelu(x, approximate='tanh')

def _silu(x):
    return torch.nn.functional.silu(x)

def _sigmoid(x):
    return torch.sigmoid(x)

def _layernorm(x, axis=-1, eps=1e-05):
    m = x.mean(dim=axis, keepdim=True)
    v = x.var(dim=axis, keepdim=True, unbiased=False)
    return (x - m) / torch.sqrt(v + eps)

def _scatter_add(tgt, idx, src, axis=0):
    return tgt.clone().index_add_(axis, idx, src)

def _segment_sum(src, seg, n):
    out = torch.zeros((n,) + src.shape[1:], dtype=src.dtype)
    return out.index_add_(0, seg, src)

def _pad(x, pw):
    flat = tuple((v for pair in reversed(pw) for v in pair))
    return torch.nn.functional.pad(x, flat)
kernel_name = 'gather_scatter__tensor_product_equiv_equiformer__graph'

def setup_inputs():

    _w = lambda a: (lambda t: t.to(torch.bfloat16) if t.is_floating_point() else t)(torch.as_tensor(a))
    N, deg, C, De = (10000, 32, 128, max(0, 1))
    E = N * deg
    src = (lambda lo, hi, *s: torch.randint(lo, hi, s))(0, N, E).to(torch.int64)
    dst = (lambda lo, hi, *s: torch.randint(lo, hi, s))(0, N, E).to(torch.int64)
    rvec = (lambda *s: torch.randn(*s, dtype=torch.bfloat16) * 0.05)(E, 3).to(float)
    rn = (torch.linalg.norm(rvec, dim=-1, keepdim=True) + 1e-06).to(float)
    rhat = (rvec / rn).to(float)
    eps = torch.zeros((3, 3, 3), dtype=float)
    eps[0, 1, 2] = eps[1, 2, 0] = eps[2, 0, 1] = 1.0
    eps[0, 2, 1] = eps[2, 1, 0] = eps[1, 0, 2] = -1.0
    return {'x': _w((lambda *s: torch.randn(*s, dtype=torch.bfloat16) * 0.4)(N, 4 * C).to(float)), 'rhat': _w(rhat), 'e_attr': _w((lambda *s: torch.randn(*s, dtype=torch.bfloat16) * 0.4)(E, De).to(float)), 'src': _w(src), 'dst': _w(dst), 'w_rad': _w((lambda *s: torch.randn(*s, dtype=torch.bfloat16) * 0.4)(De, 5 * C).to(float)), 'w_si0': _w((lambda *s: torch.randn(*s, dtype=torch.bfloat16) * 0.4)(2 * C, C).to(float)), 'w_si1': _w((lambda *s: torch.randn(*s, dtype=torch.bfloat16) * 0.05)(3 * C, C).to(float)), 'cg_eps': _w(eps)}

def reference(x, rhat, e_attr, src, dst, w_rad, w_si0, w_si1, cg_eps):
    N = x.shape[0]
    C = w_si0.shape[1]
    E = rhat.shape[0]
    x0 = x[:, :C].clone()
    x1 = x[:, C:].reshape(N, 3, C)
    R = (e_attr @ w_rad).reshape(E, 5, C)
    f0 = x0[src]
    f1 = x1[src]
    Y1 = rhat
    p00_0 = f0 * R[:, 0, :]
    p11_0 = torch.einsum('ejc,ej->ec', f1, Y1) * R[:, 1, :]
    p01_1 = torch.einsum('ec,ej->ejc', f0, Y1) * R[:, 2, :][:, None, :]
    p10_1 = f1 * R[:, 3, :][:, None, :]
    p11_1 = torch.einsum('ijk,ekc,ej->eic', cg_eps, f1, Y1) * R[:, 4, :][:, None, :]
    m0 = torch.concatenate([p00_0, p11_0], axis=-1) @ w_si0
    m1 = torch.einsum('ejp,pc->ejc', torch.concatenate([p01_1, p10_1, p11_1], axis=-1), w_si1)
    agg0 = _segment_sum(m0, dst, N)
    agg1 = _segment_sum(m1.reshape(E, 3 * C), dst, N).reshape(N, 3, C)
    gate = _sigmoid(agg0)
    out1 = agg1 * gate[:, None, :]
    return torch.concatenate([agg0, out1.reshape(N, 3 * C)], axis=-1)
```

```python
import sys

NAME = "gather_scatter__tensor_product_equiv_equiformer__graph"
N = 10000
E = 320000
NB = 250
NPB = 40
NCH = 250
CH = 1280
RECB = 12
WS_REC = 0
WS_OFF = 0x400000
WS_WF = 0x480000
NWPREP = 32

CAP = 256
PSTR = 2816
L_P = 0
L_COEF = NPB * PSTR
L_META = L_COEF + 10 * CAP * 8
L_CNT = L_META + 10 * CAP * 2
L_ZERO = L_CNT + 64
L_TOT = L_ZERO + 64

class Asm:
    def __init__(self):
        self.l = []
    def __call__(self, s):
        for x in s.split("\n"):
            x = x.strip()
            if x:
                self.l.append("    " + x)
    def label(self, s):
        self.l.append(s + ":")
    def raw(self, s):
        self.l.append(s)
    def text(self):
        return "\n".join(self.l) + "\n"

def vr(a, n):
    return f"v[{a}:{a+n-1}]"
def sr(a, n=2):
    return f"s[{a}:{a+n-1}]"

def gen_part(a, opts):
    a.raw(".p2align 8")
    a.raw(".globl part_kernel")
    a.raw(".type part_kernel,@function")
    a.label("part_kernel")
    a(f"""
    s_cmp_ge_u32 s2, {NCH + NWPREP}
    s_cbranch_scc1 P_done
    s_load_dwordx8 s[8:15], s[0:1], 8
    s_load_dwordx4 s[16:19], s[0:1], 40
    s_load_dwordx2 s[20:21], s[0:1], 56
    s_load_dwordx2 s[22:23], s[0:1], 88
    s_cmp_ge_u32 s2, {NCH}
    s_cbranch_scc1 P_wprep
    v_lshlrev_b32 v21, 2, v0
    s_mul_i32 s3, s2, {CH}
    v_add_u32 v1, s3, v21
    v_lshlrev_b32 v2, 2, v1
    v_mul_u32_u24 v3, 6, v1
    v_lshlrev_b32 v20, 1, v1
    v_mov_b32 v22, 0
    ds_write_b32 v21, v22
    v_mov_b32 v23, 1
    s_waitcnt lgkmcnt(0)
    global_load_dwordx4 v[4:7], v2, s[14:15]
    global_load_dwordx4 v[8:11], v2, s[12:13]
    global_load_dwordx4 v[12:15], v3, s[8:9]
    global_load_dwordx2 v[16:17], v3, s[8:9] offset:16
    global_load_dwordx2 v[18:19], v20, s[10:11]
    s_barrier
    s_waitcnt vmcnt(4)
    """)
    for i in range(4):
        a(f"""
        v_mul_u32_u24 v{24+i}, 0xcccd, v{4+i}
        v_lshrrev_b32 v{24+i}, 21, v{24+i}
        v_mul_u32_u24 v1, {NPB}, v{24+i}
        v_sub_u32 v{4+i}, v{4+i}, v1
        v_lshlrev_b32 v{24+i}, 2, v{24+i}
        ds_add_rtn_u32 v{28+i}, v{24+i}, v23
        """)
    a("s_waitcnt vmcnt(3)")
    for i in range(4):
        a(f"v_lshl_or_b32 v{32+4*i+2}, v{4+i}, 14, v{8+i}")
    a("s_waitcnt vmcnt(0)")
    a("s_mov_b32 s4, 0xffff0000")
    def half(dst, base, idx):
        r = base + idx // 2
        if idx % 2 == 0:
            a(f"v_lshlrev_b32 v{dst}, 16, v{r}")
        else:
            a(f"v_and_b32 v{dst}, s4, v{r}")
    for i in range(4):
        half(4, 18, i)
        half(5, 12, 3*i+0)
        half(6, 12, 3*i+1)
        half(7, 12, 3*i+2)
        a(f"""
        v_mul_f32 v5, v4, v5
        v_mul_f32 v6, v4, v6
        v_mul_f32 v7, v4, v7
        v_cvt_pk_bf16_f32 v{32+4*i}, v4, v5
        v_cvt_pk_bf16_f32 v{32+4*i+1}, v6, v7
        """)
    a(f"""
    v_and_b32 v1, 63, v0
    v_lshlrev_b32 v1, 4, v1
    s_waitcnt lgkmcnt(0)
    s_barrier
    ds_read_b128 v[4:7], v1
    s_waitcnt lgkmcnt(0)
    v_add_u32 v9, v4, v5
    v_add_u32 v10, v9, v6
    v_add_u32 v11, v10, v7
    v_mov_b32 v12, v11
    s_nop 1
    v_add_u32_dpp v12, v12, v12 row_shr:1 row_mask:0xf bank_mask:0xf bound_ctrl:0
    s_nop 1
    v_add_u32_dpp v12, v12, v12 row_shr:2 row_mask:0xf bank_mask:0xf bound_ctrl:0
    s_nop 1
    v_add_u32_dpp v12, v12, v12 row_shr:4 row_mask:0xf bank_mask:0xf bound_ctrl:0
    s_nop 1
    v_add_u32_dpp v12, v12, v12 row_shr:8 row_mask:0xf bank_mask:0xf bound_ctrl:0
    s_nop 1
    v_add_u32_dpp v12, v12, v12 row_bcast:15 row_mask:0xa bank_mask:0xf
    s_nop 1
    v_add_u32_dpp v12, v12, v12 row_bcast:31 row_mask:0xc bank_mask:0xf
    v_sub_u32 v12, v12, v11
    v_add_u32 v13, v12, v4
    v_add_u32 v14, v12, v9
    v_add_u32 v15, v12, v10
    ds_write_b128 v1, v[12:15] offset:2048
    s_lshl_b32 s3, s2, 10
    s_add_u32 s3, s3, {WS_OFF}
    v_add_u32 v2, s3, v1
    s_waitcnt lgkmcnt(0)
    """)
    for i in range(4):
        a(f"ds_read_b32 v{4+i}, v{24+i} offset:2048")
    a(f"""
    v_cmp_gt_u32 vcc, 64, v0
    s_and_saveexec_b64 s[6:7], vcc
    s_cbranch_execz P_nooff
    global_store_dwordx4 v2, v[12:15], s[22:23]
    """)
    a.label("P_nooff")
    a(f"""
    s_mov_b64 exec, s[6:7]
    s_mul_i32 s3, s2, {CH * RECB}
    s_waitcnt lgkmcnt(0)
    """)
    for i in range(4):
        a(f"""
        v_add_u32 v{4+i}, v{4+i}, v{28+i}
        v_mul_u32_u24 v{4+i}, {RECB}, v{4+i}
        v_add_u32 v{4+i}, s3, v{4+i}
        global_store_dwordx3 v{4+i}, {vr(32+4*i,3)}, s[22:23]
        """)
    a("s_endpgm")
    a.label("P_wprep")
    a(f"""
    v_lshrrev_b32 v1, 6, v0
    s_nop 0
    v_readfirstlane_b32 s4, v1
    s_sub_u32 s3, s2, {NCH}
    s_mul_i32 s3, s3, 5
    s_add_u32 s3, s3, s4
    s_mul_i32 s5, s3, 3277
    s_lshr_b32 s5, s5, 16
    s_mul_i32 s6, s5, 20
    s_sub_u32 s6, s3, s6
    v_and_b32 v1, 63, v0
    v_and_b32 v2, 15, v1
    v_lshrrev_b32 v3, 4, v1
    s_lshl_b32 s7, s6, 5
    v_lshl_add_u32 v4, v3, 3, s7
    v_lshlrev_b32 v5, 1, v4
    s_lshl_b32 s24, s5, 4
    v_add_u32 v2, s24, v2
    v_lshlrev_b32 v2, 1, v2
    v_lshl_add_u32 v6, v4, 8, v2
    s_waitcnt lgkmcnt(0)
    s_sub_u32 s26, s20, {256*256}
    s_subb_u32 s27, s21, 0
    s_cmp_lt_u32 s6, 8
    s_cselect_b32 s26, s18, s26
    s_cselect_b32 s27, s19, s27
    global_load_dwordx4 v[8:11], v5, s[16:17]
    """)
    for i in range(8):
        a(f"global_load_ushort v{12+i}, v6, s[26:27] offset:{256*i}")
    a(f"""
    s_mov_b32 s4, 0xffff0000
    s_lshl_b32 s3, s3, 10
    s_add_u32 s3, s3, {WS_WF}
    v_lshl_add_u32 v7, v1, 4, s3
    s_waitcnt vmcnt(0)
    """)
    for i in range(8):
        if i % 2 == 0:
            a(f"v_lshlrev_b32 v20, 16, v{8+i//2}")
        else:
            a(f"v_and_b32 v20, s4, v{8+i//2}")
        a(f"v_lshlrev_b32 v{12+i}, 16, v{12+i}")
        a(f"v_mul_f32 v{12+i}, v20, v{12+i}")
    for i in range(4):
        a(f"v_cvt_pk_bf16_f32 v{24+i}, v{12+2*i}, v{13+2*i}")
    a("global_store_dwordx4 v7, v[24:27], s[22:23]")
    a.label("P_done")
    a("s_endpgm")

V_N16 = 1; V_SH = 2; V_C = 3; V_CA = 4; V_ZA = 5; V_MA = 6; V_PB = 7
V_O0 = 8; V_O1 = 9; V_JB = 10; V_DONE = 11
V_T = 12
V_M = 16
V_A = [20, 24]
V_B = [28, 32]
V_AD = 36
V_ACC = 40
V_L = [72, 104]
S_G = 18; S_S = 19; S_S1 = 20; S_B1 = 21; S_S2 = 22; S_1024 = 23; S_PLO = 24; S_PHI = 25
S_SELR = 26; S_KEEP = 28; S_MORE = 29; S_CTAB = 30; S_T = 32
S_M = 40
S_ACT = 56; S_PEND = 58; S_TM = 60; S_M14 = 62; S_HI = 63

def comp011(i): return 2 + 3*i
def comp101(i): return 3 + 3*i
def comp111(i): return 4 + 3*i
FL = [
    [(0, 0, 0), (comp011(0), 0, 0), (comp011(1), 0, 0), (comp011(2), 0, 0)],
    [(comp101(0), 0, 0), (1, 0, 0), (comp111(2), 1, 0), (comp111(1), 0, 0)],
    [(comp101(1), 0, 0), (comp111(2), 0, 1), (1, 0, 1), (comp111(0), 1, 0)],
    [(comp101(2), 0, 0), (comp111(1), 1, 1), (comp111(0), 0, 1), (1, 0, 1)],
]
CTAB = 0; SGN = 0; KEEP = 0
for b in range(4):
    for r in range(4):
        c, s, k = FL[b][r]
        CTAB |= c << (16*b + 4*r)
        SGN |= s << (4*b + r)
        KEEP |= k << (4*b + r)

def stage_x(a, p):
    L = V_L[p]; A = V_A[p]
    for d in range(4):
        a(f"v_and_b32 v{V_T+d}, s{S_M14}, v{V_M+d}")
    for i in range(8):
        ad = V_AD + (i % 4)
        sel = " op_sel:[1,0,0,0]" if i % 2 else ""
        a(f"v_mad_u32_u16 v{ad}, v{V_T+i//2}, s{S_1024}, v{V_N16}{sel}")
        a(f"buffer_load_dwordx4 {vr(L+4*i,4)}, v{ad}, s[4:7], s{S_B1} offen")
    a(f"""
    v_cndmask_b32 v{V_T}, v{V_M}, v{V_M+1}, {sr(S_SELR)}
    v_cndmask_b32 v{V_T+1}, v{V_M+2}, v{V_M+3}, {sr(S_SELR)}
    v_bfe_u32 v{V_T}, v{V_T}, v{V_SH}, 2
    v_bfe_u32 v{V_T+1}, v{V_T+1}, v{V_SH}, 2
    s_lshl_b32 s{S_T}, s{S_S1}, 8
    v_cmp_eq_u32 vcc, v{V_T}, v{V_C}
    v_cmp_eq_u32 {sr(S_TM)}, v{V_T+1}, v{V_C}
    v_add_u32 v{V_T+2}, s{S_T}, v{V_CA}
    s_add_u32 s{S_S2}, s{S_S1}, 1
    s_cmp_eq_u32 s{S_S2}, s{S_S}
    s_cselect_b32 s{S_S2}, 0, s{S_S2}
    v_cndmask_b32 v{V_T}, v{V_ZA}, v{V_T+2}, vcc
    v_cndmask_b32 v{V_T+1}, v{V_ZA}, v{V_T+2}, {sr(S_TM)}
    s_lshl_b32 s{S_T}, s{S_S2}, 6
    v_add_u32 v{V_T+3}, s{S_T}, v{V_MA}
    ds_read_b64_tr_b16 {vr(A,2)}, v{V_T}
    ds_read_b64_tr_b16 {vr(A+2,2)}, v{V_T+1} offset:32
    ds_read_b128 {vr(V_M,4)}, v{V_T+3}
    """)

def advance(a):
    a(f"""
    s_mov_b32 s{S_S1}, s{S_S2}
    s_cmp_eq_u32 s{S_S2}, 0
    s_cselect_b32 s{S_T}, 256, 0
    s_add_u32 s{S_B1}, s{S_B1}, s{S_T}
    """)

def compute(a, p):
    L = V_L[p]; A = V_A[p]
    def perms(j):
        B = V_B[j % 2]
        sel = S_PHI if j % 2 else S_PLO
        for q in range(4):
            a(f"v_perm_b32 v{B+q}, v{L+4*(2*q+1)+j//2}, v{L+4*(2*q)+j//2}, s{sel}")
    perms(0)
    for j in range(8):
        if j + 1 < 8:
            perms(j + 1)
        else:
            a("s_nop 1")
        a(f"v_mfma_f32_16x16x32_bf16 {vr(V_ACC+4*j,4)}, {vr(A,4)}, {vr(V_B[j%2],4)}, {vr(V_ACC+4*j,4)}")

def flush(a, p):
    L = V_L[p]
    a(f"""
    s_lshr_b32 s{S_T}, s{S_B1}, 8
    s_sub_u32 s{S_T}, s{S_T}, 1
    s_lshl_b32 s{S_T+1}, s{S_T}, 4
    s_lshr_b64 {sr(S_T+2)}, {sr(S_CTAB)}, s{S_T+1}
    s_lshl_b32 s{S_T+1}, s{S_T}, 2
    s_lshr_b32 s{S_T+4}, {hex(SGN)}, s{S_T+1}
    s_lshr_b32 s{S_T+5}, s{S_KEEP}, s{S_T+1}
    """)
    for r in range(4):
        a(f"""
        s_bfe_u32 s{S_T}, s{S_T+2}, {hex((4<<16) | (4*r))}
        s_lshl_b32 s{S_T}, s{S_T}, 8
        v_add_u32 v{L+16+r}, s{S_T}, v{V_PB}
        ds_read_b128 {vr(L+4*r,4)}, v{L+16+r}
        """)
    a("s_waitcnt lgkmcnt(0)")
    for r in range(4):
        a(f"""
        s_bitcmp1_b32 s{S_T+4}, {r}
        s_cselect_b32 s{S_T}, -1.0, 1.0
        s_bitcmp1_b32 s{S_T+5}, {r}
        s_cselect_b32 s{S_T+1}, -1, 0
        """)
        for d in range(4):
            a(f"""
            v_and_b32 v{L+4*r+d}, s{S_T+1}, v{L+4*r+d}
            v_lshlrev_b32 v{L+20+2*d}, 16, v{L+4*r+d}
            v_and_b32 v{L+21+2*d}, s{S_HI}, v{L+4*r+d}
            v_fma_f32 v{L+20+2*d}, v{V_ACC+4*(2*d)+r}, s{S_T}, v{L+20+2*d}
            v_fma_f32 v{L+21+2*d}, v{V_ACC+4*(2*d+1)+r}, s{S_T}, v{L+21+2*d}
            v_cvt_pk_bf16_f32 v{L+4*r+d}, v{L+20+2*d}, v{L+21+2*d}
            """)
        a(f"ds_write_b128 v{L+16+r}, {vr(L+4*r,4)}")
    for k in range(32):
        a(f"v_mov_b32 v{V_ACC+k}, 0")

def gen_main(a, opts):
    K = NAME + "_kernel"
    a.raw(".p2align 8")
    a.raw(f".globl {K}")
    a.raw(f".type {K},@function")
    a.label(K)
    a(f"""
    s_cmp_ge_u32 s2, {NB}
    s_cbranch_scc1 M_done
    s_load_dwordx2 s[4:5], s[0:1], 0
    s_load_dwordx2 s[8:9], s[0:1], 72
    s_load_dwordx2 s[12:13], s[0:1], 88
    v_lshrrev_b32 v{V_T}, 6, v0
    v_mov_b32 v{V_O0}, 0
    v_readfirstlane_b32 s{S_G}, v{V_T}
    v_mov_b32 v{V_O1}, 0
    v_mov_b32 v{V_JB}, 0
    v_mov_b32 v{V_DONE}, 0
    s_mov_b32 s6, {N*1024}
    s_mov_b32 s7, 0x20000
    s_mov_b32 s10, {N*1024}
    s_mov_b32 s11, 0x20000
    v_lshrrev_b32 v{V_T}, 1, v0
    v_lshlrev_b32 v{V_T}, 10, v{V_T}
    s_lshl_b32 s3, s2, 2
    v_add_u32 v{V_T}, s3, v{V_T}
    v_cmp_gt_u32 vcc, {2*NCH}, v0
    s_waitcnt lgkmcnt(0)
    s_and_b32 s5, s5, 0xffff
    s_and_b32 s9, s9, 0xffff
    s_add_u32 s14, s12, {WS_OFF}
    s_addc_u32 s15, s13, 0
    s_add_u32 s16, s12, {WS_WF}
    s_addc_u32 s17, s13, 0
    s_and_saveexec_b64 {sr(S_TM)}, vcc
    s_cbranch_execz M_nooff
    global_load_dwordx2 {vr(V_O0,2)}, v{V_T}, s[14:15]
    """)
    a.label("M_nooff")
    a(f"""
    s_mov_b64 exec, {sr(S_TM)}
    s_movk_i32 s{S_1024}, 1024
    s_mov_b32 s{S_PLO}, 0x05040100
    s_mov_b32 s{S_PHI}, 0x07060302
    s_mov_b32 s{S_M14}, 0x3fff3fff
    s_mov_b32 s{S_HI}, 0xffff0000
    s_mov_b32 s{S_KEEP}, {hex(KEEP)}
    s_mov_b32 s{S_CTAB}, {hex(CTAB & 0xffffffff)}
    s_mov_b32 s{S_CTAB+1}, {hex(CTAB >> 32)}
    s_mov_b32 s{S_SELR}, 0xff00ff00
    s_mov_b32 s{S_SELR+1}, 0xff00ff00
    v_and_b32 v{V_T}, 63, v0
    v_and_b32 v{V_T+1}, 15, v{V_T}
    v_lshrrev_b32 v{V_T+2}, 4, v{V_T}
    v_lshlrev_b32 v{V_N16}, 4, v{V_T+1}
    v_and_b32 v{V_C}, 3, v{V_T}
    v_bfe_u32 v{V_T+3}, v{V_T}, 2, 2
    v_and_b32 v{V_SH}, 1, v{V_T+3}
    v_lshlrev_b32 v{V_SH}, 4, v{V_SH}
    v_add_u32 v{V_SH}, 14, v{V_SH}
    s_mul_i32 s{S_T}, s{S_G}, {CAP*8}
    s_add_u32 s{S_T}, s{S_T}, {L_COEF}
    v_lshl_add_u32 v{V_CA}, v{V_T+2}, 3, v{V_T+3}
    v_lshl_add_u32 v{V_CA}, v{V_CA}, 3, s{S_T}
    v_mov_b32 v{V_ZA}, {L_ZERO}
    s_mul_i32 s{S_T}, s{S_G}, {CAP*2}
    s_add_u32 s{S_T}, s{S_T}, {L_META}
    v_lshl_add_u32 v{V_MA}, v{V_T+2}, 4, s{S_T}
    s_lshl_b32 s{S_T}, s{S_G}, 2
    v_add_u32 v{V_T+2}, s{S_T}, v{V_T+2}
    v_mul_u32_u24 v{V_PB}, {PSTR}, v{V_T+2}
    v_and_b32 v{V_T+2}, 15, v{V_T+2}
    v_xor_b32 v{V_T+2}, v{V_T+2}, v{V_T+1}
    v_lshl_add_u32 v{V_PB}, v{V_T+2}, 4, v{V_PB}
    """)
    a.label("M_init")
    L = V_L[0]
    a(f"""
    v_mov_b32 v{L}, 0
    v_mov_b32 v{L+1}, 0
    v_mov_b32 v{L+2}, 0
    v_mov_b32 v{L+3}, 0
    v_mov_b32 v{L+4}, -1
    v_mov_b32 v{L+5}, -1
    v_lshlrev_b32 v{V_T}, 4, v0
    v_add_u32 v{V_T}, {L_COEF}, v{V_T}
    ds_write_b128 v{V_T}, {vr(L,4)}
    ds_write_b128 v{V_T}, {vr(L,4)} offset:10240
    v_lshlrev_b32 v{V_T+1}, 3, v0
    v_add_u32 v{V_T+1}, {L_META}, v{V_T+1}
    ds_write_b64 v{V_T+1}, {vr(L+4,2)}
    v_lshlrev_b32 v{V_T+2}, 2, v0
    v_add_u32 v{V_T+2}, {L_CNT}, v{V_T+2}
    v_cmp_gt_u32 vcc, 32, v0
    s_and_saveexec_b64 {sr(S_TM)}, vcc
    ds_write_b32 v{V_T+2}, v{L}
    s_mov_b64 exec, {sr(S_TM)}
    s_mov_b64 {sr(S_ACT)}, -1
    s_waitcnt lgkmcnt(0)
    s_barrier
    s_waitcnt vmcnt(0)
    """)
    a.label("M_window")
    a(f"""
    v_and_b32 v{V_T+2}, 1, v0
    v_add_u32 v{V_T+2}, v{V_T+2}, v{V_JB}
    v_add_u32 v{V_T+2}, v{V_T+2}, v{V_O0}
    v_sub_u32 v{V_T}, v{V_O1}, v{V_T+2}
    v_mul_u32_u24 v{V_T+2}, {RECB}, v{V_T+2}
    v_lshrrev_b32 v{V_T+1}, 1, v0
    v_mul_u32_u24 v{V_T+1}, {CH*RECB}, v{V_T+1}
    v_add_u32 v{V_T+1}, v{V_T+1}, v{V_T+2}
    """)
    for i in range(8):
        m = sr(S_M + 2*i)
        a(f"""
        v_cmp_lt_i32 {m}, {2*i}, v{V_T}
        v_and_b32 v{V_T+2}, {1<<i}, v{V_DONE}
        v_cmp_eq_u32 vcc, 0, v{V_T+2}
        s_and_b64 {m}, {m}, vcc
        s_and_b64 {m}, {m}, {sr(S_ACT)}
        """)
    for i in range(8):
        a(f"""
        s_mov_b64 exec, {sr(S_M+2*i)}
        global_load_dwordx3 {vr(L+4*i,3)}, v{V_T+1}, s[12:13] offset:{2*RECB*i}
        """)
    a(f"""
    s_mov_b64 exec, -1
    v_mov_b32 v{V_T+3}, 1
    s_mov_b32 s{S_T}, {L_CNT}
    s_waitcnt vmcnt(0)
    """)
    L2 = V_L[1]
    for i in range(8):
        a(f"""
        s_mov_b64 exec, {sr(S_M+2*i)}
        v_lshrrev_b32 v{L2+i}, 16, v{L+4*i+2}
        v_lshl_add_u32 v{V_T+2}, v{L2+i}, 2, s{S_T}
        ds_add_rtn_u32 v{L+4*i+3}, v{V_T+2}, v{V_T+3}
        """)
    a(f"""
    s_mov_b64 {sr(S_PEND)}, 0
    s_mov_b32 s{S_T}, {L_COEF}
    s_mov_b32 s{S_T+1}, {L_META}
    s_movk_i32 s{S_T+2}, {CAP}
    s_waitcnt lgkmcnt(0)
    """)
    for i in range(8):
        m = sr(S_M + 2*i)
        a(f"""
        s_mov_b64 exec, {m}
        v_cmp_gt_u32 vcc, s{S_T+2}, v{L+4*i+3}
        s_andn2_b64 {sr(S_TM)}, {m}, vcc
        s_or_b64 {sr(S_PEND)}, {sr(S_PEND)}, {sr(S_TM)}
        s_mov_b64 exec, vcc
        v_lshl_add_u32 v{L2+i}, v{L2+i}, 8, v{L+4*i+3}
        v_lshl_add_u32 v{L2+8+i}, v{L2+i}, 3, s{S_T}
        v_lshl_add_u32 v{L2+i}, v{L2+i}, 1, s{S_T+1}
        ds_write_b64 v{L2+8+i}, {vr(L+4*i,2)}
        ds_write_b16 v{L2+i}, v{L+4*i+2}
        v_or_b32 v{V_DONE}, {1<<i}, v{V_DONE}
        """)
    assert CAP == 256
    a(f"""
    s_mov_b64 exec, -1
    v_mov_b32 v{V_T+2}, {L_CNT+48}
    s_mov_b64 exec, {sr(S_PEND)}
    ds_write_b32 v{V_T+2}, v{V_T+3}
    s_andn2_b64 {sr(S_ACT)}, {sr(S_ACT)}, {sr(S_PEND)}
    s_mov_b64 exec, {sr(S_ACT)}
    v_add_u32 v{V_JB}, 16, v{V_JB}
    v_mov_b32 v{V_DONE}, 0
    v_cmp_lt_i32 vcc, 16, v{V_T}
    s_mov_b64 exec, -1
    s_cmp_lg_u64 vcc, 0
    s_cbranch_scc1 M_window
    s_lshl_b32 s{S_T}, s{S_G}, 2
    s_add_u32 s{S_T}, s{S_T}, {L_CNT}
    v_mov_b32 v{V_T}, s{S_T}
    s_waitcnt lgkmcnt(0)
    s_barrier
    ds_read_b32 v{V_T+1}, v{V_T}
    ds_read_b32 v{V_T+3}, v{V_T+2}
    ds_read_b128 {vr(V_M,4)}, v{V_MA}
    """)
    for k in range(32):
        a(f"v_mov_b32 v{V_ACC+k}, 0")
    a(f"""
    s_mov_b32 s{S_S1}, 0
    s_mov_b32 s{S_B1}, 0
    s_waitcnt lgkmcnt(0)
    v_readfirstlane_b32 s{S_S}, v{V_T+1}
    v_readfirstlane_b32 s{S_MORE}, v{V_T+3}
    s_min_u32 s{S_S}, s{S_S}, {CAP}
    s_add_u32 s{S_S}, s{S_S}, 31
    s_lshr_b32 s{S_S}, s{S_S}, 5
    s_max_u32 s{S_S}, s{S_S}, 1
    """)
    stage_x(a, 0)
    advance(a)
    for p in range(2):
        a.label(f"M_it{p}")
        a(f"""
        s_waitcnt lgkmcnt(0)
        s_cmp_eq_u32 s{S_B1}, 1024
        s_cbranch_scc1 M_last{p}
        """)
        stage_x(a, p ^ 1)
        a(f"""
        s_waitcnt vmcnt(8)
        s_branch M_go{p}
        """)
        a.label(f"M_last{p}")
        a("s_waitcnt vmcnt(0)")
        a.label(f"M_go{p}")
        compute(a, p)
        a(f"""
        s_cmp_lg_u32 s{S_S1}, 0
        s_cbranch_scc1 M_nofl{p}
        """)
        flush(a, p)
        a(f"""
        s_cmp_eq_u32 s{S_B1}, 1024
        s_cbranch_scc1 M_end
        """)
        a.label(f"M_nofl{p}")
        advance(a)
        if p == 1:
            a("s_branch M_it0")
    a.label("M_end")
    a(f"""
    s_cmp_eq_u32 s{S_MORE}, 0
    s_cbranch_scc1 M_gemm
    s_mov_b32 s{S_KEEP}, 0xffff
    s_waitcnt lgkmcnt(0)
    s_barrier
    s_branch M_init
    """)
    a.label("M_gemm")
    W = 56; ACC = [24, 40]; BB = 136; NBB = 6
    a(f"""
    s_cmp_ge_u32 s{S_G}, 8
    s_cbranch_scc0 M_gw
    s_waitcnt lgkmcnt(0)
    s_barrier
    s_endpgm
    """)
    a.label("M_gw")
    a(f"""
    v_and_b32 v10, 63, v0
    s_mul_i32 s{S_T}, s{S_G}, {20*1024}
    v_lshl_add_u32 v11, v10, 4, s{S_T}
    s_waitcnt lgkmcnt(0)
    """)
    for ks in range(20):
        if ks % 4 == 0 and ks:
            a("v_add_u32 v11, 4096, v11")
        a(f"global_load_dwordx4 {vr(W+4*ks,4)}, v11, s[16:17] offset:{1024*(ks%4)}")
    a(f"""
    v_and_b32 v12, 15, v10
    v_lshrrev_b32 v13, 4, v10
    v_mul_u32_u24 v14, {PSTR}, v12
    """)
    for k4 in range(4):
        a(f"""
        v_add_u32 v15, {4*k4}, v13
        v_xor_b32 v15, v15, v12
        v_lshl_add_u32 v{1+k4}, v15, 4, v14
        v_add_u32 v{5+k4}, {32*PSTR}, v{1+k4}
        """)
    a(f"""
    s_mul_i32 s{S_T}, s2, {NPB*1024}
    s_lshl_b32 s{S_T+1}, s{S_G}, 5
    s_add_u32 s{S_T}, s{S_T}, s{S_T+1}
    v_lshl_add_u32 v9, v12, 10, s{S_T}
    v_lshl_add_u32 v9, v13, 3, v9
    v_cmp_gt_u32 {sr(S_TM)}, 8, v12
    s_mov_b32 s{S_T+2}, 0xbfb8aa3b
    s_barrier
    """)
    steps = []
    for t in range(3):
        for c in range(2):
            for k4 in range(4):
                steps.append((t, 0, c, k4, c*4 + k4, c == 0 and k4 == 0))
        for cc in range(3):
            for k4 in range(4):
                for i in range(3):
                    steps.append((t, 1+i, 2+3*i+cc, k4, 8 + cc*4 + k4, cc == 0 and k4 == 0))
    def rd(n):
        t, o, c, k4, ws, first = steps[n]
        base = (1 + k4) if t < 2 else (5 + k4)
        off = c*256 + (16*PSTR if t == 1 else 0)
        a(f"ds_read_b128 {vr(BB+4*(n%NBB),4)}, v{base} offset:{off}")
    def epilogue(t):
        A0 = ACC[t % 2]
        a("s_nop 7")
        for r in range(4):
            a(f"v_mul_f32 v{12+r}, s{S_T+2}, v{A0+r}")
        for r in range(4):
            a(f"v_exp_f32 v{12+r}, v{12+r}")
        a(f"v_cvt_pk_bf16_f32 v16, v{A0}, v{A0+1}")
        a(f"v_cvt_pk_bf16_f32 v17, v{A0+2}, v{A0+3}")
        for r in range(4):
            a(f"v_add_f32 v{12+r}, 1.0, v{12+r}")
        for r in range(4):
            a(f"v_rcp_f32 v{12+r}, v{12+r}")
        if t == 2:
            a(f"v_mov_b32 v10, 0x7ffff000")
            a(f"v_cndmask_b32 v9, v10, v9, {sr(S_TM)}")
        a(f"buffer_store_dwordx2 v[16:17], v9, s[8:11], 0 offen")
        for i in range(3):
            B0 = A0 + 4 + 4*i
            for r in range(4):
                a(f"v_mul_f32 v{B0+r}, v{B0+r}, v{12+r}")
            a(f"v_cvt_pk_bf16_f32 v{18+2*i}, v{B0}, v{B0+1}")
            a(f"v_cvt_pk_bf16_f32 v{19+2*i}, v{B0+2}, v{B0+3}")
            a(f"buffer_store_dwordx2 {vr(18+2*i,2)}, v9, s[8:11], 0 offen offset:{256*(i+1)}")
        if t < 2:
            a("v_add_u32 v9, 16384, v9")
    n_steps = len(steps)
    for n in range(NBB - 1):
        rd(n)
    wseen = -1
    for n in range(n_steps):
        t, o, c, k4, ws, first = steps[n]
        if n + NBB - 1 < n_steps:
            rd(n + NBB - 1)
            pend = NBB - 1
        else:
            pend = n_steps - 1 - n
        w = f"s_waitcnt lgkmcnt({pend})"
        if t == 0 and ws > wseen:
            w += f" vmcnt({19 - ws})"
            w = f"s_waitcnt vmcnt({19-ws}) lgkmcnt({pend})"
            wseen = ws
        a(w)
        acc = vr(ACC[t % 2] + 4*o, 4)
        a(f"v_mfma_f32_16x16x32_bf16 {acc}, {vr(W+4*ws,4)}, {vr(BB+4*(n%NBB),4)}, {'0' if first else acc}")
        if n + 1 == n_steps or steps[n+1][0] != t:
            epilogue(t)
    a.label("M_done")
    a("s_endpgm")

def kd(a, name, vg, sg):
    acc = (vg + 3) // 4 * 4
    a.raw(f""".p2align 6
.amdhsa_kernel {name}
  .amdhsa_next_free_vgpr {vg}
  .amdhsa_next_free_sgpr {sg}
  .amdhsa_accum_offset {acc}
  .amdhsa_group_segment_fixed_size 0
  .amdhsa_kernarg_size 96
  .amdhsa_user_sgpr_count 2
  .amdhsa_user_sgpr_kernarg_segment_ptr 1
  .amdhsa_system_sgpr_workgroup_id_x 1
  .amdhsa_float_denorm_mode_32 3
.end_amdhsa_kernel""")

def main():
    opts = dict(x.split("=") for x in sys.argv[2:])
    a = Asm()
    ref = open(f"cdna_kernels/{NAME}.s.ref").read().split("\n")
    for ln in ref:
        if ln.startswith(";") and "@launch" not in ln and "Override" not in ln and "grid=ceil" not in ln:
            a.raw(ln)
    a.raw(f"; @launch kernel=part_kernel grid=({NCH+NWPREP},1,1) block=(320,1,1) lds=4096")
    a.raw(f"; @launch kernel={NAME}_kernel grid=({NB},1,1) block=(640,1,1) lds={L_TOT}")
    a.raw('.amdgcn_target "amdgcn-amd-amdhsa--gfx950"')
    a.raw(".text")
    gen_part(a, opts)
    gen_main(a, opts)
    a.raw('.section .rodata,"a"')
    kd(a, "part_kernel", 48, 32)
    kd(a, NAME + "_kernel", 160, 64)
    open(sys.argv[1], "w").write(a.text())

main()
```

```python
import sys

NAME = "gather_scatter__tensor_product_equiv_equiformer__graph"
N = 10000
E = 320000
NB = 250
NPB = 40
NCH = 250
CH = 1280
RECB = 12
WS_REC = 0
WS_OFF = 0x400000
WS_WF = 0x480000
NWPREP = 32

CAP = 256
PSTR = 2816
L_P = 0
L_COEF = NPB * PSTR
L_META = L_COEF + 10 * CAP * 8
L_CNT = L_META + 10 * CAP * 2
L_ZERO = L_CNT + 64
L_TOT = L_ZERO + 64

class Asm:
    def __init__(self):
        self.l = []
    def __call__(self, s):
        for x in s.split("\n"):
            x = x.strip()
            if x:
                self.l.append("    " + x)
    def label(self, s):
        self.l.append(s + ":")
    def raw(self, s):
        self.l.append(s)
    def text(self):
        return "\n".join(self.l) + "\n"

def vr(a, n):
    return f"v[{a}:{a+n-1}]"
def sr(a, n=2):
    return f"s[{a}:{a+n-1}]"

def pstamp(a, k, real=False):
    if DBG:
        a(f"s_mem{'realtime' if real else 'time'} {sr(32+2*k)}")
def pstamp_dump(a):
    if DBG:
        a("s_waitcnt lgkmcnt(0) vmcnt(0)")
        pstamp(a, 9)
        pstamp(a, 11, True)
        a("v_lshrrev_b32 v1, 6, v0")
        a("s_waitcnt lgkmcnt(0)")
        a("v_readfirstlane_b32 s4, v1")
        a(f"s_mul_i32 s3, s2, 5")
        a(f"s_add_u32 s3, s3, s4")
        a(f"s_lshl_b32 s3, s3, 7")
        a(f"s_add_u32 s3, s3, 0x900000")
        a(f"v_mov_b32 v1, s3")
        for k in range(0, 32, 2):
            a(f"v_mov_b32 v2, s{32+k}")
            a(f"v_mov_b32 v3, s{32+k+1}")
            a(f"global_store_dwordx2 v1, v[2:3], s[22:23] offset:{4*k}")
            a("s_nop 1")

def gen_part(a, opts):
    a.raw(".p2align 8")
    a.raw(".globl part_kernel")
    a.raw(".type part_kernel,@function")
    a.label("part_kernel")
    a(f"""
    s_cmp_ge_u32 s2, {NCH + NWPREP}
    s_cbranch_scc1 P_done
    """)
    if DBG:
        for k in range(32, 64): a(f"s_mov_b32 s{k}, 0")
    pstamp(a, 0)
    pstamp(a, 10, True)
    a(f"""
    s_load_dwordx8 s[8:15], s[0:1], 8
    s_load_dwordx4 s[16:19], s[0:1], 40
    s_load_dwordx2 s[20:21], s[0:1], 56
    s_load_dwordx2 s[22:23], s[0:1], 88
    s_cmp_ge_u32 s2, {NCH}
    s_cbranch_scc1 P_wprep
    v_lshlrev_b32 v21, 2, v0
    s_mul_i32 s3, s2, {CH}
    v_add_u32 v1, s3, v21
    v_lshlrev_b32 v2, 2, v1
    v_mul_u32_u24 v3, 6, v1
    v_lshlrev_b32 v20, 1, v1
    v_mov_b32 v22, 0
    ds_write_b32 v21, v22
    v_mov_b32 v23, 1
    s_waitcnt lgkmcnt(0)
    global_load_dwordx4 v[4:7], v2, s[14:15]
    global_load_dwordx4 v[8:11], v2, s[12:13]
    global_load_dwordx4 v[12:15], v3, s[8:9]
    global_load_dwordx2 v[16:17], v3, s[8:9] offset:16
    global_load_dwordx2 v[18:19], v20, s[10:11]
    """)
    pstamp(a, 1)
    a("""
    s_barrier
    s_waitcnt vmcnt(4)
    """)
    pstamp(a, 2)
    for i in range(4):
        a(f"""
        v_mul_u32_u24 v{24+i}, 0xcccd, v{4+i}
        v_lshrrev_b32 v{24+i}, 21, v{24+i}
        v_mul_u32_u24 v1, {NPB}, v{24+i}
        v_sub_u32 v{4+i}, v{4+i}, v1
        v_lshlrev_b32 v{24+i}, 2, v{24+i}
        ds_add_rtn_u32 v{28+i}, v{24+i}, v23
        """)
    a("s_waitcnt vmcnt(3)")
    for i in range(4):
        a(f"v_lshl_or_b32 v{32+4*i+2}, v{4+i}, 14, v{8+i}")
    a("s_waitcnt vmcnt(0)")
    pstamp(a, 3)
    a("s_mov_b32 s4, 0xffff0000")
    def half(dst, base, idx):
        r = base + idx // 2
        if idx % 2 == 0:
            a(f"v_lshlrev_b32 v{dst}, 16, v{r}")
        else:
            a(f"v_and_b32 v{dst}, s4, v{r}")
    for i in range(4):
        half(4, 18, i)
        half(5, 12, 3*i+0)
        half(6, 12, 3*i+1)
        half(7, 12, 3*i+2)
        a(f"""
        v_mul_f32 v5, v4, v5
        v_mul_f32 v6, v4, v6
        v_mul_f32 v7, v4, v7
        v_cvt_pk_bf16_f32 v{32+4*i}, v4, v5
        v_cvt_pk_bf16_f32 v{32+4*i+1}, v6, v7
        """)
    a(f"""
    v_and_b32 v1, 63, v0
    v_lshlrev_b32 v1, 4, v1
    s_waitcnt lgkmcnt(0)
    s_barrier
    """)
    pstamp(a, 4)
    a(f"""
    ds_read_b128 v[4:7], v1
    s_waitcnt lgkmcnt(0)
    v_add_u32 v9, v4, v5
    v_add_u32 v10, v9, v6
    v_add_u32 v11, v10, v7
    v_mov_b32 v12, v11
    s_nop 1
    v_add_u32_dpp v12, v12, v12 row_shr:1 row_mask:0xf bank_mask:0xf bound_ctrl:0
    s_nop 1
    v_add_u32_dpp v12, v12, v12 row_shr:2 row_mask:0xf bank_mask:0xf bound_ctrl:0
    s_nop 1
    v_add_u32_dpp v12, v12, v12 row_shr:4 row_mask:0xf bank_mask:0xf bound_ctrl:0
    s_nop 1
    v_add_u32_dpp v12, v12, v12 row_shr:8 row_mask:0xf bank_mask:0xf bound_ctrl:0
    s_nop 1
    v_add_u32_dpp v12, v12, v12 row_bcast:15 row_mask:0xa bank_mask:0xf
    s_nop 1
    v_add_u32_dpp v12, v12, v12 row_bcast:31 row_mask:0xc bank_mask:0xf
    v_sub_u32 v12, v12, v11
    v_add_u32 v13, v12, v4
    v_add_u32 v14, v12, v9
    v_add_u32 v15, v12, v10
    ds_write_b128 v1, v[12:15] offset:2048
    s_lshl_b32 s3, s2, 10
    s_add_u32 s3, s3, {WS_OFF}
    v_add_u32 v2, s3, v1
    s_waitcnt lgkmcnt(0)
    """)
    for i in range(4):
        a(f"ds_read_b32 v{4+i}, v{24+i} offset:2048")
    a(f"""
    v_cmp_gt_u32 vcc, 64, v0
    s_and_saveexec_b64 s[6:7], vcc
    s_cbranch_execz P_nooff
    global_store_dwordx4 v2, v[12:15], s[22:23]
    """)
    a.label("P_nooff")
    a(f"""
    s_mov_b64 exec, s[6:7]
    s_mul_i32 s3, s2, {CH * RECB}
    s_waitcnt lgkmcnt(0)
    """)
    pstamp(a, 5)
    for i in range(4):
        a(f"""
        v_add_u32 v{4+i}, v{4+i}, v{28+i}
        v_mul_u32_u24 v{4+i}, {RECB}, v{4+i}
        v_add_u32 v{4+i}, s3, v{4+i}
        global_store_dwordx3 v{4+i}, {vr(32+4*i,3)}, s[22:23]
        """)
    pstamp(a, 6)
    pstamp_dump(a)
    a("s_endpgm")
    a.label("P_wprep")
    a(f"""
    v_lshrrev_b32 v1, 6, v0
    s_nop 0
    v_readfirstlane_b32 s4, v1
    s_sub_u32 s3, s2, {NCH}
    s_mul_i32 s3, s3, 5
    s_add_u32 s3, s3, s4
    s_mul_i32 s5, s3, 3277
    s_lshr_b32 s5, s5, 16
    s_mul_i32 s6, s5, 20
    s_sub_u32 s6, s3, s6
    v_and_b32 v1, 63, v0
    v_and_b32 v2, 15, v1
    v_lshrrev_b32 v3, 4, v1
    s_lshl_b32 s7, s6, 5
    v_lshl_add_u32 v4, v3, 3, s7
    v_lshlrev_b32 v5, 1, v4
    s_lshl_b32 s24, s5, 4
    v_add_u32 v2, s24, v2
    v_lshlrev_b32 v2, 1, v2
    v_lshl_add_u32 v6, v4, 8, v2
    s_waitcnt lgkmcnt(0)
    s_sub_u32 s26, s20, {256*256}
    s_subb_u32 s27, s21, 0
    s_cmp_lt_u32 s6, 8
    s_cselect_b32 s26, s18, s26
    s_cselect_b32 s27, s19, s27
    global_load_dwordx4 v[8:11], v5, s[16:17]
    """)
    for i in range(8):
        a(f"global_load_ushort v{12+i}, v6, s[26:27] offset:{256*i}")
    a(f"""
    s_mov_b32 s4, 0xffff0000
    s_lshl_b32 s3, s3, 10
    s_add_u32 s3, s3, {WS_WF}
    v_lshl_add_u32 v7, v1, 4, s3
    s_waitcnt vmcnt(0)
    """)
    for i in range(8):
        if i % 2 == 0:
            a(f"v_lshlrev_b32 v20, 16, v{8+i//2}")
        else:
            a(f"v_and_b32 v20, s4, v{8+i//2}")
        a(f"v_lshlrev_b32 v{12+i}, 16, v{12+i}")
        a(f"v_mul_f32 v{12+i}, v20, v{12+i}")
    for i in range(4):
        a(f"v_cvt_pk_bf16_f32 v{24+i}, v{12+2*i}, v{13+2*i}")
    a("global_store_dwordx4 v7, v[24:27], s[22:23]")
    pstamp_dump(a)
    a.label("P_done")
    a("s_endpgm")

V_N16 = 1; V_SH = 2; V_C = 3; V_CA = 4; V_ZA = 5; V_MA = 6; V_PB = 7
V_O0 = 8; V_O1 = 9; V_JB = 10; V_DONE = 11
V_T = 12
V_M = 16
V_A = [20, 24]
V_B = [28, 32]
V_AD = 36
V_ACC = 40
V_L = [72, 104]
S_G = 18; S_S = 19; S_S1 = 20; S_B1 = 21; S_S2 = 22; S_1024 = 23; S_PLO = 24; S_PHI = 25
S_SELR = 26; S_KEEP = 28; S_MORE = 29; S_CTAB = 30; S_T = 32
S_M = 40
S_ACT = 56; S_PEND = 58; S_TM = 60; S_M14 = 62; S_HI = 63

def comp011(i): return 2 + 3*i
def comp101(i): return 3 + 3*i
def comp111(i): return 4 + 3*i
FL = [
    [(0, 0, 0), (comp011(0), 0, 0), (comp011(1), 0, 0), (comp011(2), 0, 0)],
    [(comp101(0), 0, 0), (1, 0, 0), (comp111(2), 1, 0), (comp111(1), 0, 0)],
    [(comp101(1), 0, 0), (comp111(2), 0, 1), (1, 0, 1), (comp111(0), 1, 0)],
    [(comp101(2), 0, 0), (comp111(1), 1, 1), (comp111(0), 0, 1), (1, 0, 1)],
]
CTAB = 0; SGN = 0; KEEP = 0
for b in range(4):
    for r in range(4):
        c, s, k = FL[b][r]
        CTAB |= c << (16*b + 4*r)
        SGN |= s << (4*b + r)
        KEEP |= k << (4*b + r)

S_ST = 64
DBG = False
OPT = {}
PLANAR = False
def stamp(a, k, real=False):
    if DBG:
        a(f"s_mem{'realtime' if real else 'time'} {sr(S_ST+2*k)}")
def stamp_flush(a):
    if DBG:
        a(f"s_memtime {sr(S_T+6)}")
        a("s_waitcnt lgkmcnt(0)")
        for b in range(4):
            a(f"s_cmp_eq_u32 s{S_B1}, {256*(b+1)}")
            a(f"s_cselect_b32 s{S_ST+2*(3+b)}, s{S_T+6}, s{S_ST+2*(3+b)}")
            a(f"s_cselect_b32 s{S_ST+2*(3+b)+1}, s{S_T+7}, s{S_ST+2*(3+b)+1}")
def stamp_dump(a):
    if DBG:
        a("s_waitcnt lgkmcnt(0) vmcnt(0)")
        stamp(a, 9)
        stamp(a, 11, True)
        a(f"s_getreg_b32 s{S_ST+24}, hwreg(HW_REG_XCC_ID)")
        a(f"s_mov_b32 s{S_ST+25}, s{S_S}")
        a("s_waitcnt lgkmcnt(0)")
        a(f"s_mul_i32 s{S_T}, s2, 10")
        a(f"s_add_u32 s{S_T}, s{S_T}, s{S_G}")
        a(f"s_lshl_b32 s{S_T}, s{S_T}, 7")
        a(f"s_add_u32 s{S_T}, s{S_T}, 0x800000")
        a(f"v_mov_b32 v1, s{S_T}")
        for k in range(0, 32, 2):
            a(f"v_mov_b32 v2, s{S_ST+k}")
            a(f"v_mov_b32 v3, s{S_ST+k+1}")
            a(f"global_store_dwordx2 v1, v[2:3], s[12:13] offset:{4*k}")
            a("s_nop 1")

def stage_x(a, p):
    L = V_L[p]; A = V_A[p]
    if PLANAR:
        a(f"s_mul_i32 s3, s{S_B1}, 10000")
    for d in range(4):
        a(f"v_and_b32 v{V_T+d}, s{S_M14}, v{V_M+d}")
    for i in range(8):
        ad = V_AD + (i % 4)
        sel = " op_sel:[1,0,0,0]" if i % 2 else ""
        a(f"v_mad_u32_u16 v{ad}, v{V_T+i//2}, s{S_1024}, v{V_N16}{sel}")
        if not OPT.get("noload"):
            a(f"buffer_load_dwordx4 {vr(L+4*i,4)}, v{ad}, s[4:7], s{3 if PLANAR else S_B1} offen")
    a(f"""
    v_cndmask_b32 v{V_T}, v{V_M}, v{V_M+1}, {sr(S_SELR)}
    v_cndmask_b32 v{V_T+1}, v{V_M+2}, v{V_M+3}, {sr(S_SELR)}
    v_bfe_u32 v{V_T}, v{V_T}, v{V_SH}, 2
    v_bfe_u32 v{V_T+1}, v{V_T+1}, v{V_SH}, 2
    s_lshl_b32 s{S_T}, s{S_S1}, 8
    v_cmp_eq_u32 vcc, v{V_T}, v{V_C}
    v_cmp_eq_u32 {sr(S_TM)}, v{V_T+1}, v{V_C}
    v_add_u32 v{V_T+2}, s{S_T}, v{V_CA}
    s_add_u32 s{S_S2}, s{S_S1}, 1
    s_cmp_eq_u32 s{S_S2}, s{S_S}
    s_cselect_b32 s{S_S2}, 0, s{S_S2}
    v_cndmask_b32 v{V_T}, v{V_ZA}, v{V_T+2}, vcc
    v_cndmask_b32 v{V_T+1}, v{V_ZA}, v{V_T+2}, {sr(S_TM)}
    s_lshl_b32 s{S_T}, s{S_S2}, 6
    v_add_u32 v{V_T+3}, s{S_T}, v{V_MA}
    ds_read_b64_tr_b16 {vr(A,2)}, v{V_T}
    ds_read_b64_tr_b16 {vr(A+2,2)}, v{V_T+1} offset:32
    ds_read_b128 {vr(V_M,4)}, v{V_T+3}
    """)

def advance(a):
    a(f"""
    s_mov_b32 s{S_S1}, s{S_S2}
    s_cmp_eq_u32 s{S_S2}, 0
    s_cselect_b32 s{S_T}, 256, 0
    s_add_u32 s{S_B1}, s{S_B1}, s{S_T}
    """)

def compute(a, p):
    L = V_L[p]; A = V_A[p]
    def perms(j):
        B = V_B[j % 2]
        sel = S_PHI if j % 2 else S_PLO
        for q in range(4):
            if OPT.get("noperm"): continue
            a(f"v_perm_b32 v{B+q}, v{L+4*(2*q+1)+j//2}, v{L+4*(2*q)+j//2}, s{sel}")
    perms(0)
    for j in range(8):
        if j + 1 < 8:
            perms(j + 1)
        else:
            a("s_nop 1")
        if OPT.get("nomfma"): continue
        Bop = vr(L+4*j,4) if OPT.get("noperm") else vr(V_B[j%2],4)
        a(f"v_mfma_f32_16x16x32_bf16 {vr(V_ACC+4*j,4)}, {vr(A,4)}, {Bop}, {vr(V_ACC+4*j,4)}")

def flush(a, p):
    if OPT.get("noflush"): return
    L = V_L[p]
    a(f"""
    s_lshr_b32 s{S_T}, s{S_B1}, 8
    s_sub_u32 s{S_T}, s{S_T}, 1
    s_lshl_b32 s{S_T+1}, s{S_T}, 4
    s_lshr_b64 {sr(S_T+2)}, {sr(S_CTAB)}, s{S_T+1}
    s_lshl_b32 s{S_T+1}, s{S_T}, 2
    s_lshr_b32 s{S_T+4}, {hex(SGN)}, s{S_T+1}
    s_lshr_b32 s{S_T+5}, s{S_KEEP}, s{S_T+1}
    """)
    for r in range(4):
        a(f"""
        s_bfe_u32 s{S_T}, s{S_T+2}, {hex((4<<16) | (4*r))}
        s_lshl_b32 s{S_T}, s{S_T}, 8
        v_add_u32 v{L+16+r}, s{S_T}, v{V_PB}
        ds_read_b128 {vr(L+4*r,4)}, v{L+16+r}
        """)
    a("s_waitcnt lgkmcnt(0)")
    for r in range(4):
        a(f"""
        s_bitcmp1_b32 s{S_T+4}, {r}
        s_cselect_b32 s{S_T}, -1.0, 1.0
        s_bitcmp1_b32 s{S_T+5}, {r}
        s_cselect_b32 s{S_T+1}, -1, 0
        """)
        for d in range(4):
            a(f"""
            v_and_b32 v{L+4*r+d}, s{S_T+1}, v{L+4*r+d}
            v_lshlrev_b32 v{L+20+2*d}, 16, v{L+4*r+d}
            v_and_b32 v{L+21+2*d}, s{S_HI}, v{L+4*r+d}
            v_fma_f32 v{L+20+2*d}, v{V_ACC+4*(2*d)+r}, s{S_T}, v{L+20+2*d}
            v_fma_f32 v{L+21+2*d}, v{V_ACC+4*(2*d+1)+r}, s{S_T}, v{L+21+2*d}
            v_cvt_pk_bf16_f32 v{L+4*r+d}, v{L+20+2*d}, v{L+21+2*d}
            """)
        a(f"ds_write_b128 v{L+16+r}, {vr(L+4*r,4)}")
    for k in range(32):
        a(f"v_mov_b32 v{V_ACC+k}, 0")

def gen_main(a, opts):
    K = NAME + "_kernel"
    a.raw(".p2align 8")
    a.raw(f".globl {K}")
    a.raw(f".type {K},@function")
    a.label(K)
    a(f"""
    s_cmp_ge_u32 s2, {NB}
    s_cbranch_scc1 M_done
    """)
    stamp(a, 0)
    stamp(a, 10, True)
    a(f"""
    s_load_dwordx2 s[4:5], s[0:1], 0
    s_load_dwordx2 s[8:9], s[0:1], 72
    s_load_dwordx2 s[12:13], s[0:1], 88
    v_lshrrev_b32 v{V_T}, 6, v0
    v_mov_b32 v{V_O0}, 0
    v_readfirstlane_b32 s{S_G}, v{V_T}
    v_mov_b32 v{V_O1}, 0
    v_mov_b32 v{V_JB}, 0
    v_mov_b32 v{V_DONE}, 0
    s_mov_b32 s6, {N*1024}
    s_mov_b32 s7, 0x20000
    s_mov_b32 s10, {N*1024}
    s_mov_b32 s11, 0x20000
    v_lshrrev_b32 v{V_T}, 1, v0
    v_lshlrev_b32 v{V_T}, 10, v{V_T}
    s_lshl_b32 s3, s2, 2
    v_add_u32 v{V_T}, s3, v{V_T}
    v_cmp_gt_u32 vcc, {2*NCH}, v0
    s_waitcnt lgkmcnt(0)
    s_and_b32 s5, s5, 0xffff
    s_and_b32 s9, s9, 0xffff
    s_add_u32 s14, s12, {WS_OFF}
    s_addc_u32 s15, s13, 0
    s_add_u32 s16, s12, {WS_WF}
    s_addc_u32 s17, s13, 0
    s_and_saveexec_b64 {sr(S_TM)}, vcc
    s_cbranch_execz M_nooff
    global_load_dwordx2 {vr(V_O0,2)}, v{V_T}, s[14:15]
    """)
    a.label("M_nooff")
    a(f"""
    s_mov_b64 exec, {sr(S_TM)}
    s_movk_i32 s{S_1024}, {256 if PLANAR else 1024}
    s_mov_b32 s{S_PLO}, 0x05040100
    s_mov_b32 s{S_PHI}, 0x07060302
    s_mov_b32 s{S_M14}, 0x3fff3fff
    s_mov_b32 s{S_HI}, 0xffff0000
    s_mov_b32 s{S_KEEP}, {hex(KEEP)}
    s_mov_b32 s{S_CTAB}, {hex(CTAB & 0xffffffff)}
    s_mov_b32 s{S_CTAB+1}, {hex(CTAB >> 32)}
    s_mov_b32 s{S_SELR}, 0xff00ff00
    s_mov_b32 s{S_SELR+1}, 0xff00ff00
    v_and_b32 v{V_T}, 63, v0
    v_and_b32 v{V_T+1}, 15, v{V_T}
    v_lshrrev_b32 v{V_T+2}, 4, v{V_T}
    v_lshlrev_b32 v{V_N16}, 4, v{V_T+1}
    v_and_b32 v{V_C}, 3, v{V_T}
    v_bfe_u32 v{V_T+3}, v{V_T}, 2, 2
    v_and_b32 v{V_SH}, 1, v{V_T+3}
    v_lshlrev_b32 v{V_SH}, 4, v{V_SH}
    v_add_u32 v{V_SH}, 14, v{V_SH}
    s_mul_i32 s{S_T}, s{S_G}, {CAP*8}
    s_add_u32 s{S_T}, s{S_T}, {L_COEF}
    v_lshl_add_u32 v{V_CA}, v{V_T+2}, 3, v{V_T+3}
    v_lshl_add_u32 v{V_CA}, v{V_CA}, 3, s{S_T}
    v_mov_b32 v{V_ZA}, {L_ZERO}
    s_mul_i32 s{S_T}, s{S_G}, {CAP*2}
    s_add_u32 s{S_T}, s{S_T}, {L_META}
    v_lshl_add_u32 v{V_MA}, v{V_T+2}, 4, s{S_T}
    s_lshl_b32 s{S_T}, s{S_G}, 2
    v_add_u32 v{V_T+2}, s{S_T}, v{V_T+2}
    v_mul_u32_u24 v{V_PB}, {PSTR}, v{V_T+2}
    v_and_b32 v{V_T+2}, 15, v{V_T+2}
    v_xor_b32 v{V_T+2}, v{V_T+2}, v{V_T+1}
    v_lshl_add_u32 v{V_PB}, v{V_T+2}, 4, v{V_PB}
    """)
    a.label("M_init")
    L = V_L[0]
    a(f"""
    v_mov_b32 v{L}, 0
    v_mov_b32 v{L+1}, 0
    v_mov_b32 v{L+2}, 0
    v_mov_b32 v{L+3}, 0
    v_mov_b32 v{L+4}, -1
    v_mov_b32 v{L+5}, -1
    v_lshlrev_b32 v{V_T}, 4, v0
    v_add_u32 v{V_T}, {L_COEF}, v{V_T}
    ds_write_b128 v{V_T}, {vr(L,4)}
    ds_write_b128 v{V_T}, {vr(L,4)} offset:10240
    v_lshlrev_b32 v{V_T+1}, 3, v0
    v_add_u32 v{V_T+1}, {L_META}, v{V_T+1}
    ds_write_b64 v{V_T+1}, {vr(L+4,2)}
    v_lshlrev_b32 v{V_T+2}, 2, v0
    v_add_u32 v{V_T+2}, {L_CNT}, v{V_T+2}
    v_cmp_gt_u32 vcc, 32, v0
    s_and_saveexec_b64 {sr(S_TM)}, vcc
    ds_write_b32 v{V_T+2}, v{L}
    s_mov_b64 exec, {sr(S_TM)}
    s_mov_b64 {sr(S_ACT)}, -1
    s_waitcnt lgkmcnt(0)
    s_barrier
    s_waitcnt vmcnt(0)
    """)
    stamp(a, 1)
    a.label("M_window")
    a(f"""
    v_and_b32 v{V_T+2}, 1, v0
    v_add_u32 v{V_T+2}, v{V_T+2}, v{V_JB}
    v_add_u32 v{V_T+2}, v{V_T+2}, v{V_O0}
    v_sub_u32 v{V_T}, v{V_O1}, v{V_T+2}
    v_mul_u32_u24 v{V_T+2}, {RECB}, v{V_T+2}
    v_lshrrev_b32 v{V_T+1}, 1, v0
    v_mul_u32_u24 v{V_T+1}, {CH*RECB}, v{V_T+1}
    v_add_u32 v{V_T+1}, v{V_T+1}, v{V_T+2}
    """)
    for i in range(8):
        m = sr(S_M + 2*i)
        a(f"""
        v_cmp_lt_i32 {m}, {2*i}, v{V_T}
        v_and_b32 v{V_T+2}, {1<<i}, v{V_DONE}
        v_cmp_eq_u32 vcc, 0, v{V_T+2}
        s_and_b64 {m}, {m}, vcc
        s_and_b64 {m}, {m}, {sr(S_ACT)}
        """)
    for i in range(8):
        a(f"""
        s_mov_b64 exec, {sr(S_M+2*i)}
        global_load_dwordx3 {vr(L+4*i,3)}, v{V_T+1}, s[12:13] offset:{2*RECB*i}
        """)
    a(f"""
    s_mov_b64 exec, -1
    v_mov_b32 v{V_T+3}, 1
    s_mov_b32 s{S_T}, {L_CNT}
    s_waitcnt vmcnt(0)
    """)
    stamp(a, 13)
    L2 = V_L[1]
    for i in range(8):
        a(f"""
        s_mov_b64 exec, {sr(S_M+2*i)}
        v_lshrrev_b32 v{L2+i}, 16, v{L+4*i+2}
        v_lshl_add_u32 v{V_T+2}, v{L2+i}, 2, s{S_T}
        ds_add_rtn_u32 v{L+4*i+3}, v{V_T+2}, v{V_T+3}
        """)
    a(f"""
    s_mov_b64 {sr(S_PEND)}, 0
    s_mov_b32 s{S_T}, {L_COEF}
    s_mov_b32 s{S_T+1}, {L_META}
    s_movk_i32 s{S_T+2}, {CAP}
    s_waitcnt lgkmcnt(0)
    """)
    stamp(a, 14)
    for i in range(8):
        m = sr(S_M + 2*i)
        a(f"""
        s_mov_b64 exec, {m}
        v_cmp_gt_u32 vcc, s{S_T+2}, v{L+4*i+3}
        s_andn2_b64 {sr(S_TM)}, {m}, vcc
        s_or_b64 {sr(S_PEND)}, {sr(S_PEND)}, {sr(S_TM)}
        s_mov_b64 exec, vcc
        v_lshl_add_u32 v{L2+i}, v{L2+i}, 8, v{L+4*i+3}
        v_lshl_add_u32 v{L2+8+i}, v{L2+i}, 3, s{S_T}
        v_lshl_add_u32 v{L2+i}, v{L2+i}, 1, s{S_T+1}
        ds_write_b64 v{L2+8+i}, {vr(L+4*i,2)}
        ds_write_b16 v{L2+i}, v{L+4*i+2}
        v_or_b32 v{V_DONE}, {1<<i}, v{V_DONE}
        """)
    assert CAP == 256
    a(f"""
    s_mov_b64 exec, -1
    v_mov_b32 v{V_T+2}, {L_CNT+48}
    s_mov_b64 exec, {sr(S_PEND)}
    ds_write_b32 v{V_T+2}, v{V_T+3}
    s_andn2_b64 {sr(S_ACT)}, {sr(S_ACT)}, {sr(S_PEND)}
    s_mov_b64 exec, {sr(S_ACT)}
    v_add_u32 v{V_JB}, 16, v{V_JB}
    v_mov_b32 v{V_DONE}, 0
    v_cmp_lt_i32 vcc, 16, v{V_T}
    s_mov_b64 exec, -1
    s_cmp_lg_u64 vcc, 0
    s_cbranch_scc1 M_window
    s_lshl_b32 s{S_T}, s{S_G}, 2
    s_add_u32 s{S_T}, s{S_T}, {L_CNT}
    v_mov_b32 v{V_T}, s{S_T}
    s_waitcnt lgkmcnt(0)
    """)
    stamp(a, 15)
    a(f"""
    s_barrier
    ds_read_b32 v{V_T+1}, v{V_T}
    ds_read_b32 v{V_T+3}, v{V_T+2}
    ds_read_b128 {vr(V_M,4)}, v{V_MA}
    """)
    for k in range(32):
        a(f"v_mov_b32 v{V_ACC+k}, 0")
    a(f"""
    s_mov_b32 s{S_S1}, 0
    s_mov_b32 s{S_B1}, 0
    s_waitcnt lgkmcnt(0)
    v_readfirstlane_b32 s{S_S}, v{V_T+1}
    v_readfirstlane_b32 s{S_MORE}, v{V_T+3}
    s_min_u32 s{S_S}, s{S_S}, {CAP}
    s_add_u32 s{S_S}, s{S_S}, 31
    s_lshr_b32 s{S_S}, s{S_S}, 5
    s_max_u32 s{S_S}, s{S_S}, 1
    """)
    stamp(a, 2)
    stage_x(a, 0)
    advance(a)
    for p in range(2):
        a.label(f"M_it{p}")
        a(f"""
        s_waitcnt lgkmcnt(0)
        s_cmp_eq_u32 s{S_B1}, 1024
        s_cbranch_scc1 M_last{p}
        """)
        stage_x(a, p ^ 1)
        a(f"""
        s_waitcnt vmcnt(8)
        s_branch M_go{p}
        """)
        a.label(f"M_last{p}")
        a("s_waitcnt vmcnt(0)")
        a.label(f"M_go{p}")
        compute(a, p)
        a(f"""
        s_cmp_lg_u32 s{S_S1}, 0
        s_cbranch_scc1 M_nofl{p}
        """)
        flush(a, p)
        stamp_flush(a)
        a(f"""
        s_cmp_eq_u32 s{S_B1}, 1024
        s_cbranch_scc1 M_end
        """)
        if int(opts.get("pbar", 1)):
            a("s_barrier")
        a.label(f"M_nofl{p}")
        advance(a)
        if p == 1:
            a("s_branch M_it0")
    a.label("M_end")
    a(f"""
    s_cmp_eq_u32 s{S_MORE}, 0
    s_cbranch_scc1 M_gemm
    s_mov_b32 s{S_KEEP}, 0xffff
    s_waitcnt lgkmcnt(0)
    s_barrier
    s_branch M_init
    """)
    a.label("M_gemm")
    W = 56; ACC = [24, 40]; BB = 136; NBB = 6
    a(f"""
    s_cmp_ge_u32 s{S_G}, 8
    s_cbranch_scc0 M_gw
    s_waitcnt lgkmcnt(0)
    s_barrier
    """)
    stamp_dump(a)
    a("s_endpgm")
    a.label("M_gw")
    a(f"""
    v_and_b32 v10, 63, v0
    s_mul_i32 s{S_T}, s{S_G}, {20*1024}
    v_lshl_add_u32 v11, v10, 4, s{S_T}
    s_waitcnt lgkmcnt(0)
    """)
    for ks in range(20):
        if ks % 4 == 0 and ks:
            a("v_add_u32 v11, 4096, v11")
        a(f"global_load_dwordx4 {vr(W+4*ks,4)}, v11, s[16:17] offset:{1024*(ks%4)}")
    a(f"""
    v_and_b32 v12, 15, v10
    v_lshrrev_b32 v13, 4, v10
    v_mul_u32_u24 v14, {PSTR}, v12
    """)
    for k4 in range(4):
        a(f"""
        v_add_u32 v15, {4*k4}, v13
        v_xor_b32 v15, v15, v12
        v_lshl_add_u32 v{1+k4}, v15, 4, v14
        v_add_u32 v{5+k4}, {32*PSTR}, v{1+k4}
        """)
    a(f"""
    s_mul_i32 s{S_T}, s2, {NPB*1024}
    s_lshl_b32 s{S_T+1}, s{S_G}, 5
    s_add_u32 s{S_T}, s{S_T}, s{S_T+1}
    v_lshl_add_u32 v9, v12, 10, s{S_T}
    v_lshl_add_u32 v9, v13, 3, v9
    v_cmp_gt_u32 {sr(S_TM)}, 8, v12
    s_mov_b32 s{S_T+2}, 0xbfb8aa3b
    s_barrier
    """)
    stamp(a, 7)
    steps = []
    for t in range(3):
        for c in range(2):
            for k4 in range(4):
                steps.append((t, 0, c, k4, c*4 + k4, c == 0 and k4 == 0))
        for cc in range(3):
            for k4 in range(4):
                for i in range(3):
                    steps.append((t, 1+i, 2+3*i+cc, k4, 8 + cc*4 + k4, cc == 0 and k4 == 0))
    def rd(n):
        t, o, c, k4, ws, first = steps[n]
        base = (1 + k4) if t < 2 else (5 + k4)
        off = c*256 + (16*PSTR if t == 1 else 0)
        a(f"ds_read_b128 {vr(BB+4*(n%NBB),4)}, v{base} offset:{off}")
    def epilogue(t):
        A0 = ACC[t % 2]
        a("s_nop 7")
        for r in range(4):
            a(f"v_mul_f32 v{12+r}, s{S_T+2}, v{A0+r}")
        for r in range(4):
            a(f"v_exp_f32 v{12+r}, v{12+r}")
        a(f"v_cvt_pk_bf16_f32 v16, v{A0}, v{A0+1}")
        a(f"v_cvt_pk_bf16_f32 v17, v{A0+2}, v{A0+3}")
        for r in range(4):
            a(f"v_add_f32 v{12+r}, 1.0, v{12+r}")
        for r in range(4):
            a(f"v_rcp_f32 v{12+r}, v{12+r}")
        if t == 2:
            a(f"v_mov_b32 v10, 0x7ffff000")
            a(f"v_cndmask_b32 v9, v10, v9, {sr(S_TM)}")
        a(f"buffer_store_dwordx2 v[16:17], v9, s[8:11], 0 offen")
        for i in range(3):
            B0 = A0 + 4 + 4*i
            for r in range(4):
                a(f"v_mul_f32 v{B0+r}, v{B0+r}, v{12+r}")
            a(f"v_cvt_pk_bf16_f32 v{18+2*i}, v{B0}, v{B0+1}")
            a(f"v_cvt_pk_bf16_f32 v{19+2*i}, v{B0+2}, v{B0+3}")
            a(f"buffer_store_dwordx2 {vr(18+2*i,2)}, v9, s[8:11], 0 offen offset:{256*(i+1)}")
        if t < 2:
            a("v_add_u32 v9, 16384, v9")
    n_steps = len(steps)
    for n in range(NBB - 1):
        rd(n)
    wseen = -1
    for n in range(n_steps):
        t, o, c, k4, ws, first = steps[n]
        if n + NBB - 1 < n_steps:
            rd(n + NBB - 1)
            pend = NBB - 1
        else:
            pend = n_steps - 1 - n
        w = f"s_waitcnt lgkmcnt({pend})"
        if t == 0 and ws > wseen:
            w += f" vmcnt({19 - ws})"
            w = f"s_waitcnt vmcnt({19-ws}) lgkmcnt({pend})"
            wseen = ws
        a(w)
        acc = vr(ACC[t % 2] + 4*o, 4)
        a(f"v_mfma_f32_16x16x32_bf16 {acc}, {vr(W+4*ws,4)}, {vr(BB+4*(n%NBB),4)}, {'0' if first else acc}")
        if n + 1 == n_steps or steps[n+1][0] != t:
            epilogue(t)
    stamp(a, 8)
    stamp_dump(a)
    a.label("M_done")
    a("s_endpgm")

def kd(a, name, vg, sg):
    acc = (vg + 3) // 4 * 4
    a.raw(f""".p2align 6
.amdhsa_kernel {name}
  .amdhsa_next_free_vgpr {vg}
  .amdhsa_next_free_sgpr {sg}
  .amdhsa_accum_offset {acc}
  .amdhsa_group_segment_fixed_size 0
  .amdhsa_kernarg_size 96
  .amdhsa_user_sgpr_count 2
  .amdhsa_user_sgpr_kernarg_segment_ptr 1
  .amdhsa_system_sgpr_workgroup_id_x 1
  .amdhsa_float_denorm_mode_32 3
.end_amdhsa_kernel""")

def main():
    opts = dict(x.split("=") for x in sys.argv[2:])
    global DBG, PLANAR
    OPT.update(opts)
    PLANAR = bool(int(opts.get('planar', 0)))
    DBG = bool(int(opts.get("dbg", 0)))
    a = Asm()
    ref = open(f"cdna_kernels/{NAME}.s.ref").read().split("\n")
    for ln in ref:
        if ln.startswith(";") and "@launch" not in ln and "Override" not in ln and "grid=ceil" not in ln:
            a.raw(ln)
    a.raw(f"; @launch kernel=part_kernel grid=({NCH+NWPREP},1,1) block=(320,1,1) lds=4096")
    a.raw(f"; @launch kernel={NAME}_kernel grid=({NB},1,1) block=(640,1,1) lds={L_TOT}")
    a.raw('.amdgcn_target "amdgcn-amd-amdhsa--gfx950"')
    a.raw(".text")
    gen_part(a, opts)
    gen_main(a, opts)
    a.raw('.section .rodata,"a"')
    kd(a, "part_kernel", 48, 64 if DBG else 32)
    kd(a, NAME + "_kernel", 160, 96 if DBG else 64)
    open(sys.argv[1], "w").write(a.text())

main()
```

```python
import sys

NAME = "gather_scatter__tensor_product_equiv_equiformer__graph"
N = 10000
E = 320000
NB = 256
NCH = 250
CH = 1280
WS_REC = 0
WS_OFF = 0x500000
WS_WF = 0x580000
NWPREP = 32

NG = 12
NT = NG * 64
CAP = 224
PSTR = 2816
L_CC = 512
L_BASE = L_CC + NG * 64
L_ACNT = L_BASE + NG * 64
L_MORE = L_ACNT + 60
L_P = L_ACNT + 128
L_LIST = L_P + 40 * PSTR
L_TOT = L_LIST + NG * CAP * 16
assert L_TOT <= 163840 and L_P % 16 == 0
OOBOFF = 0x00FFFC00

OPT = {}
DBG = False

class Asm:
    def __init__(self):
        self.l = []
    def __call__(self, s):
        for x in s.split("\n"):
            x = x.strip()
            if x:
                self.l.append("    " + x)
    def label(self, s):
        self.l.append(s + ":")
    def raw(self, s):
        self.l.append(s)
    def text(self):
        return "\n".join(self.l) + "\n"

def vr(a, n):
    return f"v[{a}:{a+n-1}]"
def sr(a, n=2):
    return f"s[{a}:{a+n-1}]"

def pstamp(a, k, real=False):
    if DBG:
        a(f"s_mem{'realtime' if real else 'time'} {sr(32+2*k)}")
def pstamp_dump(a):
    if DBG:
        a("s_waitcnt lgkmcnt(0) vmcnt(0)")
        pstamp(a, 9)
        pstamp(a, 11, True)
        a("v_lshrrev_b32 v1, 6, v0")
        a("s_waitcnt lgkmcnt(0)")
        a("v_readfirstlane_b32 s4, v1")
        a(f"s_mul_i32 s3, s2, 5")
        a(f"s_add_u32 s3, s3, s4")
        a(f"s_lshl_b32 s3, s3, 7")
        a(f"s_add_u32 s3, s3, 0x900000")
        a(f"v_mov_b32 v1, s3")
        for k in range(0, 32, 2):
            a(f"v_mov_b32 v2, s{32+k}")
            a(f"v_mov_b32 v3, s{32+k+1}")
            a(f"global_store_dwordx2 v1, v[2:3], s[22:23] offset:{4*k}")
            a("s_nop 1")

def gen_part(a):
    a.raw(".p2align 8")
    a.raw(".globl part_kernel")
    a.raw(".type part_kernel,@function")
    a.label("part_kernel")
    a(f"""
    s_cmp_ge_u32 s2, {NCH + NWPREP}
    s_cbranch_scc1 P_done
    """)
    if DBG:
        for k in range(32, 64): a(f"s_mov_b32 s{k}, 0")
    pstamp(a, 0)
    pstamp(a, 10, True)
    a(f"""
    s_load_dwordx8 s[8:15], s[0:1], 8
    s_load_dwordx4 s[16:19], s[0:1], 40
    s_load_dwordx2 s[20:21], s[0:1], 56
    s_load_dwordx2 s[22:23], s[0:1], 88
    s_load_dwordx2 s[28:29], s[0:1], 0
    s_cmp_ge_u32 s2, {NCH}
    s_cbranch_scc1 P_wprep
    v_lshlrev_b32 v21, 2, v0
    s_mul_i32 s3, s2, {CH}
    v_add_u32 v1, s3, v21
    v_lshlrev_b32 v2, 2, v1
    v_mul_u32_u24 v3, 6, v1
    v_lshlrev_b32 v20, 1, v1
    v_mov_b32 v22, 0
    ds_write_b32 v21, v22
    v_mov_b32 v23, 1
    s_mov_b32 s5, 429497
    s_movk_i32 s6, 625
    s_waitcnt lgkmcnt(0)
    global_load_dwordx4 v[4:7], v2, s[14:15]
    global_load_dwordx4 v[8:11], v2, s[12:13]
    global_load_dwordx4 v[12:15], v3, s[8:9]
    global_load_dwordx2 v[16:17], v3, s[8:9] offset:16
    global_load_dwordx2 v[18:19], v20, s[10:11]
    """)
    PF = int(OPT.get("pf", 0))
    npf = 0
    if PF:
        a(f"""
        s_and_b32 s29, s29, 0xffff
        s_mov_b32 s30, {N*1024}
        s_mov_b32 s31, 0x20000
        """)
    if PF & 1:
        a(f"""
        s_lshr_b32 s24, s2, 3
        s_mul_i32 s24, s24, 320
        v_add_u32 v48, s24, v0
        v_lshlrev_b32 v48, 10, v48
        buffer_load_dword v49, v48, s[28:31], 0 offen
        buffer_load_dword v50, v48, s[28:31], 0 offen offset:128
        """)
        npf += 2
        if PF & 4:
            a("buffer_load_dword v51, v48, s[28:31], 0 offen offset:256")
            npf += 1
    if PF & 2:
        a(f"""
        s_mul_i32 s24, s2, 320
        v_add_u32 v52, s24, v0
        v_lshlrev_b32 v52, 7, v52
        buffer_load_dword v53, v52, s[28:31], 0 offen
        """)
        npf += 1
    pstamp(a, 1)
    a(f"""
    s_barrier
    s_waitcnt vmcnt({4+npf})
    """)
    pstamp(a, 2)
    for i in range(4):
        a(f"""
        v_mul_u32_u24 v{24+i}, s5, v{4+i}
        v_lshrrev_b32 v{24+i}, 24, v{24+i}
        v_mad_u32_u24 v1, v{24+i}, s6, 15
        v_lshlrev_b32 v{24+i}, 2, v{24+i}
        ds_add_rtn_u32 v{28+i}, v{24+i}, v23
        v_lshrrev_b32 v1, 4, v1
        v_sub_u32 v{4+i}, v{4+i}, v1
        v_mul_u32_u24 v1, 43, v{4+i}
        v_lshrrev_b32 v1, 9, v1
        v_mul_u32_u24 v2, 12, v1
        v_sub_u32 v{4+i}, v{4+i}, v2
        v_lshlrev_b32 v1, v1, v23
        v_lshl_or_b32 v{32+4*i+3}, v{4+i}, 10, v1
        """)
    a(f"s_waitcnt vmcnt({3+npf})")
    for i in range(4):
        a(f"""
        v_mul_u32_u24 v1, 1677, v{8+i}
        v_lshrrev_b32 v1, 20, v1
        v_lshl_or_b32 v{32+4*i+3}, v1, 6, v{32+4*i+3}
        v_lshlrev_b32 v{32+4*i+2}, 10, v{8+i}
        """)
    a(f"s_waitcnt vmcnt({npf})")
    pstamp(a, 3)
    a("s_mov_b32 s4, 0xffff0000")
    def half(dst, base, idx):
        r = base + idx // 2
        if idx % 2 == 0:
            a(f"v_lshlrev_b32 v{dst}, 16, v{r}")
        else:
            a(f"v_and_b32 v{dst}, s4, v{r}")
    for i in range(4):
        half(4, 18, i)
        half(5, 12, 3*i+0)
        half(6, 12, 3*i+1)
        half(7, 12, 3*i+2)
        a(f"""
        v_mul_f32 v5, v4, v5
        v_mul_f32 v6, v4, v6
        v_mul_f32 v7, v4, v7
        v_cvt_pk_bf16_f32 v{32+4*i}, v4, v5
        v_cvt_pk_bf16_f32 v{32+4*i+1}, v6, v7
        """)
    a(f"""
    v_and_b32 v1, 63, v0
    v_lshlrev_b32 v1, 4, v1
    s_waitcnt lgkmcnt(0)
    s_barrier
    """)
    pstamp(a, 4)
    a(f"""
    ds_read_b128 v[4:7], v1
    s_waitcnt lgkmcnt(0)
    v_add_u32 v9, v4, v5
    v_add_u32 v10, v9, v6
    v_add_u32 v11, v10, v7
    v_mov_b32 v12, v11
    s_nop 1
    v_add_u32_dpp v12, v12, v12 row_shr:1 row_mask:0xf bank_mask:0xf bound_ctrl:0
    s_nop 1
    v_add_u32_dpp v12, v12, v12 row_shr:2 row_mask:0xf bank_mask:0xf bound_ctrl:0
    s_nop 1
    v_add_u32_dpp v12, v12, v12 row_shr:4 row_mask:0xf bank_mask:0xf bound_ctrl:0
    s_nop 1
    v_add_u32_dpp v12, v12, v12 row_shr:8 row_mask:0xf bank_mask:0xf bound_ctrl:0
    s_nop 1
    v_add_u32_dpp v12, v12, v12 row_bcast:15 row_mask:0xa bank_mask:0xf
    s_nop 1
    v_add_u32_dpp v12, v12, v12 row_bcast:31 row_mask:0xc bank_mask:0xf
    v_sub_u32 v12, v12, v11
    v_add_u32 v13, v12, v4
    v_add_u32 v14, v12, v9
    v_add_u32 v15, v12, v10
    ds_write_b128 v1, v[12:15] offset:2048
    s_lshl_b32 s3, s2, 10
    s_add_u32 s3, s3, {WS_OFF}
    v_add_u32 v2, s3, v1
    v_lshl_or_b32 v16, v4, 16, v12
    v_lshl_or_b32 v17, v5, 16, v13
    v_lshl_or_b32 v18, v6, 16, v14
    v_lshl_or_b32 v19, v7, 16, v15
    s_waitcnt lgkmcnt(0)
    """)
    for i in range(4):
        a(f"ds_read_b32 v{4+i}, v{24+i} offset:2048")
    a(f"""
    v_cmp_gt_u32 vcc, 64, v0
    s_and_saveexec_b64 s[6:7], vcc
    s_cbranch_execz P_nooff
    global_store_dwordx4 v2, v[16:19], s[22:23]
    """)
    a.label("P_nooff")
    a(f"""
    s_mov_b64 exec, s[6:7]
    s_mul_i32 s3, s2, {CH * 16}
    s_waitcnt lgkmcnt(0)
    """)
    pstamp(a, 5)
    for i in range(4):
        a(f"""
        v_add_u32 v{4+i}, v{4+i}, v{28+i}
        v_lshl_add_u32 v{4+i}, v{4+i}, 4, s3
        global_store_dwordx4 v{4+i}, {vr(32+4*i,4)}, s[22:23]
        """)
    pstamp(a, 6)
    pstamp_dump(a)
    a("s_endpgm")
    a.label("P_wprep")
    a(f"""
    v_lshrrev_b32 v1, 6, v0
    s_nop 0
    v_readfirstlane_b32 s4, v1
    s_sub_u32 s3, s2, {NCH}
    s_mul_i32 s3, s3, 5
    s_add_u32 s3, s3, s4
    s_mul_i32 s5, s3, 3277
    s_lshr_b32 s5, s5, 16
    s_mul_i32 s6, s5, 20
    s_sub_u32 s6, s3, s6
    v_and_b32 v1, 63, v0
    v_and_b32 v2, 15, v1
    v_lshrrev_b32 v3, 4, v1
    s_lshl_b32 s7, s6, 5
    v_lshl_add_u32 v4, v3, 3, s7
    v_lshlrev_b32 v5, 1, v4
    s_lshl_b32 s24, s5, 4
    v_add_u32 v2, s24, v2
    v_lshlrev_b32 v2, 1, v2
    v_lshl_add_u32 v6, v4, 8, v2
    s_waitcnt lgkmcnt(0)
    s_sub_u32 s26, s20, {256*256}
    s_subb_u32 s27, s21, 0
    s_cmp_lt_u32 s6, 8
    s_cselect_b32 s26, s18, s26
    s_cselect_b32 s27, s19, s27
    global_load_dwordx4 v[8:11], v5, s[16:17]
    """)
    for i in range(8):
        a(f"global_load_ushort v{12+i}, v6, s[26:27] offset:{256*i}")
    a(f"""
    s_mov_b32 s4, 0xffff0000
    s_lshl_b32 s3, s3, 10
    s_add_u32 s3, s3, {WS_WF}
    v_lshl_add_u32 v7, v1, 4, s3
    s_waitcnt vmcnt(0)
    """)
    for i in range(8):
        if i % 2 == 0:
            a(f"v_lshlrev_b32 v20, 16, v{8+i//2}")
        else:
            a(f"v_and_b32 v20, s4, v{8+i//2}")
        a(f"v_lshlrev_b32 v{12+i}, 16, v{12+i}")
        a(f"v_mul_f32 v{12+i}, v20, v{12+i}")
    for i in range(4):
        a(f"v_cvt_pk_bf16_f32 v{24+i}, v{12+2*i}, v{13+2*i}")
    a("global_store_dwordx4 v7, v[24:27], s[22:23]")
    pstamp_dump(a)
    a.label("P_done")
    a("s_endpgm")

V_C = 1
V_N16 = 2
V_VS = 4
V_VC = 5
V_PB = 6
V_JB = 7
V_DONE = 8
V_OFF = 9
V_T = 12
V_OH = 16
V_CA = 18
V_SC = 20
V_IX = 24
V_A = [32, 36]
V_B = [40, 44]
V_ACC = 48
V_SV = 80
V_L = [104, 136]
NVG = 168
S_X = 4; S_OUT = 8; S_REC = 12; S_OFFS = 16; S_WF = 20
S_G = 22; S_S = 23; S_S1 = 24; S_B1 = 25; S_S2 = 26; S_PLO = 27; S_PHI = 28; S_NLAST = 29
S_RND = 30; S_MORE = 31; S_T = 32
S_M = 40
S_ACT = 52; S_PEND = 54; S_TM = 56; S_FEX = 58; S_RET = 60; S_HI = 62; S_FIRST = 63
S_ST = 64

def stamp(a, k, real=False):
    if DBG:
        a(f"s_mem{'realtime' if real else 'time'} {sr(S_ST+2*k)}")
def stamp_dump(a):
    if DBG:
        a("s_waitcnt lgkmcnt(0) vmcnt(0)")
        stamp(a, 9)
        stamp(a, 11, True)
        a(f"s_getreg_b32 s{S_ST+24}, hwreg(HW_REG_XCC_ID)")
        a(f"s_mov_b32 s{S_ST+25}, s{S_S}")
        a("s_waitcnt lgkmcnt(0)")
        a(f"s_mul_i32 s{S_T}, s2, {NG}")
        a(f"s_add_u32 s{S_T}, s{S_T}, s{S_G}")
        a(f"s_lshl_b32 s{S_T}, s{S_T}, 7")
        a(f"s_add_u32 s{S_T}, s{S_T}, {0x800000 - WS_WF}")
        a(f"v_mov_b32 v1, s{S_T}")
        for k in range(0, 32, 2):
            a(f"v_mov_b32 v2, s{S_ST+k}")
            a(f"v_mov_b32 v3, s{S_ST+k+1}")
            a(f"global_store_dwordx2 v1, v[2:3], {sr(S_WF)} offset:{4*k}")
            a("s_nop 1")

def comp011(i): return 2 + 3*i
def comp101(i): return 3 + 3*i
def comp111(i): return 4 + 3*i

def meta_reads(a):
    a(f"""
    s_lshl_b32 s{S_T}, s{S_S2}, 9
    v_add_u32 v{V_T}, s{S_T}, v{V_VS}
    v_add_u32 v{V_CA}, s{S_T}, v{V_VC}
    """)
    for i in range(0, 8, 2):
        a(f"ds_read2_b32 {vr(V_IX+i,2)}, v{V_T} offset0:{16*i+2} offset1:{16*(i+1)+2}")
    a(f"ds_read2_b32 {vr(V_OH,2)}, v{V_CA} offset0:3 offset1:67")

def stage_x(a, p, tag, wait=True):
    L = V_L[p]; A = V_A[p]
    for i in range(0, 8, 2):
        if OPT.get("nopk"):
            a(f"v_add_u32 v{V_IX+i}, v{V_IX+i}, v{V_N16}")
            a(f"v_add_u32 v{V_IX+i+1}, v{V_IX+i+1}, v{V_N16}")
        else:
            a(f"v_pk_add_f32 {vr(V_IX+i,2)}, {vr(V_IX+i,2)}, {vr(V_N16,2)}")
    a(f"""
    v_bfe_i32 v{V_OH}, v{V_OH}, v{V_C}, 1
    v_bfe_i32 v{V_OH+1}, v{V_OH+1}, v{V_C}, 1
    s_add_u32 s{S_S2}, s{S_S1}, 1
    v_and_b32 v{V_OH}, v{V_OH}, v{V_CA}
    v_and_b32 v{V_OH+1}, v{V_OH+1}, v{V_CA}
    s_cmp_eq_u32 s{S_S2}, s{S_S}
    ds_read_b64_tr_b16 {vr(A,2)}, v{V_OH}
    ds_read_b64_tr_b16 {vr(A+2,2)}, v{V_OH+1} offset:256
    s_cbranch_scc1 M_part{tag}
    """)
    def load(i):
        if not OPT.get("noload"):
            a(f"buffer_load_dwordx4 {vr(L+4*i,4)}, v{V_IX+i}, {sr(S_X,4)}, s{S_B1} offen {OPT.get('ldf','').replace('+',' ')}")
    a.label(f"M_full{tag}")
    for i in range(8):
        load(i)
    meta_reads(a)
    if wait: a("s_waitcnt vmcnt(8)")
    a(f"s_branch M_go{tag}")
    a.label(f"M_part{tag}")
    a(f"""
    s_mov_b32 s{S_S2}, 0
    s_cmp_eq_u32 s{S_NLAST}, 8
    s_cbranch_scc1 M_full{tag}
    """)
    for i in range(8):
        if i < 7:
            a(f"s_cmp_eq_u32 s{S_NLAST}, {i}")
            a(f"s_cbranch_scc1 M_w{tag}_{i}")
            load(i)
    for i in range(7, -1, -1):
        a.label(f"M_w{tag}_{i}")
        if wait:
            a(f"s_waitcnt vmcnt({i})")
            if i > 0: a(f"s_branch M_pm{tag}")
    a.label(f"M_pm{tag}")
    meta_reads(a)

def advance(a):
    a(f"""
    s_mov_b32 s{S_S1}, s{S_S2}
    s_cmp_eq_u32 s{S_S2}, 0
    s_cselect_b32 s{S_T}, 256, 0
    s_add_u32 s{S_B1}, s{S_B1}, s{S_T}
    """)

def compute(a, p, first):
    L = V_L[p]; A = V_A[p]
    def perms(j):
        B = V_B[j % 2]
        sel = S_PHI if j % 2 else S_PLO
        for q in range(4):
            if OPT.get("noperm"): continue
            a(f"v_perm_b32 v{B+q}, v{L+4*(2*q+1)+j//2}, v{L+4*(2*q)+j//2}, s{sel}")
    perms(0)
    for j in range(8):
        if j + 1 < 8:
            perms(j + 1)
        else:
            a("s_nop 1")
        if OPT.get("nomfma"): continue
        Bop = vr(L+4*j,4) if OPT.get("noperm") else vr(V_B[j%2],4)
        acc = vr(V_ACC+4*j,4)
        a(f"v_mfma_f32_16x16x32_bf16 {acc}, {vr(A,4)}, {Bop}, {'0' if first else acc}")

wc_n = [0]
def write_comp(a, comp, regs):
    n = wc_n[0]; wc_n[0] += 1
    a(f"""
    s_cmp_eq_u32 s{S_RND}, 0
    s_cbranch_scc1 M_wc{n}
    ds_read_b128 {vr(V_SC,4)}, v{V_PB} offset:{comp*256}
    s_waitcnt lgkmcnt(0)
    """)
    for d in range(4):
        a(f"""
        v_lshlrev_b32 v{V_T}, 16, v{V_SC+d}
        v_and_b32 v{V_T+1}, s{S_HI}, v{V_SC+d}
        v_add_f32 v{regs[2*d]}, v{regs[2*d]}, v{V_T}
        v_add_f32 v{regs[2*d+1]}, v{regs[2*d+1]}, v{V_T+1}
        """)
    a.label(f"M_wc{n}")
    sc = [V_SC, V_B[0], V_B[1]][n % 3]
    for d in range(4):
        a(f"v_cvt_pk_bf16_f32 v{sc+d}, v{regs[2*d]}, v{regs[2*d+1]}")
    a(f"ds_write_b128 v{V_PB}, {vr(sc,4)} offset:{comp*256}")

def flush_sub(a):
    acc = lambda r: [V_ACC + 4*j + r for j in range(8)]
    sv = lambda k: [V_SV + 8*k + j for j in range(8)]
    a.label("M_flush")
    a(f"""
    s_mov_b64 exec, {sr(S_FEX)}
    s_cmp_eq_u32 s{S_B1}, 512
    s_cbranch_scc1 M_fl1
    s_cmp_eq_u32 s{S_B1}, 768
    s_cbranch_scc1 M_fl2
    s_cmp_eq_u32 s{S_B1}, 1024
    s_cbranch_scc1 M_fl3
    s_nop 1
    """)
    def ret(prio, k):
        stamp(a, k)
        if prio is not None and not OPT.get("noprio"): a(f"s_setprio {prio}")
        if prio is not None and OPT.get("pbar"): a("s_barrier")
        a(f"s_mov_b64 exec, -1")
        a(f"s_setpc_b64 {sr(S_RET)}")
    write_comp(a, 0, acc(0))
    for i in range(3): write_comp(a, comp011(i), acc(1+i))
    ret(2, 3)
    a.label("M_fl1")
    a("s_nop 4")
    write_comp(a, comp101(0), acc(0))
    for k in range(3):
        for j in range(8): a(f"v_mov_b32 v{sv(k)[j]}, v{acc(1+k)[j]}")
    ret(1, 4)
    a.label("M_fl2")
    a("s_nop 2")
    write_comp(a, comp101(1), acc(0))
    for j in range(8): a(f"v_sub_f32 v{acc(1)[j]}, v{acc(1)[j]}, v{sv(1)[j]}")
    write_comp(a, comp111(2), acc(1))
    for j in range(8): a(f"v_add_f32 v{sv(0)[j]}, v{sv(0)[j]}, v{acc(2)[j]}")
    for j in range(8): a(f"v_mov_b32 v{sv(1)[j]}, v{acc(3)[j]}")
    ret(0, 5)
    a.label("M_fl3")
    write_comp(a, comp101(2), acc(0))
    for j in range(8): a(f"v_sub_f32 v{sv(2)[j]}, v{sv(2)[j]}, v{acc(1)[j]}")
    write_comp(a, comp111(1), sv(2))
    for j in range(8): a(f"v_sub_f32 v{acc(2)[j]}, v{acc(2)[j]}, v{sv(1)[j]}")
    write_comp(a, comp111(0), acc(2))
    for j in range(8): a(f"v_add_f32 v{sv(0)[j]}, v{sv(0)[j]}, v{acc(3)[j]}")
    write_comp(a, 1, sv(0))
    ret(None, 6)

def gen_main(a):
    K = NAME + "_kernel"
    a.raw(".p2align 8")
    a.raw(f".globl {K}")
    a.raw(f".type {K},@function")
    a.label(K)
    a(f"""
    s_cmp_ge_u32 s2, {NB}
    s_cbranch_scc1 M_done
    s_and_b32 s3, s2, 7
    s_lshr_b32 s2, s2, 3
    s_lshl_b32 s3, s3, 5
    s_or_b32 s2, s2, s3
    """)
    stamp(a, 0)
    stamp(a, 10, True)
    T = V_T
    a(f"""
    s_load_dwordx2 {sr(S_X)}, s[0:1], 0
    s_load_dwordx2 {sr(S_OUT)}, s[0:1], 72
    s_load_dwordx2 {sr(S_REC)}, s[0:1], 88
    v_lshrrev_b32 v{T}, 6, v0
    v_mov_b32 v{V_JB}, 0
    v_readfirstlane_b32 s{S_G}, v{T}
    v_mov_b32 v{V_DONE}, 0
    s_mov_b32 s{S_X+2}, {N*1024}
    s_mov_b32 s{S_X+3}, 0x20000
    s_mov_b32 s{S_OUT+2}, {N*1024}
    s_mov_b32 s{S_OUT+3}, 0x20000
    s_mov_b32 s{S_REC+2}, {NCH*CH*16}
    s_mov_b32 s{S_REC+3}, 0x20000
    s_mov_b32 s{S_OFFS+2}, {NCH*1024}
    s_mov_b32 s{S_OFFS+3}, 0x20000
    v_lshrrev_b32 v{T}, 3, v0
    v_lshlrev_b32 v{T}, 10, v{T}
    s_lshl_b32 s3, s2, 2
    v_add_u32 v{T}, s3, v{T}
    v_add_u32 v{T+1}, {96*1024}, v{T}
    v_add_u32 v{T+2}, {192*1024}, v{T}
    s_waitcnt lgkmcnt(0)
    s_add_u32 s{S_OFFS}, s{S_REC}, {WS_OFF}
    s_addc_u32 s{S_OFFS+1}, s{S_REC+1}, 0
    s_add_u32 s{S_WF}, s{S_REC}, {WS_WF}
    s_addc_u32 s{S_WF+1}, s{S_REC+1}, 0
    s_and_b32 s{S_OFFS+1}, s{S_OFFS+1}, 0xffff
    s_and_b32 s{S_REC+1}, s{S_REC+1}, 0xffff
    s_and_b32 s{S_X+1}, s{S_X+1}, 0xffff
    s_and_b32 s{S_OUT+1}, s{S_OUT+1}, 0xffff
    """)
    for r in range(3):
        a(f"buffer_load_dword v{V_OFF+r}, v{T+r}, {sr(S_OFFS,4)}, 0 offen")
    a(f"""
    s_mov_b32 s{S_PLO}, 0x05040100
    s_mov_b32 s{S_PHI}, 0x07060302
    s_mov_b32 s{S_HI}, 0xffff0000
    s_mov_b32 s{S_RND}, 0
    v_and_b32 v{T}, 63, v0
    v_and_b32 v{T+1}, 15, v{T}
    v_lshrrev_b32 v{T+2}, 4, v{T}
    v_lshlrev_b32 v{V_N16}, 4, v{T+1}
    v_lshlrev_b32 v{V_N16+1}, 4, v{T+1}
    v_and_b32 v{V_C}, 3, v{T}
    v_bfe_u32 v{T+3}, v{T}, 2, 2
    s_mul_i32 s{S_T}, s{S_G}, {CAP*16}
    s_add_u32 s{S_T}, s{S_T}, {L_LIST}
    v_lshl_add_u32 v{V_VS}, v{T+2}, 4, s{S_T}
    v_lshl_add_u32 v{V_VC}, v{T+3}, 6, v{V_VS}
    v_mul_u32_u24 v{T+2}, 12, v{T+2}
    v_add_u32 v{T+2}, s{S_G}, v{T+2}
    v_cmp_gt_u32 {sr(S_FEX)}, 40, v{T+2}
    v_mul_u32_u24 v{V_PB}, {PSTR}, v{T+2}
    v_and_b32 v{T+2}, 15, v{T+2}
    v_xor_b32 v{T+2}, v{T+2}, v{T+1}
    v_lshl_add_u32 v{V_PB}, v{T+2}, 4, v{V_PB}
    v_add_u32 v{V_PB}, {L_P}, v{V_PB}
    """)
    a.label("M_init")
    L = V_L[0]; L2 = V_L[1]
    a(f"""
    v_mov_b32 v{T+1}, 0
    v_lshlrev_b32 v{T}, 2, v0
    s_movk_i32 s{S_T}, {L_P//4}
    v_cmp_gt_u32 vcc, s{S_T}, v0
    s_and_saveexec_b64 {sr(S_TM)}, vcc
    ds_write_b32 v{T}, v{T+1}
    s_mov_b64 exec, {sr(S_TM)}
    s_mov_b64 {sr(S_ACT)}, -1
    s_waitcnt lgkmcnt(0)
    s_barrier
    s_waitcnt vmcnt(0)
    s_mov_b32 s{S_FIRST}, s{S_RND}
    """)
    stamp(a, 1)
    a.label("M_window")
    REM = L2; ADR = L2 + 3; CTR = L2 + 6; RNK = L2 + 12; BAS = L2 + 18; ONE = L2 + 24
    a(f"""
    v_and_b32 v{T}, 7, v0
    v_add_u32 v{T}, v{T}, v{V_JB}
    v_lshrrev_b32 v{T+1}, 3, v0
    v_mul_u32_u24 v{T+1}, {CH}, v{T+1}
    v_add_u32 v{T+1}, v{T+1}, v{T}
    v_mov_b32 v{ONE}, 1
    """)
    for r in range(3):
        a(f"""
        v_lshrrev_b32 v{REM+r}, 16, v{V_OFF+r}
        v_sub_u32 v{REM+r}, v{REM+r}, v{T}
        v_and_b32 v{ADR+r}, 0xffff, v{V_OFF+r}
        v_add_u32 v{ADR+r}, v{ADR+r}, v{T+1}
        v_lshlrev_b32 v{ADR+r}, 4, v{ADR+r}
        """)
        if r: a(f"v_add_u32 v{ADR+r}, {96*CH*16*r}, v{ADR+r}")
    for k in range(6):
        r = k % 3; h = k // 3
        m = sr(S_M + 2*k)
        a(f"""
        v_cmp_lt_i32 {m}, {8*h}, v{REM+r}
        v_and_b32 v{T+2}, {1<<k}, v{V_DONE}
        v_cmp_eq_u32 vcc, 0, v{T+2}
        s_and_b64 {m}, {m}, vcc
        s_and_b64 exec, {m}, {sr(S_ACT)}
        s_mov_b64 {m}, exec
        s_cbranch_execz M_sl{k}
        buffer_load_dwordx4 {vr(L+4*k,4)}, v{ADR+r}, {sr(S_REC,4)}, 0 offen offset:{128*h}
        """)
        a.label(f"M_sl{k}")
        a("s_mov_b64 exec, -1")
    a(f"""
    s_waitcnt vmcnt(0)
    """)
    stamp(a, 13)
    a(f"""
    s_cmp_lg_u32 s{S_FIRST}, 0
    s_cbranch_scc1 M_append
    """)
    for k in range(6):
        a(f"""
        s_mov_b64 exec, {sr(S_M+2*k)}
        s_cbranch_execz M_sa{k}
        v_lshrrev_b32 v{CTR+k}, 4, v{L+4*k+3}
        ds_add_rtn_u32 v{RNK+k}, v{CTR+k}, v{ONE} offset:{L_CC}
        """)
        a.label(f"M_sa{k}")
    SCN = V_ACC
    a(f"""
    s_mov_b64 exec, -1
    v_and_b32 v{T}, 63, v0
    v_lshlrev_b32 v{T}, 4, v{T}
    v_cmp_lt_u32 vcc, 0, v{V_C}
    v_cmp_lt_u32 {sr(S_TM)}, 1, v{V_C}
    s_waitcnt lgkmcnt(0)
    s_barrier
    """)
    stamp(a, 14)
    a(f"""
    ds_read_b128 {vr(SCN,4)}, v{T} offset:{L_CC}
    s_waitcnt lgkmcnt(0)
    v_add_u32 v{SCN+4}, v{SCN}, v{SCN+1}
    v_add_u32 v{SCN+5}, v{SCN+4}, v{SCN+2}
    v_add_u32 v{SCN+6}, v{SCN+5}, v{SCN+3}
    s_nop 1
    v_mov_b32_dpp v{SCN+7}, v{SCN+6} quad_perm:[0,0,1,2] row_mask:0xf bank_mask:0xf
    v_cndmask_b32 v{SCN+7}, 0, v{SCN+7}, vcc
    v_add_u32 v{SCN+7}, v{SCN+7}, v{SCN+6}
    s_nop 1
    v_mov_b32_dpp v{SCN+8}, v{SCN+7} quad_perm:[0,0,0,1] row_mask:0xf bank_mask:0xf
    v_cndmask_b32 v{SCN+8}, 0, v{SCN+8}, {sr(S_TM)}
    v_add_u32 v{SCN+8}, v{SCN+8}, v{SCN+7}
    v_sub_u32 v{SCN+8}, v{SCN+8}, v{SCN+6}
    v_add_u32 v{SCN+9}, v{SCN+8}, v{SCN}
    v_add_u32 v{SCN+10}, v{SCN+8}, v{SCN+4}
    v_add_u32 v{SCN+11}, v{SCN+8}, v{SCN+5}
    s_mov_b32 exec_hi, 0xffff
    ds_write_b128 v{T}, {vr(SCN+8,4)} offset:{L_BASE}
    """)
    for k in range(6):
        a(f"""
        s_mov_b64 exec, {sr(S_M+2*k)}
        s_cbranch_execz M_sb{k}
        ds_read_b32 v{BAS+k}, v{CTR+k} offset:{L_BASE}
        """)
        a.label(f"M_sb{k}")
    a("s_branch M_place")
    a.label("M_append")
    for k in range(6):
        a(f"""
        s_mov_b64 exec, {sr(S_M+2*k)}
        v_lshrrev_b32 v{T}, 10, v{L+4*k+3}
        v_lshlrev_b32 v{T+1}, 2, v{T}
        v_lshlrev_b32 v{T}, 6, v{T}
        ds_add_rtn_u32 v{RNK+k}, v{T+1}, v{ONE} offset:{L_ACNT}
        ds_read_b32 v{BAS+k}, v{T} offset:{L_BASE+60}
        ds_read_b32 v{CTR+k}, v{T} offset:{L_CC+60}
        s_waitcnt lgkmcnt(0)
        v_add_u32 v{BAS+k}, v{BAS+k}, v{CTR+k}
        """)
    a.label("M_place")
    a(f"""
    s_mov_b64 {sr(S_PEND)}, 0
    s_mov_b32 s{S_T}, {L_LIST}
    s_movk_i32 s{S_T+2}, {CAP}
    s_mov_b32 s{S_FIRST}, 1
    s_waitcnt lgkmcnt(0)
    """)
    for k in range(6):
        m = sr(S_M + 2*k)
        a(f"""
        s_mov_b64 exec, {m}
        s_cbranch_execz M_sp{k}
        v_add_u32 v{RNK+k}, v{RNK+k}, v{BAS+k}
        v_lshrrev_b32 v{T}, 10, v{L+4*k+3}
        v_cmp_gt_u32 vcc, s{S_T+2}, v{RNK+k}
        v_mad_u32_u24 v{T}, v{T}, s{S_T+2}, v{RNK+k}
        s_andn2_b64 {sr(S_TM)}, {m}, vcc
        s_or_b64 {sr(S_PEND)}, {sr(S_PEND)}, {sr(S_TM)}
        s_mov_b64 exec, vcc
        v_lshl_add_u32 v{CTR+k}, v{T}, 4, s{S_T}
        ds_write_b128 v{CTR+k}, {vr(L+4*k,4)}
        v_or_b32 v{V_DONE}, {1<<k}, v{V_DONE}
        """)
        a.label(f"M_sp{k}")
    a(f"""
    s_mov_b64 exec, -1
    v_mov_b32 v{T+2}, {L_MORE}
    v_max_i32 v{T}, v{REM}, v{REM+1}
    v_max_i32 v{T}, v{T}, v{REM+2}
    s_mov_b64 exec, {sr(S_PEND)}
    ds_write_b32 v{T+2}, v{ONE}
    s_andn2_b64 {sr(S_ACT)}, {sr(S_ACT)}, {sr(S_PEND)}
    s_mov_b64 exec, {sr(S_ACT)}
    v_add_u32 v{V_JB}, 16, v{V_JB}
    v_mov_b32 v{V_DONE}, 0
    v_cmp_lt_i32 vcc, 16, v{T}
    s_mov_b64 exec, -1
    s_cmp_lg_u64 vcc, 0
    s_cbranch_scc1 M_window
    s_lshl_b32 s{S_T}, s{S_G}, 6
    v_mov_b32 v{T}, s{S_T}
    s_lshl_b32 s{S_T}, s{S_G}, 2
    v_mov_b32 v{T+1}, s{S_T}
    s_waitcnt lgkmcnt(0)
    """)
    stamp(a, 15)
    a(f"""
    s_barrier
    ds_read_b32 v{V_A[0]}, v{T} offset:{L_BASE+60}
    ds_read_b32 v{V_A[0]+1}, v{T} offset:{L_CC+60}
    ds_read_b32 v{V_A[0]+2}, v{T+1} offset:{L_ACNT}
    ds_read_b32 v{V_A[0]+3}, v{T+2}
    v_and_b32 v{T}, 63, v0
    v_mov_b32 v{V_B[0]}, {OOBOFF}
    v_mov_b32 v{V_B[0]+1}, 0
    s_mov_b32 s{S_S1}, 0
    s_mov_b32 s{S_S2}, 0
    s_mov_b32 s{S_B1}, 0
    s_waitcnt lgkmcnt(0)
    v_add3_u32 v{T+1}, v{V_A[0]}, v{V_A[0]+1}, v{V_A[0]+2}
    v_readfirstlane_b32 s{S_MORE}, v{V_A[0]+3}
    v_readfirstlane_b32 s{S_T}, v{T+1}
    s_min_u32 s{S_T}, s{S_T}, {CAP}
    s_add_u32 s{S_S}, s{S_T}, 31
    s_lshr_b32 s{S_S}, s{S_S}, 5
    s_max_u32 s{S_S}, s{S_S}, 1
    s_lshl_b32 s{S_T+1}, s{S_S}, 5
    v_add_u32 v{T}, s{S_T}, v{T}
    v_cmp_gt_u32 vcc, s{S_T+1}, v{T}
    s_mul_i32 s{S_T+2}, s{S_G}, {CAP*16}
    s_add_u32 s{S_T+2}, s{S_T+2}, {L_LIST+8}
    v_lshl_add_u32 v{T}, v{T}, 4, s{S_T+2}
    s_mov_b64 exec, vcc
    ds_write_b64 v{T}, {vr(V_B[0],2)}
    s_mov_b64 exec, -1
    s_sub_u32 s{S_NLAST}, s{S_T}, s{S_T+1}
    s_add_u32 s{S_NLAST}, s{S_NLAST}, 35
    s_lshr_b32 s{S_NLAST}, s{S_NLAST}, 2
    """)
    meta_reads(a)
    a(f"""
    s_cmp_gt_u32 s{S_S}, 2
    s_cbranch_scc1 M_nozl
    """)
    for k in range(64):
        a(f"v_mov_b32 v{V_L[0]+k}, 0")
    a.label("M_nozl")
    stamp(a, 2)
    if not OPT.get("noprio"): a("s_setprio 3")
    a("s_waitcnt lgkmcnt(0)")
    stage_x(a, 0, "i", wait=False)
    a.label("M_goi")
    advance(a)
    a(f"s_mov_b32 s{S_FIRST}, 1")
    for p in range(2):
        a.label(f"M_it{p}")
        a(f"""
        s_waitcnt lgkmcnt(0)
        s_cmp_eq_u32 s{S_B1}, 1024
        s_cbranch_scc1 M_w{p}_0
        """)
        stage_x(a, p ^ 1, str(p))
        a.label(f"M_go{p}")
        a(f"""
        s_cmp_eq_u32 s{S_FIRST}, 0
        s_cbranch_scc1 M_cn{p}
        """)
        compute(a, p, True)
        a(f"s_branch M_cd{p}")
        a.label(f"M_cn{p}")
        compute(a, p, False)
        a.label(f"M_cd{p}")
        a(f"""
        s_mov_b32 s{S_FIRST}, 0
        s_cmp_lg_u32 s{S_S1}, 0
        s_cbranch_scc1 M_nofl{p}
        s_mov_b32 s{S_FIRST}, 1
        s_call_b64 {sr(S_RET)}, M_flush
        s_cmp_eq_u32 s{S_B1}, 1024
        s_cbranch_scc1 M_end
        """)
        a.label(f"M_nofl{p}")
        advance(a)
        if p == 1:
            a("s_branch M_it0")
    flush_sub(a)
    a.label("M_end")
    a(f"""
    s_cmp_eq_u32 s{S_MORE}, 0
    s_cbranch_scc1 M_gemm
    s_mov_b32 s{S_RND}, 1
    s_waitcnt lgkmcnt(0)
    s_barrier
    s_branch M_init
    """)
    a.label("M_gemm")
    W = 56; ACC = [24, 40]; BB = 136; NBB = 6
    a(f"""
    s_cmp_ge_u32 s{S_G}, 8
    s_cbranch_scc0 M_gw
    s_waitcnt lgkmcnt(0)
    s_barrier
    """)
    stamp_dump(a)
    a("s_endpgm")
    a.label("M_gw")
    a(f"""
    v_and_b32 v10, 63, v0
    s_mul_i32 s{S_T}, s{S_G}, {20*1024}
    v_lshl_add_u32 v11, v10, 4, s{S_T}
    s_waitcnt lgkmcnt(0)
    """)
    for ks in range(20):
        if ks % 4 == 0 and ks:
            a("v_add_u32 v11, 4096, v11")
        a(f"global_load_dwordx4 {vr(W+4*ks,4)}, v11, {sr(S_WF)} offset:{1024*(ks%4)}")
    a(f"""
    v_and_b32 v12, 15, v10
    v_lshrrev_b32 v13, 4, v10
    v_mul_u32_u24 v14, {PSTR}, v12
    v_add_u32 v14, {L_P}, v14
    """)
    for k4 in range(4):
        a(f"""
        v_add_u32 v15, {4*k4}, v13
        v_xor_b32 v15, v15, v12
        v_lshl_add_u32 v{1+k4}, v15, 4, v14
        v_add_u32 v{5+k4}, {32*PSTR}, v{1+k4}
        """)
    a(f"""
    s_mul_i32 s{S_T}, s2, 625
    s_add_u32 s{S_T+3}, s{S_T}, {625+15}
    s_add_u32 s{S_T}, s{S_T}, 15
    s_lshr_b32 s{S_T}, s{S_T}, 4
    s_lshr_b32 s{S_T+3}, s{S_T+3}, 4
    s_sub_u32 s{S_T+3}, s{S_T+3}, s{S_T}
    s_sub_u32 s{S_T+3}, s{S_T+3}, 32
    s_lshl_b32 s{S_T}, s{S_T}, 10
    s_lshl_b32 s{S_T+1}, s{S_G}, 5
    s_add_u32 s{S_T}, s{S_T}, s{S_T+1}
    v_lshl_add_u32 v9, v12, 10, s{S_T}
    v_lshl_add_u32 v9, v13, 3, v9
    v_cmp_gt_u32 {sr(S_TM)}, s{S_T+3}, v12
    s_mov_b32 s{S_T+2}, 0xbfb8aa3b
    s_barrier
    """)
    stamp(a, 7)
    steps = []
    for t in range(3):
        for c in range(2):
            for k4 in range(4):
                steps.append((t, 0, c, k4, c*4 + k4, c == 0 and k4 == 0))
        for cc in range(3):
            for k4 in range(4):
                for i in range(3):
                    steps.append((t, 1+i, 2+3*i+cc, k4, 8 + cc*4 + k4, cc == 0 and k4 == 0))
    def rd(n):
        t, o, c, k4, ws, first = steps[n]
        base = (1 + k4) if t < 2 else (5 + k4)
        off = c*256 + (16*PSTR if t == 1 else 0)
        a(f"ds_read_b128 {vr(BB+4*(n%NBB),4)}, v{base} offset:{off}")
    def epilogue(t):
        A0 = ACC[t % 2]
        a("s_nop 7")
        for r in range(4):
            a(f"v_mul_f32 v{12+r}, s{S_T+2}, v{A0+r}")
        for r in range(4):
            a(f"v_exp_f32 v{12+r}, v{12+r}")
        a(f"v_cvt_pk_bf16_f32 v16, v{A0}, v{A0+1}")
        a(f"v_cvt_pk_bf16_f32 v17, v{A0+2}, v{A0+3}")
        for r in range(4):
            a(f"v_add_f32 v{12+r}, 1.0, v{12+r}")
        for r in range(4):
            a(f"v_rcp_f32 v{12+r}, v{12+r}")
        if t == 2:
            a(f"v_mov_b32 v10, 0x7ffff000")
            a(f"v_cndmask_b32 v9, v10, v9, {sr(S_TM)}")
        a(f"buffer_store_dwordx2 v[16:17], v9, {sr(S_OUT,4)}, 0 offen")
        for i in range(3):
            B0 = A0 + 4 + 4*i
            for r in range(4):
                a(f"v_mul_f32 v{B0+r}, v{B0+r}, v{12+r}")
            a(f"v_cvt_pk_bf16_f32 v{18+2*i}, v{B0}, v{B0+1}")
            a(f"v_cvt_pk_bf16_f32 v{19+2*i}, v{B0+2}, v{B0+3}")
            a(f"buffer_store_dwordx2 {vr(18+2*i,2)}, v9, {sr(S_OUT,4)}, 0 offen offset:{256*(i+1)}")
        if t < 2:
            a("v_add_u32 v9, 16384, v9")
    n_steps = len(steps)
    for n in range(NBB - 1):
        rd(n)
    wseen = -1
    for n in range(n_steps):
        t, o, c, k4, ws, first = steps[n]
        if n + NBB - 1 < n_steps:
            rd(n + NBB - 1)
            pend = NBB - 1
        else:
            pend = n_steps - 1 - n
        w = f"s_waitcnt lgkmcnt({pend})"
        if t == 0 and ws > wseen:
            w = f"s_waitcnt vmcnt({19-ws}) lgkmcnt({pend})"
            wseen = ws
        a(w)
        acc = vr(ACC[t % 2] + 4*o, 4)
        a(f"v_mfma_f32_16x16x32_bf16 {acc}, {vr(W+4*ws,4)}, {vr(BB+4*(n%NBB),4)}, {'0' if first else acc}")
        if n + 1 == n_steps or steps[n+1][0] != t:
            epilogue(t)
    stamp(a, 8)
    stamp_dump(a)
    a.label("M_done")
    a("s_endpgm")

def kd(a, name, vg, sg):
    acc = (vg + 3) // 4 * 4
    a.raw(f""".p2align 6
.amdhsa_kernel {name}
  .amdhsa_next_free_vgpr {vg}
  .amdhsa_next_free_sgpr {sg}
  .amdhsa_accum_offset {acc}
  .amdhsa_group_segment_fixed_size 0
  .amdhsa_kernarg_size 96
  .amdhsa_user_sgpr_count 2
  .amdhsa_user_sgpr_kernarg_segment_ptr 1
  .amdhsa_system_sgpr_workgroup_id_x 1
  .amdhsa_float_denorm_mode_32 3
.end_amdhsa_kernel""")

def main():
    global DBG
    OPT.update(dict(x.split("=") for x in sys.argv[2:]))
    DBG = bool(int(OPT.get("dbg", 0)))
    a = Asm()
    ref = open(f"cdna_kernels/{NAME}.s.ref").read().split("\n")
    for ln in ref:
        if ln.startswith(";") and "@launch" not in ln and "Override" not in ln and "grid=ceil" not in ln:
            a.raw(ln)
    a.raw(f"; @launch kernel=part_kernel grid=({NCH+NWPREP},1,1) block=(320,1,1) lds=4096")
    a.raw(f"; @launch kernel={NAME}_kernel grid=({NB},1,1) block=({NT},1,1) lds={L_TOT}")
    a.raw('.amdgcn_target "amdgcn-amd-amdhsa--gfx950"')
    a.raw(".text")
    gen_part(a)
    gen_main(a)
    a.raw('.section .rodata,"a"')
    kd(a, "part_kernel", 56, 64 if DBG else 32)
    kd(a, NAME + "_kernel", NVG, 96 if DBG else 64)
    open(sys.argv[1], "w").write(a.text())

main()
```

```python
import sys

NAME = "gather_scatter__tensor_product_equiv_equiformer__graph"
N = 10000
E = 320000
NB = 256
NCH = 125
CH = 2560
WS_REC = 0
WS_OFF = 0x500000
WS_WF = 0x580000
WS_WFLAG = 0x5c0000
SPIN_MAX = 1 << 18
NWPREP = 32

NG = 12
NT = NG * 64
CAP = 224
PSTR = 2816
L_CC = 512
L_BASE = L_CC + NG * 64
L_ACNT = L_BASE + NG * 64
L_MORE = L_ACNT + 60
L_NONCE = L_ACNT + 64
L_P = L_ACNT + 128
L_LIST = L_P + 40 * PSTR
L_TOT = L_LIST + NG * CAP * 16
assert L_TOT <= 163840 and L_P % 16 == 0
OOBOFF = 0x00FFFC00

OPT = {}
DBG = False

class Asm:
    def __init__(self):
        self.l = []
    def __call__(self, s):
        for x in s.split("\n"):
            x = x.strip()
            if x:
                self.l.append("    " + x)
    def label(self, s):
        self.l.append(s + ":")
    def raw(self, s):
        self.l.append(s)
    def text(self):
        return "\n".join(self.l) + "\n"

def vr(a, n):
    return f"v[{a}:{a+n-1}]"
def sr(a, n=2):
    return f"s[{a}:{a+n-1}]"

V_C = 1
V_N16 = 2
V_VS = 4
V_VC = 5
V_PB = 6
V_JB = 7
V_DONE = 8
V_OFF = 9
V_T = 12
V_OH = 16
V_CA = 18
V_SC = 20
V_IX = 24
V_A = [32, 36]
V_B = [40, 44]
V_ACC = 48
V_SV = 80
V_L = [104, 136]
NVG = 168
S_X = 4; S_OUT = 8; S_REC = 12; S_OFFS = 16; S_WF = 20
S_G = 22; S_S = 23; S_S1 = 24; S_B1 = 25; S_S2 = 26; S_PLO = 27; S_PHI = 28; S_NLAST = 29
S_RND = 30; S_MORE = 31; S_T = 32
S_M = 40
S_ACT = 52; S_PEND = 54; S_TM = 56; S_FEX = 58; S_RET = 60; S_HI = 62; S_FIRST = 63
S_NON = 64; S_DBG = 66; S_WSB = 68; S_SPIN = 3
S_ST = 70

def stamp(a, k, real=False):
    if DBG:
        a(f"s_mem{'realtime' if real else 'time'} {sr(S_ST+2*k)}")
def stamp_dump(a):
    if DBG:
        a("s_waitcnt lgkmcnt(0) vmcnt(0)")
        stamp(a, 9)
        stamp(a, 11, True)
        a("s_waitcnt lgkmcnt(0)")
        a(f"s_mul_i32 s{S_T}, s2, {NG}")
        a(f"s_add_u32 s{S_T}, s{S_T}, s{S_G}")
        a(f"s_lshl_b32 s{S_T}, s{S_T}, 7")
        a(f"s_add_u32 s{S_T}, s{S_T}, {0x800000 - WS_WF}")
        a(f"v_mov_b32 v1, s{S_T}")
        for k in range(0, 32, 2):
            a(f"v_mov_b32 v2, s{S_ST+k}")
            a(f"v_mov_b32 v3, s{S_ST+k+1}")
            a(f"global_store_dwordx2 v1, v[2:3], {sr(S_WF)} offset:{4*k}")
            a("s_nop 1")

def comp011(i): return 2 + 3*i
def comp101(i): return 3 + 3*i
def comp111(i): return 4 + 3*i

def meta_reads(a):
    a(f"""
    s_lshl_b32 s{S_T}, s{S_S2}, 9
    v_add_u32 v{V_T}, s{S_T}, v{V_VS}
    v_add_u32 v{V_CA}, s{S_T}, v{V_VC}
    """)
    for i in range(0, 8, 2):
        a(f"ds_read2_b32 {vr(V_IX+i,2)}, v{V_T} offset0:{16*i+2} offset1:{16*(i+1)+2}")
    a(f"ds_read2_b32 {vr(V_OH,2)}, v{V_CA} offset0:3 offset1:67")

def stage_x(a, p, tag, wait=True):
    L = V_L[p]; A = V_A[p]
    for i in range(0, 8, 2):
        if OPT.get("nopk"):
            a(f"v_add_u32 v{V_IX+i}, v{V_IX+i}, v{V_N16}")
            a(f"v_add_u32 v{V_IX+i+1}, v{V_IX+i+1}, v{V_N16}")
        else:
            a(f"v_pk_add_f32 {vr(V_IX+i,2)}, {vr(V_IX+i,2)}, {vr(V_N16,2)}")
    a(f"""
    v_bfe_i32 v{V_OH}, v{V_OH}, v{V_C}, 1
    v_bfe_i32 v{V_OH+1}, v{V_OH+1}, v{V_C}, 1
    s_add_u32 s{S_S2}, s{S_S1}, 1
    v_and_b32 v{V_OH}, v{V_OH}, v{V_CA}
    v_and_b32 v{V_OH+1}, v{V_OH+1}, v{V_CA}
    s_cmp_eq_u32 s{S_S2}, s{S_S}
    ds_read_b64_tr_b16 {vr(A,2)}, v{V_OH}
    ds_read_b64_tr_b16 {vr(A+2,2)}, v{V_OH+1} offset:256
    s_cbranch_scc1 M_part{tag}
    """)
    def load(i):
        if not OPT.get("noload"):
            a(f"buffer_load_dwordx4 {vr(L+4*i,4)}, v{V_IX+i}, {sr(S_X,4)}, s{S_B1} offen {OPT.get('ldf','').replace('+',' ')}")
    a.label(f"M_full{tag}")
    for i in range(8):
        load(i)
    meta_reads(a)
    if wait: a("s_waitcnt vmcnt(8)")
    a(f"s_branch M_go{tag}")
    a.label(f"M_part{tag}")
    a(f"""
    s_mov_b32 s{S_S2}, 0
    s_cmp_eq_u32 s{S_NLAST}, 8
    s_cbranch_scc1 M_full{tag}
    """)
    for i in range(8):
        if i < 7:
            a(f"s_cmp_eq_u32 s{S_NLAST}, {i}")
            a(f"s_cbranch_scc1 M_w{tag}_{i}")
            load(i)
    for i in range(7, -1, -1):
        a.label(f"M_w{tag}_{i}")
        if wait:
            a(f"s_waitcnt vmcnt({i})")
            if i > 0: a(f"s_branch M_pm{tag}")
    a.label(f"M_pm{tag}")
    meta_reads(a)

def advance(a):
    a(f"""
    s_mov_b32 s{S_S1}, s{S_S2}
    s_cmp_eq_u32 s{S_S2}, 0
    s_cselect_b32 s{S_T}, 256, 0
    s_add_u32 s{S_B1}, s{S_B1}, s{S_T}
    """)

def compute(a, p, first):
    L = V_L[p]; A = V_A[p]
    def perms(j):
        B = V_B[j % 2]
        sel = S_PHI if j % 2 else S_PLO
        for q in range(4):
            if OPT.get("noperm"): continue
            a(f"v_perm_b32 v{B+q}, v{L+4*(2*q+1)+j//2}, v{L+4*(2*q)+j//2}, s{sel}")
    perms(0)
    for j in range(8):
        if j + 1 < 8:
            perms(j + 1)
        else:
            a("s_nop 1")
        if OPT.get("nomfma"): continue
        Bop = vr(L+4*j,4) if OPT.get("noperm") else vr(V_B[j%2],4)
        acc = vr(V_ACC+4*j,4)
        a(f"v_mfma_f32_16x16x32_bf16 {acc}, {vr(A,4)}, {Bop}, {'0' if first else acc}")

wc_n = [0]
def write_comp(a, comp, regs):
    n = wc_n[0]; wc_n[0] += 1
    a(f"""
    s_cmp_eq_u32 s{S_RND}, 0
    s_cbranch_scc1 M_wc{n}
    ds_read_b128 {vr(V_SC,4)}, v{V_PB} offset:{comp*256}
    s_waitcnt lgkmcnt(0)
    """)
    for d in range(4):
        a(f"""
        v_lshlrev_b32 v{V_T}, 16, v{V_SC+d}
        v_and_b32 v{V_T+1}, s{S_HI}, v{V_SC+d}
        v_add_f32 v{regs[2*d]}, v{regs[2*d]}, v{V_T}
        v_add_f32 v{regs[2*d+1]}, v{regs[2*d+1]}, v{V_T+1}
        """)
    a.label(f"M_wc{n}")
    sc = [V_SC, V_B[0], V_B[1]][n % 3]
    for d in range(4):
        a(f"v_cvt_pk_bf16_f32 v{sc+d}, v{regs[2*d]}, v{regs[2*d+1]}")
    a(f"ds_write_b128 v{V_PB}, {vr(sc,4)} offset:{comp*256}")

def flush_sub(a):
    acc = lambda r: [V_ACC + 4*j + r for j in range(8)]
    sv = lambda k: [V_SV + 8*k + j for j in range(8)]
    a.label("M_flush")
    a(f"""
    s_mov_b64 exec, {sr(S_FEX)}
    s_cmp_eq_u32 s{S_B1}, 512
    s_cbranch_scc1 M_fl1
    s_cmp_eq_u32 s{S_B1}, 768
    s_cbranch_scc1 M_fl2
    s_cmp_eq_u32 s{S_B1}, 1024
    s_cbranch_scc1 M_fl3
    s_nop 1
    """)
    def ret(prio, k):
        stamp(a, k)
        if prio is not None and not OPT.get("noprio"): a(f"s_setprio {prio}")
        if prio is not None and OPT.get("pbar"): a("s_barrier")
        a(f"s_mov_b64 exec, -1")
        a(f"s_setpc_b64 {sr(S_RET)}")
    write_comp(a, 0, acc(0))
    for i in range(3): write_comp(a, comp011(i), acc(1+i))
    ret(2, 3)
    a.label("M_fl1")
    a("s_nop 4")
    write_comp(a, comp101(0), acc(0))
    for k in range(3):
        for j in range(8): a(f"v_mov_b32 v{sv(k)[j]}, v{acc(1+k)[j]}")
    ret(1, 4)
    a.label("M_fl2")
    a("s_nop 2")
    write_comp(a, comp101(1), acc(0))
    for j in range(8): a(f"v_sub_f32 v{acc(1)[j]}, v{acc(1)[j]}, v{sv(1)[j]}")
    write_comp(a, comp111(2), acc(1))
    for j in range(8): a(f"v_add_f32 v{sv(0)[j]}, v{sv(0)[j]}, v{acc(2)[j]}")
    for j in range(8): a(f"v_mov_b32 v{sv(1)[j]}, v{acc(3)[j]}")
    ret(0, 5)
    a.label("M_fl3")
    write_comp(a, comp101(2), acc(0))
    for j in range(8): a(f"v_sub_f32 v{sv(2)[j]}, v{sv(2)[j]}, v{acc(1)[j]}")
    write_comp(a, comp111(1), sv(2))
    for j in range(8): a(f"v_sub_f32 v{acc(2)[j]}, v{acc(2)[j]}, v{sv(1)[j]}")
    write_comp(a, comp111(0), acc(2))
    for j in range(8): a(f"v_add_f32 v{sv(0)[j]}, v{sv(0)[j]}, v{acc(3)[j]}")
    write_comp(a, 1, sv(0))
    ret(None, 6)


S_IN = 40
def phase_a(a):
    RH = S_IN; EA = S_IN + 2; SRC = S_IN + 4; DST = S_IN + 6; WR = S_IN + 8; W0 = S_IN + 10; W1 = S_IN + 12
    H = L_P; BS = L_P + 4096; STG = L_P + 8192
    WSB = sr(S_WSB)
    def poll_nonce(tag):
        a(f"""
        v_mov_b32 v2, 0
        s_mov_b32 s{S_T}, {SPIN_MAX}
        """)
        a.label(f"A_pn{tag}")
        a(f"""
        global_load_dwordx2 v[4:5], v2, {sr(S_DBG)} sc1
        s_sub_u32 s{S_T}, s{S_T}, 1
        s_cmp_eq_u32 s{S_T}, 0
        s_cbranch_scc1 A_pd{tag}
        s_waitcnt vmcnt(0)
        v_readfirstlane_b32 s{S_T+1}, v4
        s_cmp_eq_u32 s{S_T+1}, 0
        s_cbranch_scc1 A_pn{tag}
        """)
        a.label(f"A_pd{tag}")
        a(f"""
        s_waitcnt vmcnt(0)
        v_mov_b32 v2, {L_NONCE}
        ds_write_b64 v2, v[4:5]
        """)
    def read_nonce():
        a(f"""
        v_mov_b32 v2, {L_NONCE}
        ds_read_b64 v[2:3], v2
        s_waitcnt lgkmcnt(0)
        v_readfirstlane_b32 s{S_NON}, v2
        v_readfirstlane_b32 s{S_NON+1}, v3
        """)
    a(f"""
    s_cmp_ge_u32 s3, {NCH}
    s_cbranch_scc1 A_touch
    s_cmp_ge_u32 s{S_G}, 10
    s_cbranch_scc1 A_wprep
    v_lshlrev_b32 v21, 2, v0
    s_mul_i32 s{S_T}, s3, {CH}
    v_add_u32 v1, s{S_T}, v21
    v_lshlrev_b32 v2, 2, v1
    v_mul_u32_u24 v3, 6, v1
    v_lshlrev_b32 v20, 1, v1
    global_load_dwordx4 v[4:7], v2, {sr(DST)} {OPT.get('inf','')}
    global_load_dwordx4 v[8:11], v2, {sr(SRC)} {OPT.get('inf','')}
    global_load_dwordx4 v[12:15], v3, {sr(RH)} {OPT.get('inf','')}
    global_load_dwordx2 v[16:17], v3, {sr(RH)} offset:16 {OPT.get('inf','')}
    global_load_dwordx2 v[18:19], v20, {sr(EA)} {OPT.get('inf','')}
    v_mov_b32 v22, 0
    ds_write_b32 v21, v22 offset:{H}
    v_mov_b32 v23, 1
    s_mov_b32 s{S_T+1}, 429497
    s_movk_i32 s{S_T+2}, 625
    s_waitcnt lgkmcnt(0)
    s_barrier
    s_waitcnt vmcnt(4)
    """)
    for i in range(4):
        a(f"""
        v_mul_u32_u24 v{24+i}, s{S_T+1}, v{4+i}
        v_lshrrev_b32 v{24+i}, 24, v{24+i}
        v_mad_u32_u24 v1, v{24+i}, s{S_T+2}, 15
        v_lshlrev_b32 v{24+i}, 2, v{24+i}
        ds_add_rtn_u32 v{28+i}, v{24+i}, v23 offset:{H}
        v_lshrrev_b32 v1, 4, v1
        v_sub_u32 v{4+i}, v{4+i}, v1
        v_mul_u32_u24 v1, 43, v{4+i}
        v_lshrrev_b32 v1, 9, v1
        v_mul_u32_u24 v2, 12, v1
        v_sub_u32 v{4+i}, v{4+i}, v2
        v_lshlrev_b32 v1, 14, v1
        v_lshl_or_b32 v{32+4*i+2}, v{4+i}, 20, v1
        """)
    a(f"s_waitcnt vmcnt(3)")
    for i in range(4):
        a(f"""
        v_mul_u32_u24 v1, 1677, v{8+i}
        v_lshrrev_b32 v1, 20, v1
        v_lshl_or_b32 v1, v1, 16, v{8+i}
        v_or_b32 v{32+4*i+2}, v1, v{32+4*i+2}
        """)
    a(f"s_waitcnt vmcnt(0)")
    stamp(a, 12)
    def half(dst, base, idx):
        r = base + idx // 2
        if idx % 2 == 0:
            a(f"v_lshlrev_b32 v{dst}, 16, v{r}")
        else:
            a(f"v_and_b32 v{dst}, s{S_HI}, v{r}")
    for i in range(4):
        half(4, 18, i)
        half(5, 12, 3*i+0)
        half(6, 12, 3*i+1)
        half(7, 12, 3*i+2)
        a(f"""
        v_mul_f32 v5, v4, v5
        v_mul_f32 v6, v4, v6
        v_mul_f32 v7, v4, v7
        v_cvt_pk_bf16_f32 v{32+4*i}, v4, v5
        v_cvt_pk_bf16_f32 v{32+4*i+1}, v6, v7
        """)
    a(f"""
    v_and_b32 v1, 63, v0
    v_lshlrev_b32 v1, 4, v1
    s_waitcnt lgkmcnt(0)
    s_barrier
    ds_read_b128 v[4:7], v1 offset:{H}
    """)
    read_nonce()
    a(f"""
    v_add_u32 v9, v4, v5
    v_add_u32 v10, v9, v6
    v_add_u32 v11, v10, v7
    v_mov_b32 v12, v11
    s_nop 1
    v_add_u32_dpp v12, v12, v12 row_shr:1 row_mask:0xf bank_mask:0xf bound_ctrl:0
    s_nop 1
    v_add_u32_dpp v12, v12, v12 row_shr:2 row_mask:0xf bank_mask:0xf bound_ctrl:0
    s_nop 1
    v_add_u32_dpp v12, v12, v12 row_shr:4 row_mask:0xf bank_mask:0xf bound_ctrl:0
    s_nop 1
    v_add_u32_dpp v12, v12, v12 row_shr:8 row_mask:0xf bank_mask:0xf bound_ctrl:0
    s_nop 1
    v_add_u32_dpp v12, v12, v12 row_bcast:15 row_mask:0xa bank_mask:0xf
    s_nop 1
    v_add_u32_dpp v12, v12, v12 row_bcast:31 row_mask:0xc bank_mask:0xf
    v_sub_u32 v12, v12, v11
    v_add_u32 v13, v12, v4
    v_add_u32 v14, v12, v9
    v_add_u32 v15, v12, v10
    ds_write_b128 v1, v[12:15] offset:{BS}
    s_cmp_lg_u32 s{S_G}, 0
    s_cbranch_scc1 A_nooff
    s_lshl_b32 s{S_T}, s3, 11
    s_add_u32 s{S_T}, s{S_T}, {WS_OFF}
    v_lshl_add_u32 v2, v1, 1, s{S_T}
    """)
    for i in range(4):
        a(f"""
        v_lshl_or_b32 v{48+2*i}, v{4+i}, 12, v{12+i}
        v_or_b32 v{48+2*i}, s{S_NON+1}, v{48+2*i}
        v_mov_b32 v{49+2*i}, s{S_NON}
        """)
    a(f"""
    global_store_dwordx4 v2, v[48:51], {WSB} sc1
    global_store_dwordx4 v2, v[52:55], {WSB} offset:16 sc1
    """)
    a.label("A_nooff")
    a("s_waitcnt lgkmcnt(0)")
    for i in range(4):
        a(f"ds_read_b32 v{4+i}, v{24+i} offset:{BS}")
    for i in range(4):
        a(f"""
        v_or_b32 v{32+4*i+2}, s{S_NON+1}, v{32+4*i+2}
        v_mov_b32 v{32+4*i+3}, s{S_NON}
        """)
    a(f"""
    s_mul_i32 s{S_T}, s3, {CH * 16}
    v_lshlrev_b32 v20, 4, v0
    v_add_u32 v21, s{S_T}, v20
    s_waitcnt lgkmcnt(0)
    """)
    for i in range(4):
        a(f"""
        v_add_lshl_u32 v{4+i}, v{4+i}, v{28+i}, 4
        ds_write_b128 v{4+i}, {vr(32+4*i,4)} offset:{STG}
        """)
    a("""
    s_waitcnt lgkmcnt(0)
    s_barrier
    """)
    for i in range(4):
        a(f"ds_read_b128 {vr(32+4*i,4)}, v20 offset:{STG+10240*i}")
    for i in range(4):
        a(f"""
        s_waitcnt lgkmcnt({3-i})
        global_store_dwordx4 v21, {vr(32+4*i,4)}, {WSB} sc1 {OPT.get('rs','')}
        """)
        if i < 3: a("v_add_u32 v21, 10240, v21")
    a("s_branch A_end")
    a.label("A_wprep")
    F = S_T + 2
    a(f"""
    s_lshl_b32 s{F}, s3, 1
    s_add_u32 s{F}, s{F}, s{S_G}
    s_sub_u32 s{F}, s{F}, 10
    s_cmp_ge_u32 s{F}, 160
    s_cbranch_scc1 A_wp1
    s_mul_i32 s{S_T+3}, s{F}, 3277
    s_lshr_b32 s{S_T+3}, s{S_T+3}, 16
    s_mul_i32 s{S_T+4}, s{S_T+3}, 20
    s_sub_u32 s{S_T+4}, s{F}, s{S_T+4}
    v_and_b32 v1, 63, v0
    v_and_b32 v2, 15, v1
    v_lshrrev_b32 v3, 4, v1
    s_lshl_b32 s{S_T+5}, s{S_T+4}, 5
    v_lshl_add_u32 v4, v3, 3, s{S_T+5}
    v_lshlrev_b32 v5, 1, v4
    s_lshl_b32 s{S_T+5}, s{S_T+3}, 4
    v_add_u32 v2, s{S_T+5}, v2
    v_lshlrev_b32 v2, 1, v2
    v_lshl_add_u32 v6, v4, 8, v2
    s_sub_u32 s{S_T+6}, s{W1}, {256*256}
    s_subb_u32 s{S_T+7}, s{W1+1}, 0
    s_cmp_lt_u32 s{S_T+4}, 8
    s_cselect_b32 s{S_T+6}, s{W0}, s{S_T+6}
    s_cselect_b32 s{S_T+7}, s{W0+1}, s{S_T+7}
    global_load_dwordx4 v[8:11], v5, {sr(WR)}
    """)
    for i in range(8):
        a(f"global_load_ushort v{12+i}, v6, {sr(S_T+6)} offset:{256*i}")
    a.label("A_wp1")
    a(f"""
    s_waitcnt lgkmcnt(0)
    s_barrier
    s_cmp_lg_u32 s{S_G}, 11
    s_cbranch_scc1 A_wp2
    """)
    poll_nonce("w")
    a.label("A_wp2")
    a(f"""
    s_cmp_ge_u32 s{F}, 160
    s_cbranch_scc1 A_wp3
    s_lshl_b32 s{S_T+3}, s{F}, 10
    s_add_u32 s{S_T+3}, s{S_T+3}, {WS_WF}
    v_lshl_add_u32 v7, v1, 4, s{S_T+3}
    s_waitcnt vmcnt(0)
    """)
    for i in range(8):
        if i % 2 == 0:
            a(f"v_lshlrev_b32 v20, 16, v{8+i//2}")
        else:
            a(f"v_and_b32 v20, s{S_HI}, v{8+i//2}")
        a(f"v_lshlrev_b32 v{12+i}, 16, v{12+i}")
        a(f"v_mul_f32 v{12+i}, v20, v{12+i}")
    for i in range(4):
        a(f"v_cvt_pk_bf16_f32 v{24+i}, v{12+2*i}, v{13+2*i}")
    a(f"global_store_dwordx4 v7, v[24:27], {WSB} sc1")
    a.label("A_wp3")
    a(f"""
    s_waitcnt lgkmcnt(0)
    s_barrier
    """)
    read_nonce()
    a(f"""
    s_barrier
    s_cmp_ge_u32 s{F}, 160
    s_cbranch_scc1 A_end
    s_lshl_b32 s{S_T+3}, s{F}, 3
    s_add_u32 s{S_T+3}, s{S_T+3}, {WS_WFLAG}
    v_mov_b32 v7, s{S_T+3}
    v_mov_b32 v4, s{S_NON+1}
    v_mov_b32 v5, s{S_NON}
    s_waitcnt vmcnt(0)
    s_mov_b64 exec, 1
    global_store_dwordx2 v7, v[4:5], {WSB} sc1
    s_mov_b64 exec, -1
    s_branch A_end
    """)
    a.label("A_touch")
    a(f"""
    s_waitcnt lgkmcnt(0)
    s_barrier
    s_cmp_lg_u32 s{S_G}, 0
    s_cbranch_scc1 A_t1
    """)
    poll_nonce("t")
    a.label("A_t1")
    a(f"""
    s_sub_u32 s{S_T}, s3, {NCH}
    s_mul_i32 s{S_T}, s{S_T}, 611
    v_add_u32 v6, s{S_T}, v0
    v_lshlrev_b32 v6, 7, v6
    s_movk_i32 s{S_T+1}, 611
    v_mov_b32 v8, 0x7fff0000
    v_cmp_gt_u32 vcc, s{S_T+1}, v0
    s_waitcnt lgkmcnt(0)
    s_barrier
    v_cndmask_b32 v6, v8, v6, vcc
    """)
    if int(OPT.get("pf", 1)):
        a(f"buffer_load_dword v{V_SV}, v6, {sr(S_X,4)}, 0 offen")
    read_nonce()
    a.label("A_end")

def gen_main(a):
    K = NAME + "_kernel"
    a.raw(".p2align 8")
    a.raw(f".globl {K}")
    a.raw(f".type {K},@function")
    a.label(K)
    a(f"""
    s_cmp_ge_u32 s2, {NB}
    s_cbranch_scc1 M_done
    """)
    if DBG:
        for k in range(S_ST, S_ST+32): a(f"s_mov_b32 s{k}, 0")
    stamp(a, 0)
    stamp(a, 10, True)
    T = V_T
    a(f"""
    s_load_dwordx8 s[{S_IN}:{S_IN+7}], s[0:1], 8
    s_load_dwordx4 s[{S_IN+8}:{S_IN+11}], s[0:1], 40
    s_load_dwordx2 {sr(S_IN+12)}, s[0:1], 56
    s_load_dwordx2 {sr(S_X)}, s[0:1], 0
    s_load_dwordx2 {sr(S_OUT)}, s[0:1], 72
    s_load_dwordx2 {sr(S_DBG)}, s[0:1], 80
    s_load_dwordx2 {sr(S_WSB)}, s[0:1], 88
    s_memrealtime {sr(S_NON)}
    s_mov_b32 s3, s2
    s_and_b32 s{S_T}, s2, 7
    s_lshr_b32 s2, s2, 3
    s_lshl_b32 s{S_T}, s{S_T}, 5
    s_or_b32 s2, s2, s{S_T}
    v_lshrrev_b32 v1, 6, v0
    v_mov_b32 v3, 0
    v_readfirstlane_b32 s{S_G}, v1
    v_lshlrev_b32 v2, 2, v0
    s_movk_i32 s{S_T}, {L_P//4}
    v_cmp_gt_u32 vcc, s{S_T}, v0
    s_and_saveexec_b64 {sr(S_TM)}, vcc
    ds_write_b32 v2, v3
    s_mov_b64 exec, {sr(S_TM)}
    s_mov_b32 s{S_X+2}, {N*1024}
    s_mov_b32 s{S_X+3}, 0x20000
    s_mov_b32 s{S_OUT+2}, {N*1024}
    s_mov_b32 s{S_OUT+3}, 0x20000
    s_mov_b32 s{S_REC+2}, {NCH*CH*16}
    s_mov_b32 s{S_REC+3}, 0x20000
    s_mov_b32 s{S_OFFS+2}, {NCH*2048}
    s_mov_b32 s{S_OFFS+3}, 0x20000
    s_mov_b32 s{S_HI}, 0xffff0000
    s_or_b32 s{S_T}, s3, s{S_G}
    s_xor_b32 s{S_T}, s{S_T}, 11
    s_waitcnt lgkmcnt(0)
    s_cmp_lg_u32 s3, 0
    s_cbranch_scc1 M_nonon
    s_cmp_lg_u32 s{S_G}, 11
    s_cbranch_scc1 M_nonon
    s_lshl_b32 s{S_NON+1}, s{S_NON+1}, 24
    s_or_b32 s{S_NON}, s{S_NON}, 1
    v_mov_b32 v4, s{S_NON}
    v_mov_b32 v5, s{S_NON+1}
    s_mov_b64 exec, 1
    global_store_dwordx2 v3, v[4:5], {sr(S_DBG)} sc1
    s_mov_b64 exec, -1
    """)
    a.label("M_nonon")
    a(f"""
    s_mov_b32 s{S_REC}, s{S_WSB}
    s_and_b32 s{S_REC+1}, s{S_WSB+1}, 0xffff
    s_add_u32 s{S_OFFS}, s{S_WSB}, {WS_OFF}
    s_addc_u32 s{S_OFFS+1}, s{S_WSB+1}, 0
    s_add_u32 s{S_WF}, s{S_WSB}, {WS_WF}
    s_addc_u32 s{S_WF+1}, s{S_WSB+1}, 0
    s_and_b32 s{S_OFFS+1}, s{S_OFFS+1}, 0xffff
    s_and_b32 s{S_X+1}, s{S_X+1}, 0xffff
    s_and_b32 s{S_OUT+1}, s{S_OUT+1}, 0xffff
    """)
    phase_a(a)
    stamp(a, 14)
    PO = V_ACC
    a(f"""
    v_lshrrev_b32 v{T}, 4, v0
    v_lshlrev_b32 v{PO+6}, 11, v{T}
    s_lshl_b32 s{S_T}, s2, 3
    v_add_u32 v{PO+6}, s{S_T}, v{PO+6}
    v_add_u32 v{PO+7}, {48*2048}, v{PO+6}
    v_add_u32 v{PO+8}, {96*2048}, v{PO+6}
    v_cmp_le_u32 {sr(S_PEND)}, {NCH-96}, v{T}
    s_mov_b32 s{S_SPIN}, {SPIN_MAX}
    """)
    for r in range(3):
        a(f"buffer_load_dwordx2 {vr(PO+2*r,2)}, v{PO+6+r}, {sr(S_OFFS,4)}, 0 offen sc1")
    a(f"""
    v_mov_b32 v{V_JB}, 0
    v_mov_b32 v{V_DONE}, 0
    """)
    a(f"""
    s_mov_b32 s{S_PLO}, 0x05040100
    s_mov_b32 s{S_PHI}, 0x07060302
    s_mov_b32 s{S_RND}, 0
    v_and_b32 v{T}, 63, v0
    v_and_b32 v{T+1}, 15, v{T}
    v_lshrrev_b32 v{T+2}, 4, v{T}
    v_lshlrev_b32 v{V_N16}, 4, v{T+1}
    v_lshlrev_b32 v{V_N16+1}, 4, v{T+1}
    v_and_b32 v{V_C}, 3, v{T}
    v_bfe_u32 v{T+3}, v{T}, 2, 2
    s_mul_i32 s{S_T}, s{S_G}, {CAP*16}
    s_add_u32 s{S_T}, s{S_T}, {L_LIST}
    v_lshl_add_u32 v{V_VS}, v{T+2}, 4, s{S_T}
    v_lshl_add_u32 v{V_VC}, v{T+3}, 6, v{V_VS}
    v_mul_u32_u24 v{T+2}, 12, v{T+2}
    v_add_u32 v{T+2}, s{S_G}, v{T+2}
    v_cmp_gt_u32 {sr(S_FEX)}, 40, v{T+2}
    v_mul_u32_u24 v{V_PB}, {PSTR}, v{T+2}
    v_and_b32 v{T+2}, 15, v{T+2}
    v_xor_b32 v{T+2}, v{T+2}, v{T+1}
    v_lshl_add_u32 v{V_PB}, v{T+2}, 4, v{V_PB}
    v_add_u32 v{V_PB}, {L_P}, v{V_PB}
    """)
    L = V_L[0]; L2 = V_L[1]
    a.label("M_poll")
    a(f"""
    s_waitcnt vmcnt(0)
    s_mov_b32 s{S_T}, 0xff000000
    """)
    for r in range(3):
        a(f"""
        v_and_b32 v{T}, s{S_T}, v{PO+2*r}
        v_cmp_eq_u32 {sr(S_M+2*r)}, s{S_NON+1}, v{T}
        v_cmp_eq_u32 vcc, s{S_NON}, v{PO+2*r+1}
        s_and_b64 {sr(S_M+2*r)}, {sr(S_M+2*r)}, vcc
        """)
    a(f"""
    s_or_b64 {sr(S_M+4)}, {sr(S_M+4)}, {sr(S_PEND)}
    s_and_b64 {sr(S_M)}, {sr(S_M)}, {sr(S_M+2)}
    s_and_b64 {sr(S_M)}, {sr(S_M)}, {sr(S_M+4)}
    s_cmp_eq_u64 {sr(S_M)}, -1
    s_cbranch_scc1 M_polled
    s_sub_u32 s{S_SPIN}, s{S_SPIN}, 1
    s_cmp_eq_u32 s{S_SPIN}, 0
    s_cbranch_scc1 M_polled
    """)
    for r in range(3):
        a(f"buffer_load_dwordx2 {vr(PO+2*r,2)}, v{PO+6+r}, {sr(S_OFFS,4)}, 0 offen sc1")
    a("s_branch M_poll")
    a.label("M_polled")
    for r in range(3):
        a(f"v_and_b32 v{V_OFF+r}, 0xffffff, v{PO+2*r}")
    a(f"""
    s_mov_b64 {sr(S_ACT)}, -1
    s_mov_b32 s{S_FIRST}, 0
    s_min_u32 s{S_T}, s{S_G}, 7
    s_mul_i32 s{S_T}, s{S_T}, 160
    s_add_u32 s{S_T}, s{S_T}, {WS_WFLAG}
    v_and_b32 v{V_SV+4}, 63, v0
    v_min_u32 v{V_SV+4}, 19, v{V_SV+4}
    v_lshl_add_u32 v{V_SV+4}, v{V_SV+4}, 3, s{S_T}
    global_load_dwordx2 {vr(V_SV+2,2)}, v{V_SV+4}, {sr(S_WSB)} sc1
    s_branch M_w0
    """)
    a.label("M_init")
    a(f"""
    v_mov_b32 v{T+1}, 0
    v_lshlrev_b32 v{T}, 2, v0
    s_movk_i32 s{S_T}, {L_P//4}
    v_cmp_gt_u32 vcc, s{S_T}, v0
    s_and_saveexec_b64 {sr(S_TM)}, vcc
    ds_write_b32 v{T}, v{T+1}
    s_mov_b64 exec, {sr(S_TM)}
    s_mov_b64 {sr(S_ACT)}, -1
    s_waitcnt lgkmcnt(0)
    s_barrier
    s_mov_b32 s{S_FIRST}, 1
    """)
    a.label("M_w0")
    stamp(a, 1)
    a.label("M_window")
    REM = L2; ADR = L2 + 3; CTR = L2 + 6; RNK = L2 + 12; BAS = L2 + 18; ONE = L2 + 24
    a(f"""
    v_and_b32 v{T}, 15, v0
    v_add_u32 v{T}, v{T}, v{V_JB}
    v_lshrrev_b32 v{T+1}, 4, v0
    v_mul_u32_u24 v{T+1}, {CH}, v{T+1}
    v_add_u32 v{T+1}, v{T+1}, v{T}
    v_mov_b32 v{ONE}, 1
    """)
    for r in range(3):
        a(f"""
        v_lshrrev_b32 v{REM+r}, 12, v{V_OFF+r}
        v_sub_u32 v{REM+r}, v{REM+r}, v{T}
        v_and_b32 v{ADR+r}, 0xfff, v{V_OFF+r}
        v_add_u32 v{ADR+r}, v{ADR+r}, v{T+1}
        v_lshlrev_b32 v{ADR+r}, 4, v{ADR+r}
        """)
        if r: a(f"v_add_u32 v{ADR+r}, {48*CH*16*r}, v{ADR+r}")
    for k in range(6):
        r = k % 3; h = k // 3
        m = sr(S_M + 2*k)
        a(f"""
        v_cmp_lt_i32 {m}, {16*h}, v{REM+r}
        v_and_b32 v{T+2}, {1<<k}, v{V_DONE}
        v_cmp_eq_u32 vcc, 0, v{T+2}
        s_and_b64 {m}, {m}, vcc
        s_and_b64 {m}, {m}, {sr(S_ACT)}
        """)
    a.label("M_rload")
    for k in range(6):
        r = k % 3; h = k // 3
        a(f"""
        s_mov_b64 exec, {sr(S_M+2*k)}
        s_cbranch_execz M_sl{k}
        buffer_load_dwordx4 {vr(L+4*k,4)}, v{ADR+r}, {sr(S_REC,4)}, 0 offen offset:{256*h} sc1 {OPT.get('rl','')}
        """)
        a.label(f"M_sl{k}")
    a(f"""
    s_mov_b64 {sr(S_PEND)}, 0
    s_mov_b32 s{S_T}, 0xff000000
    s_waitcnt vmcnt(0)
    """)
    for k in range(6):
        a(f"""
        s_mov_b64 exec, {sr(S_M+2*k)}
        s_cbranch_execz M_sc{k}
        v_and_b32 v{T}, s{S_T}, v{L+4*k+2}
        v_cmp_ne_u32 {sr(S_TM)}, s{S_NON+1}, v{T}
        v_cmp_ne_u32 vcc, s{S_NON}, v{L+4*k+3}
        s_or_b64 {sr(S_PEND)}, {sr(S_PEND)}, {sr(S_TM)}
        s_or_b64 {sr(S_PEND)}, {sr(S_PEND)}, vcc
        """)
        a.label(f"M_sc{k}")
    a(f"""
    s_mov_b64 exec, -1
    s_cmp_eq_u64 {sr(S_PEND)}, 0
    s_cbranch_scc1 M_rok
    s_sub_u32 s{S_SPIN}, s{S_SPIN}, 1
    s_cmp_gt_i32 s{S_SPIN}, 0
    s_cbranch_scc1 M_rload
    """)
    a.label("M_rok")
    stamp(a, 13)
    a(f"""
    s_cmp_lg_u32 s{S_FIRST}, 0
    s_cbranch_scc1 M_append
    """)
    for k in range(6):
        a(f"""
        s_mov_b64 exec, {sr(S_M+2*k)}
        s_cbranch_execz M_sa{k}
        v_bfe_u32 v{CTR+k}, v{L+4*k+2}, 16, 8
        v_lshlrev_b32 v{CTR+k}, 2, v{CTR+k}
        ds_add_rtn_u32 v{RNK+k}, v{CTR+k}, v{ONE} offset:{L_CC}
        """)
        a.label(f"M_sa{k}")
    SCN = V_ACC
    a(f"""
    s_mov_b64 exec, -1
    v_and_b32 v{T}, 63, v0
    v_lshlrev_b32 v{T}, 4, v{T}
    v_cmp_lt_u32 vcc, 0, v{V_C}
    v_cmp_lt_u32 {sr(S_TM)}, 1, v{V_C}
    s_waitcnt lgkmcnt(0)
    s_barrier
    ds_read_b128 {vr(SCN,4)}, v{T} offset:{L_CC}
    s_waitcnt lgkmcnt(0)
    v_add_u32 v{SCN+4}, v{SCN}, v{SCN+1}
    v_add_u32 v{SCN+5}, v{SCN+4}, v{SCN+2}
    v_add_u32 v{SCN+6}, v{SCN+5}, v{SCN+3}
    s_nop 1
    v_mov_b32_dpp v{SCN+7}, v{SCN+6} quad_perm:[0,0,1,2] row_mask:0xf bank_mask:0xf
    v_cndmask_b32 v{SCN+7}, 0, v{SCN+7}, vcc
    v_add_u32 v{SCN+7}, v{SCN+7}, v{SCN+6}
    s_nop 1
    v_mov_b32_dpp v{SCN+8}, v{SCN+7} quad_perm:[0,0,0,1] row_mask:0xf bank_mask:0xf
    v_cndmask_b32 v{SCN+8}, 0, v{SCN+8}, {sr(S_TM)}
    v_add_u32 v{SCN+8}, v{SCN+8}, v{SCN+7}
    v_sub_u32 v{SCN+8}, v{SCN+8}, v{SCN+6}
    v_add_u32 v{SCN+9}, v{SCN+8}, v{SCN}
    v_add_u32 v{SCN+10}, v{SCN+8}, v{SCN+4}
    v_add_u32 v{SCN+11}, v{SCN+8}, v{SCN+5}
    s_mov_b32 exec_hi, 0xffff
    ds_write_b128 v{T}, {vr(SCN+8,4)} offset:{L_BASE}
    """)
    for k in range(6):
        a(f"""
        s_mov_b64 exec, {sr(S_M+2*k)}
        s_cbranch_execz M_sb{k}
        ds_read_b32 v{BAS+k}, v{CTR+k} offset:{L_BASE}
        """)
        a.label(f"M_sb{k}")
    a("s_branch M_place")
    a.label("M_append")
    for k in range(6):
        a(f"""
        s_mov_b64 exec, {sr(S_M+2*k)}
        v_bfe_u32 v{T}, v{L+4*k+2}, 20, 4
        v_lshlrev_b32 v{T+1}, 2, v{T}
        v_lshlrev_b32 v{T}, 6, v{T}
        ds_add_rtn_u32 v{RNK+k}, v{T+1}, v{ONE} offset:{L_ACNT}
        ds_read_b32 v{BAS+k}, v{T} offset:{L_BASE+60}
        ds_read_b32 v{CTR+k}, v{T} offset:{L_CC+60}
        s_waitcnt lgkmcnt(0)
        v_add_u32 v{BAS+k}, v{BAS+k}, v{CTR+k}
        """)
    a.label("M_place")
    a(f"""
    s_mov_b64 {sr(S_PEND)}, 0
    s_mov_b32 s{S_T}, {L_LIST}
    s_movk_i32 s{S_T+2}, {CAP}
    s_mov_b32 s{S_FIRST}, 1
    s_waitcnt lgkmcnt(0)
    """)
    for k in range(6):
        m = sr(S_M + 2*k)
        a(f"""
        s_mov_b64 exec, {m}
        s_cbranch_execz M_sp{k}
        v_add_u32 v{RNK+k}, v{RNK+k}, v{BAS+k}
        v_bfe_u32 v{T}, v{L+4*k+2}, 20, 4
        v_bfe_u32 v{T+1}, v{L+4*k+2}, 14, 2
        v_cmp_gt_u32 vcc, s{S_T+2}, v{RNK+k}
        v_mad_u32_u24 v{T}, v{T}, s{S_T+2}, v{RNK+k}
        v_lshlrev_b32 v{L+4*k+3}, v{T+1}, v{ONE}
        v_and_b32 v{L+4*k+2}, 0x3fff, v{L+4*k+2}
        v_lshlrev_b32 v{L+4*k+2}, 10, v{L+4*k+2}
        s_andn2_b64 {sr(S_TM)}, {m}, vcc
        s_or_b64 {sr(S_PEND)}, {sr(S_PEND)}, {sr(S_TM)}
        s_mov_b64 exec, vcc
        v_lshl_add_u32 v{CTR+k}, v{T}, 4, s{S_T}
        ds_write_b128 v{CTR+k}, {vr(L+4*k,4)}
        v_or_b32 v{V_DONE}, {1<<k}, v{V_DONE}
        """)
        a.label(f"M_sp{k}")
    a(f"""
    s_mov_b64 exec, -1
    v_mov_b32 v{T+2}, {L_MORE}
    v_max_i32 v{T}, v{REM}, v{REM+1}
    v_max_i32 v{T}, v{T}, v{REM+2}
    s_mov_b64 exec, {sr(S_PEND)}
    ds_write_b32 v{T+2}, v{ONE}
    s_andn2_b64 {sr(S_ACT)}, {sr(S_ACT)}, {sr(S_PEND)}
    s_mov_b64 exec, {sr(S_ACT)}
    v_add_u32 v{V_JB}, 32, v{V_JB}
    v_mov_b32 v{V_DONE}, 0
    v_cmp_lt_i32 vcc, 32, v{T}
    s_mov_b64 exec, -1
    s_cmp_lg_u64 vcc, 0
    s_cbranch_scc1 M_window
    s_lshl_b32 s{S_T}, s{S_G}, 6
    v_mov_b32 v{T}, s{S_T}
    s_lshl_b32 s{S_T}, s{S_G}, 2
    v_mov_b32 v{T+1}, s{S_T}
    s_waitcnt lgkmcnt(0)
    """)
    stamp(a, 15)
    a(f"""
    s_barrier
    ds_read_b32 v{V_A[0]}, v{T} offset:{L_BASE+60}
    ds_read_b32 v{V_A[0]+1}, v{T} offset:{L_CC+60}
    ds_read_b32 v{V_A[0]+2}, v{T+1} offset:{L_ACNT}
    ds_read_b32 v{V_A[0]+3}, v{T+2}
    v_and_b32 v{T}, 63, v0
    v_mov_b32 v{V_B[0]}, {OOBOFF}
    v_mov_b32 v{V_B[0]+1}, 0
    s_mov_b32 s{S_S1}, 0
    s_mov_b32 s{S_S2}, 0
    s_mov_b32 s{S_B1}, 0
    s_waitcnt lgkmcnt(0)
    v_add3_u32 v{T+1}, v{V_A[0]}, v{V_A[0]+1}, v{V_A[0]+2}
    v_readfirstlane_b32 s{S_MORE}, v{V_A[0]+3}
    v_readfirstlane_b32 s{S_T}, v{T+1}
    s_min_u32 s{S_T}, s{S_T}, {CAP}
    s_add_u32 s{S_S}, s{S_T}, 31
    s_lshr_b32 s{S_S}, s{S_S}, 5
    s_max_u32 s{S_S}, s{S_S}, 1
    s_lshl_b32 s{S_T+1}, s{S_S}, 5
    v_add_u32 v{T}, s{S_T}, v{T}
    v_cmp_gt_u32 vcc, s{S_T+1}, v{T}
    s_mul_i32 s{S_T+2}, s{S_G}, {CAP*16}
    s_add_u32 s{S_T+2}, s{S_T+2}, {L_LIST+8}
    v_lshl_add_u32 v{T}, v{T}, 4, s{S_T+2}
    s_mov_b64 exec, vcc
    ds_write_b64 v{T}, {vr(V_B[0],2)}
    s_mov_b64 exec, -1
    s_sub_u32 s{S_NLAST}, s{S_T}, s{S_T+1}
    s_add_u32 s{S_NLAST}, s{S_NLAST}, 35
    s_lshr_b32 s{S_NLAST}, s{S_NLAST}, 2
    """)
    meta_reads(a)
    a(f"""
    s_cmp_gt_u32 s{S_S}, 2
    s_cbranch_scc1 M_nozl
    """)
    for k in range(64):
        a(f"v_mov_b32 v{V_L[0]+k}, 0")
    a.label("M_nozl")
    a(f"""
    s_cmp_lg_u32 s{S_RND}, 0
    s_cbranch_scc1 M_wfok
    """)
    a.label("M_wfchk")
    a(f"""
    v_cmp_eq_u32 {sr(S_TM)}, s{S_NON+1}, v{V_SV+2}
    v_cmp_eq_u32 vcc, s{S_NON}, v{V_SV+3}
    s_and_b64 {sr(S_TM)}, {sr(S_TM)}, vcc
    s_cmp_eq_u64 {sr(S_TM)}, -1
    s_cbranch_scc1 M_wfok
    s_sub_u32 s{S_SPIN}, s{S_SPIN}, 1
    s_cmp_le_i32 s{S_SPIN}, 0
    s_cbranch_scc1 M_wfok
    global_load_dwordx2 {vr(V_SV+2,2)}, v{V_SV+4}, {sr(S_WSB)} sc1
    s_waitcnt vmcnt(0)
    s_branch M_wfchk
    """)
    a.label("M_wfok")
    stamp(a, 2)
    if not OPT.get("noprio"): a("s_setprio 3")
    a("s_waitcnt lgkmcnt(0)")
    stage_x(a, 0, "i", wait=False)
    a.label("M_goi")
    advance(a)
    a(f"s_mov_b32 s{S_FIRST}, 1")
    for p in range(2):
        a.label(f"M_it{p}")
        a(f"""
        s_waitcnt lgkmcnt(0)
        s_cmp_eq_u32 s{S_B1}, 1024
        s_cbranch_scc1 M_w{p}_0
        """)
        stage_x(a, p ^ 1, str(p))
        a.label(f"M_go{p}")
        a(f"""
        s_cmp_eq_u32 s{S_FIRST}, 0
        s_cbranch_scc1 M_cn{p}
        """)
        compute(a, p, True)
        a(f"s_branch M_cd{p}")
        a.label(f"M_cn{p}")
        compute(a, p, False)
        a.label(f"M_cd{p}")
        a(f"""
        s_mov_b32 s{S_FIRST}, 0
        s_cmp_lg_u32 s{S_S1}, 0
        s_cbranch_scc1 M_nofl{p}
        s_mov_b32 s{S_FIRST}, 1
        s_call_b64 {sr(S_RET)}, M_flush
        s_cmp_eq_u32 s{S_B1}, 1024
        s_cbranch_scc1 M_end
        """)
        a.label(f"M_nofl{p}")
        advance(a)
        if p == 1:
            a("s_branch M_it0")
    flush_sub(a)
    a.label("M_end")
    a(f"""
    s_cmp_eq_u32 s{S_MORE}, 0
    s_cbranch_scc1 M_gemm
    s_mov_b32 s{S_RND}, 1
    s_waitcnt lgkmcnt(0)
    s_barrier
    s_branch M_init
    """)
    a.label("M_gemm")
    W = 56; ACC = [24, 40]; BB = 136; NBB = 6
    a(f"""
    s_cmp_ge_u32 s{S_G}, 8
    s_cbranch_scc0 M_gw
    s_waitcnt lgkmcnt(0)
    s_barrier
    """)
    stamp_dump(a)
    a("s_endpgm")
    a.label("M_gw")
    a(f"""
    v_and_b32 v10, 63, v0
    s_mul_i32 s{S_T}, s{S_G}, {20*1024}
    v_lshl_add_u32 v11, v10, 4, s{S_T}
    s_waitcnt lgkmcnt(0)
    """)
    for ks in range(20):
        if ks % 4 == 0 and ks:
            a("v_add_u32 v11, 4096, v11")
        a(f"global_load_dwordx4 {vr(W+4*ks,4)}, v11, {sr(S_WF)} offset:{1024*(ks%4)} sc1")
    a(f"""
    v_and_b32 v12, 15, v10
    v_lshrrev_b32 v13, 4, v10
    v_mul_u32_u24 v14, {PSTR}, v12
    v_add_u32 v14, {L_P}, v14
    """)
    for k4 in range(4):
        a(f"""
        v_add_u32 v15, {4*k4}, v13
        v_xor_b32 v15, v15, v12
        v_lshl_add_u32 v{1+k4}, v15, 4, v14
        v_add_u32 v{5+k4}, {32*PSTR}, v{1+k4}
        """)
    a(f"""
    s_mul_i32 s{S_T}, s2, 625
    s_add_u32 s{S_T+3}, s{S_T}, {625+15}
    s_add_u32 s{S_T}, s{S_T}, 15
    s_lshr_b32 s{S_T}, s{S_T}, 4
    s_lshr_b32 s{S_T+3}, s{S_T+3}, 4
    s_sub_u32 s{S_T+3}, s{S_T+3}, s{S_T}
    s_sub_u32 s{S_T+3}, s{S_T+3}, 32
    s_lshl_b32 s{S_T}, s{S_T}, 10
    s_lshl_b32 s{S_T+1}, s{S_G}, 5
    s_add_u32 s{S_T}, s{S_T}, s{S_T+1}
    v_lshl_add_u32 v9, v12, 10, s{S_T}
    v_lshl_add_u32 v9, v13, 3, v9
    v_cmp_gt_u32 {sr(S_TM)}, s{S_T+3}, v12
    s_mov_b32 s{S_T+2}, 0xbfb8aa3b
    s_barrier
    """)
    stamp(a, 7)
    steps = []
    for t in range(3):
        for c in range(2):
            for k4 in range(4):
                steps.append((t, 0, c, k4, c*4 + k4, c == 0 and k4 == 0))
        for cc in range(3):
            for k4 in range(4):
                for i in range(3):
                    steps.append((t, 1+i, 2+3*i+cc, k4, 8 + cc*4 + k4, cc == 0 and k4 == 0))
    def rd(n):
        t, o, c, k4, ws, first = steps[n]
        base = (1 + k4) if t < 2 else (5 + k4)
        off = c*256 + (16*PSTR if t == 1 else 0)
        a(f"ds_read_b128 {vr(BB+4*(n%NBB),4)}, v{base} offset:{off}")
    def epilogue(t):
        A0 = ACC[t % 2]
        a("s_nop 7")
        for r in range(4):
            a(f"v_mul_f32 v{12+r}, s{S_T+2}, v{A0+r}")
        for r in range(4):
            a(f"v_exp_f32 v{12+r}, v{12+r}")
        a(f"v_cvt_pk_bf16_f32 v16, v{A0}, v{A0+1}")
        a(f"v_cvt_pk_bf16_f32 v17, v{A0+2}, v{A0+3}")
        for r in range(4):
            a(f"v_add_f32 v{12+r}, 1.0, v{12+r}")
        for r in range(4):
            a(f"v_rcp_f32 v{12+r}, v{12+r}")
        if t == 2:
            a(f"v_mov_b32 v10, 0x7ffff000")
            a(f"v_cndmask_b32 v9, v10, v9, {sr(S_TM)}")
        a(f"buffer_store_dwordx2 v[16:17], v9, {sr(S_OUT,4)}, 0 offen {OPT.get('of','').replace('+',' ')}")
        for i in range(3):
            B0 = A0 + 4 + 4*i
            for r in range(4):
                a(f"v_mul_f32 v{B0+r}, v{B0+r}, v{12+r}")
            a(f"v_cvt_pk_bf16_f32 v{18+2*i}, v{B0}, v{B0+1}")
            a(f"v_cvt_pk_bf16_f32 v{19+2*i}, v{B0+2}, v{B0+3}")
            a(f"buffer_store_dwordx2 {vr(18+2*i,2)}, v9, {sr(S_OUT,4)}, 0 offen offset:{256*(i+1)} {OPT.get('of','').replace('+',' ')}")
        if t < 2:
            a("v_add_u32 v9, 16384, v9")
    n_steps = len(steps)
    for n in range(NBB - 1):
        rd(n)
    wseen = -1
    for n in range(n_steps):
        t, o, c, k4, ws, first = steps[n]
        if n + NBB - 1 < n_steps:
            rd(n + NBB - 1)
            pend = NBB - 1
        else:
            pend = n_steps - 1 - n
        w = f"s_waitcnt lgkmcnt({pend})"
        if t == 0 and ws > wseen:
            w = f"s_waitcnt vmcnt({19-ws}) lgkmcnt({pend})"
            wseen = ws
        a(w)
        acc = vr(ACC[t % 2] + 4*o, 4)
        a(f"v_mfma_f32_16x16x32_bf16 {acc}, {vr(W+4*ws,4)}, {vr(BB+4*(n%NBB),4)}, {'0' if first else acc}")
        if n + 1 == n_steps or steps[n+1][0] != t:
            epilogue(t)
    stamp(a, 8)
    stamp_dump(a)
    a.label("M_done")
    a("s_endpgm")

def kd(a, name, vg, sg):
    acc = (vg + 3) // 4 * 4
    a.raw(f""".p2align 6
.amdhsa_kernel {name}
  .amdhsa_next_free_vgpr {vg}
  .amdhsa_next_free_sgpr {sg}
  .amdhsa_accum_offset {acc}
  .amdhsa_group_segment_fixed_size 0
  .amdhsa_kernarg_size 96
  .amdhsa_user_sgpr_count 2
  .amdhsa_user_sgpr_kernarg_segment_ptr 1
  .amdhsa_system_sgpr_workgroup_id_x 1
  .amdhsa_float_denorm_mode_32 3
.end_amdhsa_kernel""")

def main():
    global DBG
    OPT.update(dict(x.split("=") for x in sys.argv[2:]))
    DBG = bool(int(OPT.get("dbg", 0)))
    a = Asm()
    ref = open(f"cdna_kernels/{NAME}.s.ref").read().split("\n")
    for ln in ref:
        if ln.startswith(";") and "@launch" not in ln and "Override" not in ln and "grid=ceil" not in ln:
            a.raw(ln)
    a.raw(f"; @launch kernel={NAME}_kernel grid=({NB},1,1) block=({NT},1,1) lds={L_TOT}")
    a.raw('.amdgcn_target "amdgcn-amd-amdhsa--gfx950"')
    a.raw(".text")
    gen_main(a)
    a.raw('.section .rodata,"a"')
    kd(a, NAME + "_kernel", NVG, 102 if DBG else 70)
    open(sys.argv[1], "w").write(a.text())

main()
```

```python
import sys

NAME = "gather_scatter__tensor_product_equiv_equiformer__graph"
N = 10000
E = 320000
NB = 256
NCH = 125
CH = 2560
WS_REC = 0
WS_OFF = 0x500000
WS_WF = 0x580000
WS_WFLAG = 0x5c0000
SPIN_MAX = 1 << 18
NWPREP = 32

NG = 12
NT = NG * 64
CAP = 224
PSTR = 2816
L_CC = 512
L_BASE = L_CC + NG * 64
L_ACNT = L_BASE + NG * 64
L_MORE = L_ACNT + 60
L_NONCE = L_ACNT + 64
L_P = L_ACNT + 128
L_LIST = L_P + 40 * PSTR
L_TOT = L_LIST + NG * CAP * 16
assert L_TOT <= 163840 and L_P % 16 == 0
OOBOFF = 0x00FFFC00

OPT = {}
DBG = False

class Asm:
    def __init__(self):
        self.l = []
    def __call__(self, s):
        for x in s.split("\n"):
            x = x.strip()
            if x:
                self.l.append("    " + x)
    def label(self, s):
        self.l.append(s + ":")
    def raw(self, s):
        self.l.append(s)
    def text(self):
        return "\n".join(self.l) + "\n"

def vr(a, n):
    return f"v[{a}:{a+n-1}]"
def sr(a, n=2):
    return f"s[{a}:{a+n-1}]"

V_C = 1
V_N16 = 2
V_VS = 4
V_VC = 5
V_PB = 6
V_JB = 7
V_DONE = 8
V_OFF = 9
V_T = 12
V_OH = 16
V_CA = 18
V_SC = 20
V_IX = 24
V_A = [32, 36]
V_B = [40, 44]
V_ACC = 48
V_SV = 80
V_L = [104, 136]
NVG = 168
S_X = 4; S_OUT = 8; S_REC = 12; S_OFFS = 16; S_WF = 20
S_G = 22; S_S = 23; S_S1 = 24; S_B1 = 25; S_S2 = 26; S_PLO = 27; S_PHI = 28; S_NLAST = 29
S_RND = 30; S_MORE = 31; S_T = 32
S_M = 40
S_ACT = 52; S_PEND = 54; S_TM = 56; S_FEX = 58; S_RET = 60; S_HI = 62; S_FIRST = 63
S_NON = 64; S_DBG = 66; S_WSB = 68; S_SPIN = 3
S_ST = 70

def stamp(a, k, real=False):
    if OPT.get("dbg2"): real = True
    if DBG:
        a(f"s_mem{'realtime' if real else 'time'} {sr(S_ST+2*k)}")
def stamp_dump(a):
    if OPT.get("dbg2"):
        a("s_waitcnt lgkmcnt(0) vmcnt(0)")
        stamp(a, 9)
        a("s_waitcnt lgkmcnt(0)")
        a("v_mov_b32 v1, 0")
        a("s_mov_b64 exec, 1")
        for n, k in enumerate([0, 12, 14, 1, 13, 15, 2, 3, 4, 5, 6, 7, 8, 9]):
            a(f"s_sub_u32 s{S_T}, s{S_ST+2*k}, s{S_NON}")
            a(f"s_add_u32 s{S_T}, s{S_T}, 1000")
            a(f"s_cmp_eq_u32 s{S_ST+2*k}, 0")
            a(f"s_cselect_b32 s{S_T}, 0, s{S_T}")
            a(f"v_mov_b32 v2, s{S_T}")
            a(f"global_atomic_umax v1, v2, {sr(S_DBG)} offset:{8+4*n}")
            a("s_nop 1")
        return
    if DBG:
        a("s_waitcnt lgkmcnt(0) vmcnt(0)")
        stamp(a, 9)
        stamp(a, 11, True)
        a("s_waitcnt lgkmcnt(0)")
        a(f"s_mul_i32 s{S_T}, s2, {NG}")
        a(f"s_add_u32 s{S_T}, s{S_T}, s{S_G}")
        a(f"s_lshl_b32 s{S_T}, s{S_T}, 7")
        a(f"s_add_u32 s{S_T}, s{S_T}, {0x800000 - WS_WF}")
        a(f"v_mov_b32 v1, s{S_T}")
        for k in range(0, 32, 2):
            a(f"v_mov_b32 v2, s{S_ST+k}")
            a(f"v_mov_b32 v3, s{S_ST+k+1}")
            a(f"global_store_dwordx2 v1, v[2:3], {sr(S_WF)} offset:{4*k}")
            a("s_nop 1")

def comp011(i): return 2 + 3*i
def comp101(i): return 3 + 3*i
def comp111(i): return 4 + 3*i

def meta_reads(a):
    a(f"""
    s_lshl_b32 s{S_T}, s{S_S2}, 9
    v_add_u32 v{V_T}, s{S_T}, v{V_VS}
    v_add_u32 v{V_CA}, s{S_T}, v{V_VC}
    """)
    for i in range(0, 8, 2):
        a(f"ds_read2_b32 {vr(V_IX+i,2)}, v{V_T} offset0:{16*i+2} offset1:{16*(i+1)+2}")
    a(f"ds_read2_b32 {vr(V_OH,2)}, v{V_CA} offset0:3 offset1:67")

def stage_x(a, p, tag, wait=True):
    L = V_L[p]; A = V_A[p]
    for i in range(0, 8, 2):
        if OPT.get("nopk"):
            a(f"v_add_u32 v{V_IX+i}, v{V_IX+i}, v{V_N16}")
            a(f"v_add_u32 v{V_IX+i+1}, v{V_IX+i+1}, v{V_N16}")
        else:
            a(f"v_pk_add_f32 {vr(V_IX+i,2)}, {vr(V_IX+i,2)}, {vr(V_N16,2)}")
    a(f"""
    v_bfe_i32 v{V_OH}, v{V_OH}, v{V_C}, 1
    v_bfe_i32 v{V_OH+1}, v{V_OH+1}, v{V_C}, 1
    s_add_u32 s{S_S2}, s{S_S1}, 1
    v_and_b32 v{V_OH}, v{V_OH}, v{V_CA}
    v_and_b32 v{V_OH+1}, v{V_OH+1}, v{V_CA}
    s_cmp_eq_u32 s{S_S2}, s{S_S}
    ds_read_b64_tr_b16 {vr(A,2)}, v{V_OH}
    ds_read_b64_tr_b16 {vr(A+2,2)}, v{V_OH+1} offset:256
    s_cbranch_scc1 M_part{tag}
    """)
    def load(i):
        if not OPT.get("noload"):
            a(f"buffer_load_dwordx4 {vr(L+4*i,4)}, v{V_IX+i}, {sr(S_X,4)}, s{S_B1} offen {OPT.get('ldf','').replace('+',' ')}")
    a.label(f"M_full{tag}")
    for i in range(8):
        load(i)
    meta_reads(a)
    if wait: a("s_waitcnt vmcnt(8)")
    a(f"s_branch M_go{tag}")
    a.label(f"M_part{tag}")
    a(f"""
    s_mov_b32 s{S_S2}, 0
    s_cmp_eq_u32 s{S_NLAST}, 8
    s_cbranch_scc1 M_full{tag}
    """)
    for i in range(8):
        if i < 7:
            a(f"s_cmp_eq_u32 s{S_NLAST}, {i}")
            a(f"s_cbranch_scc1 M_w{tag}_{i}")
            load(i)
    for i in range(7, -1, -1):
        a.label(f"M_w{tag}_{i}")
        if wait:
            a(f"s_waitcnt vmcnt({i})")
            if i > 0: a(f"s_branch M_pm{tag}")
    a.label(f"M_pm{tag}")
    meta_reads(a)

def advance(a):
    a(f"""
    s_mov_b32 s{S_S1}, s{S_S2}
    s_cmp_eq_u32 s{S_S2}, 0
    s_cselect_b32 s{S_T}, 256, 0
    s_add_u32 s{S_B1}, s{S_B1}, s{S_T}
    """)

def compute(a, p, first):
    L = V_L[p]; A = V_A[p]
    def perms(j):
        B = V_B[j % 2]
        sel = S_PHI if j % 2 else S_PLO
        for q in range(4):
            if OPT.get("noperm"): continue
            a(f"v_perm_b32 v{B+q}, v{L+4*(2*q+1)+j//2}, v{L+4*(2*q)+j//2}, s{sel}")
    perms(0)
    for j in range(8):
        if j + 1 < 8:
            perms(j + 1)
        else:
            a("s_nop 1")
        if OPT.get("nomfma"): continue
        Bop = vr(L+4*j,4) if OPT.get("noperm") else vr(V_B[j%2],4)
        acc = vr(V_ACC+4*j,4)
        a(f"v_mfma_f32_16x16x32_bf16 {acc}, {vr(A,4)}, {Bop}, {'0' if first else acc}")

wc_n = [0]
def write_comp(a, comp, regs):
    n = wc_n[0]; wc_n[0] += 1
    a(f"""
    s_cmp_eq_u32 s{S_RND}, 0
    s_cbranch_scc1 M_wc{n}
    ds_read_b128 {vr(V_SC,4)}, v{V_PB} offset:{comp*256}
    s_waitcnt lgkmcnt(0)
    """)
    for d in range(4):
        a(f"""
        v_lshlrev_b32 v{V_T}, 16, v{V_SC+d}
        v_and_b32 v{V_T+1}, s{S_HI}, v{V_SC+d}
        v_add_f32 v{regs[2*d]}, v{regs[2*d]}, v{V_T}
        v_add_f32 v{regs[2*d+1]}, v{regs[2*d+1]}, v{V_T+1}
        """)
    a.label(f"M_wc{n}")
    sc = [V_SC, V_B[0], V_B[1]][n % 3]
    for d in range(4):
        a(f"v_cvt_pk_bf16_f32 v{sc+d}, v{regs[2*d]}, v{regs[2*d+1]}")
    a(f"ds_write_b128 v{V_PB}, {vr(sc,4)} offset:{comp*256}")

def flush_sub(a):
    acc = lambda r: [V_ACC + 4*j + r for j in range(8)]
    sv = lambda k: [V_SV + 8*k + j for j in range(8)]
    a.label("M_flush")
    a(f"""
    s_mov_b64 exec, {sr(S_FEX)}
    s_cmp_eq_u32 s{S_B1}, 512
    s_cbranch_scc1 M_fl1
    s_cmp_eq_u32 s{S_B1}, 768
    s_cbranch_scc1 M_fl2
    s_cmp_eq_u32 s{S_B1}, 1024
    s_cbranch_scc1 M_fl3
    s_nop 1
    """)
    def ret(prio, k):
        stamp(a, k)
        if prio is not None and not OPT.get("noprio"): a(f"s_setprio {prio}")
        if prio is not None and OPT.get("pbar"): a("s_barrier")
        a(f"s_mov_b64 exec, -1")
        a(f"s_setpc_b64 {sr(S_RET)}")
    write_comp(a, 0, acc(0))
    for i in range(3): write_comp(a, comp011(i), acc(1+i))
    ret(2, 3)
    a.label("M_fl1")
    a("s_nop 4")
    write_comp(a, comp101(0), acc(0))
    for k in range(3):
        for j in range(8): a(f"v_mov_b32 v{sv(k)[j]}, v{acc(1+k)[j]}")
    ret(1, 4)
    a.label("M_fl2")
    a("s_nop 2")
    write_comp(a, comp101(1), acc(0))
    for j in range(8): a(f"v_sub_f32 v{acc(1)[j]}, v{acc(1)[j]}, v{sv(1)[j]}")
    write_comp(a, comp111(2), acc(1))
    for j in range(8): a(f"v_add_f32 v{sv(0)[j]}, v{sv(0)[j]}, v{acc(2)[j]}")
    for j in range(8): a(f"v_mov_b32 v{sv(1)[j]}, v{acc(3)[j]}")
    ret(0, 5)
    a.label("M_fl3")
    write_comp(a, comp101(2), acc(0))
    for j in range(8): a(f"v_sub_f32 v{sv(2)[j]}, v{sv(2)[j]}, v{acc(1)[j]}")
    write_comp(a, comp111(1), sv(2))
    for j in range(8): a(f"v_sub_f32 v{acc(2)[j]}, v{acc(2)[j]}, v{sv(1)[j]}")
    write_comp(a, comp111(0), acc(2))
    for j in range(8): a(f"v_add_f32 v{sv(0)[j]}, v{sv(0)[j]}, v{acc(3)[j]}")
    write_comp(a, 1, sv(0))
    ret(None, 6)


S_IN = 40
def phase_a(a):
    RH = S_IN; EA = S_IN + 2; SRC = S_IN + 4; DST = S_IN + 6; WR = S_IN + 8; W0 = S_IN + 10; W1 = S_IN + 12
    H = L_P; BS = L_P + 4096; STG = L_P + 8192
    WSB = sr(S_WSB)
    def poll_nonce(tag):
        a(f"""
        v_mov_b32 v2, 0
        s_mov_b32 s{S_T}, {SPIN_MAX}
        """)
        a.label(f"A_pn{tag}")
        a(f"""
        global_load_dwordx2 v[4:5], v2, {sr(S_DBG)} sc1
        s_sub_u32 s{S_T}, s{S_T}, 1
        s_cmp_eq_u32 s{S_T}, 0
        s_cbranch_scc1 A_pd{tag}
        s_waitcnt vmcnt(0)
        v_readfirstlane_b32 s{S_T+1}, v4
        s_cmp_eq_u32 s{S_T+1}, 0
        s_cbranch_scc1 A_pn{tag}
        """)
        a.label(f"A_pd{tag}")
        a(f"""
        s_waitcnt vmcnt(0)
        v_mov_b32 v2, {L_NONCE}
        ds_write_b64 v2, v[4:5]
        """)
    def read_nonce():
        a(f"""
        v_mov_b32 v2, {L_NONCE}
        ds_read_b64 v[2:3], v2
        s_waitcnt lgkmcnt(0)
        v_readfirstlane_b32 s{S_NON}, v2
        v_readfirstlane_b32 s{S_NON+1}, v3
        """)
    a(f"""
    s_cmp_ge_u32 s3, {NCH}
    s_cbranch_scc1 A_touch
    s_cmp_ge_u32 s{S_G}, 10
    s_cbranch_scc1 A_wprep
    v_lshlrev_b32 v21, 2, v0
    s_mul_i32 s{S_T}, s3, {CH}
    v_add_u32 v1, s{S_T}, v21
    v_lshlrev_b32 v2, 2, v1
    v_mul_u32_u24 v3, 6, v1
    v_lshlrev_b32 v20, 1, v1
    global_load_dwordx4 v[4:7], v2, {sr(DST)} {OPT.get('inf','')}
    global_load_dwordx4 v[8:11], v2, {sr(SRC)} {OPT.get('inf','')}
    global_load_dwordx4 v[12:15], v3, {sr(RH)} {OPT.get('inf','')}
    global_load_dwordx2 v[16:17], v3, {sr(RH)} offset:16 {OPT.get('inf','')}
    global_load_dwordx2 v[18:19], v20, {sr(EA)} {OPT.get('inf','')}
    v_mov_b32 v22, 0
    ds_write_b32 v21, v22 offset:{H}
    v_mov_b32 v23, 1
    s_mov_b32 s{S_T+1}, 429497
    s_movk_i32 s{S_T+2}, 625
    s_waitcnt lgkmcnt(0)
    s_barrier
    s_waitcnt vmcnt(4)
    """)
    for i in range(4):
        a(f"""
        v_mul_u32_u24 v{24+i}, s{S_T+1}, v{4+i}
        v_lshrrev_b32 v{24+i}, 24, v{24+i}
        v_mad_u32_u24 v1, v{24+i}, s{S_T+2}, 15
        v_lshlrev_b32 v{24+i}, 2, v{24+i}
        ds_add_rtn_u32 v{28+i}, v{24+i}, v23 offset:{H}
        v_lshrrev_b32 v1, 4, v1
        v_sub_u32 v{4+i}, v{4+i}, v1
        v_mul_u32_u24 v1, 43, v{4+i}
        v_lshrrev_b32 v1, 9, v1
        v_mul_u32_u24 v2, 12, v1
        v_sub_u32 v{4+i}, v{4+i}, v2
        v_lshlrev_b32 v1, 14, v1
        v_lshl_or_b32 v{32+4*i+2}, v{4+i}, 20, v1
        """)
    a(f"s_waitcnt vmcnt(3)")
    for i in range(4):
        a(f"""
        v_mul_u32_u24 v1, 1677, v{8+i}
        v_lshrrev_b32 v1, 20, v1
        v_lshl_or_b32 v1, v1, 16, v{8+i}
        v_or_b32 v{32+4*i+2}, v1, v{32+4*i+2}
        """)
    a(f"s_waitcnt vmcnt(0)")
    stamp(a, 12)
    def half(dst, base, idx):
        r = base + idx // 2
        if idx % 2 == 0:
            a(f"v_lshlrev_b32 v{dst}, 16, v{r}")
        else:
            a(f"v_and_b32 v{dst}, s{S_HI}, v{r}")
    for i in range(4):
        half(4, 18, i)
        half(5, 12, 3*i+0)
        half(6, 12, 3*i+1)
        half(7, 12, 3*i+2)
        a(f"""
        v_mul_f32 v5, v4, v5
        v_mul_f32 v6, v4, v6
        v_mul_f32 v7, v4, v7
        v_cvt_pk_bf16_f32 v{32+4*i}, v4, v5
        v_cvt_pk_bf16_f32 v{32+4*i+1}, v6, v7
        """)
    a(f"""
    v_and_b32 v1, 63, v0
    v_lshlrev_b32 v1, 4, v1
    s_waitcnt lgkmcnt(0)
    s_barrier
    ds_read_b128 v[4:7], v1 offset:{H}
    """)
    read_nonce()
    a(f"""
    v_add_u32 v9, v4, v5
    v_add_u32 v10, v9, v6
    v_add_u32 v11, v10, v7
    v_mov_b32 v12, v11
    s_nop 1
    v_add_u32_dpp v12, v12, v12 row_shr:1 row_mask:0xf bank_mask:0xf bound_ctrl:0
    s_nop 1
    v_add_u32_dpp v12, v12, v12 row_shr:2 row_mask:0xf bank_mask:0xf bound_ctrl:0
    s_nop 1
    v_add_u32_dpp v12, v12, v12 row_shr:4 row_mask:0xf bank_mask:0xf bound_ctrl:0
    s_nop 1
    v_add_u32_dpp v12, v12, v12 row_shr:8 row_mask:0xf bank_mask:0xf bound_ctrl:0
    s_nop 1
    v_add_u32_dpp v12, v12, v12 row_bcast:15 row_mask:0xa bank_mask:0xf
    s_nop 1
    v_add_u32_dpp v12, v12, v12 row_bcast:31 row_mask:0xc bank_mask:0xf
    v_sub_u32 v12, v12, v11
    v_add_u32 v13, v12, v4
    v_add_u32 v14, v12, v9
    v_add_u32 v15, v12, v10
    ds_write_b128 v1, v[12:15] offset:{BS}
    s_cmp_lg_u32 s{S_G}, 0
    s_cbranch_scc1 A_nooff
    s_lshl_b32 s{S_T}, s3, 11
    s_add_u32 s{S_T}, s{S_T}, {WS_OFF}
    v_lshl_add_u32 v2, v1, 1, s{S_T}
    """)
    for i in range(4):
        a(f"""
        v_lshl_or_b32 v{48+2*i}, v{4+i}, 12, v{12+i}
        v_or_b32 v{48+2*i}, s{S_NON+1}, v{48+2*i}
        v_mov_b32 v{49+2*i}, s{S_NON}
        """)
    a(f"""
    global_store_dwordx4 v2, v[48:51], {WSB} sc1
    global_store_dwordx4 v2, v[52:55], {WSB} offset:16 sc1
    """)
    a.label("A_nooff")
    a("s_waitcnt lgkmcnt(0)")
    for i in range(4):
        a(f"ds_read_b32 v{4+i}, v{24+i} offset:{BS}")
    for i in range(4):
        a(f"""
        v_or_b32 v{32+4*i+2}, s{S_NON+1}, v{32+4*i+2}
        v_mov_b32 v{32+4*i+3}, s{S_NON}
        """)
    a(f"""
    s_mul_i32 s{S_T}, s3, {CH * 16}
    v_lshlrev_b32 v20, 4, v0
    v_add_u32 v21, s{S_T}, v20
    s_waitcnt lgkmcnt(0)
    """)
    for i in range(4):
        a(f"""
        v_add_lshl_u32 v{4+i}, v{4+i}, v{28+i}, 4
        ds_write_b128 v{4+i}, {vr(32+4*i,4)} offset:{STG}
        """)
    a("""
    s_waitcnt lgkmcnt(0)
    s_barrier
    """)
    for i in range(4):
        a(f"ds_read_b128 {vr(32+4*i,4)}, v20 offset:{STG+10240*i}")
    for i in range(4):
        a(f"""
        s_waitcnt lgkmcnt({3-i})
        global_store_dwordx4 v21, {vr(32+4*i,4)}, {WSB} sc1 {OPT.get('rs','')}
        """)
        if i < 3: a("v_add_u32 v21, 10240, v21")
    a("s_branch A_end")
    a.label("A_wprep")
    F = S_T + 2
    a(f"""
    s_lshl_b32 s{F}, s3, 1
    s_add_u32 s{F}, s{F}, s{S_G}
    s_sub_u32 s{F}, s{F}, 10
    s_cmp_ge_u32 s{F}, 160
    s_cbranch_scc1 A_wp1
    s_mul_i32 s{S_T+3}, s{F}, 3277
    s_lshr_b32 s{S_T+3}, s{S_T+3}, 16
    s_mul_i32 s{S_T+4}, s{S_T+3}, 20
    s_sub_u32 s{S_T+4}, s{F}, s{S_T+4}
    v_and_b32 v1, 63, v0
    v_and_b32 v2, 15, v1
    v_lshrrev_b32 v3, 4, v1
    s_lshl_b32 s{S_T+5}, s{S_T+4}, 5
    v_lshl_add_u32 v4, v3, 3, s{S_T+5}
    v_lshlrev_b32 v5, 1, v4
    s_lshl_b32 s{S_T+5}, s{S_T+3}, 4
    v_add_u32 v2, s{S_T+5}, v2
    v_lshlrev_b32 v2, 1, v2
    v_lshl_add_u32 v6, v4, 8, v2
    s_sub_u32 s{S_T+6}, s{W1}, {256*256}
    s_subb_u32 s{S_T+7}, s{W1+1}, 0
    s_cmp_lt_u32 s{S_T+4}, 8
    s_cselect_b32 s{S_T+6}, s{W0}, s{S_T+6}
    s_cselect_b32 s{S_T+7}, s{W0+1}, s{S_T+7}
    global_load_dwordx4 v[8:11], v5, {sr(WR)}
    """)
    for i in range(8):
        a(f"global_load_ushort v{12+i}, v6, {sr(S_T+6)} offset:{256*i}")
    a.label("A_wp1")
    a(f"""
    s_waitcnt lgkmcnt(0)
    s_barrier
    s_cmp_lg_u32 s{S_G}, 11
    s_cbranch_scc1 A_wp2
    """)
    poll_nonce("w")
    a.label("A_wp2")
    a(f"""
    s_cmp_ge_u32 s{F}, 160
    s_cbranch_scc1 A_wp3
    s_lshl_b32 s{S_T+3}, s{F}, 10
    s_add_u32 s{S_T+3}, s{S_T+3}, {WS_WF}
    v_lshl_add_u32 v7, v1, 4, s{S_T+3}
    s_waitcnt vmcnt(0)
    """)
    for i in range(8):
        if i % 2 == 0:
            a(f"v_lshlrev_b32 v20, 16, v{8+i//2}")
        else:
            a(f"v_and_b32 v20, s{S_HI}, v{8+i//2}")
        a(f"v_lshlrev_b32 v{12+i}, 16, v{12+i}")
        a(f"v_mul_f32 v{12+i}, v20, v{12+i}")
    for i in range(4):
        a(f"v_cvt_pk_bf16_f32 v{24+i}, v{12+2*i}, v{13+2*i}")
    a(f"global_store_dwordx4 v7, v[24:27], {WSB} sc1")
    a.label("A_wp3")
    a(f"""
    s_waitcnt lgkmcnt(0)
    s_barrier
    """)
    read_nonce()
    a(f"""
    s_barrier
    s_cmp_ge_u32 s{F}, 160
    s_cbranch_scc1 A_end
    s_lshl_b32 s{S_T+3}, s{F}, 3
    s_add_u32 s{S_T+3}, s{S_T+3}, {WS_WFLAG}
    v_mov_b32 v7, s{S_T+3}
    v_mov_b32 v4, s{S_NON+1}
    v_mov_b32 v5, s{S_NON}
    s_waitcnt vmcnt(0)
    s_mov_b64 exec, 1
    global_store_dwordx2 v7, v[4:5], {WSB} sc1
    s_mov_b64 exec, -1
    s_branch A_end
    """)
    a.label("A_touch")
    a(f"""
    s_waitcnt lgkmcnt(0)
    s_barrier
    s_cmp_lg_u32 s{S_G}, 0
    s_cbranch_scc1 A_t1
    """)
    poll_nonce("t")
    a.label("A_t1")
    a(f"""
    s_sub_u32 s{S_T}, s3, {NCH}
    s_mul_i32 s{S_T}, s{S_T}, 611
    v_add_u32 v6, s{S_T}, v0
    v_lshlrev_b32 v6, 7, v6
    s_movk_i32 s{S_T+1}, 611
    v_mov_b32 v8, 0x7fff0000
    v_cmp_gt_u32 vcc, s{S_T+1}, v0
    s_waitcnt lgkmcnt(0)
    s_barrier
    v_cndmask_b32 v6, v8, v6, vcc
    """)
    if int(OPT.get("pf", 1)):
        a(f"buffer_load_dword v{V_SV}, v6, {sr(S_X,4)}, 0 offen")
    read_nonce()
    a.label("A_end")

def gen_main(a):
    K = NAME + "_kernel"
    a.raw(".p2align 8")
    a.raw(f".globl {K}")
    a.raw(f".type {K},@function")
    a.label(K)
    a(f"""
    s_cmp_ge_u32 s2, {NB}
    s_cbranch_scc1 M_done
    """)
    if DBG:
        for k in range(S_ST, S_ST+32): a(f"s_mov_b32 s{k}, 0")
    stamp(a, 0)
    stamp(a, 10, True)
    T = V_T
    a(f"""
    s_load_dwordx8 s[{S_IN}:{S_IN+7}], s[0:1], 8
    s_load_dwordx4 s[{S_IN+8}:{S_IN+11}], s[0:1], 40
    s_load_dwordx2 {sr(S_IN+12)}, s[0:1], 56
    s_load_dwordx2 {sr(S_X)}, s[0:1], 0
    s_load_dwordx2 {sr(S_OUT)}, s[0:1], 72
    s_load_dwordx2 {sr(S_DBG)}, s[0:1], 80
    s_load_dwordx2 {sr(S_WSB)}, s[0:1], 88
    s_memrealtime {sr(S_NON)}
    s_mov_b32 s3, s2
    s_and_b32 s{S_T}, s2, 7
    s_lshr_b32 s2, s2, 3
    s_lshl_b32 s{S_T}, s{S_T}, 5
    s_or_b32 s2, s2, s{S_T}
    v_lshrrev_b32 v1, 6, v0
    v_mov_b32 v3, 0
    v_readfirstlane_b32 s{S_G}, v1
    v_lshlrev_b32 v2, 2, v0
    s_movk_i32 s{S_T}, {L_P//4}
    v_cmp_gt_u32 vcc, s{S_T}, v0
    s_and_saveexec_b64 {sr(S_TM)}, vcc
    ds_write_b32 v2, v3
    s_mov_b64 exec, {sr(S_TM)}
    s_mov_b32 s{S_X+2}, {N*1024}
    s_mov_b32 s{S_X+3}, 0x20000
    s_mov_b32 s{S_OUT+2}, {N*1024}
    s_mov_b32 s{S_OUT+3}, 0x20000
    s_mov_b32 s{S_REC+2}, {NCH*CH*16}
    s_mov_b32 s{S_REC+3}, 0x20000
    s_mov_b32 s{S_OFFS+2}, {NCH*2048}
    s_mov_b32 s{S_OFFS+3}, 0x20000
    s_mov_b32 s{S_HI}, 0xffff0000
    s_or_b32 s{S_T}, s3, s{S_G}
    s_xor_b32 s{S_T}, s{S_T}, 11
    s_waitcnt lgkmcnt(0)
    s_cmp_lg_u32 s3, 0
    s_cbranch_scc1 M_nonon
    s_cmp_lg_u32 s{S_G}, 11
    s_cbranch_scc1 M_nonon
    s_lshl_b32 s{S_NON+1}, s{S_NON+1}, 24
    s_or_b32 s{S_NON}, s{S_NON}, 1
    v_mov_b32 v4, s{S_NON}
    v_mov_b32 v5, s{S_NON+1}
    s_mov_b64 exec, 1
    global_store_dwordx2 v3, v[4:5], {sr(S_DBG)} sc1
    s_mov_b64 exec, -1
    """)
    a.label("M_nonon")
    a(f"""
    s_mov_b32 s{S_REC}, s{S_WSB}
    s_and_b32 s{S_REC+1}, s{S_WSB+1}, 0xffff
    s_add_u32 s{S_OFFS}, s{S_WSB}, {WS_OFF}
    s_addc_u32 s{S_OFFS+1}, s{S_WSB+1}, 0
    s_add_u32 s{S_WF}, s{S_WSB}, {WS_WF}
    s_addc_u32 s{S_WF+1}, s{S_WSB+1}, 0
    s_and_b32 s{S_OFFS+1}, s{S_OFFS+1}, 0xffff
    s_and_b32 s{S_X+1}, s{S_X+1}, 0xffff
    s_and_b32 s{S_OUT+1}, s{S_OUT+1}, 0xffff
    """)
    phase_a(a)
    stamp(a, 14)
    PO = V_ACC
    a(f"""
    v_lshrrev_b32 v{T}, 4, v0
    v_lshlrev_b32 v{PO+6}, 11, v{T}
    s_lshl_b32 s{S_T}, s2, 3
    v_add_u32 v{PO+6}, s{S_T}, v{PO+6}
    v_add_u32 v{PO+7}, {48*2048}, v{PO+6}
    v_add_u32 v{PO+8}, {96*2048}, v{PO+6}
    v_cmp_le_u32 {sr(S_PEND)}, {NCH-96}, v{T}
    s_mov_b32 s{S_SPIN}, {SPIN_MAX}
    """)
    for r in range(3):
        a(f"buffer_load_dwordx2 {vr(PO+2*r,2)}, v{PO+6+r}, {sr(S_OFFS,4)}, 0 offen sc1")
    a(f"""
    v_mov_b32 v{V_JB}, 0
    v_mov_b32 v{V_DONE}, 0
    """)
    a(f"""
    s_mov_b32 s{S_PLO}, 0x05040100
    s_mov_b32 s{S_PHI}, 0x07060302
    s_mov_b32 s{S_RND}, 0
    v_and_b32 v{T}, 63, v0
    v_and_b32 v{T+1}, 15, v{T}
    v_lshrrev_b32 v{T+2}, 4, v{T}
    v_lshlrev_b32 v{V_N16}, 4, v{T+1}
    v_lshlrev_b32 v{V_N16+1}, 4, v{T+1}
    v_and_b32 v{V_C}, 3, v{T}
    v_bfe_u32 v{T+3}, v{T}, 2, 2
    s_mul_i32 s{S_T}, s{S_G}, {CAP*16}
    s_add_u32 s{S_T}, s{S_T}, {L_LIST}
    v_lshl_add_u32 v{V_VS}, v{T+2}, 4, s{S_T}
    v_lshl_add_u32 v{V_VC}, v{T+3}, 6, v{V_VS}
    v_mul_u32_u24 v{T+2}, 12, v{T+2}
    v_add_u32 v{T+2}, s{S_G}, v{T+2}
    v_cmp_gt_u32 {sr(S_FEX)}, 40, v{T+2}
    v_mul_u32_u24 v{V_PB}, {PSTR}, v{T+2}
    v_and_b32 v{T+2}, 15, v{T+2}
    v_xor_b32 v{T+2}, v{T+2}, v{T+1}
    v_lshl_add_u32 v{V_PB}, v{T+2}, 4, v{V_PB}
    v_add_u32 v{V_PB}, {L_P}, v{V_PB}
    """)
    L = V_L[0]; L2 = V_L[1]
    a.label("M_poll")
    a(f"""
    s_waitcnt vmcnt(0)
    s_mov_b32 s{S_T}, 0xff000000
    """)
    for r in range(3):
        a(f"""
        v_and_b32 v{T}, s{S_T}, v{PO+2*r}
        v_cmp_eq_u32 {sr(S_M+2*r)}, s{S_NON+1}, v{T}
        v_cmp_eq_u32 vcc, s{S_NON}, v{PO+2*r+1}
        s_and_b64 {sr(S_M+2*r)}, {sr(S_M+2*r)}, vcc
        """)
    a(f"""
    s_or_b64 {sr(S_M+4)}, {sr(S_M+4)}, {sr(S_PEND)}
    s_and_b64 {sr(S_M)}, {sr(S_M)}, {sr(S_M+2)}
    s_and_b64 {sr(S_M)}, {sr(S_M)}, {sr(S_M+4)}
    s_cmp_eq_u64 {sr(S_M)}, -1
    s_cbranch_scc1 M_polled
    s_sub_u32 s{S_SPIN}, s{S_SPIN}, 1
    s_cmp_eq_u32 s{S_SPIN}, 0
    s_cbranch_scc1 M_polled
    """)
    for r in range(3):
        a(f"buffer_load_dwordx2 {vr(PO+2*r,2)}, v{PO+6+r}, {sr(S_OFFS,4)}, 0 offen sc1")
    a("s_branch M_poll")
    a.label("M_polled")
    for r in range(3):
        a(f"v_and_b32 v{V_OFF+r}, 0xffffff, v{PO+2*r}")
    a(f"""
    s_mov_b64 {sr(S_ACT)}, -1
    s_mov_b32 s{S_FIRST}, 0
    s_min_u32 s{S_T}, s{S_G}, 7
    s_mul_i32 s{S_T}, s{S_T}, 160
    s_add_u32 s{S_T}, s{S_T}, {WS_WFLAG}
    v_and_b32 v{V_SV+4}, 63, v0
    v_min_u32 v{V_SV+4}, 19, v{V_SV+4}
    v_lshl_add_u32 v{V_SV+4}, v{V_SV+4}, 3, s{S_T}
    global_load_dwordx2 {vr(V_SV+2,2)}, v{V_SV+4}, {sr(S_WSB)} sc1
    s_branch M_w0
    """)
    a.label("M_init")
    a(f"""
    v_mov_b32 v{T+1}, 0
    v_lshlrev_b32 v{T}, 2, v0
    s_movk_i32 s{S_T}, {L_P//4}
    v_cmp_gt_u32 vcc, s{S_T}, v0
    s_and_saveexec_b64 {sr(S_TM)}, vcc
    ds_write_b32 v{T}, v{T+1}
    s_mov_b64 exec, {sr(S_TM)}
    s_mov_b64 {sr(S_ACT)}, -1
    s_waitcnt lgkmcnt(0)
    s_barrier
    s_mov_b32 s{S_FIRST}, 1
    """)
    a.label("M_w0")
    stamp(a, 1)
    a.label("M_window")
    REM = L2; ADR = L2 + 3; CTR = L2 + 6; RNK = L2 + 12; BAS = L2 + 18; ONE = L2 + 24
    a(f"""
    v_and_b32 v{T}, 15, v0
    v_add_u32 v{T}, v{T}, v{V_JB}
    v_lshrrev_b32 v{T+1}, 4, v0
    v_mul_u32_u24 v{T+1}, {CH}, v{T+1}
    v_add_u32 v{T+1}, v{T+1}, v{T}
    v_mov_b32 v{ONE}, 1
    """)
    for r in range(3):
        a(f"""
        v_lshrrev_b32 v{REM+r}, 12, v{V_OFF+r}
        v_sub_u32 v{REM+r}, v{REM+r}, v{T}
        v_and_b32 v{ADR+r}, 0xfff, v{V_OFF+r}
        v_add_u32 v{ADR+r}, v{ADR+r}, v{T+1}
        v_lshlrev_b32 v{ADR+r}, 4, v{ADR+r}
        """)
        if r: a(f"v_add_u32 v{ADR+r}, {48*CH*16*r}, v{ADR+r}")
    for k in range(6):
        r = k % 3; h = k // 3
        m = sr(S_M + 2*k)
        a(f"""
        v_cmp_lt_i32 {m}, {16*h}, v{REM+r}
        v_and_b32 v{T+2}, {1<<k}, v{V_DONE}
        v_cmp_eq_u32 vcc, 0, v{T+2}
        s_and_b64 {m}, {m}, vcc
        s_and_b64 {m}, {m}, {sr(S_ACT)}
        """)
    a.label("M_rload")
    for k in range(6):
        r = k % 3; h = k // 3
        a(f"""
        s_mov_b64 exec, {sr(S_M+2*k)}
        s_cbranch_execz M_sl{k}
        buffer_load_dwordx4 {vr(L+4*k,4)}, v{ADR+r}, {sr(S_REC,4)}, 0 offen offset:{256*h} sc1 {OPT.get('rl','')}
        """)
        a.label(f"M_sl{k}")
    a(f"""
    s_mov_b64 {sr(S_PEND)}, 0
    s_mov_b32 s{S_T}, 0xff000000
    s_waitcnt vmcnt(0)
    """)
    for k in range(6):
        a(f"""
        s_mov_b64 exec, {sr(S_M+2*k)}
        s_cbranch_execz M_sc{k}
        v_and_b32 v{T}, s{S_T}, v{L+4*k+2}
        v_cmp_ne_u32 {sr(S_TM)}, s{S_NON+1}, v{T}
        v_cmp_ne_u32 vcc, s{S_NON}, v{L+4*k+3}
        s_or_b64 {sr(S_PEND)}, {sr(S_PEND)}, {sr(S_TM)}
        s_or_b64 {sr(S_PEND)}, {sr(S_PEND)}, vcc
        """)
        a.label(f"M_sc{k}")
    a(f"""
    s_mov_b64 exec, -1
    s_cmp_eq_u64 {sr(S_PEND)}, 0
    s_cbranch_scc1 M_rok
    s_sub_u32 s{S_SPIN}, s{S_SPIN}, 1
    s_cmp_gt_i32 s{S_SPIN}, 0
    s_cbranch_scc1 M_rload
    """)
    a.label("M_rok")
    stamp(a, 13)
    a(f"""
    s_cmp_lg_u32 s{S_FIRST}, 0
    s_cbranch_scc1 M_append
    """)
    for k in range(6):
        a(f"""
        s_mov_b64 exec, {sr(S_M+2*k)}
        s_cbranch_execz M_sa{k}
        v_bfe_u32 v{CTR+k}, v{L+4*k+2}, 16, 8
        v_lshlrev_b32 v{CTR+k}, 2, v{CTR+k}
        ds_add_rtn_u32 v{RNK+k}, v{CTR+k}, v{ONE} offset:{L_CC}
        """)
        a.label(f"M_sa{k}")
    SCN = V_ACC
    a(f"""
    s_mov_b64 exec, -1
    v_and_b32 v{T}, 63, v0
    v_lshlrev_b32 v{T}, 4, v{T}
    v_cmp_lt_u32 vcc, 0, v{V_C}
    v_cmp_lt_u32 {sr(S_TM)}, 1, v{V_C}
    s_waitcnt lgkmcnt(0)
    s_barrier
    ds_read_b128 {vr(SCN,4)}, v{T} offset:{L_CC}
    s_waitcnt lgkmcnt(0)
    v_add_u32 v{SCN+4}, v{SCN}, v{SCN+1}
    v_add_u32 v{SCN+5}, v{SCN+4}, v{SCN+2}
    v_add_u32 v{SCN+6}, v{SCN+5}, v{SCN+3}
    s_nop 1
    v_mov_b32_dpp v{SCN+7}, v{SCN+6} quad_perm:[0,0,1,2] row_mask:0xf bank_mask:0xf
    v_cndmask_b32 v{SCN+7}, 0, v{SCN+7}, vcc
    v_add_u32 v{SCN+7}, v{SCN+7}, v{SCN+6}
    s_nop 1
    v_mov_b32_dpp v{SCN+8}, v{SCN+7} quad_perm:[0,0,0,1] row_mask:0xf bank_mask:0xf
    v_cndmask_b32 v{SCN+8}, 0, v{SCN+8}, {sr(S_TM)}
    v_add_u32 v{SCN+8}, v{SCN+8}, v{SCN+7}
    v_sub_u32 v{SCN+8}, v{SCN+8}, v{SCN+6}
    v_add_u32 v{SCN+9}, v{SCN+8}, v{SCN}
    v_add_u32 v{SCN+10}, v{SCN+8}, v{SCN+4}
    v_add_u32 v{SCN+11}, v{SCN+8}, v{SCN+5}
    s_mov_b32 exec_hi, 0xffff
    ds_write_b128 v{T}, {vr(SCN+8,4)} offset:{L_BASE}
    """)
    for k in range(6):
        a(f"""
        s_mov_b64 exec, {sr(S_M+2*k)}
        s_cbranch_execz M_sb{k}
        ds_read_b32 v{BAS+k}, v{CTR+k} offset:{L_BASE}
        """)
        a.label(f"M_sb{k}")
    a("s_branch M_place")
    a.label("M_append")
    for k in range(6):
        a(f"""
        s_mov_b64 exec, {sr(S_M+2*k)}
        v_bfe_u32 v{T}, v{L+4*k+2}, 20, 4
        v_lshlrev_b32 v{T+1}, 2, v{T}
        v_lshlrev_b32 v{T}, 6, v{T}
        ds_add_rtn_u32 v{RNK+k}, v{T+1}, v{ONE} offset:{L_ACNT}
        ds_read_b32 v{BAS+k}, v{T} offset:{L_BASE+60}
        ds_read_b32 v{CTR+k}, v{T} offset:{L_CC+60}
        s_waitcnt lgkmcnt(0)
        v_add_u32 v{BAS+k}, v{BAS+k}, v{CTR+k}
        """)
    a.label("M_place")
    a(f"""
    s_mov_b64 {sr(S_PEND)}, 0
    s_mov_b32 s{S_T}, {L_LIST}
    s_movk_i32 s{S_T+2}, {CAP}
    s_mov_b32 s{S_FIRST}, 1
    s_waitcnt lgkmcnt(0)
    """)
    for k in range(6):
        m = sr(S_M + 2*k)
        a(f"""
        s_mov_b64 exec, {m}
        s_cbranch_execz M_sp{k}
        v_add_u32 v{RNK+k}, v{RNK+k}, v{BAS+k}
        v_bfe_u32 v{T}, v{L+4*k+2}, 20, 4
        v_bfe_u32 v{T+1}, v{L+4*k+2}, 14, 2
        v_cmp_gt_u32 vcc, s{S_T+2}, v{RNK+k}
        v_mad_u32_u24 v{T}, v{T}, s{S_T+2}, v{RNK+k}
        v_lshlrev_b32 v{L+4*k+3}, v{T+1}, v{ONE}
        v_and_b32 v{L+4*k+2}, 0x3fff, v{L+4*k+2}
        v_lshlrev_b32 v{L+4*k+2}, 10, v{L+4*k+2}
        s_andn2_b64 {sr(S_TM)}, {m}, vcc
        s_or_b64 {sr(S_PEND)}, {sr(S_PEND)}, {sr(S_TM)}
        s_mov_b64 exec, vcc
        v_lshl_add_u32 v{CTR+k}, v{T}, 4, s{S_T}
        ds_write_b128 v{CTR+k}, {vr(L+4*k,4)}
        v_or_b32 v{V_DONE}, {1<<k}, v{V_DONE}
        """)
        a.label(f"M_sp{k}")
    a(f"""
    s_mov_b64 exec, -1
    v_mov_b32 v{T+2}, {L_MORE}
    v_max_i32 v{T}, v{REM}, v{REM+1}
    v_max_i32 v{T}, v{T}, v{REM+2}
    s_mov_b64 exec, {sr(S_PEND)}
    ds_write_b32 v{T+2}, v{ONE}
    s_andn2_b64 {sr(S_ACT)}, {sr(S_ACT)}, {sr(S_PEND)}
    s_mov_b64 exec, {sr(S_ACT)}
    v_add_u32 v{V_JB}, 32, v{V_JB}
    v_mov_b32 v{V_DONE}, 0
    v_cmp_lt_i32 vcc, 32, v{T}
    s_mov_b64 exec, -1
    s_cmp_lg_u64 vcc, 0
    s_cbranch_scc1 M_window
    s_lshl_b32 s{S_T}, s{S_G}, 6
    v_mov_b32 v{T}, s{S_T}
    s_lshl_b32 s{S_T}, s{S_G}, 2
    v_mov_b32 v{T+1}, s{S_T}
    s_waitcnt lgkmcnt(0)
    """)
    stamp(a, 15)
    a(f"""
    s_barrier
    ds_read_b32 v{V_A[0]}, v{T} offset:{L_BASE+60}
    ds_read_b32 v{V_A[0]+1}, v{T} offset:{L_CC+60}
    ds_read_b32 v{V_A[0]+2}, v{T+1} offset:{L_ACNT}
    ds_read_b32 v{V_A[0]+3}, v{T+2}
    v_and_b32 v{T}, 63, v0
    v_mov_b32 v{V_B[0]}, {OOBOFF}
    v_mov_b32 v{V_B[0]+1}, 0
    s_mov_b32 s{S_S1}, 0
    s_mov_b32 s{S_S2}, 0
    s_mov_b32 s{S_B1}, 0
    s_waitcnt lgkmcnt(0)
    v_add3_u32 v{T+1}, v{V_A[0]}, v{V_A[0]+1}, v{V_A[0]+2}
    v_readfirstlane_b32 s{S_MORE}, v{V_A[0]+3}
    v_readfirstlane_b32 s{S_T}, v{T+1}
    s_min_u32 s{S_T}, s{S_T}, {CAP}
    s_add_u32 s{S_S}, s{S_T}, 31
    s_lshr_b32 s{S_S}, s{S_S}, 5
    s_max_u32 s{S_S}, s{S_S}, 1
    s_lshl_b32 s{S_T+1}, s{S_S}, 5
    v_add_u32 v{T}, s{S_T}, v{T}
    v_cmp_gt_u32 vcc, s{S_T+1}, v{T}
    s_mul_i32 s{S_T+2}, s{S_G}, {CAP*16}
    s_add_u32 s{S_T+2}, s{S_T+2}, {L_LIST+8}
    v_lshl_add_u32 v{T}, v{T}, 4, s{S_T+2}
    s_mov_b64 exec, vcc
    ds_write_b64 v{T}, {vr(V_B[0],2)}
    s_mov_b64 exec, -1
    s_sub_u32 s{S_NLAST}, s{S_T}, s{S_T+1}
    s_add_u32 s{S_NLAST}, s{S_NLAST}, 35
    s_lshr_b32 s{S_NLAST}, s{S_NLAST}, 2
    """)
    meta_reads(a)
    a(f"""
    s_cmp_gt_u32 s{S_S}, 2
    s_cbranch_scc1 M_nozl
    """)
    for k in range(64):
        a(f"v_mov_b32 v{V_L[0]+k}, 0")
    a.label("M_nozl")
    a(f"""
    s_cmp_lg_u32 s{S_RND}, 0
    s_cbranch_scc1 M_wfok
    """)
    a.label("M_wfchk")
    a(f"""
    v_cmp_eq_u32 {sr(S_TM)}, s{S_NON+1}, v{V_SV+2}
    v_cmp_eq_u32 vcc, s{S_NON}, v{V_SV+3}
    s_and_b64 {sr(S_TM)}, {sr(S_TM)}, vcc
    s_cmp_eq_u64 {sr(S_TM)}, -1
    s_cbranch_scc1 M_wfok
    s_sub_u32 s{S_SPIN}, s{S_SPIN}, 1
    s_cmp_le_i32 s{S_SPIN}, 0
    s_cbranch_scc1 M_wfok
    global_load_dwordx2 {vr(V_SV+2,2)}, v{V_SV+4}, {sr(S_WSB)} sc1
    s_waitcnt vmcnt(0)
    s_branch M_wfchk
    """)
    a.label("M_wfok")
    stamp(a, 2)
    if not OPT.get("noprio"): a("s_setprio 3")
    a("s_waitcnt lgkmcnt(0)")
    stage_x(a, 0, "i", wait=False)
    a.label("M_goi")
    advance(a)
    a(f"s_mov_b32 s{S_FIRST}, 1")
    for p in range(2):
        a.label(f"M_it{p}")
        a(f"""
        s_waitcnt lgkmcnt(0)
        s_cmp_eq_u32 s{S_B1}, 1024
        s_cbranch_scc1 M_w{p}_0
        """)
        stage_x(a, p ^ 1, str(p))
        a.label(f"M_go{p}")
        a(f"""
        s_cmp_eq_u32 s{S_FIRST}, 0
        s_cbranch_scc1 M_cn{p}
        """)
        compute(a, p, True)
        a(f"s_branch M_cd{p}")
        a.label(f"M_cn{p}")
        compute(a, p, False)
        a.label(f"M_cd{p}")
        a(f"""
        s_mov_b32 s{S_FIRST}, 0
        s_cmp_lg_u32 s{S_S1}, 0
        s_cbranch_scc1 M_nofl{p}
        s_mov_b32 s{S_FIRST}, 1
        s_call_b64 {sr(S_RET)}, M_flush
        s_cmp_eq_u32 s{S_B1}, 1024
        s_cbranch_scc1 M_end
        """)
        a.label(f"M_nofl{p}")
        advance(a)
        if p == 1:
            a("s_branch M_it0")
    flush_sub(a)
    a.label("M_end")
    a(f"""
    s_cmp_eq_u32 s{S_MORE}, 0
    s_cbranch_scc1 M_gemm
    s_mov_b32 s{S_RND}, 1
    s_waitcnt lgkmcnt(0)
    s_barrier
    s_branch M_init
    """)
    a.label("M_gemm")
    W = 56; ACC = [24, 40]; BB = 136; NBB = 6
    a(f"""
    s_cmp_ge_u32 s{S_G}, 8
    s_cbranch_scc0 M_gw
    s_waitcnt lgkmcnt(0)
    s_barrier
    """)
    stamp_dump(a)
    a("s_endpgm")
    a.label("M_gw")
    a(f"""
    v_and_b32 v10, 63, v0
    s_mul_i32 s{S_T}, s{S_G}, {20*1024}
    v_lshl_add_u32 v11, v10, 4, s{S_T}
    s_waitcnt lgkmcnt(0)
    """)
    for ks in range(20):
        if ks % 4 == 0 and ks:
            a("v_add_u32 v11, 4096, v11")
        a(f"global_load_dwordx4 {vr(W+4*ks,4)}, v11, {sr(S_WF)} offset:{1024*(ks%4)} sc1")
    a(f"""
    v_and_b32 v12, 15, v10
    v_lshrrev_b32 v13, 4, v10
    v_mul_u32_u24 v14, {PSTR}, v12
    v_add_u32 v14, {L_P}, v14
    """)
    for k4 in range(4):
        a(f"""
        v_add_u32 v15, {4*k4}, v13
        v_xor_b32 v15, v15, v12
        v_lshl_add_u32 v{1+k4}, v15, 4, v14
        v_add_u32 v{5+k4}, {32*PSTR}, v{1+k4}
        """)
    a(f"""
    s_mul_i32 s{S_T}, s2, 625
    s_add_u32 s{S_T+3}, s{S_T}, {625+15}
    s_add_u32 s{S_T}, s{S_T}, 15
    s_lshr_b32 s{S_T}, s{S_T}, 4
    s_lshr_b32 s{S_T+3}, s{S_T+3}, 4
    s_sub_u32 s{S_T+3}, s{S_T+3}, s{S_T}
    s_sub_u32 s{S_T+3}, s{S_T+3}, 32
    s_lshl_b32 s{S_T}, s{S_T}, 10
    s_lshl_b32 s{S_T+1}, s{S_G}, 5
    s_add_u32 s{S_T}, s{S_T}, s{S_T+1}
    v_lshl_add_u32 v9, v12, 10, s{S_T}
    v_lshl_add_u32 v9, v13, 3, v9
    v_cmp_gt_u32 {sr(S_TM)}, s{S_T+3}, v12
    s_mov_b32 s{S_T+2}, 0xbfb8aa3b
    s_barrier
    """)
    stamp(a, 7)
    steps = []
    for t in range(3):
        for c in range(2):
            for k4 in range(4):
                steps.append((t, 0, c, k4, c*4 + k4, c == 0 and k4 == 0))
        for cc in range(3):
            for k4 in range(4):
                for i in range(3):
                    steps.append((t, 1+i, 2+3*i+cc, k4, 8 + cc*4 + k4, cc == 0 and k4 == 0))
    def rd(n):
        t, o, c, k4, ws, first = steps[n]
        base = (1 + k4) if t < 2 else (5 + k4)
        off = c*256 + (16*PSTR if t == 1 else 0)
        a(f"ds_read_b128 {vr(BB+4*(n%NBB),4)}, v{base} offset:{off}")
    def epilogue(t):
        A0 = ACC[t % 2]
        a("s_nop 7")
        for r in range(4):
            a(f"v_mul_f32 v{12+r}, s{S_T+2}, v{A0+r}")
        for r in range(4):
            a(f"v_exp_f32 v{12+r}, v{12+r}")
        a(f"v_cvt_pk_bf16_f32 v16, v{A0}, v{A0+1}")
        a(f"v_cvt_pk_bf16_f32 v17, v{A0+2}, v{A0+3}")
        for r in range(4):
            a(f"v_add_f32 v{12+r}, 1.0, v{12+r}")
        for r in range(4):
            a(f"v_rcp_f32 v{12+r}, v{12+r}")
        if t == 2:
            a(f"v_mov_b32 v10, 0x7ffff000")
            a(f"v_cndmask_b32 v9, v10, v9, {sr(S_TM)}")
        a(f"buffer_store_dwordx2 v[16:17], v9, {sr(S_OUT,4)}, 0 offen {OPT.get('of','').replace('+',' ')}")
        for i in range(3):
            B0 = A0 + 4 + 4*i
            for r in range(4):
                a(f"v_mul_f32 v{B0+r}, v{B0+r}, v{12+r}")
            a(f"v_cvt_pk_bf16_f32 v{18+2*i}, v{B0}, v{B0+1}")
            a(f"v_cvt_pk_bf16_f32 v{19+2*i}, v{B0+2}, v{B0+3}")
            a(f"buffer_store_dwordx2 {vr(18+2*i,2)}, v9, {sr(S_OUT,4)}, 0 offen offset:{256*(i+1)} {OPT.get('of','').replace('+',' ')}")
        if t < 2:
            a("v_add_u32 v9, 16384, v9")
    n_steps = len(steps)
    for n in range(NBB - 1):
        rd(n)
    wseen = -1
    for n in range(n_steps):
        t, o, c, k4, ws, first = steps[n]
        if n + NBB - 1 < n_steps:
            rd(n + NBB - 1)
            pend = NBB - 1
        else:
            pend = n_steps - 1 - n
        w = f"s_waitcnt lgkmcnt({pend})"
        if t == 0 and ws > wseen:
            w = f"s_waitcnt vmcnt({19-ws}) lgkmcnt({pend})"
            wseen = ws
        a(w)
        acc = vr(ACC[t % 2] + 4*o, 4)
        a(f"v_mfma_f32_16x16x32_bf16 {acc}, {vr(W+4*ws,4)}, {vr(BB+4*(n%NBB),4)}, {'0' if first else acc}")
        if n + 1 == n_steps or steps[n+1][0] != t:
            epilogue(t)
    stamp(a, 8)
    stamp_dump(a)
    a.label("M_done")
    a("s_endpgm")

def kd(a, name, vg, sg):
    acc = (vg + 3) // 4 * 4
    a.raw(f""".p2align 6
.amdhsa_kernel {name}
  .amdhsa_next_free_vgpr {vg}
  .amdhsa_next_free_sgpr {sg}
  .amdhsa_accum_offset {acc}
  .amdhsa_group_segment_fixed_size 0
  .amdhsa_kernarg_size 96
  .amdhsa_user_sgpr_count 2
  .amdhsa_user_sgpr_kernarg_segment_ptr 1
  .amdhsa_system_sgpr_workgroup_id_x 1
  .amdhsa_float_denorm_mode_32 3
.end_amdhsa_kernel""")

def main():
    global DBG
    OPT.update(dict(x.split("=") for x in sys.argv[2:]))
    DBG = bool(int(OPT.get("dbg", 0)))
    a = Asm()
    ref = open(f"cdna_kernels/{NAME}.s.ref").read().split("\n")
    for ln in ref:
        if ln.startswith(";") and "@launch" not in ln and "Override" not in ln and "grid=ceil" not in ln:
            a.raw(ln)
    a.raw(f"; @launch kernel={NAME}_kernel grid=({NB},1,1) block=({NT},1,1) lds={L_TOT}")
    a.raw('.amdgcn_target "amdgcn-amd-amdhsa--gfx950"')
    a.raw(".text")
    gen_main(a)
    a.raw('.section .rodata,"a"')
    kd(a, NAME + "_kernel", NVG, 102 if DBG else 70)
    open(sys.argv[1], "w").write(a.text())

main()
```

```python
import sys

NAME = "gather_scatter__tensor_product_equiv_equiformer__graph"
N = 10000
E = 320000
NB = 256
CH = 1250
WS_OFF = 0x500000
WS_WF = 0x600000
WS_WFLAG = 0x640000
SPIN_MAX = 1 << 18
TAGM = 0xffc00000

NG = 12
NT = NG * 64
CAP = 224
PSTR = 2816
L_CC = 512
L_BASE = L_CC + NG * 64
L_ACNT = L_BASE + NG * 64
L_MORE = L_ACNT + 60
L_NONCE = L_ACNT + 64
L_FC = L_ACNT + 80
OSTR = 1040
L_P = L_ACNT + 128
L_LIST = L_P + 40 * PSTR
L_TOT = L_LIST + NG * CAP * 16
assert L_TOT <= 163840 and L_P % 16 == 0
OOBOFF = 0x00FFFC00

OPT = {}
DBG = False

class Asm:
    def __init__(self):
        self.l = []
    def __call__(self, s):
        for x in s.split("\n"):
            x = x.strip()
            if x:
                self.l.append("    " + x)
    def label(self, s):
        self.l.append(s + ":")
    def raw(self, s):
        self.l.append(s)
    def text(self):
        return "\n".join(self.l) + "\n"

def vr(a, n):
    return f"v[{a}:{a+n-1}]"
def sr(a, n=2):
    return f"s[{a}:{a+n-1}]"
def fl(k):
    return OPT.get(k, {'of': 'sc1'}.get(k, '')).replace('+', ' ')

V_C = 1; V_N16 = 2; V_VS = 4; V_VC = 5; V_PB = 6; V_JB = 7; V_DONE = 8
V_OFF = 9
V_T = 12
V_OH = 16; V_CA = 18; V_TCH = 19
V_SC = 20; V_IX = 24
V_A = [32, 36]
V_B = [40, 44]
V_ACC = 48
V_SV = 80
V_L = [104, 136]
NVG = 168
S_X = 4; S_OUT = 8; S_REC = 12; S_OFFS = 16; S_WF = 20
S_G = 22; S_S = 23; S_S1 = 24; S_B1 = 25; S_S2 = 26; S_PLO = 27; S_PHI = 28; S_NLAST = 29
S_RND = 30; S_MORE = 31; S_T = 32
S_M = 40
S_IN = 40
S_ACT = 52; S_PEND = 54; S_TM = 56; S_FEX = 58; S_RET = 60; S_HI = 62; S_FIRST = 63
S_NON = 64; S_DBG = 66; S_WSB = 68; S_SPIN = 0; S_WOK = 1; S_FLP = 63
S_ST = 70

def stamp(a, k, real=False):
    if DBG:
        a(f"s_mem{'realtime' if real else 'time'} {sr(S_ST+2*k)}")
def stamp_dump(a):
    if DBG:
        a("s_waitcnt lgkmcnt(0) vmcnt(0)")
        stamp(a, 9)
        stamp(a, 11, True)
        a("s_waitcnt lgkmcnt(0)")
        a(f"s_mul_i32 s{S_T}, s2, {NG}")
        a(f"s_add_u32 s{S_T}, s{S_T}, s{S_G}")
        a(f"s_lshl_b32 s{S_T}, s{S_T}, 7")
        a(f"s_add_u32 s{S_T}, s{S_T}, 0x800000")
        a(f"v_mov_b32 v1, s{S_T}")
        for k in range(0, 32, 2):
            a(f"v_mov_b32 v2, s{S_ST+k}")
            a(f"v_mov_b32 v3, s{S_ST+k+1}")
            a(f"global_store_dwordx2 v1, v[2:3], {sr(S_WSB)} offset:{4*k}")
            a("s_nop 1")

def comp011(i): return 2 + 3*i
def comp101(i): return 3 + 3*i
def comp111(i): return 4 + 3*i

def touch(a, beta, part, va, vd):
    a(f"""
    s_mul_i32 s{S_T+6}, s3, 79
    s_add_u32 s{S_T+6}, s{S_T+6}, {64*part}
    v_and_b32 v{va}, 63, v0
    v_add_u32 v{va}, s{S_T+6}, v{va}
    v_and_b32 v{vd}, 1, v{va}
    v_lshrrev_b32 v{va}, 1, v{va}
    v_lshlrev_b32 v{va}, 10, v{va}
    v_lshl_add_u32 v{va}, v{vd}, 7, v{va}
    """)
    if part: a("s_mov_b64 exec, 0x7fff")
    a(f"buffer_load_dword v{vd}, v{va}, {sr(S_X,4)}, 0 offen offset:{256*beta}")
    if part: a("s_mov_b64 exec, -1")

WREG = {}
for n_, ks_ in enumerate([0, 1, 2, 3, 8, 9, 10, 11]): WREG[ks_] = 136 + 4*n_
for n_, ks_ in enumerate([12, 13, 14, 15, 16, 17, 18, 19, 4, 5, 6, 7]): WREG[ks_] = 88 + 4*n_
def wload(a, va, kss):
    a(f"""
    s_sub_u32 s{S_T+6}, s{S_G}, 4
    s_mul_i32 s{S_T+6}, s{S_T+6}, {20*1024}
    v_and_b32 v{va}, 63, v0
    v_lshl_add_u32 v{va}, v{va}, 4, s{S_T+6}
    """)
    cur = 0
    for ks in kss:
        blk = ks // 4 * 4096
        if blk != cur:
            if blk > cur: a(f"v_add_u32 v{va}, {blk - cur}, v{va}")
            else: a(f"v_subrev_u32 v{va}, {cur - blk}, v{va}")
            cur = blk
        a(f"global_load_dwordx4 {vr(WREG[ks],4)}, v{va}, {sr(S_WF)} offset:{1024*(ks%4)} sc1")

def meta_reads(a):
    a(f"""
    s_lshl_b32 s{S_T}, s{S_S2}, 9
    v_add_u32 v{V_T}, s{S_T}, v{V_VS}
    v_add_u32 v{V_CA}, s{S_T}, v{V_VC}
    """)
    for i in range(0, 8, 2):
        a(f"ds_read2_b32 {vr(V_IX+i,2)}, v{V_T} offset0:{16*i+2} offset1:{16*(i+1)+2}")
    a(f"ds_read2_b32 {vr(V_OH,2)}, v{V_CA} offset0:3 offset1:67")

def stage_x(a, p, tag, wait=True):
    L = V_L[p]; A = V_A[p]
    for i in range(0, 8, 2):
        a(f"v_pk_add_f32 {vr(V_IX+i,2)}, {vr(V_IX+i,2)}, {vr(V_N16,2)}")
    a(f"""
    v_bfe_i32 v{V_OH}, v{V_OH}, v{V_C}, 1
    v_bfe_i32 v{V_OH+1}, v{V_OH+1}, v{V_C}, 1
    s_add_u32 s{S_S2}, s{S_S1}, 1
    v_and_b32 v{V_OH}, v{V_OH}, v{V_CA}
    v_and_b32 v{V_OH+1}, v{V_OH+1}, v{V_CA}
    s_cmp_eq_u32 s{S_S2}, s{S_S}
    ds_read_b64_tr_b16 {vr(A,2)}, v{V_OH}
    ds_read_b64_tr_b16 {vr(A+2,2)}, v{V_OH+1} offset:256
    s_cbranch_scc1 M_part{tag}
    """)
    def load(i):
        a(f"buffer_load_dwordx4 {vr(L+4*i,4)}, v{V_IX+i}, {sr(S_X,4)}, s{S_B1} offen")
    a.label(f"M_full{tag}")
    for i in range(8):
        load(i)
    meta_reads(a)
    if wait: a("s_waitcnt vmcnt(8)")
    a(f"s_branch M_go{tag}")
    a.label(f"M_part{tag}")
    a(f"""
    s_mov_b32 s{S_S2}, 0
    s_cmp_eq_u32 s{S_NLAST}, 8
    s_cbranch_scc1 M_full{tag}
    """)
    for i in range(7):
        a(f"s_cmp_eq_u32 s{S_NLAST}, {i}")
        a(f"s_cbranch_scc1 M_w{tag}_{i}")
        load(i)
    for i in range(7, -1, -1):
        a.label(f"M_w{tag}_{i}")
        if wait:
            a(f"s_waitcnt vmcnt({i})")
            if i > 0: a(f"s_branch M_pm{tag}")
    a.label(f"M_pm{tag}")
    meta_reads(a)

def advance(a):
    a(f"""
    s_mov_b32 s{S_S1}, s{S_S2}
    s_cmp_eq_u32 s{S_S2}, 0
    s_cselect_b32 s{S_T}, 256, 0
    s_add_u32 s{S_B1}, s{S_B1}, s{S_T}
    """)

def compute(a, p, first):
    L = V_L[p]; A = V_A[p]
    def perms(j):
        B = V_B[j % 2]
        sel = S_PHI if j % 2 else S_PLO
        for q in range(4):
            a(f"v_perm_b32 v{B+q}, v{L+4*(2*q+1)+j//2}, v{L+4*(2*q)+j//2}, s{sel}")
    perms(0)
    for j in range(8):
        if j + 1 < 8:
            perms(j + 1)
        else:
            a("s_nop 1")
        acc = vr(V_ACC+4*j,4)
        a(f"v_mfma_f32_16x16x32_bf16 {acc}, {vr(A,4)}, {vr(V_B[j%2],4)}, {'0' if first else acc}")

wc_n = [0]
def write_comp(a, comp, regs):
    n = wc_n[0]; wc_n[0] += 1
    a(f"""
    s_cmp_eq_u32 s{S_RND}, 0
    s_cbranch_scc1 M_wc{n}
    ds_read_b128 {vr(V_SC,4)}, v{V_PB} offset:{comp*256}
    s_waitcnt lgkmcnt(0)
    """)
    for d in range(4):
        a(f"""
        v_lshlrev_b32 v{V_T}, 16, v{V_SC+d}
        v_and_b32 v{V_T+1}, s{S_HI}, v{V_SC+d}
        v_add_f32 v{regs[2*d]}, v{regs[2*d]}, v{V_T}
        v_add_f32 v{regs[2*d+1]}, v{regs[2*d+1]}, v{V_T+1}
        """)
    a.label(f"M_wc{n}")
    sc = [V_SC, V_B[0], V_B[1]][n % 3]
    for d in range(4):
        a(f"v_cvt_pk_bf16_f32 v{sc+d}, v{regs[2*d]}, v{regs[2*d+1]}")
    a(f"ds_write_b128 v{V_PB}, {vr(sc,4)} offset:{comp*256}")

def setprio(a, ph):
    pl = OPT.get("pl", "3211"); phv = OPT.get("ph", "3210")
    if pl[ph] == phv[ph]:
        a(f"s_setprio {pl[ph]}")
    else:
        a(f"""
        s_setprio {pl[ph]}
        s_cmp_ge_u32 s{S_G}, 4
        s_cbranch_scc1 M_pr{ph}
        s_setprio {phv[ph]}
        """)
        a.label(f"M_pr{ph}")

def flush_sub(a):
    acc = lambda r: [V_ACC + 4*j + r for j in range(8)]
    sv = lambda k: [V_SV + 8*k + j for j in range(8)]
    a.label("M_flush")
    a(f"""
    s_mov_b64 exec, {sr(S_FEX)}
    s_cmp_eq_u32 s{S_B1}, 512
    s_cbranch_scc1 M_fl1
    s_cmp_eq_u32 s{S_B1}, 768
    s_cbranch_scc1 M_fl2
    s_cmp_eq_u32 s{S_B1}, 1024
    s_cbranch_scc1 M_fl3
    s_nop 1
    """)
    def ret(ph, k):
        stamp(a, k)
        if ph is not None: setprio(a, ph)
        a(f"s_mov_b64 exec, -1")
        a(f"s_setpc_b64 {sr(S_RET)}")
    write_comp(a, 0, acc(0))
    for i in range(3): write_comp(a, comp011(i), acc(1+i))
    a("s_mov_b64 exec, -1")
    for n, b in enumerate(OPT.get("t3", "x").replace("x", "")):
        for k in range(2):
            a(f"s_cmp_lg_u32 s{S_G}, {4+2*n+k}")
            a(f"s_cbranch_scc1 M_t3_{n}_{k}")
            touch(a, int(b), k, V_T+2, V_TCH)
            a.label(f"M_t3_{n}_{k}")
    ret(1, 3)
    a.label("M_fl1")
    a("s_nop 4")
    write_comp(a, comp101(0), acc(0))
    for k in range(3):
        for j in range(8): a(f"v_mov_b32 v{sv(k)[j]}, v{acc(1+k)[j]}")
    ret(2, 4)
    a.label("M_fl2")
    a("s_nop 2")
    write_comp(a, comp101(1), acc(0))
    for j in range(8): a(f"v_sub_f32 v{acc(1)[j]}, v{acc(1)[j]}, v{sv(1)[j]}")
    write_comp(a, comp111(2), acc(1))
    for j in range(8): a(f"v_add_f32 v{sv(0)[j]}, v{sv(0)[j]}, v{acc(2)[j]}")
    for j in range(8): a(f"v_mov_b32 v{sv(1)[j]}, v{acc(3)[j]}")
    a(f"""
    s_mov_b64 exec, 1
    v_mov_b32 v{V_T+2}, {L_FC}
    v_mov_b32 v{V_T+3}, 1
    ds_add_u32 v{V_T+2}, v{V_T+3}
    """)
    ret(3, 5)
    a.label("M_fl3")
    write_comp(a, comp101(2), acc(0))
    for j in range(8): a(f"v_sub_f32 v{sv(2)[j]}, v{sv(2)[j]}, v{acc(1)[j]}")
    write_comp(a, comp111(1), sv(2))
    for j in range(8): a(f"v_sub_f32 v{acc(2)[j]}, v{acc(2)[j]}, v{sv(1)[j]}")
    write_comp(a, comp111(0), acc(2))
    for j in range(8): a(f"v_add_f32 v{sv(0)[j]}, v{sv(0)[j]}, v{acc(3)[j]}")
    write_comp(a, 1, sv(0))
    ret(None, 6)

A_H = L_P; A_BS = L_P + 4096; A_STG = L_P + 8192

def phase_a(a):
    RH = S_IN; EA = S_IN + 2; SRC = S_IN + 4; DST = S_IN + 6; WR = S_IN + 8; W0 = S_IN + 10; W1 = S_IN + 12
    WSB = sr(S_WSB)
    def read_nonce(wait=True):
        a(f"""
        v_mov_b32 v2, {L_NONCE}
        ds_read_b64 v[2:3], v2
        s_waitcnt lgkmcnt(0)
        v_readfirstlane_b32 s{S_NON}, v2
        v_readfirstlane_b32 s{S_NON+1}, v3
        """)
    a(f"""
    s_cmp_eq_u32 s{S_G}, 10
    s_cbranch_scc1 A_scan
    s_cmp_eq_u32 s{S_G}, 11
    s_cbranch_scc1 A_aux
    s_movk_i32 s{S_T+1}, 625
    s_mul_i32 s{S_T}, s3, {CH}
    v_cmp_gt_u32 vcc, s{S_T+1}, v0
    v_lshl_add_u32 v1, v0, 1, s{S_T}
    v_lshlrev_b32 v2, 2, v1
    v_mul_u32_u24 v3, 6, v1
    v_lshlrev_b32 v20, 1, v1
    s_mov_b64 exec, vcc
    global_load_dwordx2 v[4:5], v2, {sr(DST)} nt
    global_load_dwordx2 v[8:9], v2, {sr(SRC)} nt
    global_load_dwordx3 v[12:14], v3, {sr(RH)} nt
    global_load_dword v18, v20, {sr(EA)} nt
    v_mov_b32 v23, 1
    s_mul_i32 s{S_T}, s3, {CH * 16}
    v_lshlrev_b32 v20, 4, v0
    v_add_u32 v21, s{S_T}, v20
    s_barrier
    s_waitcnt vmcnt(3)
    """)
    for i in range(2):
        a(f"""
        v_and_b32 v{24+i}, 0xff, v{4+i}
        v_lshlrev_b32 v{24+i}, 2, v{24+i}
        ds_add_rtn_u32 v{28+i}, v{24+i}, v23 offset:{A_H}
        """)
    a("""
    s_waitcnt lgkmcnt(0)
    s_barrier
    """)
    for i in range(2):
        a(f"""
        v_lshrrev_b32 v{4+i}, 8, v{4+i}
        v_mul_u32_u24 v1, 43, v{4+i}
        v_lshrrev_b32 v1, 9, v1
        v_mul_u32_u24 v2, 12, v1
        v_sub_u32 v{4+i}, v{4+i}, v2
        v_lshlrev_b32 v1, 14, v1
        v_lshl_or_b32 v{32+4*i+2}, v{4+i}, 16, v1
        """)
    a(f"s_waitcnt vmcnt(0)")
    def half(dst, base, idx):
        r = base + idx // 2
        if idx % 2 == 0:
            a(f"v_lshlrev_b32 v{dst}, 16, v{r}")
        else:
            a(f"v_and_b32 v{dst}, s{S_HI}, v{r}")
    for i in range(2):
        half(4, 18, i)
        half(5, 12, 3*i+0)
        half(6, 12, 3*i+1)
        half(7, 12, 3*i+2)
        a(f"""
        v_mul_f32 v5, v4, v5
        v_mul_f32 v6, v4, v6
        v_mul_f32 v7, v4, v7
        v_cvt_pk_bf16_f32 v{32+4*i}, v4, v5
        v_cvt_pk_bf16_f32 v{32+4*i+1}, v6, v7
        """)
    a(f"""
    v_mov_b32 v2, {L_NONCE}
    s_barrier
    ds_read_b32 v4, v24 offset:{A_BS}
    ds_read_b32 v5, v25 offset:{A_BS}
    ds_read_b64 v[2:3], v2
    s_waitcnt lgkmcnt(0)
    """)
    for i in range(2):
        a(f"""
        v_add_lshl_u32 v{4+i}, v{4+i}, v{28+i}, 4
        v_or3_b32 v{32+4*i+2}, v{32+4*i+2}, v{8+i}, v3
        v_mov_b32 v{32+4*i+3}, v2
        ds_write_b128 v{4+i}, {vr(32+4*i,4)} offset:{A_STG}
        """)
    a(f"""
    v_readfirstlane_b32 s{S_NON}, v2
    v_readfirstlane_b32 s{S_NON+1}, v3
    s_waitcnt lgkmcnt(0)
    s_barrier
    ds_read_b128 v[32:35], v20 offset:{A_STG}
    ds_read_b128 v[36:39], v20 offset:{A_STG+10000}
    v_add_u32 v22, 10000, v21
    s_waitcnt lgkmcnt(1)
    global_store_dwordx4 v21, v[32:35], {WSB} sc1
    s_waitcnt lgkmcnt(0)
    global_store_dwordx4 v22, v[36:39], {WSB} sc1
    s_mov_b64 exec, -1
    s_branch A_end
    """)
    a.label("A_scan")
    a(f"""
    v_and_b32 v1, 63, v0
    v_lshlrev_b32 v1, 4, v1
    s_lshl_b32 s{S_T}, s3, 11
    s_add_u32 s{S_T}, s{S_T}, {WS_OFF}
    v_lshl_add_u32 v20, v1, 1, s{S_T}
    s_barrier
    """)
    for n, b in enumerate(OPT.get("t0", "x").replace("x", "")):
        touch(a, int(b), 0, 60+4*n, 61+4*n)
        touch(a, int(b), 1, 62+4*n, 63+4*n)
    a(f"""
    s_barrier
    ds_read_b128 v[4:7], v1 offset:{A_H}
    """)
    a(f"""
    s_waitcnt lgkmcnt(0)
    v_add_u32 v9, v4, v5
    v_add_u32 v10, v9, v6
    v_add_u32 v11, v10, v7
    v_mov_b32 v12, v11
    s_nop 1
    v_add_u32_dpp v12, v12, v12 row_shr:1 row_mask:0xf bank_mask:0xf bound_ctrl:0
    s_nop 1
    v_add_u32_dpp v12, v12, v12 row_shr:2 row_mask:0xf bank_mask:0xf bound_ctrl:0
    s_nop 1
    v_add_u32_dpp v12, v12, v12 row_shr:4 row_mask:0xf bank_mask:0xf bound_ctrl:0
    s_nop 1
    v_add_u32_dpp v12, v12, v12 row_shr:8 row_mask:0xf bank_mask:0xf bound_ctrl:0
    s_nop 1
    v_add_u32_dpp v12, v12, v12 row_bcast:15 row_mask:0xa bank_mask:0xf
    s_nop 1
    v_add_u32_dpp v12, v12, v12 row_bcast:31 row_mask:0xc bank_mask:0xf
    v_sub_u32 v12, v12, v11
    v_add_u32 v13, v12, v4
    v_add_u32 v14, v12, v9
    v_add_u32 v15, v12, v10
    ds_write_b128 v1, v[12:15] offset:{A_BS}
    """)
    for i in range(4):
        a(f"v_lshl_or_b32 v{24+2*i}, v{4+i}, 11, v{12+i}")
    a(f"""
    v_mov_b32 v2, {L_NONCE}
    s_waitcnt lgkmcnt(0)
    s_barrier
    ds_read_b64 v[2:3], v2
    s_waitcnt lgkmcnt(0)
    """)
    for i in range(4):
        a(f"""
        v_or_b32 v{24+2*i}, v3, v{24+2*i}
        v_mov_b32 v{25+2*i}, v2
        """)
    a(f"""
    v_readfirstlane_b32 s{S_NON}, v2
    v_readfirstlane_b32 s{S_NON+1}, v3
    s_barrier
    global_store_dwordx4 v20, v[24:27], {WSB} sc1
    global_store_dwordx4 v20, v[28:31], {WSB} offset:16 sc1
    s_branch A_end
    """)
    a.label("A_aux")
    a(f"""
    v_and_b32 v1, 63, v0
    s_cmp_ge_u32 s3, 160
    s_cbranch_scc1 A_wp1
    s_lshr_b32 s{S_T+3}, s3, 3
    s_and_b32 s{S_T+4}, s3, 3
    s_and_b32 s{S_T+5}, s3, 4
    s_lshl_b32 s{S_T+5}, s{S_T+5}, 1
    s_or_b32 s{S_T+4}, s{S_T+4}, s{S_T+5}
    s_cmp_lt_u32 s3, 64
    s_cbranch_scc1 A_wa
    s_sub_u32 s{S_T+5}, s3, 64
    s_and_b32 s{S_T+3}, s{S_T+5}, 7
    s_lshr_b32 s{S_T+4}, s{S_T+5}, 3
    s_cmp_lt_u32 s{S_T+4}, 4
    s_cselect_b32 s{S_T+5}, 4, 8
    s_add_u32 s{S_T+4}, s{S_T+4}, s{S_T+5}
    """)
    a.label("A_wa")
    a(f"""
    s_mul_i32 s{S_T+2}, s{S_T+3}, 20
    s_add_u32 s{S_T+2}, s{S_T+2}, s{S_T+4}
    v_and_b32 v2, 15, v1
    v_lshrrev_b32 v3, 4, v1
    s_lshl_b32 s{S_T+5}, s{S_T+4}, 5
    v_lshl_add_u32 v4, v3, 3, s{S_T+5}
    v_lshlrev_b32 v5, 1, v4
    s_lshl_b32 s{S_T+5}, s{S_T+3}, 4
    v_add_u32 v2, s{S_T+5}, v2
    v_lshlrev_b32 v2, 1, v2
    v_lshl_add_u32 v6, v4, 8, v2
    s_sub_u32 s{S_T+6}, s{W1}, {256*256}
    s_subb_u32 s{S_T+7}, s{W1+1}, 0
    s_cmp_lt_u32 s{S_T+4}, 8
    s_cselect_b32 s{S_T+6}, s{W0}, s{S_T+6}
    s_cselect_b32 s{S_T+7}, s{W0+1}, s{S_T+7}
    global_load_dwordx4 v[8:11], v5, {sr(WR)}
    """)
    for i in range(8):
        a(f"global_load_ushort v{12+i}, v6, {sr(S_T+6)} offset:{256*i}")
    a.label("A_wp1")
    a(f"""
    v_mov_b32 v2, 0
    s_barrier
    s_sleep {OPT.get('ns', 16)}
    global_load_dwordx2 v[4:5], v2, {sr(S_DBG)} sc1
    s_barrier
    """)
    T1 = OPT.get("t1", "0").replace("x", "")
    a(f"""
    s_cmp_ge_u32 s3, 160
    s_cbranch_scc1 A_nw
    s_lshl_b32 s{S_T+3}, s{S_T+2}, 10
    s_add_u32 s{S_T+3}, s{S_T+3}, {WS_WF}
    v_lshl_add_u32 v7, v1, 4, s{S_T+3}
    s_waitcnt vmcnt(1)
    """)
    for i in range(8):
        if i % 2 == 0:
            a(f"v_lshlrev_b32 v20, 16, v{8+i//2}")
        else:
            a(f"v_and_b32 v20, s{S_HI}, v{8+i//2}")
        a(f"v_lshlrev_b32 v{12+i}, 16, v{12+i}")
        a(f"v_mul_f32 v{12+i}, v20, v{12+i}")
    for i in range(4):
        a(f"v_cvt_pk_bf16_f32 v{24+i}, v{12+2*i}, v{13+2*i}")
    a(f"""
    global_store_dwordx4 v7, v[24:27], {WSB} sc1
    s_waitcnt vmcnt(1)
    s_branch A_nw1
    """)
    a.label("A_nw")
    a("s_waitcnt vmcnt(0)")
    a.label("A_nw1")
    for n, b in enumerate(T1):
        touch(a, int(b), 0, 32+4*n, 33+4*n)
        touch(a, int(b), 1, 34+4*n, 35+4*n)
    a("s_branch A_pn1")
    a.label("A_pn")
    a("s_waitcnt vmcnt(0)")
    a.label("A_pn1")
    a(f"""
    v_readfirstlane_b32 s{S_NON}, v4
    v_readfirstlane_b32 s{S_NON+1}, v5
    s_cmp_lg_u32 s{S_NON}, 0
    s_cbranch_scc1 A_pd
    global_load_dwordx2 v[4:5], v2, {sr(S_DBG)} sc1
    s_sub_u32 s{S_SPIN}, s{S_SPIN}, 1
    s_cmp_gt_i32 s{S_SPIN}, 0
    s_cbranch_scc1 A_pn
    s_waitcnt vmcnt(0)
    """)
    a.label("A_pd")
    a(f"""
    v_mov_b32 v2, {L_NONCE}
    ds_write_b64 v2, v[4:5]
    s_waitcnt lgkmcnt(0)
    s_barrier
    s_waitcnt vmcnt({2*len(T1)})
    s_barrier
    """)
    a.label("A_end")

def gen_main(a):
    K = NAME + "_kernel"
    a.raw(".p2align 8")
    a.raw(f".globl {K}")
    a.raw(f".type {K},@function")
    a.label(K)
    a(f"""
    s_cmp_ge_u32 s2, {NB}
    s_cbranch_scc1 M_done
    """)
    if OPT.get("empty"): a("s_endpgm")
    if DBG:
        for k in range(S_ST, S_ST+32): a(f"s_mov_b32 s{k}, 0")
    stamp(a, 0)
    stamp(a, 10, True)
    T = V_T
    a(f"""
    s_load_dwordx8 s[{S_IN}:{S_IN+7}], s[0:1], 8
    s_load_dwordx4 s[{S_IN+8}:{S_IN+11}], s[0:1], 40
    s_load_dwordx2 {sr(S_IN+12)}, s[0:1], 56
    s_load_dwordx2 {sr(S_X)}, s[0:1], 0
    s_load_dwordx2 {sr(S_OUT)}, s[0:1], 72
    s_load_dwordx2 {sr(S_DBG)}, s[0:1], 80
    s_load_dwordx2 {sr(S_WSB)}, s[0:1], 88
    s_memrealtime {sr(S_NON)}
    s_mov_b32 s3, s2
    s_and_b32 s{S_T}, s2, 7
    s_lshr_b32 s2, s2, 3
    s_lshl_b32 s{S_T}, s{S_T}, 5
    s_or_b32 s2, s2, s{S_T}
    v_lshrrev_b32 v1, 6, v0
    v_mov_b32 v3, 0
    v_readfirstlane_b32 s{S_G}, v1
    v_lshlrev_b32 v2, 2, v0
    ds_write_b32 v2, v3
    ds_write_b32 v2, v3 offset:{A_H}
    s_mov_b32 s{S_X+2}, {N*1024}
    s_mov_b32 s{S_X+3}, 0x20000
    s_mov_b32 s{S_OUT+2}, {N*1024}
    s_mov_b32 s{S_OUT+3}, 0x20000
    s_mov_b32 s{S_REC+2}, {E*16}
    s_mov_b32 s{S_REC+3}, 0x20000
    s_mov_b32 s{S_OFFS+2}, {NB*2048}
    s_mov_b32 s{S_OFFS+3}, 0x20000
    s_mov_b32 s{S_HI}, 0xffff0000
    s_waitcnt lgkmcnt(0)
    s_cmp_lg_u32 s3, 0
    s_cbranch_scc1 M_nonon
    s_cmp_lg_u32 s{S_G}, 0
    s_cbranch_scc1 M_nonon
    s_lshl_b32 s{S_NON+1}, s{S_NON+1}, 22
    s_or_b32 s{S_NON}, s{S_NON}, 1
    v_mov_b32 v4, s{S_NON}
    v_mov_b32 v5, s{S_NON+1}
    s_mov_b64 exec, 1
    global_store_dwordx2 v3, v[4:5], {sr(S_DBG)} sc1
    s_mov_b64 exec, -1
    """)
    a.label("M_nonon")
    assert L_P // 4 <= NT
    a(f"""
    s_mov_b32 s{S_SPIN}, {SPIN_MAX}
    s_mov_b32 s{S_REC}, s{S_WSB}
    s_and_b32 s{S_REC+1}, s{S_WSB+1}, 0xffff
    s_add_u32 s{S_OFFS}, s{S_WSB}, {WS_OFF}
    s_addc_u32 s{S_OFFS+1}, s{S_WSB+1}, 0
    s_add_u32 s{S_WF}, s{S_WSB}, {WS_WF}
    s_addc_u32 s{S_WF+1}, s{S_WSB+1}, 0
    s_and_b32 s{S_OFFS+1}, s{S_OFFS+1}, 0xffff
    s_and_b32 s{S_X+1}, s{S_X+1}, 0xffff
    s_and_b32 s{S_OUT+1}, s{S_OUT+1}, 0xffff
    """)
    phase_a(a)
    if int(OPT.get("rm", 1)):
        a(f"""
        s_add_u32 s{S_G}, s{S_G}, 4
        s_cmp_ge_u32 s{S_G}, 12
        s_cselect_b32 s{S_T}, 12, 0
        s_sub_u32 s{S_G}, s{S_G}, s{S_T}
        """)
    PO = V_ACC
    a(f"""
    v_lshrrev_b32 v{T}, 3, v0
    v_lshlrev_b32 v{PO+6}, 11, v{T}
    s_lshl_b32 s{S_T}, s2, 3
    v_add_u32 v{PO+6}, s{S_T}, v{PO+6}
    v_add_u32 v{PO+7}, {96*2048}, v{PO+6}
    v_add_u32 v{PO+8}, {192*2048}, v{PO+6}
    v_cmp_le_u32 {sr(S_PEND)}, 64, v{T}
    """)
    for r in range(3):
        a(f"buffer_load_dwordx2 {vr(PO+2*r,2)}, v{PO+6+r}, {sr(S_OFFS,4)}, 0 offen sc1")
    a(f"""
    v_mov_b32 v{V_JB}, 0
    v_mov_b32 v{V_DONE}, 0
    s_mov_b32 s{S_PLO}, 0x05040100
    s_mov_b32 s{S_PHI}, 0x07060302
    s_mov_b32 s{S_RND}, 0
    v_and_b32 v{T}, 63, v0
    v_and_b32 v{T+1}, 15, v{T}
    v_lshrrev_b32 v{T+2}, 4, v{T}
    v_lshlrev_b32 v{V_N16}, 4, v{T+1}
    v_lshlrev_b32 v{V_N16+1}, 4, v{T+1}
    v_and_b32 v{V_C}, 3, v{T}
    v_bfe_u32 v{T+3}, v{T}, 2, 2
    s_mul_i32 s{S_T}, s{S_G}, {CAP*16}
    s_add_u32 s{S_T}, s{S_T}, {L_LIST}
    v_lshl_add_u32 v{V_VS}, v{T+2}, 4, s{S_T}
    v_lshl_add_u32 v{V_VC}, v{T+3}, 6, v{V_VS}
    v_mul_u32_u24 v{T+2}, 12, v{T+2}
    v_add_u32 v{T+2}, s{S_G}, v{T+2}
    v_cmp_gt_u32 {sr(S_FEX)}, 40, v{T+2}
    v_mul_u32_u24 v{V_PB}, {PSTR}, v{T+2}
    v_and_b32 v{T+2}, 15, v{T+2}
    v_xor_b32 v{T+2}, v{T+2}, v{T+1}
    v_lshl_add_u32 v{V_PB}, v{T+2}, 4, v{V_PB}
    v_add_u32 v{V_PB}, {L_P}, v{V_PB}
    s_mov_b32 s{S_T+7}, {TAGM}
    """)
    L = V_L[0]; L2 = V_L[1]
    a.label("M_poll")
    a("s_waitcnt vmcnt(0)")
    for r in range(3):
        a(f"""
        v_and_b32 v{T}, s{S_T+7}, v{PO+2*r}
        v_cmp_eq_u32 {sr(S_M+2*r)}, s{S_NON+1}, v{T}
        v_cmp_eq_u32 vcc, s{S_NON}, v{PO+2*r+1}
        s_and_b64 {sr(S_M+2*r)}, {sr(S_M+2*r)}, vcc
        """)
    a(f"""
    s_or_b64 {sr(S_M+4)}, {sr(S_M+4)}, {sr(S_PEND)}
    s_and_b64 {sr(S_M)}, {sr(S_M)}, {sr(S_M+2)}
    s_and_b64 {sr(S_M)}, {sr(S_M)}, {sr(S_M+4)}
    s_cmp_eq_u64 {sr(S_M)}, -1
    s_cbranch_scc1 M_polled
    s_sub_u32 s{S_SPIN}, s{S_SPIN}, 1
    s_cmp_le_i32 s{S_SPIN}, 0
    s_cbranch_scc1 M_polled
    s_sleep {OPT.get('slp', 4)}
    """)
    for r in range(3):
        a(f"buffer_load_dwordx2 {vr(PO+2*r,2)}, v{PO+6+r}, {sr(S_OFFS,4)}, 0 offen sc1")
    a("s_branch M_poll")
    a.label("M_polled")
    for r in range(3):
        a(f"v_and_b32 v{V_OFF+r}, 0x3fffff, v{PO+2*r}")
    a(f"""
    s_mov_b64 {sr(S_ACT)}, -1
    s_mov_b32 s{S_FIRST}, 0
    s_branch M_w0
    """)
    a.label("M_init")
    a(f"""
    v_mov_b32 v{T+1}, 0
    v_lshlrev_b32 v{T}, 2, v0
    s_movk_i32 s{S_T}, {L_P//4}
    v_cmp_gt_u32 vcc, s{S_T}, v0
    s_and_saveexec_b64 {sr(S_TM)}, vcc
    ds_write_b32 v{T}, v{T+1}
    s_mov_b64 exec, {sr(S_TM)}
    s_mov_b64 {sr(S_ACT)}, -1
    s_waitcnt lgkmcnt(0)
    s_barrier
    s_mov_b32 s{S_FIRST}, 1
    """)
    a.label("M_w0")
    stamp(a, 1)
    a.label("M_window")
    L2 = V_ACC + 16
    REM = L2; ADR = L2 + 3; CTR = L2 + 6; RNK = L2 + 12; BAS = L2 + 18; ONE = L2 + 24
    WFV = L2 + 26; WFA = L2 + 28; TCA = L2 + 29
    a(f"""
    v_and_b32 v{T}, 7, v0
    v_add_u32 v{T}, v{T}, v{V_JB}
    v_lshrrev_b32 v{T+1}, 3, v0
    v_mul_u32_u24 v{T+1}, {CH}, v{T+1}
    v_add_u32 v{T+1}, v{T+1}, v{T}
    v_mov_b32 v{ONE}, 1
    """)
    for r in range(3):
        a(f"""
        v_lshrrev_b32 v{REM+r}, 11, v{V_OFF+r}
        v_sub_u32 v{REM+r}, v{REM+r}, v{T}
        v_and_b32 v{ADR+r}, 0x7ff, v{V_OFF+r}
        v_add_lshl_u32 v{ADR+r}, v{ADR+r}, v{T+1}, 4
        """)
        if r: a(f"v_add_u32 v{ADR+r}, {96*CH*16*r}, v{ADR+r}")
    for k in range(6):
        r = k % 3; h = k // 3
        a(f"v_cmp_lt_i32 {sr(S_M+2*k)}, {8*h}, v{REM+r}")
    a(f"""
    s_cmp_eq_u32 s{S_FIRST}, 0
    s_cbranch_scc1 M_rload
    """)
    for k in range(6):
        m = sr(S_M + 2*k)
        a(f"""
        v_and_b32 v{T+2}, {1<<k}, v{V_DONE}
        v_cmp_eq_u32 vcc, 0, v{T+2}
        s_and_b64 {m}, {m}, vcc
        s_and_b64 {m}, {m}, {sr(S_ACT)}
        """)
    a.label("M_rload")
    for k in range(6):
        r = k % 3; h = k // 3
        a(f"""
        s_mov_b64 exec, {sr(S_M+2*k)}
        s_cbranch_execz M_sl{k}
        buffer_load_dwordx4 {vr(L+4*k,4)}, v{ADR+r}, {sr(S_REC,4)}, 0 offen offset:{128*h} sc1
        """)
        a.label(f"M_sl{k}")
    a(f"""
    s_mov_b64 {sr(S_PEND)}, 0
    s_mov_b32 s{S_T}, {TAGM}
    s_waitcnt vmcnt(0)
    """)
    for k in range(6):
        a(f"""
        s_mov_b64 exec, {sr(S_M+2*k)}
        s_cbranch_execz M_sc{k}
        v_and_b32 v{T}, s{S_T}, v{L+4*k+2}
        v_cmp_ne_u32 {sr(S_TM)}, s{S_NON+1}, v{T}
        v_cmp_ne_u32 vcc, s{S_NON}, v{L+4*k+3}
        v_bfe_u32 v{CTR+k}, v{L+4*k+2}, 16, 4
        v_and_b32 v{T}, 15, v{L+4*k+2}
        s_or_b64 {sr(S_PEND)}, {sr(S_PEND)}, {sr(S_TM)}
        s_or_b64 {sr(S_PEND)}, {sr(S_PEND)}, vcc
        v_lshl_or_b32 v{T}, v{CTR+k}, 4, v{T}
        v_lshlrev_b32 v{BAS+k}, 2, v{T}
        """)
        a.label(f"M_sc{k}")
    a(f"""
    s_mov_b64 exec, -1
    s_cmp_eq_u64 {sr(S_PEND)}, 0
    s_cbranch_scc1 M_rok
    s_sleep {OPT.get('slp', 4)}
    s_sub_u32 s{S_SPIN}, s{S_SPIN}, 1
    s_cmp_gt_i32 s{S_SPIN}, 0
    s_cbranch_scc1 M_rload
    """)
    a.label("M_rok")
    stamp(a, 13)
    a(f"""
    s_cmp_lg_u32 s{S_FIRST}, 0
    s_cbranch_scc1 M_append
    """)
    for k in range(6):
        a(f"""
        s_mov_b64 exec, {sr(S_M+2*k)}
        s_cbranch_execz M_sa{k}
        ds_add_rtn_u32 v{RNK+k}, v{BAS+k}, v{ONE} offset:{L_CC}
        """)
        a.label(f"M_sa{k}")
    SCN = V_ACC
    a(f"""
    s_mov_b64 exec, -1
    s_cmp_lt_u32 s{S_G}, 4
    s_cbranch_scc1 M_nowpre
    """)
    wload(a, WFA, [0, 1, 2, 3, 8, 9, 10, 11])
    a.label("M_nowpre")
    a(f"""
    v_and_b32 v{T}, 63, v0
    v_lshlrev_b32 v{T}, 4, v{T}
    v_cmp_lt_u32 vcc, 0, v{V_C}
    v_cmp_lt_u32 {sr(S_TM)}, 1, v{V_C}
    s_waitcnt lgkmcnt(0)
    s_barrier
    ds_read_b128 {vr(SCN,4)}, v{T} offset:{L_CC}
    """)
    for n, b in enumerate(OPT.get("t2", "123").replace("x", "")):
        a(f"s_cmp_lg_u32 s{S_G}, {n}")
        a(f"s_cbranch_scc1 M_t2_{n}")
        touch(a, int(b), 0, TCA, V_TCH)
        touch(a, int(b), 1, TCA, TCA+1)
        a.label(f"M_t2_{n}")
    a(f"""
    s_waitcnt lgkmcnt(0)
    v_add_u32 v{SCN+4}, v{SCN}, v{SCN+1}
    v_add_u32 v{SCN+5}, v{SCN+4}, v{SCN+2}
    v_add_u32 v{SCN+6}, v{SCN+5}, v{SCN+3}
    s_nop 1
    v_mov_b32_dpp v{SCN+7}, v{SCN+6} quad_perm:[0,0,1,2] row_mask:0xf bank_mask:0xf
    v_cndmask_b32 v{SCN+7}, 0, v{SCN+7}, vcc
    v_add_u32 v{SCN+7}, v{SCN+7}, v{SCN+6}
    s_nop 1
    v_mov_b32_dpp v{SCN+8}, v{SCN+7} quad_perm:[0,0,0,1] row_mask:0xf bank_mask:0xf
    v_cndmask_b32 v{SCN+8}, 0, v{SCN+8}, {sr(S_TM)}
    v_add_u32 v{SCN+8}, v{SCN+8}, v{SCN+7}
    v_sub_u32 v{SCN+8}, v{SCN+8}, v{SCN+6}
    v_add_u32 v{SCN+9}, v{SCN+8}, v{SCN}
    v_add_u32 v{SCN+10}, v{SCN+8}, v{SCN+4}
    v_add_u32 v{SCN+11}, v{SCN+8}, v{SCN+5}
    s_mov_b32 exec_hi, 0xffff
    ds_write_b128 v{T}, {vr(SCN+8,4)} offset:{L_BASE}
    """)
    for k in range(6):
        a(f"""
        s_mov_b64 exec, {sr(S_M+2*k)}
        s_cbranch_execz M_sb{k}
        ds_read_b32 v{BAS+k}, v{BAS+k} offset:{L_BASE}
        """)
        a.label(f"M_sb{k}")
    a("s_branch M_place")
    a.label("M_append")
    for k in range(6):
        a(f"""
        s_mov_b64 exec, {sr(S_M+2*k)}
        v_lshlrev_b32 v{T+1}, 2, v{CTR+k}
        v_lshlrev_b32 v{T}, 6, v{CTR+k}
        ds_add_rtn_u32 v{RNK+k}, v{T+1}, v{ONE} offset:{L_ACNT}
        ds_read_b32 v{BAS+k}, v{T} offset:{L_BASE+60}
        ds_read_b32 v{T+2}, v{T} offset:{L_CC+60}
        s_waitcnt lgkmcnt(0)
        v_add_u32 v{BAS+k}, v{BAS+k}, v{T+2}
        """)
    a.label("M_place")
    a(f"""
    s_mov_b64 exec, -1
    s_mov_b64 {sr(S_PEND)}, 0
    s_mov_b32 s{S_T}, {L_LIST}
    s_movk_i32 s{S_T+2}, {CAP}
    s_mov_b32 s{S_FIRST}, 1
    """)
    for k in range(6):
        a(f"""
        s_cmp_eq_u64 {sr(S_M+2*k)}, 0
        s_cbranch_scc1 M_se{k}
        v_bfe_u32 v{T+1}, v{L+4*k+2}, 14, 2
        v_and_b32 v{L+4*k+2}, 0x3fff, v{L+4*k+2}
        v_lshlrev_b32 v{L+4*k+3}, v{T+1}, v{ONE}
        v_lshlrev_b32 v{L+4*k+2}, 10, v{L+4*k+2}
        v_mul_u32_u24 v{CTR+k}, s{S_T+2}, v{CTR+k}
        """)
        a.label(f"M_se{k}")
    a("s_waitcnt lgkmcnt(0)")
    for k in range(6):
        m = sr(S_M + 2*k)
        a(f"""
        s_mov_b64 exec, {m}
        s_cbranch_execz M_sp{k}
        v_add_u32 v{RNK+k}, v{RNK+k}, v{BAS+k}
        v_cmp_gt_u32 vcc, s{S_T+2}, v{RNK+k}
        v_add_u32 v{T}, v{CTR+k}, v{RNK+k}
        v_lshl_add_u32 v{CTR+k}, v{T}, 4, s{S_T}
        s_andn2_b64 {sr(S_TM)}, {m}, vcc
        s_or_b64 {sr(S_PEND)}, {sr(S_PEND)}, {sr(S_TM)}
        s_mov_b64 exec, vcc
        ds_write_b128 v{CTR+k}, {vr(L+4*k,4)}
        v_or_b32 v{V_DONE}, {1<<k}, v{V_DONE}
        """)
        a.label(f"M_sp{k}")
    a(f"""
    s_mov_b64 exec, -1
    v_mov_b32 v{T+2}, {L_MORE}
    v_max3_i32 v{T}, v{REM}, v{REM+1}, v{REM+2}
    s_mov_b64 exec, {sr(S_PEND)}
    ds_write_b32 v{T+2}, v{ONE}
    s_andn2_b64 {sr(S_ACT)}, {sr(S_ACT)}, {sr(S_PEND)}
    s_mov_b64 exec, {sr(S_ACT)}
    v_add_u32 v{V_JB}, 16, v{V_JB}
    v_mov_b32 v{V_DONE}, 0
    v_cmp_lt_i32 vcc, 16, v{T}
    s_mov_b64 exec, -1
    s_cmp_lg_u64 vcc, 0
    s_cbranch_scc1 M_window
    s_lshl_b32 s{S_T}, s{S_G}, 6
    v_mov_b32 v{T}, s{S_T}
    s_lshl_b32 s{S_T}, s{S_G}, 2
    v_mov_b32 v{T+1}, s{S_T}
    s_waitcnt lgkmcnt(0)
    """)
    stamp(a, 15)
    a(f"""
    s_barrier
    ds_read_b32 v{V_A[0]}, v{T} offset:{L_BASE+60}
    ds_read_b32 v{V_A[0]+1}, v{T} offset:{L_CC+60}
    ds_read_b32 v{V_A[0]+2}, v{T+1} offset:{L_ACNT}
    ds_read_b32 v{V_A[0]+3}, v{T+2}
    v_and_b32 v{T}, 63, v0
    v_mov_b32 v{V_B[0]}, {OOBOFF}
    v_mov_b32 v{V_B[0]+1}, 0
    s_mov_b32 s{S_S1}, 0
    s_mov_b32 s{S_S2}, 0
    s_mov_b32 s{S_B1}, 0
    s_waitcnt lgkmcnt(0)
    v_add3_u32 v{T+1}, v{V_A[0]}, v{V_A[0]+1}, v{V_A[0]+2}
    v_readfirstlane_b32 s{S_MORE}, v{V_A[0]+3}
    v_readfirstlane_b32 s{S_T}, v{T+1}
    s_min_u32 s{S_T}, s{S_T}, {CAP}
    s_add_u32 s{S_S}, s{S_T}, 31
    s_lshr_b32 s{S_S}, s{S_S}, 5
    s_max_u32 s{S_S}, s{S_S}, 1
    s_lshl_b32 s{S_T+1}, s{S_S}, 5
    v_add_u32 v{T}, s{S_T}, v{T}
    v_cmp_gt_u32 vcc, s{S_T+1}, v{T}
    s_mul_i32 s{S_T+2}, s{S_G}, {CAP*16}
    s_add_u32 s{S_T+2}, s{S_T+2}, {L_LIST+8}
    v_lshl_add_u32 v{T}, v{T}, 4, s{S_T+2}
    s_mov_b64 exec, vcc
    ds_write_b64 v{T}, {vr(V_B[0],2)}
    s_mov_b64 exec, -1
    s_sub_u32 s{S_NLAST}, s{S_T}, s{S_T+1}
    s_add_u32 s{S_NLAST}, s{S_NLAST}, 35
    s_lshr_b32 s{S_NLAST}, s{S_NLAST}, 2
    """)
    meta_reads(a)
    a(f"""
    s_cmp_gt_u32 s{S_S}, 2
    s_cbranch_scc1 M_nozl
    """)
    for k in range(32):
        a(f"v_mov_b32 v{V_L[0]+k}, 0")
    a(f"""
    s_cmp_ge_u32 s{S_G}, 4
    s_cbranch_scc1 M_nozl
    """)
    for k in range(32):
        a(f"v_mov_b32 v{V_L[1]+k}, 0")
    a.label("M_nozl")
    stamp(a, 2)
    setprio(a, 0)
    a(f"""
    s_waitcnt lgkmcnt(0)
    s_cmp_ge_u32 s{S_G}, 4
    s_cbranch_scc1 M_sb
    """)
    stage_x(a, 0, "i", wait=False)
    a.label("M_goi")
    advance(a)
    a(f"s_mov_b32 s{S_FIRST}, 1")
    for p in range(2):
        a.label(f"M_it{p}")
        a(f"""
        s_waitcnt lgkmcnt(0)
        s_cmp_eq_u32 s{S_B1}, 1024
        s_cbranch_scc1 M_w{p}_0
        """)
        stage_x(a, p ^ 1, str(p))
        a.label(f"M_go{p}")
        a(f"""
        s_cmp_eq_u32 s{S_FIRST}, 0
        s_cbranch_scc1 M_cn{p}
        """)
        compute(a, p, True)
        a(f"s_branch M_cd{p}")
        a.label(f"M_cn{p}")
        compute(a, p, False)
        a.label(f"M_cd{p}")
        a(f"""
        s_mov_b32 s{S_FIRST}, 0
        s_cmp_lg_u32 s{S_S1}, 0
        s_cbranch_scc1 M_nofl{p}
        s_mov_b32 s{S_FIRST}, 1
        s_call_b64 {sr(S_RET)}, M_flush
        s_cmp_eq_u32 s{S_B1}, 1024
        s_cbranch_scc1 M_end
        """)
        a.label(f"M_nofl{p}")
        advance(a)
        if p == 1:
            a("s_branch M_it0")
    a.label("M_sb")
    a(f"s_mov_b32 s{S_FLP}, 0")
    a.label("M_its")
    stage_x(a, 0, "s", wait=False)
    a.label("M_gos")
    a(f"""
    s_cmp_eq_u32 s{S_FLP}, 0
    s_cbranch_scc1 M_nofls
    """)
    a.label("M_dofl")
    a(f"""
    s_call_b64 {sr(S_RET)}, M_flush
    s_cmp_eq_u32 s{S_B1}, 1024
    s_cbranch_scc1 M_end
    """)
    a.label("M_nofls")
    a(f"""
    s_cmp_eq_u32 s{S_S1}, 0
    s_waitcnt vmcnt(0) lgkmcnt(0)
    s_cbranch_scc0 M_cns
    """)
    compute(a, 0, True)
    a("s_branch M_cds")
    a.label("M_cns")
    compute(a, 0, False)
    a.label("M_cds")
    a(f"""
    s_mov_b32 s{S_S1}, s{S_S2}
    s_cmp_eq_u32 s{S_S2}, 0
    s_cselect_b32 s{S_FLP}, 256, 0
    s_add_u32 s{S_B1}, s{S_B1}, s{S_FLP}
    s_cmp_eq_u32 s{S_B1}, 1024
    s_cbranch_scc1 M_dofl
    s_branch M_its
    """)
    flush_sub(a)
    a.label("M_end")
    a(f"""
    s_cmp_eq_u32 s{S_MORE}, 0
    s_cbranch_scc1 M_gemm
    s_mov_b32 s{S_RND}, 1
    s_waitcnt lgkmcnt(0)
    s_barrier
    s_branch M_init
    """)
    a.label("M_gemm")
    if OPT.get("nogemm"): a("s_endpgm")
    gemm(a)
    a.label("M_done")
    a("s_endpgm")

def gemm(a):
    ACC = [40, 56, 72]; BB = 16; NBB = 6
    a(f"""
    s_setprio 0
    s_cmp_ge_u32 s{S_G}, 4
    s_cbranch_scc1 M_gw
    s_waitcnt lgkmcnt(0)
    s_barrier
    {"s_barrier" if OPT.get("twice") else ""}
    {"s_barrier" if OPT.get("twice") else ""}
    s_branch M_st
    """)
    a.label("M_gw")
    a(f"""
    v_and_b32 v10, 63, v0
    s_waitcnt lgkmcnt(0)
    """)
    late = [12, 13, 14, 15, 16, 17, 18, 19, 4, 5, 6, 7]
    wload(a, 11, late)
    a(f"""
    v_and_b32 v12, 15, v10
    v_lshrrev_b32 v13, 4, v10
    v_mul_u32_u24 v14, {PSTR}, v12
    v_add_u32 v14, {L_P}, v14
    """)
    for k4 in range(4):
        a(f"""
        v_add_u32 v15, {4*k4}, v13
        v_xor_b32 v15, v15, v12
        v_lshl_add_u32 v{1+k4}, v15, 4, v14
        v_add_u32 v{5+k4}, {32*PSTR}, v{1+k4}
        """)
    a(f"""
    s_lshl_b32 s{S_T+1}, s{S_G}, 5
    s_add_u32 s{S_T+1}, s{S_T+1}, {L_LIST - 128}
    v_mul_u32_u24 v9, {OSTR}, v12
    v_lshl_add_u32 v9, v13, 3, v9
    v_add_u32 v9, s{S_T+1}, v9
    s_mov_b32 s{S_T+2}, 0xbfb8aa3b
    v_mov_b32 v14, {L_FC}
    """)
    a.label("M_fcw")
    a(f"""
    ds_read_b32 v15, v14
    s_waitcnt lgkmcnt(0)
    v_readfirstlane_b32 s{S_T}, v15
    s_cmp_ge_u32 s{S_T}, {NG}
    s_cbranch_scc1 M_fcok
    s_sleep 2
    s_branch M_fcw
    """)
    a.label("M_fcok")
    stamp(a, 12)
    st1 = []; st2 = []
    for t in range(3):
        for k4 in range(4):
            st1.append((t, 0, 0, k4, k4))
            for i in range(3): st1.append((t, 1+i, comp011(i), k4, 8 + k4))
    for t in range(3):
        for k4 in range(4):
            st1.append((t, 1, comp101(0), k4, 12 + k4))
            st1.append((t, 2, comp101(1), k4, 12 + k4))
    for t in range(3):
        for k4 in range(4):
            st1.append((t, 3, comp111(2), k4, 16 + k4))
    for k4 in range(4):
        for t in range(3):
            st2.append((t, 0, 1, k4, 4 + k4))
    for t in range(3):
        for k4 in range(4):
            st2.append((t, 3, comp101(2), k4, 12 + k4))
            st2.append((t, 1, comp111(0), k4, 16 + k4))
            st2.append((t, 2, comp111(1), k4, 16 + k4))
    started = set()
    wmax = [-2]
    def run(steps, fill):
        q = []
        def rd(n):
            t, o, c, k4, ws = steps[n]
            base = (1 + k4) if t < 2 else (5 + k4)
            off = c*256 + (16*PSTR if t == 1 else 0)
            a(f"ds_read_b128 {vr(BB+4*(n%NBB),4)}, v{base} offset:{off}")
            q.append(n)
        n_steps = len(steps)
        for n in range(NBB - 1): rd(n)
        for n in range(n_steps):
            t, o, c, k4, ws = steps[n]
            if n + NBB - 1 < n_steps: rd(n + NBB - 1)
            pend = len(q) - 1 - q.index(n)
            assert pend <= 15
            idx = late.index(ws) if ws in late else -1
            w = f"lgkmcnt({pend})"
            if idx > wmax[0]:
                w = f"vmcnt({len(late) - 1 - idx}) " + w
                wmax[0] = idx
            a("s_waitcnt " + w)
            acc = vr(ACC[t] + 4*o, 4)
            first = (t, o) not in started
            started.add((t, o))
            a(f"v_mfma_f32_16x16x32_bf16 {acc}, {vr(WREG[ws],4)}, {vr(BB+4*(n%NBB),4)}, {'0' if first else acc}")
            for x in fill.get(n, []):
                a(x)
                if x.startswith("ds_"): q.append(-1)
    GT = 136
    PK = int(OPT.get("pk", 1))
    gate_ops = []
    for t in range(3):
        A0 = ACC[t]; g = GT + 4*t
        gate_ops += [f"v_mul_f32 v{g+r}, s{S_T+2}, v{A0+r}" for r in range(4)]
        gate_ops += [f"v_exp_f32 v{g+r}, v{g+r}" for r in range(4)]
        gate_ops += [f"v_cvt_pk_bf16_f32 v{A0}, v{A0}, v{A0+1}", f"v_cvt_pk_bf16_f32 v{A0+1}, v{A0+2}, v{A0+3}"]
        gate_ops += [f"ds_write_b64 v9, {vr(A0,2)} offset:{16*OSTR*t}"]
        gate_ops += [f"v_add_f32 v{g+r}, 1.0, v{g+r}" for r in range(4)]
        gate_ops += [f"v_rcp_f32 v{g+r}, v{g+r}" for r in range(4)]
    def fin_ops(t):
        o = []
        for i in [2, 0, 1]:
            B0 = ACC[t] + 4 + 4*i
            if PK:
                o += [f"v_pk_mul_f32 {vr(B0+r,2)}, {vr(B0+r,2)}, {vr(GT+4*t+r,2)}" for r in (0, 2)]
            else:
                o += [f"v_mul_f32 v{B0+r}, v{B0+r}, v{GT+4*t+r}" for r in range(4)]
            o += [f"v_cvt_pk_bf16_f32 v{B0}, v{B0}, v{B0+1}", f"v_cvt_pk_bf16_f32 v{B0+1}, v{B0+2}, v{B0+3}"]
            o += [f"ds_write_b64 v9, {vr(B0,2)} offset:{16*OSTR*t + 256*(i+1)}"]
        return o
    fill = {}
    def spread(ops, n0, n1):
        cnt = n1 - n0
        for j, op in enumerate(ops):
            fill.setdefault(n0 + j * cnt // len(ops), []).append(op)
    spread(gate_ops, 15, 34)
    spread(fin_ops(0), 34, 40)
    spread(fin_ops(1), 40, 47)
    run(st1, {})
    stamp(a, 14)
    a("s_barrier")
    stamp(a, 7)
    run(st2, fill)
    a("s_nop 5")
    for x in fin_ops(2): a(x)
    a("s_waitcnt lgkmcnt(0)")
    if OPT.get("st13"): stamp(a, 13)
    a.label("M_st")
    a(f"""
    v_and_b32 v10, 63, v0
    s_mul_i32 s{S_T}, s{S_G}, {OSTR}
    s_add_u32 s{S_T}, s{S_T}, {L_LIST}
    v_lshl_add_u32 v11, v10, 4, s{S_T}
    s_lshl_b32 s{S_T}, s{S_G}, 18
    s_lshl_b32 s{S_T+1}, s2, 10
    s_add_u32 s{S_T}, s{S_T}, s{S_T+1}
    v_lshl_add_u32 v12, v10, 4, s{S_T}
    s_barrier
    """)
    stamp(a, 8)
    for k in range(3):
        a(f"ds_read_b128 {vr(16+4*k,4)}, v11 offset:{12*OSTR*k}")
    a(f"""
    s_cmp_ge_u32 s{S_G}, 4
    s_cbranch_scc1 M_st3
    ds_read_b128 v[28:31], v11 offset:{36*OSTR}
    v_add_u32 v13, {36 << 18}, v12
    s_waitcnt lgkmcnt(0)
    buffer_store_dwordx4 v[28:31], v13, {sr(S_OUT,4)}, 0 offen {fl('of')}
    """)
    a.label("M_st3")
    for k in range(3):
        a(f"s_waitcnt lgkmcnt({2-k})")
        a(f"buffer_store_dwordx4 {vr(16+4*k,4)}, v12, {sr(S_OUT,4)}, 0 offen {fl('of')}")
        if k < 2: a(f"v_add_u32 v12, {12 << 18}, v12")
    stamp_dump(a)

def kd(a, name, vg, sg):
    acc = (vg + 3) // 4 * 4
    a.raw(f""".p2align 6
.amdhsa_kernel {name}
  .amdhsa_next_free_vgpr {vg}
  .amdhsa_next_free_sgpr {sg}
  .amdhsa_accum_offset {acc}
  .amdhsa_group_segment_fixed_size 0
  .amdhsa_kernarg_size 96
  .amdhsa_user_sgpr_count 2
  .amdhsa_user_sgpr_kernarg_segment_ptr 1
  .amdhsa_system_sgpr_workgroup_id_x 1
  .amdhsa_float_denorm_mode_32 3
.end_amdhsa_kernel""")

def main():
    global DBG
    OPT.update(dict(x.split("=") for x in sys.argv[2:]))
    DBG = bool(int(OPT.get("dbg", 0)))
    a = Asm()
    ref = open(f"cdna_kernels/{NAME}.s.ref").read().split("\n")
    for ln in ref:
        if ln.startswith(";") and "@launch" not in ln and "Override" not in ln and "grid=ceil" not in ln:
            a.raw(ln)
    a.raw(f"; @launch kernel={NAME}_kernel grid=({NB},1,1) block=({NT},1,1) lds={L_TOT}")
    a.raw('.amdgcn_target "amdgcn-amd-amdhsa--gfx950"')
    a.raw(".text")
    gen_main(a)
    a.raw('.section .rodata,"a"')
    kd(a, NAME + "_kernel", NVG, 102 if DBG else 70)
    open(sys.argv[1], "w").write(a.text())

main()
```

```python
import sys

NAME = "gather_scatter__tensor_product_equiv_equiformer__graph"
N = 10000
E = 320000
NB = 256
CH = 1250
WS_OFF = 0x500000
WS_WF = 0x600000
WS_WFLAG = 0x640000
SPIN_MAX = 1 << 18
TAGM = 0xffc00000

NG = 12
NT = NG * 64
CAP = 224
PSTR = 2816
L_CC = 512
L_BASE = L_CC + NG * 64
L_ACNT = L_BASE + NG * 64
L_MORE = L_ACNT + 60
L_NONCE = L_ACNT + 64
L_FC = L_ACNT + 80
OSTR = 1040
L_P = L_ACNT + 128
L_LIST = L_P + 40 * PSTR
L_TOT = L_LIST + NG * CAP * 16
assert L_TOT <= 163840 and L_P % 16 == 0
OOBOFF = 0x00FFFC00

OPT = {}
DBG = False

class Asm:
    def __init__(self):
        self.l = []
    def __call__(self, s):
        for x in s.split("\n"):
            x = x.strip()
            if x:
                self.l.append("    " + x)
    def label(self, s):
        self.l.append(s + ":")
    def raw(self, s):
        self.l.append(s)
    def text(self):
        return "\n".join(self.l) + "\n"

def vr(a, n):
    return f"v[{a}:{a+n-1}]"
def sr(a, n=2):
    return f"s[{a}:{a+n-1}]"
def fl(k):
    return OPT.get(k, {'of': 'sc1'}.get(k, '')).replace('+', ' ')

V_C = 1; V_N16 = 2; V_VS = 4; V_VC = 5; V_PB = 6; V_JB = 7; V_DONE = 8
V_OFF = 9
V_T = 12
V_OH = 16; V_CA = 18; V_TCH = 19
V_SC = 20; V_IX = 24
V_A = [32, 36]
V_B = [40, 44]
V_ACC = 48
V_SV = 80
V_L = [104, 136]
NVG = 168
S_X = 4; S_OUT = 8; S_REC = 12; S_OFFS = 16; S_WF = 20
S_G = 22; S_S = 23; S_S1 = 24; S_B1 = 25; S_S2 = 26; S_PLO = 27; S_PHI = 28; S_NLAST = 29
S_RND = 30; S_MORE = 31; S_T = 32
S_M = 40
S_IN = 40
S_ACT = 52; S_PEND = 54; S_TM = 56; S_FEX = 58; S_RET = 60; S_HI = 62; S_FIRST = 63
S_NON = 64; S_DBG = 66; S_WSB = 68; S_SPIN = 0; S_WOK = 1; S_FLP = 63
S_ST = 70

spn = [0]
def stamp(a, k, real=False):
    if OPT.get("spinat") and int(OPT["spinat"]) == k:
        spn[0] += 1
        a.label(f"D_spin{spn[0]}")
        a(f"""
        s_memrealtime s[70:71]
        s_waitcnt lgkmcnt(0)
        s_sub_u32 s70, s70, s{S_NON}
        s_cmp_lt_u32 s70, {OPT["spint"]}
        s_cbranch_scc1 D_spin{spn[0]}
        """)
    if DBG:
        a(f"s_mem{'realtime' if real else 'time'} {sr(S_ST+2*k)}")
def stamp_dump(a):
    if OPT.get("spinat") == "9":
        a("s_waitcnt vmcnt(0)")
        stamp(a, 9)
    if DBG:
        a("s_waitcnt lgkmcnt(0) vmcnt(0)")
        stamp(a, 9)
        stamp(a, 11, True)
        a("s_waitcnt lgkmcnt(0)")
        if OPT.get("hwid"):
            a(f"s_getreg_b32 s{S_ST+26}, hwreg(HW_REG_HW_ID)")
            a(f"s_mov_b32 s{S_ST+27}, 0")
        a(f"s_mul_i32 s{S_T}, s2, {NG}")
        a(f"s_add_u32 s{S_T}, s{S_T}, s{S_G}")
        a(f"s_lshl_b32 s{S_T}, s{S_T}, 7")
        a(f"s_add_u32 s{S_T}, s{S_T}, 0x800000")
        a(f"v_mov_b32 v1, s{S_T}")
        for k in range(0, 32, 2):
            a(f"v_mov_b32 v2, s{S_ST+k}")
            a(f"v_mov_b32 v3, s{S_ST+k+1}")
            a(f"global_store_dwordx2 v1, v[2:3], {sr(S_WSB)} offset:{4*k}")
            a("s_nop 1")

def comp011(i): return 2 + 3*i
def comp101(i): return 3 + 3*i
def comp111(i): return 4 + 3*i

def touch(a, beta, part, va, vd):
    a(f"""
    s_mul_i32 s{S_T+6}, s3, 79
    s_add_u32 s{S_T+6}, s{S_T+6}, {64*part}
    v_and_b32 v{va}, 63, v0
    v_add_u32 v{va}, s{S_T+6}, v{va}
    v_and_b32 v{vd}, 1, v{va}
    v_lshrrev_b32 v{va}, 1, v{va}
    v_lshlrev_b32 v{va}, 10, v{va}
    v_lshl_add_u32 v{va}, v{vd}, 7, v{va}
    """)
    if part: a("s_mov_b64 exec, 0x7fff")
    a(f"buffer_load_dword v{vd}, v{va}, {sr(S_X,4)}, 0 offen offset:{256*beta}")
    if part: a("s_mov_b64 exec, -1")

WREG = {}
for n_, ks_ in enumerate([0, 1, 2, 3, 8, 9, 10, 11]): WREG[ks_] = 136 + 4*n_
for n_, ks_ in enumerate([12, 13, 14, 15, 16, 17, 18, 19, 4, 5, 6, 7]): WREG[ks_] = 88 + 4*n_
def wload(a, va, kss):
    a(f"""
    s_sub_u32 s{S_T+6}, s{S_G}, 4
    s_mul_i32 s{S_T+6}, s{S_T+6}, {20*1024}
    v_and_b32 v{va}, 63, v0
    v_lshl_add_u32 v{va}, v{va}, 4, s{S_T+6}
    """)
    cur = 0
    for ks in kss:
        blk = ks // 4 * 4096
        if blk != cur:
            if blk > cur: a(f"v_add_u32 v{va}, {blk - cur}, v{va}")
            else: a(f"v_subrev_u32 v{va}, {cur - blk}, v{va}")
            cur = blk
        a(f"global_load_dwordx4 {vr(WREG[ks],4)}, v{va}, {sr(S_WF)} offset:{1024*(ks%4)} sc1")

def meta_reads(a):
    a(f"""
    s_lshl_b32 s{S_T}, s{S_S2}, 9
    v_add_u32 v{V_T}, s{S_T}, v{V_VS}
    v_add_u32 v{V_CA}, s{S_T}, v{V_VC}
    """)
    for i in range(0, 8, 2):
        a(f"ds_read2_b32 {vr(V_IX+i,2)}, v{V_T} offset0:{16*i+2} offset1:{16*(i+1)+2}")
    a(f"ds_read2_b32 {vr(V_OH,2)}, v{V_CA} offset0:3 offset1:67")

def stage_x(a, p, tag, wait=True):
    L = V_L[p]; A = V_A[p]
    for i in range(0, 8, 2):
        a(f"v_pk_add_f32 {vr(V_IX+i,2)}, {vr(V_IX+i,2)}, {vr(V_N16,2)}")
    a(f"""
    v_bfe_i32 v{V_OH}, v{V_OH}, v{V_C}, 1
    v_bfe_i32 v{V_OH+1}, v{V_OH+1}, v{V_C}, 1
    s_add_u32 s{S_S2}, s{S_S1}, 1
    v_and_b32 v{V_OH}, v{V_OH}, v{V_CA}
    v_and_b32 v{V_OH+1}, v{V_OH+1}, v{V_CA}
    s_cmp_eq_u32 s{S_S2}, s{S_S}
    ds_read_b64_tr_b16 {vr(A,2)}, v{V_OH}
    ds_read_b64_tr_b16 {vr(A+2,2)}, v{V_OH+1} offset:256
    s_cbranch_scc1 M_part{tag}
    """)
    def load(i):
        a(f"buffer_load_dwordx4 {vr(L+4*i,4)}, v{V_IX+i}, {sr(S_X,4)}, s{S_B1} offen")
    a.label(f"M_full{tag}")
    for i in range(8):
        load(i)
    meta_reads(a)
    if wait: a("s_waitcnt vmcnt(8)")
    a(f"s_branch M_go{tag}")
    a.label(f"M_part{tag}")
    a(f"""
    s_mov_b32 s{S_S2}, 0
    s_cmp_eq_u32 s{S_NLAST}, 8
    s_cbranch_scc1 M_full{tag}
    """)
    for i in range(7):
        a(f"s_cmp_eq_u32 s{S_NLAST}, {i}")
        a(f"s_cbranch_scc1 M_w{tag}_{i}")
        load(i)
    for i in range(7, -1, -1):
        a.label(f"M_w{tag}_{i}")
        if wait:
            a(f"s_waitcnt vmcnt({i})")
            if i > 0: a(f"s_branch M_pm{tag}")
    a.label(f"M_pm{tag}")
    meta_reads(a)

def advance(a):
    a(f"""
    s_mov_b32 s{S_S1}, s{S_S2}
    s_cmp_eq_u32 s{S_S2}, 0
    s_cselect_b32 s{S_T}, 256, 0
    s_add_u32 s{S_B1}, s{S_B1}, s{S_T}
    """)

def compute(a, p, first):
    L = V_L[p]; A = V_A[p]
    def perms(j):
        B = V_B[j % 2]
        sel = S_PHI if j % 2 else S_PLO
        for q in range(4):
            a(f"v_perm_b32 v{B+q}, v{L+4*(2*q+1)+j//2}, v{L+4*(2*q)+j//2}, s{sel}")
    perms(0)
    for j in range(8):
        if j + 1 < 8:
            perms(j + 1)
        else:
            a("s_nop 1")
        acc = vr(V_ACC+4*j,4)
        a(f"v_mfma_f32_16x16x32_bf16 {acc}, {vr(A,4)}, {vr(V_B[j%2],4)}, {'0' if first else acc}")

wc_n = [0]
def write_comp(a, comp, regs):
    n = wc_n[0]; wc_n[0] += 1
    a(f"""
    s_cmp_eq_u32 s{S_RND}, 0
    s_cbranch_scc1 M_wc{n}
    ds_read_b128 {vr(V_SC,4)}, v{V_PB} offset:{comp*256}
    s_waitcnt lgkmcnt(0)
    """)
    for d in range(4):
        a(f"""
        v_lshlrev_b32 v{V_T}, 16, v{V_SC+d}
        v_and_b32 v{V_T+1}, s{S_HI}, v{V_SC+d}
        v_add_f32 v{regs[2*d]}, v{regs[2*d]}, v{V_T}
        v_add_f32 v{regs[2*d+1]}, v{regs[2*d+1]}, v{V_T+1}
        """)
    a.label(f"M_wc{n}")
    sc = [V_SC, V_B[0], V_B[1]][n % 3]
    for d in range(4):
        a(f"v_cvt_pk_bf16_f32 v{sc+d}, v{regs[2*d]}, v{regs[2*d+1]}")
    a(f"ds_write_b128 v{V_PB}, {vr(sc,4)} offset:{comp*256}")

def setprio(a, ph):
    pl = OPT.get("pl", "3211"); phv = OPT.get("ph", "3210")
    if pl[ph] == phv[ph]:
        a(f"s_setprio {pl[ph]}")
    else:
        a(f"""
        s_setprio {pl[ph]}
        s_cmp_ge_u32 s{S_G}, 4
        s_cbranch_scc1 M_pr{ph}
        s_setprio {phv[ph]}
        """)
        a.label(f"M_pr{ph}")

def flush_sub(a):
    acc = lambda r: [V_ACC + 4*j + r for j in range(8)]
    sv = lambda k: [V_SV + 8*k + j for j in range(8)]
    a.label("M_flush")
    a(f"""
    s_mov_b64 exec, {sr(S_FEX)}
    s_cmp_eq_u32 s{S_B1}, 512
    s_cbranch_scc1 M_fl1
    s_cmp_eq_u32 s{S_B1}, 768
    s_cbranch_scc1 M_fl2
    s_cmp_eq_u32 s{S_B1}, 1024
    s_cbranch_scc1 M_fl3
    s_nop 1
    """)
    def ret(ph, k):
        if not (OPT.get("pst") and k == 3): stamp(a, k)
        if ph is not None: setprio(a, ph)
        a(f"s_mov_b64 exec, -1")
        a(f"s_setpc_b64 {sr(S_RET)}")
    write_comp(a, 0, acc(0))
    for i in range(3): write_comp(a, comp011(i), acc(1+i))
    a("s_mov_b64 exec, -1")
    for n, b in enumerate(OPT.get("t3", "x").replace("x", "")):
        for k in range(2):
            a(f"s_cmp_lg_u32 s{S_G}, {4+2*n+k}")
            a(f"s_cbranch_scc1 M_t3_{n}_{k}")
            touch(a, int(b), k, V_T+2, V_TCH)
            a.label(f"M_t3_{n}_{k}")
    ret(1, 3)
    a.label("M_fl1")
    a("s_nop 4")
    write_comp(a, comp101(0), acc(0))
    for k in range(3):
        for j in range(8): a(f"v_mov_b32 v{sv(k)[j]}, v{acc(1+k)[j]}")
    ret(2, 4)
    a.label("M_fl2")
    a("s_nop 2")
    write_comp(a, comp101(1), acc(0))
    for j in range(8): a(f"v_sub_f32 v{acc(1)[j]}, v{acc(1)[j]}, v{sv(1)[j]}")
    write_comp(a, comp111(2), acc(1))
    for j in range(8): a(f"v_add_f32 v{sv(0)[j]}, v{sv(0)[j]}, v{acc(2)[j]}")
    for j in range(8): a(f"v_mov_b32 v{sv(1)[j]}, v{acc(3)[j]}")
    a(f"""
    s_mov_b64 exec, 1
    v_mov_b32 v{V_T+2}, {L_FC}
    v_mov_b32 v{V_T+3}, 1
    ds_add_u32 v{V_T+2}, v{V_T+3}
    """)
    ret(3, 5)
    a.label("M_fl3")
    write_comp(a, comp101(2), acc(0))
    for j in range(8): a(f"v_sub_f32 v{sv(2)[j]}, v{sv(2)[j]}, v{acc(1)[j]}")
    write_comp(a, comp111(1), sv(2))
    for j in range(8): a(f"v_sub_f32 v{acc(2)[j]}, v{acc(2)[j]}, v{sv(1)[j]}")
    write_comp(a, comp111(0), acc(2))
    for j in range(8): a(f"v_add_f32 v{sv(0)[j]}, v{sv(0)[j]}, v{acc(3)[j]}")
    write_comp(a, 1, sv(0))
    ret(None, 6)

A_H = L_P; A_BS = L_P + 4096; A_STG = L_P + 8192

def phase_a(a):
    RH = S_IN; EA = S_IN + 2; SRC = S_IN + 4; DST = S_IN + 6; WR = S_IN + 8; W0 = S_IN + 10; W1 = S_IN + 12
    WSB = sr(S_WSB)
    def read_nonce(wait=True):
        a(f"""
        v_mov_b32 v2, {L_NONCE}
        ds_read_b64 v[2:3], v2
        s_waitcnt lgkmcnt(0)
        v_readfirstlane_b32 s{S_NON}, v2
        v_readfirstlane_b32 s{S_NON+1}, v3
        """)
    a(f"""
    s_cmp_eq_u32 s{S_G}, 10
    s_cbranch_scc1 A_scan
    s_cmp_eq_u32 s{S_G}, 11
    s_cbranch_scc1 A_aux
    s_movk_i32 s{S_T+1}, 625
    s_mul_i32 s{S_T}, s3, {CH}
    v_cmp_gt_u32 vcc, s{S_T+1}, v0
    v_lshl_add_u32 v1, v0, 1, s{S_T}
    v_lshlrev_b32 v2, 2, v1
    v_mul_u32_u24 v3, 6, v1
    v_lshlrev_b32 v20, 1, v1
    s_mov_b64 exec, vcc
    global_load_dwordx2 v[4:5], v2, {sr(DST)} nt
    global_load_dwordx2 v[8:9], v2, {sr(SRC)} nt
    global_load_dwordx3 v[12:14], v3, {sr(RH)} nt
    global_load_dword v18, v20, {sr(EA)} nt
    v_mov_b32 v23, 1
    s_mul_i32 s{S_T}, s3, {CH * 16}
    v_lshlrev_b32 v20, 4, v0
    v_add_u32 v21, s{S_T}, v20
    s_barrier
    s_waitcnt vmcnt(3)
    """)
    for i in range(2):
        a(f"""
        v_and_b32 v{24+i}, 0xff, v{4+i}
        v_lshlrev_b32 v{24+i}, 2, v{24+i}
        ds_add_rtn_u32 v{28+i}, v{24+i}, v23 offset:{A_H}
        """)
    a("""
    s_waitcnt lgkmcnt(0)
    s_barrier
    """)
    for i in range(2):
        a(f"""
        v_lshrrev_b32 v{4+i}, 8, v{4+i}
        v_mul_u32_u24 v1, 43, v{4+i}
        v_lshrrev_b32 v1, 9, v1
        v_mul_u32_u24 v2, 12, v1
        v_sub_u32 v{4+i}, v{4+i}, v2
        v_lshlrev_b32 v1, 14, v1
        v_lshl_or_b32 v{32+4*i+2}, v{4+i}, 16, v1
        """)
    a(f"s_waitcnt vmcnt(0)")
    def half(dst, base, idx):
        r = base + idx // 2
        if idx % 2 == 0:
            a(f"v_lshlrev_b32 v{dst}, 16, v{r}")
        else:
            a(f"v_and_b32 v{dst}, s{S_HI}, v{r}")
    for i in range(2):
        half(4, 18, i)
        half(5, 12, 3*i+0)
        half(6, 12, 3*i+1)
        half(7, 12, 3*i+2)
        a(f"""
        v_mul_f32 v5, v4, v5
        v_mul_f32 v6, v4, v6
        v_mul_f32 v7, v4, v7
        v_cvt_pk_bf16_f32 v{32+4*i}, v4, v5
        v_cvt_pk_bf16_f32 v{32+4*i+1}, v6, v7
        """)
    a(f"""
    v_mov_b32 v2, {L_NONCE}
    s_barrier
    ds_read_b32 v4, v24 offset:{A_BS}
    ds_read_b32 v5, v25 offset:{A_BS}
    ds_read_b64 v[2:3], v2
    s_waitcnt lgkmcnt(0)
    """)
    for i in range(2):
        a(f"""
        v_add_lshl_u32 v{4+i}, v{4+i}, v{28+i}, 4
        v_or3_b32 v{32+4*i+2}, v{32+4*i+2}, v{8+i}, v3
        v_mov_b32 v{32+4*i+3}, v2
        ds_write_b128 v{4+i}, {vr(32+4*i,4)} offset:{A_STG}
        """)
    a(f"""
    v_readfirstlane_b32 s{S_NON}, v2
    v_readfirstlane_b32 s{S_NON+1}, v3
    s_waitcnt lgkmcnt(0)
    s_barrier
    ds_read_b128 v[32:35], v20 offset:{A_STG}
    ds_read_b128 v[36:39], v20 offset:{A_STG+10000}
    v_add_u32 v22, 10000, v21
    s_waitcnt lgkmcnt(1)
    global_store_dwordx4 v21, v[32:35], {WSB} sc1
    s_waitcnt lgkmcnt(0)
    global_store_dwordx4 v22, v[36:39], {WSB} sc1
    s_mov_b64 exec, -1
    s_branch A_end
    """)
    a.label("A_scan")
    a(f"""
    v_and_b32 v1, 63, v0
    v_lshlrev_b32 v1, 4, v1
    s_lshl_b32 s{S_T}, s3, 11
    s_add_u32 s{S_T}, s{S_T}, {WS_OFF}
    v_lshl_add_u32 v20, v1, 1, s{S_T}
    """)
    if int(OPT.get("cpf", 1)):
        a(f"s_getpc_b64 {sr(S_T+2)}")
        a.label("A_pc")
        a(f"""
        v_lshlrev_b32 v50, 3, v1
        s_mov_b32 s{S_T+4}, M_done-A_pc
        v_add_u32 v51, 8192, v50
        v_min_u32 v51, s{S_T+4}, v51
        global_load_dword v52, v50, {sr(S_T+2)}
        global_load_dword v53, v51, {sr(S_T+2)}
        """)
    a(f"""
    s_barrier
    """)
    for n, b in enumerate(OPT.get("t0", "x").replace("x", "")):
        touch(a, int(b), 0, 60+4*n, 61+4*n)
        touch(a, int(b), 1, 62+4*n, 63+4*n)
    a(f"""
    s_barrier
    ds_read_b128 v[4:7], v1 offset:{A_H}
    """)
    a(f"""
    s_waitcnt lgkmcnt(0)
    v_add_u32 v9, v4, v5
    v_add_u32 v10, v9, v6
    v_add_u32 v11, v10, v7
    v_mov_b32 v12, v11
    s_nop 1
    v_add_u32_dpp v12, v12, v12 row_shr:1 row_mask:0xf bank_mask:0xf bound_ctrl:0
    s_nop 1
    v_add_u32_dpp v12, v12, v12 row_shr:2 row_mask:0xf bank_mask:0xf bound_ctrl:0
    s_nop 1
    v_add_u32_dpp v12, v12, v12 row_shr:4 row_mask:0xf bank_mask:0xf bound_ctrl:0
    s_nop 1
    v_add_u32_dpp v12, v12, v12 row_shr:8 row_mask:0xf bank_mask:0xf bound_ctrl:0
    s_nop 1
    v_add_u32_dpp v12, v12, v12 row_bcast:15 row_mask:0xa bank_mask:0xf
    s_nop 1
    v_add_u32_dpp v12, v12, v12 row_bcast:31 row_mask:0xc bank_mask:0xf
    v_sub_u32 v12, v12, v11
    v_add_u32 v13, v12, v4
    v_add_u32 v14, v12, v9
    v_add_u32 v15, v12, v10
    ds_write_b128 v1, v[12:15] offset:{A_BS}
    """)
    for i in range(4):
        a(f"v_lshl_or_b32 v{24+2*i}, v{4+i}, 11, v{12+i}")
    a(f"""
    v_mov_b32 v2, {L_NONCE}
    s_waitcnt lgkmcnt(0)
    s_barrier
    ds_read_b64 v[2:3], v2
    s_waitcnt lgkmcnt(0)
    """)
    for i in range(4):
        a(f"""
        v_or_b32 v{24+2*i}, v3, v{24+2*i}
        v_mov_b32 v{25+2*i}, v2
        """)
    a(f"""
    v_readfirstlane_b32 s{S_NON}, v2
    v_readfirstlane_b32 s{S_NON+1}, v3
    s_barrier
    global_store_dwordx4 v20, v[24:27], {WSB} sc1
    global_store_dwordx4 v20, v[28:31], {WSB} offset:16 sc1
    s_branch A_end
    """)
    a.label("A_aux")
    a(f"""
    v_and_b32 v1, 63, v0
    s_cmp_ge_u32 s3, 160
    s_cbranch_scc1 A_wp1
    s_lshr_b32 s{S_T+3}, s3, 3
    s_and_b32 s{S_T+4}, s3, 3
    s_and_b32 s{S_T+5}, s3, 4
    s_lshl_b32 s{S_T+5}, s{S_T+5}, 1
    s_or_b32 s{S_T+4}, s{S_T+4}, s{S_T+5}
    s_cmp_lt_u32 s3, 64
    s_cbranch_scc1 A_wa
    s_sub_u32 s{S_T+5}, s3, 64
    s_and_b32 s{S_T+3}, s{S_T+5}, 7
    s_lshr_b32 s{S_T+4}, s{S_T+5}, 3
    s_cmp_lt_u32 s{S_T+4}, 4
    s_cselect_b32 s{S_T+5}, 4, 8
    s_add_u32 s{S_T+4}, s{S_T+4}, s{S_T+5}
    """)
    a.label("A_wa")
    a(f"""
    s_mul_i32 s{S_T+2}, s{S_T+3}, 20
    s_add_u32 s{S_T+2}, s{S_T+2}, s{S_T+4}
    v_and_b32 v2, 15, v1
    v_lshrrev_b32 v3, 4, v1
    s_lshl_b32 s{S_T+5}, s{S_T+4}, 5
    v_lshl_add_u32 v4, v3, 3, s{S_T+5}
    v_lshlrev_b32 v5, 1, v4
    s_lshl_b32 s{S_T+5}, s{S_T+3}, 4
    v_add_u32 v2, s{S_T+5}, v2
    v_lshlrev_b32 v2, 1, v2
    v_lshl_add_u32 v6, v4, 8, v2
    s_sub_u32 s{S_T+6}, s{W1}, {256*256}
    s_subb_u32 s{S_T+7}, s{W1+1}, 0
    s_cmp_lt_u32 s{S_T+4}, 8
    s_cselect_b32 s{S_T+6}, s{W0}, s{S_T+6}
    s_cselect_b32 s{S_T+7}, s{W0+1}, s{S_T+7}
    global_load_dwordx4 v[8:11], v5, {sr(WR)}
    """)
    for i in range(8):
        a(f"global_load_ushort v{12+i}, v6, {sr(S_T+6)} offset:{256*i}")
    a.label("A_wp1")
    a(f"""
    v_mov_b32 v2, 0
    s_barrier
    s_sleep {OPT.get('ns', 16)}
    global_load_dwordx2 v[4:5], v2, {sr(S_DBG)} sc1
    s_barrier
    """)
    T1 = OPT.get("t1", "0").replace("x", "")
    a(f"""
    s_cmp_ge_u32 s3, 160
    s_cbranch_scc1 A_nw
    s_lshl_b32 s{S_T+3}, s{S_T+2}, 10
    s_add_u32 s{S_T+3}, s{S_T+3}, {WS_WF}
    v_lshl_add_u32 v7, v1, 4, s{S_T+3}
    s_waitcnt vmcnt(1)
    """)
    for i in range(8):
        if i % 2 == 0:
            a(f"v_lshlrev_b32 v20, 16, v{8+i//2}")
        else:
            a(f"v_and_b32 v20, s{S_HI}, v{8+i//2}")
        a(f"v_lshlrev_b32 v{12+i}, 16, v{12+i}")
        a(f"v_mul_f32 v{12+i}, v20, v{12+i}")
    for i in range(4):
        a(f"v_cvt_pk_bf16_f32 v{24+i}, v{12+2*i}, v{13+2*i}")
    a(f"""
    global_store_dwordx4 v7, v[24:27], {WSB} sc1
    s_waitcnt vmcnt(1)
    s_branch A_nw1
    """)
    a.label("A_nw")
    a("s_waitcnt vmcnt(0)")
    a.label("A_nw1")
    for n, b in enumerate(T1):
        touch(a, int(b), 0, 32+4*n, 33+4*n)
        touch(a, int(b), 1, 34+4*n, 35+4*n)
    a("s_branch A_pn1")
    a.label("A_pn")
    a("s_waitcnt vmcnt(0)")
    a.label("A_pn1")
    a(f"""
    v_readfirstlane_b32 s{S_NON}, v4
    v_readfirstlane_b32 s{S_NON+1}, v5
    s_cmp_lg_u32 s{S_NON}, 0
    s_cbranch_scc1 A_pd
    global_load_dwordx2 v[4:5], v2, {sr(S_DBG)} sc1
    s_sub_u32 s{S_SPIN}, s{S_SPIN}, 1
    s_cmp_gt_i32 s{S_SPIN}, 0
    s_cbranch_scc1 A_pn
    s_waitcnt vmcnt(0)
    """)
    a.label("A_pd")
    a(f"""
    v_mov_b32 v2, {L_NONCE}
    ds_write_b64 v2, v[4:5]
    s_waitcnt lgkmcnt(0)
    s_barrier
    s_waitcnt vmcnt({2*len(T1)})
    s_barrier
    """)
    a.label("A_end")

def gen_main(a):
    K = NAME + "_kernel"
    a.raw(".p2align 8")
    a.raw(f".globl {K}")
    a.raw(f".type {K},@function")
    a.label(K)
    a(f"""
    s_cmp_ge_u32 s2, {NB}
    s_cbranch_scc1 M_done
    """)
    if OPT.get("empty"): a("s_endpgm")
    if DBG:
        for k in range(S_ST, S_ST+32): a(f"s_mov_b32 s{k}, 0")
    stamp(a, 0)
    stamp(a, 10, True)
    T = V_T
    a(f"""
    s_load_dwordx8 s[{S_IN}:{S_IN+7}], s[0:1], 8
    s_load_dwordx4 s[{S_IN+8}:{S_IN+11}], s[0:1], 40
    s_load_dwordx2 {sr(S_IN+12)}, s[0:1], 56
    s_load_dwordx2 {sr(S_X)}, s[0:1], 0
    s_load_dwordx2 {sr(S_OUT)}, s[0:1], 72
    s_load_dwordx2 {sr(S_DBG)}, s[0:1], 80
    s_load_dwordx2 {sr(S_WSB)}, s[0:1], 88
    s_memrealtime {sr(S_NON)}
    s_mov_b32 s3, s2
    s_and_b32 s{S_T}, s2, 7
    s_lshr_b32 s2, s2, 3
    s_lshl_b32 s{S_T}, s{S_T}, 5
    s_or_b32 s2, s2, s{S_T}
    v_lshrrev_b32 v1, 6, v0
    v_mov_b32 v3, 0
    v_readfirstlane_b32 s{S_G}, v1
    v_lshlrev_b32 v2, 2, v0
    ds_write_b32 v2, v3
    ds_write_b32 v2, v3 offset:{A_H}
    s_mov_b32 s{S_X+2}, {N*1024}
    s_mov_b32 s{S_X+3}, 0x20000
    s_mov_b32 s{S_OUT+2}, {N*1024}
    s_mov_b32 s{S_OUT+3}, 0x20000
    s_mov_b32 s{S_REC+2}, {E*16}
    s_mov_b32 s{S_REC+3}, 0x20000
    s_mov_b32 s{S_OFFS+2}, {NB*2048}
    s_mov_b32 s{S_OFFS+3}, 0x20000
    s_mov_b32 s{S_HI}, 0xffff0000
    s_waitcnt lgkmcnt(0)
    s_cmp_lg_u32 s3, 0
    s_cbranch_scc1 M_nonon
    s_cmp_lg_u32 s{S_G}, 0
    s_cbranch_scc1 M_nonon
    s_lshl_b32 s{S_NON+1}, s{S_NON+1}, 22
    s_or_b32 s{S_NON}, s{S_NON}, 1
    v_mov_b32 v4, s{S_NON}
    v_mov_b32 v5, s{S_NON+1}
    s_mov_b64 exec, 1
    global_store_dwordx2 v3, v[4:5], {sr(S_DBG)} sc1
    s_mov_b64 exec, -1
    """)
    a.label("M_nonon")
    assert L_P // 4 <= NT
    a(f"""
    s_mov_b32 s{S_SPIN}, {SPIN_MAX}
    s_mov_b32 s{S_REC}, s{S_WSB}
    s_and_b32 s{S_REC+1}, s{S_WSB+1}, 0xffff
    s_add_u32 s{S_OFFS}, s{S_WSB}, {WS_OFF}
    s_addc_u32 s{S_OFFS+1}, s{S_WSB+1}, 0
    s_add_u32 s{S_WF}, s{S_WSB}, {WS_WF}
    s_addc_u32 s{S_WF+1}, s{S_WSB+1}, 0
    s_and_b32 s{S_OFFS+1}, s{S_OFFS+1}, 0xffff
    s_and_b32 s{S_X+1}, s{S_X+1}, 0xffff
    s_and_b32 s{S_OUT+1}, s{S_OUT+1}, 0xffff
    """)
    phase_a(a)
    if int(OPT.get("rm", 1)):
        a(f"""
        s_add_u32 s{S_G}, s{S_G}, 4
        s_cmp_ge_u32 s{S_G}, 12
        s_cselect_b32 s{S_T}, 12, 0
        s_sub_u32 s{S_G}, s{S_G}, s{S_T}
        """)
    PO = V_ACC
    a(f"""
    v_lshrrev_b32 v{T}, 3, v0
    v_lshlrev_b32 v{PO+6}, 11, v{T}
    s_lshl_b32 s{S_T}, s2, 3
    v_add_u32 v{PO+6}, s{S_T}, v{PO+6}
    v_add_u32 v{PO+7}, {96*2048}, v{PO+6}
    v_add_u32 v{PO+8}, {192*2048}, v{PO+6}
    v_cmp_le_u32 {sr(S_PEND)}, 64, v{T}
    """)
    for r in range(3):
        a(f"buffer_load_dwordx2 {vr(PO+2*r,2)}, v{PO+6+r}, {sr(S_OFFS,4)}, 0 offen sc1")
    a(f"""
    v_mov_b32 v{V_JB}, 0
    v_mov_b32 v{V_DONE}, 0
    s_mov_b32 s{S_PLO}, 0x05040100
    s_mov_b32 s{S_PHI}, 0x07060302
    s_mov_b32 s{S_RND}, 0
    v_and_b32 v{T}, 63, v0
    v_and_b32 v{T+1}, 15, v{T}
    v_lshrrev_b32 v{T+2}, 4, v{T}
    v_lshlrev_b32 v{V_N16}, 4, v{T+1}
    v_lshlrev_b32 v{V_N16+1}, 4, v{T+1}
    v_and_b32 v{V_C}, 3, v{T}
    v_bfe_u32 v{T+3}, v{T}, 2, 2
    s_mul_i32 s{S_T}, s{S_G}, {CAP*16}
    s_add_u32 s{S_T}, s{S_T}, {L_LIST}
    v_lshl_add_u32 v{V_VS}, v{T+2}, 4, s{S_T}
    v_lshl_add_u32 v{V_VC}, v{T+3}, 6, v{V_VS}
    v_mul_u32_u24 v{T+2}, 12, v{T+2}
    v_add_u32 v{T+2}, s{S_G}, v{T+2}
    v_cmp_gt_u32 {sr(S_FEX)}, 40, v{T+2}
    v_mul_u32_u24 v{V_PB}, {PSTR}, v{T+2}
    v_and_b32 v{T+2}, 15, v{T+2}
    v_xor_b32 v{T+2}, v{T+2}, v{T+1}
    v_lshl_add_u32 v{V_PB}, v{T+2}, 4, v{V_PB}
    v_add_u32 v{V_PB}, {L_P}, v{V_PB}
    s_mov_b32 s{S_T+7}, {TAGM}
    """)
    L = V_L[0]; L2 = V_L[1]
    if OPT.get("pst"):
        stamp(a, 12)
        a("s_waitcnt vmcnt(3)")
        stamp(a, 3)
        a("s_waitcnt vmcnt(0)")
        stamp(a, 14)
    a.label("M_poll")
    a("s_waitcnt vmcnt(0)")
    for r in range(3):
        a(f"""
        v_and_b32 v{T}, s{S_T+7}, v{PO+2*r}
        v_cmp_eq_u32 {sr(S_M+2*r)}, s{S_NON+1}, v{T}
        v_cmp_eq_u32 vcc, s{S_NON}, v{PO+2*r+1}
        s_and_b64 {sr(S_M+2*r)}, {sr(S_M+2*r)}, vcc
        """)
    a(f"""
    s_or_b64 {sr(S_M+4)}, {sr(S_M+4)}, {sr(S_PEND)}
    s_and_b64 {sr(S_M)}, {sr(S_M)}, {sr(S_M+2)}
    s_and_b64 {sr(S_M)}, {sr(S_M)}, {sr(S_M+4)}
    s_cmp_eq_u64 {sr(S_M)}, -1
    s_cbranch_scc1 M_polled
    s_sub_u32 s{S_SPIN}, s{S_SPIN}, 1
    s_cmp_le_i32 s{S_SPIN}, 0
    s_cbranch_scc1 M_polled
    s_sleep {OPT.get('slp', 4)}
    """)
    for r in range(3):
        a(f"buffer_load_dwordx2 {vr(PO+2*r,2)}, v{PO+6+r}, {sr(S_OFFS,4)}, 0 offen sc1")
    a("s_branch M_poll")
    a.label("M_polled")
    for r in range(3):
        a(f"v_and_b32 v{V_OFF+r}, 0x3fffff, v{PO+2*r}")
    a(f"""
    s_mov_b64 {sr(S_ACT)}, -1
    s_mov_b32 s{S_FIRST}, 0
    s_branch M_w0
    """)
    a.label("M_init")
    a(f"""
    v_mov_b32 v{T+1}, 0
    v_lshlrev_b32 v{T}, 2, v0
    s_movk_i32 s{S_T}, {L_P//4}
    v_cmp_gt_u32 vcc, s{S_T}, v0
    s_and_saveexec_b64 {sr(S_TM)}, vcc
    ds_write_b32 v{T}, v{T+1}
    s_mov_b64 exec, {sr(S_TM)}
    s_mov_b64 {sr(S_ACT)}, -1
    s_waitcnt lgkmcnt(0)
    s_barrier
    s_mov_b32 s{S_FIRST}, 1
    """)
    a.label("M_w0")
    stamp(a, 1)
    a.label("M_window")
    L2 = V_ACC + 16
    REM = L2; ADR = L2 + 3; CTR = L2 + 6; RNK = L2 + 12; BAS = L2 + 18; ONE = L2 + 24
    WFV = L2 + 26; WFA = L2 + 28; TCA = L2 + 29
    a(f"""
    v_and_b32 v{T}, 7, v0
    v_add_u32 v{T}, v{T}, v{V_JB}
    v_lshrrev_b32 v{T+1}, 3, v0
    v_mul_u32_u24 v{T+1}, {CH}, v{T+1}
    v_add_u32 v{T+1}, v{T+1}, v{T}
    v_mov_b32 v{ONE}, 1
    """)
    for r in range(3):
        a(f"""
        v_lshrrev_b32 v{REM+r}, 11, v{V_OFF+r}
        v_sub_u32 v{REM+r}, v{REM+r}, v{T}
        v_and_b32 v{ADR+r}, 0x7ff, v{V_OFF+r}
        v_add_lshl_u32 v{ADR+r}, v{ADR+r}, v{T+1}, 4
        """)
        if r: a(f"v_add_u32 v{ADR+r}, {96*CH*16*r}, v{ADR+r}")
    for k in range(6):
        r = k % 3; h = k // 3
        a(f"v_cmp_lt_i32 {sr(S_M+2*k)}, {8*h}, v{REM+r}")
    a(f"""
    s_cmp_eq_u32 s{S_FIRST}, 0
    s_cbranch_scc1 M_rload
    """)
    for k in range(6):
        m = sr(S_M + 2*k)
        a(f"""
        v_and_b32 v{T+2}, {1<<k}, v{V_DONE}
        v_cmp_eq_u32 vcc, 0, v{T+2}
        s_and_b64 {m}, {m}, vcc
        s_and_b64 {m}, {m}, {sr(S_ACT)}
        """)
    a.label("M_rload")
    for k in range(6):
        r = k % 3; h = k // 3
        a(f"""
        s_mov_b64 exec, {sr(S_M+2*k)}
        s_cbranch_execz M_sl{k}
        buffer_load_dwordx4 {vr(L+4*k,4)}, v{ADR+r}, {sr(S_REC,4)}, 0 offen offset:{128*h} sc1
        """)
        a.label(f"M_sl{k}")
    a(f"""
    s_mov_b64 {sr(S_PEND)}, 0
    s_mov_b32 s{S_T}, {TAGM}
    s_waitcnt vmcnt(0)
    """)
    for k in range(6):
        a(f"""
        s_mov_b64 exec, {sr(S_M+2*k)}
        s_cbranch_execz M_sc{k}
        v_and_b32 v{T}, s{S_T}, v{L+4*k+2}
        v_cmp_ne_u32 {sr(S_TM)}, s{S_NON+1}, v{T}
        v_cmp_ne_u32 vcc, s{S_NON}, v{L+4*k+3}
        v_bfe_u32 v{CTR+k}, v{L+4*k+2}, 16, 4
        v_and_b32 v{T}, 15, v{L+4*k+2}
        s_or_b64 {sr(S_PEND)}, {sr(S_PEND)}, {sr(S_TM)}
        s_or_b64 {sr(S_PEND)}, {sr(S_PEND)}, vcc
        v_lshl_or_b32 v{T}, v{CTR+k}, 4, v{T}
        v_lshlrev_b32 v{BAS+k}, 2, v{T}
        """)
        a.label(f"M_sc{k}")
    a(f"""
    s_mov_b64 exec, -1
    s_cmp_eq_u64 {sr(S_PEND)}, 0
    s_cbranch_scc1 M_rok
    s_sleep {OPT.get('slp', 4)}
    s_sub_u32 s{S_SPIN}, s{S_SPIN}, 1
    s_cmp_gt_i32 s{S_SPIN}, 0
    s_cbranch_scc1 M_rload
    """)
    a.label("M_rok")
    stamp(a, 13)
    a(f"""
    s_cmp_lg_u32 s{S_FIRST}, 0
    s_cbranch_scc1 M_append
    """)
    for k in range(6):
        a(f"""
        s_mov_b64 exec, {sr(S_M+2*k)}
        s_cbranch_execz M_sa{k}
        ds_add_rtn_u32 v{RNK+k}, v{BAS+k}, v{ONE} offset:{L_CC}
        """)
        a.label(f"M_sa{k}")
    SCN = V_ACC
    a(f"""
    s_mov_b64 exec, -1
    s_cmp_lt_u32 s{S_G}, 4
    s_cbranch_scc1 M_nowpre
    """)
    wload(a, WFA, [0, 1, 2, 3, 8, 9, 10, 11])
    a.label("M_nowpre")
    a(f"""
    v_and_b32 v{T}, 63, v0
    v_lshlrev_b32 v{T}, 4, v{T}
    v_cmp_lt_u32 vcc, 0, v{V_C}
    v_cmp_lt_u32 {sr(S_TM)}, 1, v{V_C}
    s_waitcnt lgkmcnt(0)
    s_barrier
    ds_read_b128 {vr(SCN,4)}, v{T} offset:{L_CC}
    """)
    for n, b in enumerate(OPT.get("t2", "123").replace("x", "")):
        a(f"s_cmp_lg_u32 s{S_G}, {n}")
        a(f"s_cbranch_scc1 M_t2_{n}")
        touch(a, int(b), 0, TCA, V_TCH)
        touch(a, int(b), 1, TCA, TCA+1)
        a.label(f"M_t2_{n}")
    a(f"""
    s_waitcnt lgkmcnt(0)
    v_add_u32 v{SCN+4}, v{SCN}, v{SCN+1}
    v_add_u32 v{SCN+5}, v{SCN+4}, v{SCN+2}
    v_add_u32 v{SCN+6}, v{SCN+5}, v{SCN+3}
    s_nop 1
    v_mov_b32_dpp v{SCN+7}, v{SCN+6} quad_perm:[0,0,1,2] row_mask:0xf bank_mask:0xf
    v_cndmask_b32 v{SCN+7}, 0, v{SCN+7}, vcc
    v_add_u32 v{SCN+7}, v{SCN+7}, v{SCN+6}
    s_nop 1
    v_mov_b32_dpp v{SCN+8}, v{SCN+7} quad_perm:[0,0,0,1] row_mask:0xf bank_mask:0xf
    v_cndmask_b32 v{SCN+8}, 0, v{SCN+8}, {sr(S_TM)}
    v_add_u32 v{SCN+8}, v{SCN+8}, v{SCN+7}
    v_sub_u32 v{SCN+8}, v{SCN+8}, v{SCN+6}
    v_add_u32 v{SCN+9}, v{SCN+8}, v{SCN}
    v_add_u32 v{SCN+10}, v{SCN+8}, v{SCN+4}
    v_add_u32 v{SCN+11}, v{SCN+8}, v{SCN+5}
    s_mov_b32 exec_hi, 0xffff
    ds_write_b128 v{T}, {vr(SCN+8,4)} offset:{L_BASE}
    """)
    for k in range(6):
        a(f"""
        s_mov_b64 exec, {sr(S_M+2*k)}
        s_cbranch_execz M_sb{k}
        ds_read_b32 v{BAS+k}, v{BAS+k} offset:{L_BASE}
        """)
        a.label(f"M_sb{k}")
    a("s_branch M_place")
    a.label("M_append")
    for k in range(6):
        a(f"""
        s_mov_b64 exec, {sr(S_M+2*k)}
        v_lshlrev_b32 v{T+1}, 2, v{CTR+k}
        v_lshlrev_b32 v{T}, 6, v{CTR+k}
        ds_add_rtn_u32 v{RNK+k}, v{T+1}, v{ONE} offset:{L_ACNT}
        ds_read_b32 v{BAS+k}, v{T} offset:{L_BASE+60}
        ds_read_b32 v{T+2}, v{T} offset:{L_CC+60}
        s_waitcnt lgkmcnt(0)
        v_add_u32 v{BAS+k}, v{BAS+k}, v{T+2}
        """)
    a.label("M_place")
    a(f"""
    s_mov_b64 exec, -1
    s_mov_b64 {sr(S_PEND)}, 0
    s_mov_b32 s{S_T}, {L_LIST}
    s_movk_i32 s{S_T+2}, {CAP}
    s_mov_b32 s{S_FIRST}, 1
    """)
    for k in range(6):
        a(f"""
        s_cmp_eq_u64 {sr(S_M+2*k)}, 0
        s_cbranch_scc1 M_se{k}
        v_bfe_u32 v{T+1}, v{L+4*k+2}, 14, 2
        v_and_b32 v{L+4*k+2}, 0x3fff, v{L+4*k+2}
        v_lshlrev_b32 v{L+4*k+3}, v{T+1}, v{ONE}
        v_lshlrev_b32 v{L+4*k+2}, 10, v{L+4*k+2}
        v_mul_u32_u24 v{CTR+k}, s{S_T+2}, v{CTR+k}
        """)
        a.label(f"M_se{k}")
    a("s_waitcnt lgkmcnt(0)")
    for k in range(6):
        m = sr(S_M + 2*k)
        a(f"""
        s_mov_b64 exec, {m}
        s_cbranch_execz M_sp{k}
        v_add_u32 v{RNK+k}, v{RNK+k}, v{BAS+k}
        v_cmp_gt_u32 vcc, s{S_T+2}, v{RNK+k}
        v_add_u32 v{T}, v{CTR+k}, v{RNK+k}
        v_lshl_add_u32 v{CTR+k}, v{T}, 4, s{S_T}
        s_andn2_b64 {sr(S_TM)}, {m}, vcc
        s_or_b64 {sr(S_PEND)}, {sr(S_PEND)}, {sr(S_TM)}
        s_mov_b64 exec, vcc
        ds_write_b128 v{CTR+k}, {vr(L+4*k,4)}
        v_or_b32 v{V_DONE}, {1<<k}, v{V_DONE}
        """)
        a.label(f"M_sp{k}")
    a(f"""
    s_mov_b64 exec, -1
    v_mov_b32 v{T+2}, {L_MORE}
    v_max3_i32 v{T}, v{REM}, v{REM+1}, v{REM+2}
    s_mov_b64 exec, {sr(S_PEND)}
    ds_write_b32 v{T+2}, v{ONE}
    s_andn2_b64 {sr(S_ACT)}, {sr(S_ACT)}, {sr(S_PEND)}
    s_mov_b64 exec, {sr(S_ACT)}
    v_add_u32 v{V_JB}, 16, v{V_JB}
    v_mov_b32 v{V_DONE}, 0
    v_cmp_lt_i32 vcc, 16, v{T}
    s_mov_b64 exec, -1
    s_cmp_lg_u64 vcc, 0
    s_cbranch_scc1 M_window
    s_lshl_b32 s{S_T}, s{S_G}, 6
    v_mov_b32 v{T}, s{S_T}
    s_lshl_b32 s{S_T}, s{S_G}, 2
    v_mov_b32 v{T+1}, s{S_T}
    s_waitcnt lgkmcnt(0)
    """)
    stamp(a, 15)
    a(f"""
    s_barrier
    ds_read_b32 v{V_A[0]}, v{T} offset:{L_BASE+60}
    ds_read_b32 v{V_A[0]+1}, v{T} offset:{L_CC+60}
    ds_read_b32 v{V_A[0]+2}, v{T+1} offset:{L_ACNT}
    ds_read_b32 v{V_A[0]+3}, v{T+2}
    v_and_b32 v{T}, 63, v0
    v_mov_b32 v{V_B[0]}, {OOBOFF}
    v_mov_b32 v{V_B[0]+1}, 0
    s_mov_b32 s{S_S1}, 0
    s_mov_b32 s{S_S2}, 0
    s_mov_b32 s{S_B1}, 0
    s_waitcnt lgkmcnt(0)
    v_add3_u32 v{T+1}, v{V_A[0]}, v{V_A[0]+1}, v{V_A[0]+2}
    v_readfirstlane_b32 s{S_MORE}, v{V_A[0]+3}
    v_readfirstlane_b32 s{S_T}, v{T+1}
    s_min_u32 s{S_T}, s{S_T}, {CAP}
    s_add_u32 s{S_S}, s{S_T}, 31
    s_lshr_b32 s{S_S}, s{S_S}, 5
    s_max_u32 s{S_S}, s{S_S}, 1
    s_lshl_b32 s{S_T+1}, s{S_S}, 5
    v_add_u32 v{T}, s{S_T}, v{T}
    v_cmp_gt_u32 vcc, s{S_T+1}, v{T}
    s_mul_i32 s{S_T+2}, s{S_G}, {CAP*16}
    s_add_u32 s{S_T+2}, s{S_T+2}, {L_LIST+8}
    v_lshl_add_u32 v{T}, v{T}, 4, s{S_T+2}
    s_mov_b64 exec, vcc
    ds_write_b64 v{T}, {vr(V_B[0],2)}
    s_mov_b64 exec, -1
    s_sub_u32 s{S_NLAST}, s{S_T}, s{S_T+1}
    s_add_u32 s{S_NLAST}, s{S_NLAST}, 35
    s_lshr_b32 s{S_NLAST}, s{S_NLAST}, 2
    """)
    meta_reads(a)
    a(f"""
    s_cmp_gt_u32 s{S_S}, 2
    s_cbranch_scc1 M_nozl
    """)
    for k in range(32):
        a(f"v_mov_b32 v{V_L[0]+k}, 0")
    a(f"""
    s_cmp_ge_u32 s{S_G}, 4
    s_cbranch_scc1 M_nozl
    """)
    for k in range(32):
        a(f"v_mov_b32 v{V_L[1]+k}, 0")
    a.label("M_nozl")
    stamp(a, 2)
    setprio(a, 0)
    a(f"""
    s_waitcnt lgkmcnt(0)
    s_cmp_ge_u32 s{S_G}, 4
    s_cbranch_scc1 M_sb
    """)
    stage_x(a, 0, "i", wait=False)
    a.label("M_goi")
    advance(a)
    a(f"s_mov_b32 s{S_FIRST}, 1")
    for p in range(2):
        a.label(f"M_it{p}")
        a(f"""
        s_waitcnt lgkmcnt(0)
        s_cmp_eq_u32 s{S_B1}, 1024
        s_cbranch_scc1 M_w{p}_0
        """)
        stage_x(a, p ^ 1, str(p))
        a.label(f"M_go{p}")
        a(f"""
        s_cmp_eq_u32 s{S_FIRST}, 0
        s_cbranch_scc1 M_cn{p}
        """)
        compute(a, p, True)
        a(f"s_branch M_cd{p}")
        a.label(f"M_cn{p}")
        compute(a, p, False)
        a.label(f"M_cd{p}")
        a(f"""
        s_mov_b32 s{S_FIRST}, 0
        s_cmp_lg_u32 s{S_S1}, 0
        s_cbranch_scc1 M_nofl{p}
        s_mov_b32 s{S_FIRST}, 1
        s_call_b64 {sr(S_RET)}, M_flush
        s_cmp_eq_u32 s{S_B1}, 1024
        s_cbranch_scc1 M_end
        """)
        a.label(f"M_nofl{p}")
        advance(a)
        if p == 1:
            a("s_branch M_it0")
    a.label("M_sb")
    a(f"s_mov_b32 s{S_FLP}, 0")
    a.label("M_its")
    stage_x(a, 0, "s", wait=False)
    a.label("M_gos")
    a(f"""
    s_cmp_eq_u32 s{S_FLP}, 0
    s_cbranch_scc1 M_nofls
    """)
    a.label("M_dofl")
    a(f"""
    s_call_b64 {sr(S_RET)}, M_flush
    s_cmp_eq_u32 s{S_B1}, 1024
    s_cbranch_scc1 M_end
    """)
    a.label("M_nofls")
    a(f"""
    s_cmp_eq_u32 s{S_S1}, 0
    s_waitcnt vmcnt(0) lgkmcnt(0)
    s_cbranch_scc0 M_cns
    """)
    compute(a, 0, True)
    a("s_branch M_cds")
    a.label("M_cns")
    compute(a, 0, False)
    a.label("M_cds")
    a(f"""
    s_mov_b32 s{S_S1}, s{S_S2}
    s_cmp_eq_u32 s{S_S2}, 0
    s_cselect_b32 s{S_FLP}, 256, 0
    s_add_u32 s{S_B1}, s{S_B1}, s{S_FLP}
    s_cmp_eq_u32 s{S_B1}, 1024
    s_cbranch_scc1 M_dofl
    s_branch M_its
    """)
    flush_sub(a)
    a.label("M_end")
    a(f"""
    s_cmp_eq_u32 s{S_MORE}, 0
    s_cbranch_scc1 M_gemm
    s_mov_b32 s{S_RND}, 1
    s_waitcnt lgkmcnt(0)
    s_barrier
    s_branch M_init
    """)
    a.label("M_gemm")
    if OPT.get("nogemm"): a("s_endpgm")
    gemm(a)
    a.label("M_done")
    a("s_endpgm")

def gemm(a):
    ACC = [40, 56, 72]; BB = 16; NBB = 6
    a(f"""
    s_setprio 0
    s_cmp_ge_u32 s{S_G}, 4
    s_cbranch_scc1 M_gw
    s_waitcnt lgkmcnt(0)
    s_barrier
    {"s_barrier" if OPT.get("twice") else ""}
    {"s_barrier" if OPT.get("twice") else ""}
    s_branch M_st
    """)
    a.label("M_gw")
    a(f"""
    v_and_b32 v10, 63, v0
    s_waitcnt lgkmcnt(0)
    """)
    late = [12, 13, 14, 15, 16, 17, 18, 19, 4, 5, 6, 7]
    wload(a, 11, late)
    a(f"""
    v_and_b32 v12, 15, v10
    v_lshrrev_b32 v13, 4, v10
    v_mul_u32_u24 v14, {PSTR}, v12
    v_add_u32 v14, {L_P}, v14
    """)
    for k4 in range(4):
        a(f"""
        v_add_u32 v15, {4*k4}, v13
        v_xor_b32 v15, v15, v12
        v_lshl_add_u32 v{1+k4}, v15, 4, v14
        v_add_u32 v{5+k4}, {32*PSTR}, v{1+k4}
        """)
    a(f"""
    s_lshl_b32 s{S_T+1}, s{S_G}, 5
    s_add_u32 s{S_T+1}, s{S_T+1}, {L_LIST - 128}
    v_mul_u32_u24 v9, {OSTR}, v12
    v_lshl_add_u32 v9, v13, 3, v9
    v_add_u32 v9, s{S_T+1}, v9
    s_mov_b32 s{S_T+2}, 0xbfb8aa3b
    v_mov_b32 v14, {L_FC}
    """)
    a.label("M_fcw")
    a(f"""
    ds_read_b32 v15, v14
    s_waitcnt lgkmcnt(0)
    v_readfirstlane_b32 s{S_T}, v15
    s_cmp_ge_u32 s{S_T}, {NG}
    s_cbranch_scc1 M_fcok
    s_sleep 2
    s_branch M_fcw
    """)
    a.label("M_fcok")
    if not OPT.get("pst"): stamp(a, 12)
    st1 = []; st2 = []
    for t in range(3):
        for k4 in range(4):
            st1.append((t, 0, 0, k4, k4))
            for i in range(3): st1.append((t, 1+i, comp011(i), k4, 8 + k4))
    for t in range(3):
        for k4 in range(4):
            st1.append((t, 1, comp101(0), k4, 12 + k4))
            st1.append((t, 2, comp101(1), k4, 12 + k4))
    for t in range(3):
        for k4 in range(4):
            st1.append((t, 3, comp111(2), k4, 16 + k4))
    for k4 in range(4):
        for t in range(3):
            st2.append((t, 0, 1, k4, 4 + k4))
    for t in range(3):
        for k4 in range(4):
            st2.append((t, 3, comp101(2), k4, 12 + k4))
            st2.append((t, 1, comp111(0), k4, 16 + k4))
            st2.append((t, 2, comp111(1), k4, 16 + k4))
    started = set()
    wmax = [-2]
    def run(steps, fill):
        q = []
        def rd(n):
            t, o, c, k4, ws = steps[n]
            base = (1 + k4) if t < 2 else (5 + k4)
            off = c*256 + (16*PSTR if t == 1 else 0)
            a(f"ds_read_b128 {vr(BB+4*(n%NBB),4)}, v{base} offset:{off}")
            q.append(n)
        n_steps = len(steps)
        for n in range(NBB - 1): rd(n)
        for n in range(n_steps):
            t, o, c, k4, ws = steps[n]
            if n + NBB - 1 < n_steps: rd(n + NBB - 1)
            pend = len(q) - 1 - q.index(n)
            assert pend <= 15
            idx = late.index(ws) if ws in late else -1
            w = f"lgkmcnt({pend})"
            if idx > wmax[0]:
                w = f"vmcnt({len(late) - 1 - idx}) " + w
                wmax[0] = idx
            a("s_waitcnt " + w)
            acc = vr(ACC[t] + 4*o, 4)
            first = (t, o) not in started
            started.add((t, o))
            a(f"v_mfma_f32_16x16x32_bf16 {acc}, {vr(WREG[ws],4)}, {vr(BB+4*(n%NBB),4)}, {'0' if first else acc}")
            for x in fill.get(n, []):
                a(x)
                if x.startswith("ds_"): q.append(-1)
    GT = 136
    PK = int(OPT.get("pk", 1))
    gate_ops = []
    for t in range(3):
        A0 = ACC[t]; g = GT + 4*t
        gate_ops += [f"v_mul_f32 v{g+r}, s{S_T+2}, v{A0+r}" for r in range(4)]
        gate_ops += [f"v_exp_f32 v{g+r}, v{g+r}" for r in range(4)]
        gate_ops += [f"v_cvt_pk_bf16_f32 v{A0}, v{A0}, v{A0+1}", f"v_cvt_pk_bf16_f32 v{A0+1}, v{A0+2}, v{A0+3}"]
        gate_ops += [f"ds_write_b64 v9, {vr(A0,2)} offset:{16*OSTR*t}"]
        gate_ops += [f"v_add_f32 v{g+r}, 1.0, v{g+r}" for r in range(4)]
        gate_ops += [f"v_rcp_f32 v{g+r}, v{g+r}" for r in range(4)]
    def fin_ops(t):
        o = []
        for i in [2, 0, 1]:
            B0 = ACC[t] + 4 + 4*i
            if PK:
                o += [f"v_pk_mul_f32 {vr(B0+r,2)}, {vr(B0+r,2)}, {vr(GT+4*t+r,2)}" for r in (0, 2)]
            else:
                o += [f"v_mul_f32 v{B0+r}, v{B0+r}, v{GT+4*t+r}" for r in range(4)]
            o += [f"v_cvt_pk_bf16_f32 v{B0}, v{B0}, v{B0+1}", f"v_cvt_pk_bf16_f32 v{B0+1}, v{B0+2}, v{B0+3}"]
            o += [f"ds_write_b64 v9, {vr(B0,2)} offset:{16*OSTR*t + 256*(i+1)}"]
        return o
    fill = {}
    def spread(ops, n0, n1):
        cnt = n1 - n0
        for j, op in enumerate(ops):
            fill.setdefault(n0 + j * cnt // len(ops), []).append(op)
    spread(gate_ops, 15, 34)
    spread(fin_ops(0), 34, 40)
    spread(fin_ops(1), 40, 47)
    run(st1, {})
    if not OPT.get("pst"): stamp(a, 14)
    a("s_barrier")
    stamp(a, 7)
    run(st2, fill)
    a("s_nop 5")
    for x in fin_ops(2): a(x)
    a("s_waitcnt lgkmcnt(0)")
    if OPT.get("st13"): stamp(a, 13)
    a.label("M_st")
    a(f"""
    v_and_b32 v10, 63, v0
    s_mul_i32 s{S_T}, s{S_G}, {OSTR}
    s_add_u32 s{S_T}, s{S_T}, {L_LIST}
    v_lshl_add_u32 v11, v10, 4, s{S_T}
    s_lshl_b32 s{S_T}, s{S_G}, 18
    s_lshl_b32 s{S_T+1}, s2, 10
    s_add_u32 s{S_T}, s{S_T}, s{S_T+1}
    v_lshl_add_u32 v12, v10, 4, s{S_T}
    s_barrier
    """)
    stamp(a, 8)
    for k in range(3):
        a(f"ds_read_b128 {vr(16+4*k,4)}, v11 offset:{12*OSTR*k}")
    a(f"""
    s_cmp_ge_u32 s{S_G}, 4
    s_cbranch_scc1 M_st3
    ds_read_b128 v[28:31], v11 offset:{36*OSTR}
    v_add_u32 v13, {36 << 18}, v12
    s_waitcnt lgkmcnt(0)
    buffer_store_dwordx4 v[28:31], v13, {sr(S_OUT,4)}, 0 offen {fl('of')}
    """)
    a.label("M_st3")
    for k in range(3):
        a(f"s_waitcnt lgkmcnt({2-k})")
        a(f"buffer_store_dwordx4 {vr(16+4*k,4)}, v12, {sr(S_OUT,4)}, 0 offen {fl('of')}")
        if k < 2: a(f"v_add_u32 v12, {12 << 18}, v12")
    stamp_dump(a)

def kd(a, name, vg, sg):
    acc = (vg + 3) // 4 * 4
    a.raw(f""".p2align 6
.amdhsa_kernel {name}
  .amdhsa_next_free_vgpr {vg}
  .amdhsa_next_free_sgpr {sg}
  .amdhsa_accum_offset {acc}
  .amdhsa_group_segment_fixed_size 0
  .amdhsa_kernarg_size 96
  .amdhsa_user_sgpr_count 2
  .amdhsa_user_sgpr_kernarg_segment_ptr 1
  .amdhsa_system_sgpr_workgroup_id_x 1
  .amdhsa_float_denorm_mode_32 3
.end_amdhsa_kernel""")

def main():
    global DBG
    OPT.update(dict(x.split("=") for x in sys.argv[2:]))
    DBG = bool(int(OPT.get("dbg", 0)))
    a = Asm()
    ref = open(f"cdna_kernels/{NAME}.s.ref").read().split("\n")
    for ln in ref:
        if ln.startswith(";") and "@launch" not in ln and "Override" not in ln and "grid=ceil" not in ln:
            a.raw(ln)
    a.raw(f"; @launch kernel={NAME}_kernel grid=({NB},1,1) block=({NT},1,1) lds={L_TOT}")
    a.raw('.amdgcn_target "amdgcn-amd-amdhsa--gfx950"')
    a.raw(".text")
    gen_main(a)
    a.raw('.section .rodata,"a"')
    kd(a, NAME + "_kernel", NVG, 102 if DBG else 72)
    open(sys.argv[1], "w").write(a.text())

main()
```

```python
import sys

NAME = "gather_scatter__tensor_product_equiv_equiformer__graph"
N = 10000
E = 320000
NB = 256
CH = 1250
WS_OFF = 0x500000
WS_WF = 0x600000
WS_WFLAG = 0x640000
SPIN_MAX = 1 << 18
TAGM = 0xffc00000

NG = 12
NT = NG * 64
CAP = 224
PSTR = 2816
L_CC = 512
L_BASE = L_CC + NG * 64
L_ACNT = L_BASE + NG * 64
L_MORE = L_ACNT + 60
L_NONCE = L_ACNT + 64
L_FC = L_ACNT + 80
OSTR = 1040
L_P = L_ACNT + 128
L_LIST = L_P + 40 * PSTR
L_TOT = L_LIST + NG * CAP * 16
assert L_TOT <= 163840 and L_P % 16 == 0
OOBOFF = 0x00FFFC00

OPT = {}
DBG = False

class Asm:
    def __init__(self):
        self.l = []
    def __call__(self, s):
        for x in s.split("\n"):
            x = x.strip()
            if x:
                self.l.append("    " + x)
    def label(self, s):
        self.l.append(s + ":")
    def raw(self, s):
        self.l.append(s)
    def text(self):
        return "\n".join(self.l) + "\n"

def vr(a, n):
    return f"v[{a}:{a+n-1}]"
def sr(a, n=2):
    return f"s[{a}:{a+n-1}]"
def fl(k):
    return OPT.get(k, {'of': 'sc1'}.get(k, '')).replace('+', ' ')

V_C = 1; V_N16 = 2; V_VS = 4; V_VC = 5; V_PB = 6; V_JB = 7; V_DONE = 8
V_OFF = 9
V_T = 12
V_OH = 16; V_CA = 18; V_TCH = 19
V_SC = 20; V_IX = 24
V_A = [32, 36]
V_B = [40, 44]
V_ACC = 48
V_SV = 80
V_L = [104, 136]
NVG = 168
S_X = 4; S_OUT = 8; S_REC = 12; S_OFFS = 16; S_WF = 20
S_G = 22; S_S = 23; S_S1 = 24; S_B1 = 25; S_S2 = 26; S_PLO = 27; S_PHI = 28; S_NLAST = 29
S_RND = 30; S_MORE = 31; S_T = 32
S_M = 40
S_IN = 40
S_ACT = 52; S_PEND = 54; S_TM = 56; S_FEX = 58; S_RET = 60; S_HI = 62; S_FIRST = 63
S_NON = 64; S_DBG = 66; S_WSB = 68; S_SPIN = 0; S_WOK = 1; S_FLP = 63
S_ST = 70

def stamp(a, k, real=False):
    if DBG:
        a(f"s_mem{'realtime' if real else 'time'} {sr(S_ST+2*k)}")
def stamp_dump(a):
    if DBG:
        a("s_waitcnt lgkmcnt(0) vmcnt(0)")
        stamp(a, 9)
        stamp(a, 11, True)
        a("s_waitcnt lgkmcnt(0)")
        if OPT.get("hwid"):
            a(f"s_getreg_b32 s{S_ST+26}, hwreg(HW_REG_HW_ID)")
            a(f"s_mov_b32 s{S_ST+27}, 0")
        a(f"s_mul_i32 s{S_T}, s2, {NG}")
        a(f"s_add_u32 s{S_T}, s{S_T}, s{S_G}")
        a(f"s_lshl_b32 s{S_T}, s{S_T}, 7")
        a(f"s_add_u32 s{S_T}, s{S_T}, 0x800000")
        a(f"v_mov_b32 v1, s{S_T}")
        for k in range(0, 32, 2):
            a(f"v_mov_b32 v2, s{S_ST+k}")
            a(f"v_mov_b32 v3, s{S_ST+k+1}")
            a(f"global_store_dwordx2 v1, v[2:3], {sr(S_WSB)} offset:{4*k}")
            a("s_nop 1")

def comp011(i): return 2 + 3*i
def comp101(i): return 3 + 3*i
def comp111(i): return 4 + 3*i

def touch(a, beta, part, va, vd):
    a(f"""
    s_mul_i32 s{S_T+6}, s3, 79
    s_add_u32 s{S_T+6}, s{S_T+6}, {64*part}
    v_and_b32 v{va}, 63, v0
    v_add_u32 v{va}, s{S_T+6}, v{va}
    v_and_b32 v{vd}, 1, v{va}
    v_lshrrev_b32 v{va}, 1, v{va}
    v_lshlrev_b32 v{va}, 10, v{va}
    v_lshl_add_u32 v{va}, v{vd}, 7, v{va}
    """)
    if part: a("s_mov_b64 exec, 0x7fff")
    a(f"buffer_load_dword v{vd}, v{va}, {sr(S_X,4)}, 0 offen offset:{256*beta}")
    if part: a("s_mov_b64 exec, -1")

WREG = {}
for n_, ks_ in enumerate([0, 1, 2, 3, 8, 9, 10, 11]): WREG[ks_] = 136 + 4*n_
for n_, ks_ in enumerate([12, 13, 14, 15, 16, 17, 18, 19, 4, 5, 6, 7]): WREG[ks_] = 88 + 4*n_
def wload(a, va, kss):
    a(f"""
    s_sub_u32 s{S_T+6}, s{S_G}, 4
    s_mul_i32 s{S_T+6}, s{S_T+6}, {20*1024}
    v_and_b32 v{va}, 63, v0
    v_lshl_add_u32 v{va}, v{va}, 4, s{S_T+6}
    """)
    cur = 0
    for ks in kss:
        blk = ks // 4 * 4096
        if blk != cur:
            if blk > cur: a(f"v_add_u32 v{va}, {blk - cur}, v{va}")
            else: a(f"v_subrev_u32 v{va}, {cur - blk}, v{va}")
            cur = blk
        a(f"global_load_dwordx4 {vr(WREG[ks],4)}, v{va}, {sr(S_WF)} offset:{1024*(ks%4)} sc1")

def meta_reads(a):
    a(f"""
    s_lshl_b32 s{S_T}, s{S_S2}, 9
    v_add_u32 v{V_T}, s{S_T}, v{V_VS}
    v_add_u32 v{V_CA}, s{S_T}, v{V_VC}
    """)
    for i in range(0, 8, 2):
        a(f"ds_read2_b32 {vr(V_IX+i,2)}, v{V_T} offset0:{16*i+2} offset1:{16*(i+1)+2}")
    a(f"ds_read2_b32 {vr(V_OH,2)}, v{V_CA} offset0:3 offset1:67")

def stage_x(a, p, tag, wait=True):
    L = V_L[p]; A = V_A[p]
    for i in range(0, 8, 2):
        a(f"v_pk_add_f32 {vr(V_IX+i,2)}, {vr(V_IX+i,2)}, {vr(V_N16,2)}")
    a(f"""
    v_bfe_i32 v{V_OH}, v{V_OH}, v{V_C}, 1
    v_bfe_i32 v{V_OH+1}, v{V_OH+1}, v{V_C}, 1
    s_add_u32 s{S_S2}, s{S_S1}, 1
    v_and_b32 v{V_OH}, v{V_OH}, v{V_CA}
    v_and_b32 v{V_OH+1}, v{V_OH+1}, v{V_CA}
    s_cmp_eq_u32 s{S_S2}, s{S_S}
    ds_read_b64_tr_b16 {vr(A,2)}, v{V_OH}
    ds_read_b64_tr_b16 {vr(A+2,2)}, v{V_OH+1} offset:256
    s_cbranch_scc1 M_part{tag}
    """)
    def load(i):
        a(f"buffer_load_dwordx4 {vr(L+4*i,4)}, v{V_IX+i}, {sr(S_X,4)}, s{S_B1} offen")
    a.label(f"M_full{tag}")
    for i in range(8):
        load(i)
    meta_reads(a)
    if wait: a("s_waitcnt vmcnt(8)")
    a(f"s_branch M_go{tag}")
    a.label(f"M_part{tag}")
    a(f"""
    s_mov_b32 s{S_S2}, 0
    s_cmp_eq_u32 s{S_NLAST}, 8
    s_cbranch_scc1 M_full{tag}
    """)
    for i in range(7):
        a(f"s_cmp_eq_u32 s{S_NLAST}, {i}")
        a(f"s_cbranch_scc1 M_w{tag}_{i}")
        load(i)
    for i in range(7, -1, -1):
        a.label(f"M_w{tag}_{i}")
        if wait:
            a(f"s_waitcnt vmcnt({i})")
            if i > 0: a(f"s_branch M_pm{tag}")
    a.label(f"M_pm{tag}")
    meta_reads(a)

def advance(a):
    a(f"""
    s_mov_b32 s{S_S1}, s{S_S2}
    s_cmp_eq_u32 s{S_S2}, 0
    s_cselect_b32 s{S_T}, 256, 0
    s_add_u32 s{S_B1}, s{S_B1}, s{S_T}
    """)

def compute(a, p, first):
    L = V_L[p]; A = V_A[p]
    def perms(j):
        B = V_B[j % 2]
        sel = S_PHI if j % 2 else S_PLO
        for q in range(4):
            a(f"v_perm_b32 v{B+q}, v{L+4*(2*q+1)+j//2}, v{L+4*(2*q)+j//2}, s{sel}")
    perms(0)
    for j in range(8):
        if j + 1 < 8:
            perms(j + 1)
        else:
            a("s_nop 1")
        acc = vr(V_ACC+4*j,4)
        a(f"v_mfma_f32_16x16x32_bf16 {acc}, {vr(A,4)}, {vr(V_B[j%2],4)}, {'0' if first else acc}")

wc_n = [0]
def write_comp(a, comp, regs):
    n = wc_n[0]; wc_n[0] += 1
    a(f"""
    s_cmp_eq_u32 s{S_RND}, 0
    s_cbranch_scc1 M_wc{n}
    ds_read_b128 {vr(V_SC,4)}, v{V_PB} offset:{comp*256}
    s_waitcnt lgkmcnt(0)
    """)
    for d in range(4):
        a(f"""
        v_lshlrev_b32 v{V_T}, 16, v{V_SC+d}
        v_and_b32 v{V_T+1}, s{S_HI}, v{V_SC+d}
        v_add_f32 v{regs[2*d]}, v{regs[2*d]}, v{V_T}
        v_add_f32 v{regs[2*d+1]}, v{regs[2*d+1]}, v{V_T+1}
        """)
    a.label(f"M_wc{n}")
    sc = [V_SC, V_B[0], V_B[1]][n % 3]
    for d in range(4):
        a(f"v_cvt_pk_bf16_f32 v{sc+d}, v{regs[2*d]}, v{regs[2*d+1]}")
    a(f"ds_write_b128 v{V_PB}, {vr(sc,4)} offset:{comp*256}")

def setprio(a, ph):
    pl = OPT.get("pl", "3211"); phv = OPT.get("ph", "3210")
    if pl[ph] == phv[ph]:
        a(f"s_setprio {pl[ph]}")
    else:
        a(f"""
        s_setprio {pl[ph]}
        s_cmp_ge_u32 s{S_G}, 4
        s_cbranch_scc1 M_pr{ph}
        s_setprio {phv[ph]}
        """)
        a.label(f"M_pr{ph}")

def flush_sub(a):
    acc = lambda r: [V_ACC + 4*j + r for j in range(8)]
    sv = lambda k: [V_SV + 8*k + j for j in range(8)]
    a.label("M_flush")
    a(f"""
    s_mov_b64 exec, {sr(S_FEX)}
    s_cmp_eq_u32 s{S_B1}, 512
    s_cbranch_scc1 M_fl1
    s_cmp_eq_u32 s{S_B1}, 768
    s_cbranch_scc1 M_fl2
    s_cmp_eq_u32 s{S_B1}, 1024
    s_cbranch_scc1 M_fl3
    s_nop 1
    """)
    def ret(ph, k):
        if not (OPT.get("pst") and k == 3): stamp(a, k)
        if ph is not None: setprio(a, ph)
        a(f"s_mov_b64 exec, -1")
        a(f"s_setpc_b64 {sr(S_RET)}")
    write_comp(a, 0, acc(0))
    for i in range(3): write_comp(a, comp011(i), acc(1+i))
    a("s_mov_b64 exec, -1")
    for n, b in enumerate(OPT.get("t3", "x").replace("x", "")):
        for k in range(2):
            a(f"s_cmp_lg_u32 s{S_G}, {4+2*n+k}")
            a(f"s_cbranch_scc1 M_t3_{n}_{k}")
            touch(a, int(b), k, V_T+2, V_TCH)
            a.label(f"M_t3_{n}_{k}")
    ret(1, 3)
    a.label("M_fl1")
    a("s_nop 4")
    write_comp(a, comp101(0), acc(0))
    for k in range(3):
        for j in range(8): a(f"v_mov_b32 v{sv(k)[j]}, v{acc(1+k)[j]}")
    ret(2, 4)
    a.label("M_fl2")
    a("s_nop 2")
    write_comp(a, comp101(1), acc(0))
    for j in range(8): a(f"v_sub_f32 v{acc(1)[j]}, v{acc(1)[j]}, v{sv(1)[j]}")
    write_comp(a, comp111(2), acc(1))
    for j in range(8): a(f"v_add_f32 v{sv(0)[j]}, v{sv(0)[j]}, v{acc(2)[j]}")
    for j in range(8): a(f"v_mov_b32 v{sv(1)[j]}, v{acc(3)[j]}")
    a(f"""
    s_mov_b64 exec, 1
    v_mov_b32 v{V_T+2}, {L_FC}
    v_mov_b32 v{V_T+3}, 1
    ds_add_u32 v{V_T+2}, v{V_T+3}
    """)
    ret(3, 5)
    a.label("M_fl3")
    write_comp(a, comp101(2), acc(0))
    for j in range(8): a(f"v_sub_f32 v{sv(2)[j]}, v{sv(2)[j]}, v{acc(1)[j]}")
    write_comp(a, comp111(1), sv(2))
    for j in range(8): a(f"v_sub_f32 v{acc(2)[j]}, v{acc(2)[j]}, v{sv(1)[j]}")
    write_comp(a, comp111(0), acc(2))
    for j in range(8): a(f"v_add_f32 v{sv(0)[j]}, v{sv(0)[j]}, v{acc(3)[j]}")
    write_comp(a, 1, sv(0))
    ret(None, 6)

A_H = L_P; A_BS = L_P + 4096; A_STG = L_P + 8192; A_OFS = L_P + 32768

def phase_a(a):
    RH = S_IN; EA = S_IN + 2; SRC = S_IN + 4; DST = S_IN + 6; WR = S_IN + 8; W0 = S_IN + 10; W1 = S_IN + 12
    WSB = sr(S_WSB)
    def read_nonce(wait=True):
        a(f"""
        v_mov_b32 v2, {L_NONCE}
        ds_read_b64 v[2:3], v2
        s_waitcnt lgkmcnt(0)
        v_readfirstlane_b32 s{S_NON}, v2
        v_readfirstlane_b32 s{S_NON+1}, v3
        """)
    a(f"""
    s_cmp_eq_u32 s{S_G}, 10
    s_cbranch_scc1 A_scan
    s_cmp_eq_u32 s{S_G}, 11
    s_cbranch_scc1 A_aux
    s_movk_i32 s{S_T+1}, 625
    s_mul_i32 s{S_T}, s3, {CH}
    v_cmp_gt_u32 vcc, s{S_T+1}, v0
    v_lshl_add_u32 v1, v0, 1, s{S_T}
    v_lshlrev_b32 v2, 2, v1
    v_mul_u32_u24 v3, 6, v1
    v_lshlrev_b32 v20, 1, v1
    s_mov_b64 exec, vcc
    global_load_dwordx2 v[4:5], v2, {sr(DST)} nt
    global_load_dwordx2 v[8:9], v2, {sr(SRC)} nt
    global_load_dwordx3 v[12:14], v3, {sr(RH)} nt
    global_load_dword v18, v20, {sr(EA)} nt
    v_mov_b32 v23, 1
    s_mul_i32 s{S_T}, s3, {CH * 16}
    v_lshlrev_b32 v20, 4, v0
    v_add_u32 v21, s{S_T}, v20
    s_barrier
    s_waitcnt vmcnt(3)
    """)
    for i in range(2):
        a(f"""
        v_and_b32 v{24+i}, 0xff, v{4+i}
        v_lshlrev_b32 v{24+i}, 2, v{24+i}
        ds_add_rtn_u32 v{28+i}, v{24+i}, v23 offset:{A_H}
        """)
    a("""
    s_waitcnt lgkmcnt(0)
    s_barrier
    """)
    for i in range(2):
        a(f"""
        v_lshrrev_b32 v{4+i}, 8, v{4+i}
        v_mul_u32_u24 v1, 43, v{4+i}
        v_lshrrev_b32 v1, 9, v1
        v_mul_u32_u24 v2, 12, v1
        v_sub_u32 v{4+i}, v{4+i}, v2
        v_lshlrev_b32 v1, 14, v1
        v_lshl_or_b32 v{32+4*i+2}, v{4+i}, 16, v1
        """)
    a(f"s_waitcnt vmcnt(0)")
    def half(dst, base, idx):
        r = base + idx // 2
        if idx % 2 == 0:
            a(f"v_lshlrev_b32 v{dst}, 16, v{r}")
        else:
            a(f"v_and_b32 v{dst}, s{S_HI}, v{r}")
    for i in range(2):
        half(4, 18, i)
        half(5, 12, 3*i+0)
        half(6, 12, 3*i+1)
        half(7, 12, 3*i+2)
        a(f"""
        v_mul_f32 v5, v4, v5
        v_mul_f32 v6, v4, v6
        v_mul_f32 v7, v4, v7
        v_cvt_pk_bf16_f32 v{32+4*i}, v4, v5
        v_cvt_pk_bf16_f32 v{32+4*i+1}, v6, v7
        """)
    a(f"""
    v_mov_b32 v2, {L_NONCE}
    s_barrier
    ds_read_b32 v4, v24 offset:{A_BS}
    ds_read_b32 v5, v25 offset:{A_BS}
    ds_read_b64 v[2:3], v2
    s_waitcnt lgkmcnt(0)
    """)
    for i in range(2):
        a(f"""
        v_add_lshl_u32 v{4+i}, v{4+i}, v{28+i}, 4
        v_or3_b32 v{32+4*i+2}, v{32+4*i+2}, v{8+i}, v3
        v_mov_b32 v{32+4*i+3}, v2
        ds_write_b128 v{4+i}, {vr(32+4*i,4)} offset:{A_STG}
        """)
    a(f"""
    v_readfirstlane_b32 s{S_NON}, v2
    v_readfirstlane_b32 s{S_NON+1}, v3
    s_waitcnt lgkmcnt(0)
    s_barrier
    ds_read_b128 v[32:35], v20 offset:{A_STG}
    ds_read_b128 v[36:39], v20 offset:{A_STG+10000}
    v_add_u32 v22, 10000, v21
    s_waitcnt lgkmcnt(1)
    global_store_dwordx4 v21, v[32:35], {WSB} {OPT.get("rs", "sc1").replace("+", " ")}
    s_waitcnt lgkmcnt(0)
    {"" if OPT.get("halfst") else "global_store_dwordx4 v22, v[36:39], " + WSB + " " + OPT.get("rs", "sc1").replace("+", " ")}
    """)
    PW = int(OPT.get("pw", 0))
    if PW:
        a(f"""
        s_lshr_b32 s{S_T}, s3, 3
        s_mul_i32 s{S_T}, s{S_T}, 625
        v_add_u32 v40, s{S_T}, v0
        """)
        if PW == 1:
            a("""
            v_and_b32 v41, 3, v40
            v_lshrrev_b32 v40, 2, v40
            v_lshlrev_b32 v40, 11, v40
            """)
        else:
            a("""
            v_and_b32 v41, 1, v40
            v_lshrrev_b32 v40, 1, v40
            v_lshlrev_b32 v40, 10, v40
            """)
        a(f"""
        v_lshl_add_u32 v40, v41, 7, v40
        buffer_load_dword v41, v40, {sr(S_X,4)}, 0 offen
        """)
    a(f"""
    s_mov_b64 exec, -1
    s_branch A_end
    """)
    a.label("A_scan")
    a(f"""
    v_and_b32 v1, 63, v0
    v_lshlrev_b32 v1, 4, v1
    s_lshl_b32 s{S_T}, s3, 11
    s_add_u32 s{S_T}, s{S_T}, {WS_OFF}
    v_lshl_add_u32 v20, v1, 1, s{S_T}
    """)
    if int(OPT.get("cpf", 0)):
        a(f"s_getpc_b64 {sr(S_T+2)}")
        a.label("A_pc")
        a(f"""
        v_lshlrev_b32 v50, 3, v1
        s_mov_b32 s{S_T+4}, M_done-A_pc
        v_add_u32 v51, 8192, v50
        v_min_u32 v51, s{S_T+4}, v51
        global_load_dword v52, v50, {sr(S_T+2)}
        global_load_dword v53, v51, {sr(S_T+2)}
        """)
    a(f"""
    s_barrier
    """)
    for n, b in enumerate(OPT.get("t0", "x").replace("x", "")):
        touch(a, int(b), 0, 60+4*n, 61+4*n)
        touch(a, int(b), 1, 62+4*n, 63+4*n)
    a(f"""
    s_barrier
    ds_read_b128 v[4:7], v1 offset:{A_H}
    """)
    a(f"""
    s_waitcnt lgkmcnt(0)
    v_add_u32 v9, v4, v5
    v_add_u32 v10, v9, v6
    v_add_u32 v11, v10, v7
    v_mov_b32 v12, v11
    s_nop 1
    v_add_u32_dpp v12, v12, v12 row_shr:1 row_mask:0xf bank_mask:0xf bound_ctrl:0
    s_nop 1
    v_add_u32_dpp v12, v12, v12 row_shr:2 row_mask:0xf bank_mask:0xf bound_ctrl:0
    s_nop 1
    v_add_u32_dpp v12, v12, v12 row_shr:4 row_mask:0xf bank_mask:0xf bound_ctrl:0
    s_nop 1
    v_add_u32_dpp v12, v12, v12 row_shr:8 row_mask:0xf bank_mask:0xf bound_ctrl:0
    s_nop 1
    v_add_u32_dpp v12, v12, v12 row_bcast:15 row_mask:0xa bank_mask:0xf
    s_nop 1
    v_add_u32_dpp v12, v12, v12 row_bcast:31 row_mask:0xc bank_mask:0xf
    v_sub_u32 v12, v12, v11
    v_add_u32 v13, v12, v4
    v_add_u32 v14, v12, v9
    v_add_u32 v15, v12, v10
    ds_write_b128 v1, v[12:15] offset:{A_BS}
    """)
    for i in range(4):
        a(f"v_lshl_or_b32 v{24+2*i}, v{4+i}, 11, v{12+i}")
    a(f"""
    v_mov_b32 v2, {L_NONCE}
    s_waitcnt lgkmcnt(0)
    s_barrier
    ds_read_b64 v[2:3], v2
    s_waitcnt lgkmcnt(0)
    """)
    for i in range(4):
        a(f"""
        v_or_b32 v{24+2*i}, v3, v{24+2*i}
        v_mov_b32 v{25+2*i}, v2
        """)
    a(f"""
    global_store_dwordx4 v20, v[24:27], {WSB} sc1
    global_store_dwordx4 v20, v[28:31], {WSB} offset:16 sc1
    v_readfirstlane_b32 s{S_NON}, v2
    v_readfirstlane_b32 s{S_NON+1}, v3
    v_lshlrev_b32 v40, 7, v1
    s_lshl_b32 s{S_T}, s2, 3
    v_add_u32 v40, s{S_T}, v40
    v_add_u32 v41, {64*2048}, v40
    v_add_u32 v42, {128*2048}, v40
    v_add_u32 v43, {192*2048}, v40
    s_mov_b32 s{S_T+7}, {TAGM}
    s_barrier
    s_waitcnt vmcnt(0)
    """)
    a.label("A_poll")
    for r in range(4):
        a(f"buffer_load_dwordx2 {vr(32+2*r,2)}, v{40+r}, {sr(S_OFFS,4)}, 0 offen sc1")
    a(f"""
    s_mov_b64 {sr(S_TM)}, -1
    s_waitcnt vmcnt(0)
    """)
    for r in range(4):
        a(f"""
        v_and_b32 v4, s{S_T+7}, v{32+2*r}
        v_cmp_eq_u32 {sr(S_PEND)}, s{S_NON+1}, v4
        v_cmp_eq_u32 vcc, s{S_NON}, v{33+2*r}
        s_and_b64 {sr(S_TM)}, {sr(S_TM)}, {sr(S_PEND)}
        s_and_b64 {sr(S_TM)}, {sr(S_TM)}, vcc
        """)
    a(f"""
    s_cmp_eq_u64 {sr(S_TM)}, -1
    s_cbranch_scc1 A_polled
    s_sleep {OPT.get('slp', 2)}
    s_sub_u32 s{S_SPIN}, s{S_SPIN}, 1
    s_cmp_gt_i32 s{S_SPIN}, 0
    s_cbranch_scc1 A_poll
    """)
    a.label("A_polled")
    a(f"""
    v_lshrrev_b32 v1, 2, v1
    v_mov_b32 v5, 0
    """)
    for r in range(4):
        a(f"""
        v_and_b32 v{32+2*r}, 0x3fffff, v{32+2*r}
        ds_write_b32 v1, v{32+2*r} offset:{A_OFS+256*r}
        """)
    a(f"""
    ds_write_b32 v1, v5 offset:{A_OFS+1024}
    s_branch A_end
    """)
    a.label("A_aux")
    a(f"""
    v_and_b32 v1, 63, v0
    s_cmp_ge_u32 s3, 160
    s_cbranch_scc1 A_wp1
    s_lshr_b32 s{S_T+3}, s3, 3
    s_and_b32 s{S_T+4}, s3, 3
    s_and_b32 s{S_T+5}, s3, 4
    s_lshl_b32 s{S_T+5}, s{S_T+5}, 1
    s_or_b32 s{S_T+4}, s{S_T+4}, s{S_T+5}
    s_cmp_lt_u32 s3, 64
    s_cbranch_scc1 A_wa
    s_sub_u32 s{S_T+5}, s3, 64
    s_and_b32 s{S_T+3}, s{S_T+5}, 7
    s_lshr_b32 s{S_T+4}, s{S_T+5}, 3
    s_cmp_lt_u32 s{S_T+4}, 4
    s_cselect_b32 s{S_T+5}, 4, 8
    s_add_u32 s{S_T+4}, s{S_T+4}, s{S_T+5}
    """)
    a.label("A_wa")
    a(f"""
    s_mul_i32 s{S_T+2}, s{S_T+3}, 20
    s_add_u32 s{S_T+2}, s{S_T+2}, s{S_T+4}
    v_and_b32 v2, 15, v1
    v_lshrrev_b32 v3, 4, v1
    s_lshl_b32 s{S_T+5}, s{S_T+4}, 5
    v_lshl_add_u32 v4, v3, 3, s{S_T+5}
    v_lshlrev_b32 v5, 1, v4
    s_lshl_b32 s{S_T+5}, s{S_T+3}, 4
    v_add_u32 v2, s{S_T+5}, v2
    v_lshlrev_b32 v2, 1, v2
    v_lshl_add_u32 v6, v4, 8, v2
    s_sub_u32 s{S_T+6}, s{W1}, {256*256}
    s_subb_u32 s{S_T+7}, s{W1+1}, 0
    s_cmp_lt_u32 s{S_T+4}, 8
    s_cselect_b32 s{S_T+6}, s{W0}, s{S_T+6}
    s_cselect_b32 s{S_T+7}, s{W0+1}, s{S_T+7}
    global_load_dwordx4 v[8:11], v5, {sr(WR)}
    """)
    for i in range(8):
        a(f"global_load_ushort v{12+i}, v6, {sr(S_T+6)} offset:{256*i}")
    a.label("A_wp1")
    a(f"""
    v_mov_b32 v2, 0
    s_barrier
    s_sleep {OPT.get('ns', 16)}
    global_load_dwordx2 v[4:5], v2, {sr(S_DBG)} sc1
    s_barrier
    """)
    T1 = OPT.get("t1", "0").replace("x", "")
    a(f"""
    s_cmp_ge_u32 s3, 160
    s_cbranch_scc1 A_nw
    s_lshl_b32 s{S_T+3}, s{S_T+2}, 10
    s_add_u32 s{S_T+3}, s{S_T+3}, {WS_WF}
    v_lshl_add_u32 v7, v1, 4, s{S_T+3}
    s_waitcnt vmcnt(1)
    """)
    for i in range(8):
        if i % 2 == 0:
            a(f"v_lshlrev_b32 v20, 16, v{8+i//2}")
        else:
            a(f"v_and_b32 v20, s{S_HI}, v{8+i//2}")
        a(f"v_lshlrev_b32 v{12+i}, 16, v{12+i}")
        a(f"v_mul_f32 v{12+i}, v20, v{12+i}")
    for i in range(4):
        a(f"v_cvt_pk_bf16_f32 v{24+i}, v{12+2*i}, v{13+2*i}")
    a(f"""
    global_store_dwordx4 v7, v[24:27], {WSB} sc1
    s_waitcnt vmcnt(1)
    s_branch A_nw1
    """)
    a.label("A_nw")
    a("s_waitcnt vmcnt(0)")
    a.label("A_nw1")
    for n, b in enumerate(T1):
        touch(a, int(b), 0, 32+4*n, 33+4*n)
        touch(a, int(b), 1, 34+4*n, 35+4*n)
    a("s_branch A_pn1")
    a.label("A_pn")
    a("s_waitcnt vmcnt(0)")
    a.label("A_pn1")
    a(f"""
    v_readfirstlane_b32 s{S_NON}, v4
    v_readfirstlane_b32 s{S_NON+1}, v5
    s_cmp_lg_u32 s{S_NON}, 0
    s_cbranch_scc1 A_pd
    global_load_dwordx2 v[4:5], v2, {sr(S_DBG)} sc1
    s_sub_u32 s{S_SPIN}, s{S_SPIN}, 1
    s_cmp_gt_i32 s{S_SPIN}, 0
    s_cbranch_scc1 A_pn
    s_waitcnt vmcnt(0)
    """)
    a.label("A_pd")
    a(f"""
    v_mov_b32 v2, {L_NONCE}
    ds_write_b64 v2, v[4:5]
    s_waitcnt lgkmcnt(0)
    s_barrier
    s_barrier
    s_cmp_ge_u32 s3, 160
    s_cbranch_scc1 A_end
    s_lshl_b32 s{S_T+3}, s{S_T+2}, 10
    s_add_u32 s{S_T+3}, s{S_T+3}, {WS_WFLAG}
    v_lshl_add_u32 v7, v1, 4, s{S_T+3}
    v_mov_b32 v5, v4
    v_mov_b32 v6, v4
    v_mov_b32 v11, v7
    v_mov_b32 v7, v4
    s_waitcnt vmcnt({2*len(T1)})
    global_store_dwordx4 v11, v[4:7], {WSB} sc1
    s_nop 1
    """)
    a.label("A_end")

def gen_main(a):
    K = NAME + "_kernel"
    a.raw(".p2align 8")
    a.raw(f".globl {K}")
    a.raw(f".type {K},@function")
    a.label(K)
    a(f"""
    s_cmp_ge_u32 s2, {NB}
    s_cbranch_scc1 M_done
    """)
    if OPT.get("empty"): a("s_endpgm")
    if DBG:
        for k in range(S_ST, S_ST+32): a(f"s_mov_b32 s{k}, 0")
    stamp(a, 0)
    stamp(a, 10, True)
    T = V_T
    a(f"""
    s_load_dwordx8 s[{S_IN}:{S_IN+7}], s[0:1], 8
    s_load_dwordx4 s[{S_IN+8}:{S_IN+11}], s[0:1], 40
    s_load_dwordx2 {sr(S_IN+12)}, s[0:1], 56
    s_load_dwordx2 {sr(S_X)}, s[0:1], 0
    s_load_dwordx2 {sr(S_OUT)}, s[0:1], 72
    s_load_dwordx2 {sr(S_DBG)}, s[0:1], 80
    s_load_dwordx2 {sr(S_WSB)}, s[0:1], 88
    s_memrealtime {sr(S_NON)}
    s_mov_b32 s3, s2
    s_and_b32 s{S_T}, s2, 7
    s_lshr_b32 s2, s2, 3
    s_lshl_b32 s{S_T}, s{S_T}, 5
    s_or_b32 s2, s2, s{S_T}
    v_lshrrev_b32 v1, 6, v0
    v_mov_b32 v3, 0
    v_readfirstlane_b32 s{S_G}, v1
    v_lshlrev_b32 v2, 2, v0
    ds_write_b32 v2, v3
    ds_write_b32 v2, v3 offset:{A_H}
    s_mov_b32 s{S_X+2}, {N*1024}
    s_mov_b32 s{S_X+3}, 0x20000
    s_mov_b32 s{S_OUT+2}, {N*1024}
    s_mov_b32 s{S_OUT+3}, 0x20000
    s_mov_b32 s{S_REC+2}, {E*16}
    s_mov_b32 s{S_REC+3}, 0x20000
    s_mov_b32 s{S_OFFS+2}, {NB*2048}
    s_mov_b32 s{S_OFFS+3}, 0x20000
    s_mov_b32 s{S_HI}, 0xffff0000
    s_waitcnt lgkmcnt(0)
    s_cmp_lg_u32 s3, 0
    s_cbranch_scc1 M_nonon
    s_cmp_lg_u32 s{S_G}, 0
    s_cbranch_scc1 M_nonon
    s_lshl_b32 s{S_NON+1}, s{S_NON+1}, 22
    s_or_b32 s{S_NON}, s{S_NON}, 1
    v_mov_b32 v4, s{S_NON}
    v_mov_b32 v5, s{S_NON+1}
    s_mov_b64 exec, 1
    global_store_dwordx2 v3, v[4:5], {sr(S_DBG)} sc1
    s_mov_b64 exec, -1
    """)
    a.label("M_nonon")
    assert L_P // 4 <= NT
    a(f"""
    s_mov_b32 s{S_SPIN}, {SPIN_MAX}
    s_mov_b32 s{S_REC}, s{S_WSB}
    s_and_b32 s{S_REC+1}, s{S_WSB+1}, 0xffff
    s_add_u32 s{S_OFFS}, s{S_WSB}, {WS_OFF}
    s_addc_u32 s{S_OFFS+1}, s{S_WSB+1}, 0
    s_add_u32 s{S_WF}, s{S_WSB}, {WS_WF}
    s_addc_u32 s{S_WF+1}, s{S_WSB+1}, 0
    s_and_b32 s{S_OFFS+1}, s{S_OFFS+1}, 0xffff
    s_and_b32 s{S_X+1}, s{S_X+1}, 0xffff
    s_and_b32 s{S_OUT+1}, s{S_OUT+1}, 0xffff
    """)
    phase_a(a)
    if int(OPT.get("rm", 1)):
        a(f"""
        s_add_u32 s{S_G}, s{S_G}, 4
        s_cmp_ge_u32 s{S_G}, 12
        s_cselect_b32 s{S_T}, 12, 0
        s_sub_u32 s{S_G}, s{S_G}, s{S_T}
        """)
    a(f"""
    v_mov_b32 v{V_JB}, 0
    v_mov_b32 v{V_DONE}, 0
    s_mov_b32 s{S_PLO}, 0x05040100
    s_mov_b32 s{S_PHI}, 0x07060302
    s_mov_b32 s{S_RND}, 0
    v_and_b32 v{T}, 63, v0
    v_and_b32 v{T+1}, 15, v{T}
    v_lshrrev_b32 v{T+2}, 4, v{T}
    v_lshlrev_b32 v{V_N16}, 4, v{T+1}
    v_lshlrev_b32 v{V_N16+1}, 4, v{T+1}
    v_and_b32 v{V_C}, 3, v{T}
    v_bfe_u32 v{T+3}, v{T}, 2, 2
    s_mul_i32 s{S_T}, s{S_G}, {CAP*16}
    s_add_u32 s{S_T}, s{S_T}, {L_LIST}
    v_lshl_add_u32 v{V_VS}, v{T+2}, 4, s{S_T}
    v_lshl_add_u32 v{V_VC}, v{T+3}, 6, v{V_VS}
    v_mul_u32_u24 v{T+2}, 12, v{T+2}
    v_add_u32 v{T+2}, s{S_G}, v{T+2}
    v_cmp_gt_u32 {sr(S_FEX)}, 40, v{T+2}
    v_mul_u32_u24 v{V_PB}, {PSTR}, v{T+2}
    v_and_b32 v{T+2}, 15, v{T+2}
    v_xor_b32 v{T+2}, v{T+2}, v{T+1}
    v_lshl_add_u32 v{V_PB}, v{T+2}, 4, v{V_PB}
    v_add_u32 v{V_PB}, {L_P}, v{V_PB}
    s_mov_b32 s{S_T+7}, {TAGM}
    """)
    L = V_L[0]; L2 = V_L[1]
    if OPT.get("pst"): stamp(a, 12)
    a(f"""
    v_lshrrev_b32 v{T}, 3, v0
    v_lshlrev_b32 v{T}, 2, v{T}
    s_max_u32 s{S_T}, s{S_G}, 4
    s_sub_u32 s{S_T}, s{S_T}, 4
    s_mul_i32 s{S_T}, s{S_T}, {20*1024}
    s_lshl_b32 s{S_T+1}, s2, 2
    s_add_u32 s{S_T}, s{S_T}, s{S_T+1}
    s_add_u32 s{S_T}, s{S_T}, {WS_WFLAG}
    v_and_b32 v{V_ACC+44}, 63, v0
    v_min_u32 v{V_ACC+44}, 19, v{V_ACC+44}
    v_lshl_add_u32 v{V_ACC+44}, v{V_ACC+44}, 10, s{S_T}
    s_waitcnt {"vmcnt(0) " if OPT.get("ack") else ""}lgkmcnt(0)
    """)
    if OPT.get("pst"): stamp(a, 3)
    a("s_barrier")
    for r in range(3):
        a(f"ds_read_b32 v{V_OFF+r}, v{T} offset:{A_OFS+384*r}")
    a(f"""
    s_mov_b64 {sr(S_ACT)}, -1
    s_mov_b32 s{S_FIRST}, 0
    s_waitcnt lgkmcnt(0)
    s_branch M_w0
    """)
    a.label("M_init")
    a(f"""
    v_mov_b32 v{T+1}, 0
    v_lshlrev_b32 v{T}, 2, v0
    s_movk_i32 s{S_T}, {L_P//4}
    v_cmp_gt_u32 vcc, s{S_T}, v0
    s_and_saveexec_b64 {sr(S_TM)}, vcc
    ds_write_b32 v{T}, v{T+1}
    s_mov_b64 exec, {sr(S_TM)}
    s_mov_b64 {sr(S_ACT)}, -1
    s_waitcnt lgkmcnt(0)
    s_barrier
    s_mov_b32 s{S_FIRST}, 1
    """)
    a.label("M_w0")
    stamp(a, 1)
    a.label("M_window")
    L2 = V_ACC + 16
    REM = L2; ADR = L2 + 3; CTR = L2 + 6; RNK = L2 + 12; BAS = L2 + 18; ONE = L2 + 24
    WFV = L2 + 26; WFA = L2 + 28; TCA = L2 + 29
    a(f"""
    v_and_b32 v{T}, 7, v0
    v_add_u32 v{T}, v{T}, v{V_JB}
    v_lshrrev_b32 v{T+1}, 3, v0
    v_mul_u32_u24 v{T+1}, {CH}, v{T+1}
    v_add_u32 v{T+1}, v{T+1}, v{T}
    v_mov_b32 v{ONE}, 1
    """)
    for r in range(3):
        a(f"""
        v_lshrrev_b32 v{REM+r}, 11, v{V_OFF+r}
        v_sub_u32 v{REM+r}, v{REM+r}, v{T}
        v_and_b32 v{ADR+r}, 0x7ff, v{V_OFF+r}
        v_add_lshl_u32 v{ADR+r}, v{ADR+r}, v{T+1}, 4
        """)
        if r: a(f"v_add_u32 v{ADR+r}, {96*CH*16*r}, v{ADR+r}")
    for k in range(6):
        r = k % 3; h = k // 3
        a(f"v_cmp_lt_i32 {sr(S_M+2*k)}, {8*h}, v{REM+r}")
    a(f"""
    s_cmp_eq_u32 s{S_FIRST}, 0
    s_cbranch_scc1 M_rload
    """)
    for k in range(6):
        m = sr(S_M + 2*k)
        a(f"""
        v_and_b32 v{T+2}, {1<<k}, v{V_DONE}
        v_cmp_eq_u32 vcc, 0, v{T+2}
        s_and_b64 {m}, {m}, vcc
        s_and_b64 {m}, {m}, {sr(S_ACT)}
        """)
    a.label("M_rload")
    for k in range(6):
        r = k % 3; h = k // 3
        a(f"""
        s_mov_b64 exec, {sr(S_M+2*k)}
        s_cbranch_execz M_sl{k}
        buffer_load_dwordx4 {vr(L+4*k,4)}, v{ADR+r}, {sr(S_REC,4)}, 0 offen offset:{128*h} sc1
        """)
        a.label(f"M_sl{k}")
    a(f"""
    s_mov_b64 exec, -1
    s_cmp_lg_u32 s{S_FIRST}, 0
    s_cbranch_scc1 M_nofld
    global_load_dword v{WFV}, v{WFA}, {sr(S_WSB)} sc1
    """)
    a.label("M_nofld")
    a(f"""
    s_mov_b64 {sr(S_PEND)}, 0
    s_mov_b32 s{S_T}, {TAGM}
    s_waitcnt vmcnt(0)
    """)
    for k in range(6):
        a(f"""
        s_mov_b64 exec, {sr(S_M+2*k)}
        s_cbranch_execz M_sc{k}
        v_and_b32 v{T}, s{S_T}, v{L+4*k+2}
        v_cmp_ne_u32 {sr(S_TM)}, s{S_NON+1}, v{T}
        v_cmp_ne_u32 vcc, s{S_NON}, v{L+4*k+3}
        v_bfe_u32 v{CTR+k}, v{L+4*k+2}, 16, 4
        v_and_b32 v{T}, 15, v{L+4*k+2}
        s_or_b64 {sr(S_PEND)}, {sr(S_PEND)}, {sr(S_TM)}
        s_or_b64 {sr(S_PEND)}, {sr(S_PEND)}, vcc
        v_lshl_or_b32 v{T}, v{CTR+k}, 4, v{T}
        v_lshlrev_b32 v{BAS+k}, 2, v{T}
        """)
        a.label(f"M_sc{k}")
    a(f"""
    s_mov_b64 exec, -1
    s_cmp_eq_u64 {sr(S_PEND)}, 0
    {"s_branch M_rok" if OPT.get("halfst") or OPT.get("noretry") else ""}
    s_cbranch_scc1 M_rok
    s_sleep {OPT.get('slp', 4)}
    s_sub_u32 s{S_SPIN}, s{S_SPIN}, 1
    s_cmp_gt_i32 s{S_SPIN}, 0
    s_cbranch_scc1 M_rload
    """)
    a.label("M_rok")
    stamp(a, 13)
    a(f"""
    s_cmp_lg_u32 s{S_FIRST}, 0
    s_cbranch_scc1 M_append
    """)
    for k in range(6):
        a(f"""
        s_mov_b64 exec, {sr(S_M+2*k)}
        s_cbranch_execz M_sa{k}
        ds_add_rtn_u32 v{RNK+k}, v{BAS+k}, v{ONE} offset:{L_CC}
        """)
        a.label(f"M_sa{k}")
    SCN = V_ACC
    a(f"""
    s_mov_b64 exec, -1
    v_cmp_eq_u32 vcc, s{S_NON}, v{WFV}
    s_cmp_eq_u64 vcc, -1
    s_cselect_b32 s{S_WOK}, 1, 0
    s_cbranch_scc0 M_nowpre
    s_cmp_lt_u32 s{S_G}, 4
    s_cbranch_scc1 M_nowpre
    """)
    wload(a, WFA, [0, 1, 2, 3, 8, 9, 10, 11])
    a.label("M_nowpre")
    a(f"""
    v_and_b32 v{T}, 63, v0
    v_lshlrev_b32 v{T}, 4, v{T}
    v_cmp_lt_u32 vcc, 0, v{V_C}
    v_cmp_lt_u32 {sr(S_TM)}, 1, v{V_C}
    s_waitcnt lgkmcnt(0)
    s_barrier
    ds_read_b128 {vr(SCN,4)}, v{T} offset:{L_CC}
    """)
    if int(OPT.get("t2m", 0)):
        a(f"""
        s_cmp_ge_u32 s{S_G}, 4
        s_cbranch_scc1 M_t2m
        s_mul_i32 s{S_T+6}, s3, 236
        s_mul_i32 s{S_T+5}, s{S_G}, 59
        s_add_u32 s{S_T+6}, s{S_T+6}, s{S_T+5}
        v_and_b32 v{TCA}, 63, v0
        v_add_u32 v{TCA}, s{S_T+6}, v{TCA}
        v_and_b32 v{TCA+1}, 3, v{TCA}
        v_lshrrev_b32 v{TCA}, 2, v{TCA}
        s_movk_i32 s{S_T+5}, 5000
        v_cmp_gt_u32 {sr(S_PEND)}, s{S_T+5}, v{TCA}
        v_lshlrev_b32 v{TCA+2}, 11, v{TCA}
        v_add_u32 v{TCA+2}, 1024, v{TCA+2}
        v_subrev_u32 v{TCA}, s{S_T+5}, v{TCA}
        v_lshlrev_b32 v{TCA}, 10, v{TCA}
        v_add_u32 v{TCA}, 512, v{TCA}
        v_cndmask_b32 v{TCA}, v{TCA}, v{TCA+2}, {sr(S_PEND)}
        v_lshl_add_u32 v{TCA}, v{TCA+1}, 7, v{TCA}
        s_mov_b32 exec_hi, 0x7ffffff
        buffer_load_dword v{V_TCH}, v{TCA}, {sr(S_X,4)}, 0 offen
        s_mov_b64 exec, -1
        """)
        a.label("M_t2m")
    for n, b in enumerate(OPT.get("t2", "123").replace("x", "")):
        a(f"s_cmp_lg_u32 s{S_G}, {n}")
        a(f"s_cbranch_scc1 M_t2_{n}")
        touch(a, int(b), 0, TCA, V_TCH)
        touch(a, int(b), 1, TCA, TCA+1)
        a.label(f"M_t2_{n}")
    a(f"""
    s_waitcnt lgkmcnt(0)
    v_add_u32 v{SCN+4}, v{SCN}, v{SCN+1}
    v_add_u32 v{SCN+5}, v{SCN+4}, v{SCN+2}
    v_add_u32 v{SCN+6}, v{SCN+5}, v{SCN+3}
    s_nop 1
    v_mov_b32_dpp v{SCN+7}, v{SCN+6} quad_perm:[0,0,1,2] row_mask:0xf bank_mask:0xf
    v_cndmask_b32 v{SCN+7}, 0, v{SCN+7}, vcc
    v_add_u32 v{SCN+7}, v{SCN+7}, v{SCN+6}
    s_nop 1
    v_mov_b32_dpp v{SCN+8}, v{SCN+7} quad_perm:[0,0,0,1] row_mask:0xf bank_mask:0xf
    v_cndmask_b32 v{SCN+8}, 0, v{SCN+8}, {sr(S_TM)}
    v_add_u32 v{SCN+8}, v{SCN+8}, v{SCN+7}
    v_sub_u32 v{SCN+8}, v{SCN+8}, v{SCN+6}
    v_add_u32 v{SCN+9}, v{SCN+8}, v{SCN}
    v_add_u32 v{SCN+10}, v{SCN+8}, v{SCN+4}
    v_add_u32 v{SCN+11}, v{SCN+8}, v{SCN+5}
    s_mov_b32 exec_hi, 0xffff
    ds_write_b128 v{T}, {vr(SCN+8,4)} offset:{L_BASE}
    """)
    for k in range(6):
        a(f"""
        s_mov_b64 exec, {sr(S_M+2*k)}
        s_cbranch_execz M_sb{k}
        ds_read_b32 v{BAS+k}, v{BAS+k} offset:{L_BASE}
        """)
        a.label(f"M_sb{k}")
    a("s_branch M_place")
    a.label("M_append")
    for k in range(6):
        a(f"""
        s_mov_b64 exec, {sr(S_M+2*k)}
        v_lshlrev_b32 v{T+1}, 2, v{CTR+k}
        v_lshlrev_b32 v{T}, 6, v{CTR+k}
        ds_add_rtn_u32 v{RNK+k}, v{T+1}, v{ONE} offset:{L_ACNT}
        ds_read_b32 v{BAS+k}, v{T} offset:{L_BASE+60}
        ds_read_b32 v{T+2}, v{T} offset:{L_CC+60}
        s_waitcnt lgkmcnt(0)
        v_add_u32 v{BAS+k}, v{BAS+k}, v{T+2}
        """)
    a.label("M_place")
    a(f"""
    s_mov_b64 exec, -1
    s_mov_b64 {sr(S_PEND)}, 0
    s_mov_b32 s{S_T}, {L_LIST}
    s_movk_i32 s{S_T+2}, {CAP}
    s_mov_b32 s{S_FIRST}, 1
    """)
    for k in range(6):
        a(f"""
        s_cmp_eq_u64 {sr(S_M+2*k)}, 0
        s_cbranch_scc1 M_se{k}
        v_bfe_u32 v{T+1}, v{L+4*k+2}, 14, 2
        v_and_b32 v{L+4*k+2}, 0x3fff, v{L+4*k+2}
        v_lshlrev_b32 v{L+4*k+3}, v{T+1}, v{ONE}
        v_lshlrev_b32 v{L+4*k+2}, 10, v{L+4*k+2}
        v_mul_u32_u24 v{CTR+k}, s{S_T+2}, v{CTR+k}
        """)
        a.label(f"M_se{k}")
    a("s_waitcnt lgkmcnt(0)")
    for k in range(6):
        m = sr(S_M + 2*k)
        a(f"""
        s_mov_b64 exec, {m}
        s_cbranch_execz M_sp{k}
        v_add_u32 v{RNK+k}, v{RNK+k}, v{BAS+k}
        v_cmp_gt_u32 vcc, s{S_T+2}, v{RNK+k}
        v_add_u32 v{T}, v{CTR+k}, v{RNK+k}
        v_lshl_add_u32 v{CTR+k}, v{T}, 4, s{S_T}
        s_andn2_b64 {sr(S_TM)}, {m}, vcc
        s_or_b64 {sr(S_PEND)}, {sr(S_PEND)}, {sr(S_TM)}
        s_mov_b64 exec, vcc
        ds_write_b128 v{CTR+k}, {vr(L+4*k,4)}
        v_or_b32 v{V_DONE}, {1<<k}, v{V_DONE}
        """)
        a.label(f"M_sp{k}")
    a(f"""
    s_mov_b64 exec, -1
    v_mov_b32 v{T+2}, {L_MORE}
    v_max3_i32 v{T}, v{REM}, v{REM+1}, v{REM+2}
    s_mov_b64 exec, {sr(S_PEND)}
    ds_write_b32 v{T+2}, v{ONE}
    s_andn2_b64 {sr(S_ACT)}, {sr(S_ACT)}, {sr(S_PEND)}
    s_mov_b64 exec, {sr(S_ACT)}
    v_add_u32 v{V_JB}, 16, v{V_JB}
    v_mov_b32 v{V_DONE}, 0
    v_cmp_lt_i32 vcc, 16, v{T}
    s_mov_b64 exec, -1
    s_cmp_lg_u64 vcc, 0
    s_cbranch_scc1 M_window
    s_lshl_b32 s{S_T}, s{S_G}, 6
    v_mov_b32 v{T}, s{S_T}
    s_lshl_b32 s{S_T}, s{S_G}, 2
    v_mov_b32 v{T+1}, s{S_T}
    s_waitcnt lgkmcnt(0)
    """)
    stamp(a, 15)
    a(f"""
    s_barrier
    ds_read_b32 v{V_A[0]}, v{T} offset:{L_BASE+60}
    ds_read_b32 v{V_A[0]+1}, v{T} offset:{L_CC+60}
    ds_read_b32 v{V_A[0]+2}, v{T+1} offset:{L_ACNT}
    ds_read_b32 v{V_A[0]+3}, v{T+2}
    v_and_b32 v{T}, 63, v0
    v_mov_b32 v{V_B[0]}, {OOBOFF}
    v_mov_b32 v{V_B[0]+1}, 0
    s_mov_b32 s{S_S1}, 0
    s_mov_b32 s{S_S2}, 0
    s_mov_b32 s{S_B1}, 0
    s_waitcnt lgkmcnt(0)
    v_add3_u32 v{T+1}, v{V_A[0]}, v{V_A[0]+1}, v{V_A[0]+2}
    v_readfirstlane_b32 s{S_MORE}, v{V_A[0]+3}
    v_readfirstlane_b32 s{S_T}, v{T+1}
    s_min_u32 s{S_T}, s{S_T}, {CAP}
    s_add_u32 s{S_S}, s{S_T}, 31
    s_lshr_b32 s{S_S}, s{S_S}, 5
    s_max_u32 s{S_S}, s{S_S}, 1
    s_lshl_b32 s{S_T+1}, s{S_S}, 5
    v_add_u32 v{T}, s{S_T}, v{T}
    v_cmp_gt_u32 vcc, s{S_T+1}, v{T}
    s_mul_i32 s{S_T+2}, s{S_G}, {CAP*16}
    s_add_u32 s{S_T+2}, s{S_T+2}, {L_LIST+8}
    v_lshl_add_u32 v{T}, v{T}, 4, s{S_T+2}
    s_mov_b64 exec, vcc
    ds_write_b64 v{T}, {vr(V_B[0],2)}
    s_mov_b64 exec, -1
    s_sub_u32 s{S_NLAST}, s{S_T}, s{S_T+1}
    s_add_u32 s{S_NLAST}, s{S_NLAST}, 35
    s_lshr_b32 s{S_NLAST}, s{S_NLAST}, 2
    """)
    meta_reads(a)
    a(f"""
    s_cmp_gt_u32 s{S_S}, 2
    s_cbranch_scc1 M_nozl
    """)
    for k in range(32):
        a(f"v_mov_b32 v{V_L[0]+k}, 0")
    a(f"""
    s_cmp_ge_u32 s{S_G}, 4
    s_cbranch_scc1 M_nozl
    """)
    for k in range(32):
        a(f"v_mov_b32 v{V_L[1]+k}, 0")
    a.label("M_nozl")
    stamp(a, 2)
    setprio(a, 0)
    a(f"""
    s_waitcnt lgkmcnt(0)
    s_cmp_ge_u32 s{S_G}, 4
    s_cbranch_scc1 M_sglb
    """)
    stage_x(a, 0, "i", wait=False)
    a.label("M_goi")
    advance(a)
    a(f"s_mov_b32 s{S_FIRST}, 1")
    for p in range(2):
        a.label(f"M_it{p}")
        a(f"""
        s_waitcnt lgkmcnt(0)
        s_cmp_eq_u32 s{S_B1}, 1024
        s_cbranch_scc1 M_w{p}_0
        """)
        stage_x(a, p ^ 1, str(p))
        a.label(f"M_go{p}")
        a(f"""
        s_cmp_eq_u32 s{S_FIRST}, 0
        s_cbranch_scc1 M_cn{p}
        """)
        compute(a, p, True)
        a(f"s_branch M_cd{p}")
        a.label(f"M_cn{p}")
        compute(a, p, False)
        a.label(f"M_cd{p}")
        a(f"""
        s_mov_b32 s{S_FIRST}, 0
        s_cmp_lg_u32 s{S_S1}, 0
        s_cbranch_scc1 M_nofl{p}
        s_mov_b32 s{S_FIRST}, 1
        s_call_b64 {sr(S_RET)}, M_flush
        s_cmp_eq_u32 s{S_B1}, 1024
        s_cbranch_scc1 M_end
        """)
        a.label(f"M_nofl{p}")
        advance(a)
        if p == 1:
            a("s_branch M_it0")
    def prep():
        for i in range(0, 8, 2):
            a(f"v_pk_add_f32 {vr(V_IX+i,2)}, {vr(V_IX+i,2)}, {vr(V_N16,2)}")
        a(f"""
        v_bfe_i32 v{V_OH}, v{V_OH}, v{V_C}, 1
        v_bfe_i32 v{V_OH+1}, v{V_OH+1}, v{V_C}, 1
        v_and_b32 v{V_OH}, v{V_OH}, v{V_CA}
        v_and_b32 v{V_OH+1}, v{V_OH+1}, v{V_CA}
        """)
    def load(i):
        a(f"buffer_load_dwordx4 {vr(V_L[0]+4*i,4)}, v{V_IX+i}, {sr(S_X,4)}, s{S_B1} offen")
    a.label("M_sglb")
    a(f"s_mov_b32 s{S_FLP}, 0")
    prep()
    a.label("M_its")
    a(f"""
    s_add_u32 s{S_S2}, s{S_S1}, 1
    s_cmp_eq_u32 s{S_S2}, s{S_S}
    s_cbranch_scc1 M_parts
    """)
    a.label("M_fulls")
    for i in range(8): load(i)
    a("s_branch M_pms")
    a.label("M_parts")
    a(f"""
    s_mov_b32 s{S_S2}, 0
    s_cmp_eq_u32 s{S_NLAST}, 8
    s_cbranch_scc1 M_fulls
    """)
    for i in range(7):
        a(f"s_cmp_eq_u32 s{S_NLAST}, {i}")
        a(f"s_cbranch_scc1 M_pms")
        load(i)
    a.label("M_pms")
    a(f"""
    ds_read_b64_tr_b16 {vr(V_A[0],2)}, v{V_OH}
    ds_read_b64_tr_b16 {vr(V_A[0]+2,2)}, v{V_OH+1} offset:256
    """)
    meta_reads(a)
    a(f"""
    s_cmp_eq_u32 s{S_FLP}, 0
    s_cbranch_scc1 M_nofls
    """)
    a.label("M_dofl")
    a(f"""
    s_call_b64 {sr(S_RET)}, M_flush
    s_cmp_eq_u32 s{S_B1}, 1024
    s_cbranch_scc1 M_end
    """)
    a.label("M_nofls")
    a("s_waitcnt lgkmcnt(0)")
    prep()
    a(f"""
    s_cmp_eq_u32 s{S_S1}, 0
    s_mov_b32 s{S_S1}, s{S_S2}
    s_waitcnt vmcnt(0)
    s_cbranch_scc0 M_cns
    """)
    compute(a, 0, True)
    a("s_branch M_cds")
    a.label("M_cns")
    compute(a, 0, False)
    a.label("M_cds")
    a(f"""
    s_cmp_eq_u32 s{S_S2}, 0
    s_cselect_b32 s{S_FLP}, 256, 0
    s_add_u32 s{S_B1}, s{S_B1}, s{S_FLP}
    s_cmp_eq_u32 s{S_B1}, 1024
    s_cbranch_scc1 M_dofl
    s_branch M_its
    """)
    flush_sub(a)
    a.label("M_end")
    a(f"""
    s_cmp_eq_u32 s{S_MORE}, 0
    s_cbranch_scc1 M_gemm
    s_mov_b32 s{S_RND}, 1
    s_waitcnt lgkmcnt(0)
    s_barrier
    s_branch M_init
    """)
    a.label("M_gemm")
    if OPT.get("nogemm"): a("s_endpgm")
    gemm(a)
    a.label("M_done")
    a("s_endpgm")

def gemm(a):
    ACC = [40, 56, 72]; BB = 16; NBB = 6
    a(f"""
    s_setprio 0
    s_cmp_ge_u32 s{S_G}, 4
    s_cbranch_scc1 M_gw
    s_waitcnt lgkmcnt(0)
    s_barrier
    {"s_barrier" if OPT.get("twice") else ""}
    {"s_barrier" if OPT.get("twice") else ""}
    s_branch M_st
    """)
    a.label("M_gw")
    a(f"""
    v_and_b32 v10, 63, v0
    s_waitcnt lgkmcnt(0)
    s_cmp_lg_u32 s{S_WOK}, 0
    s_cbranch_scc1 M_wfok
    s_sub_u32 s{S_T}, s{S_G}, 4
    s_mul_i32 s{S_T}, s{S_T}, {20*1024}
    s_lshl_b32 s{S_T+1}, s2, 2
    s_add_u32 s{S_T}, s{S_T}, s{S_T+1}
    s_add_u32 s{S_T}, s{S_T}, {WS_WFLAG}
    v_min_u32 v11, 19, v10
    v_lshl_add_u32 v11, v11, 10, s{S_T}
    """)
    a.label("M_wfchk")
    a(f"""
    global_load_dword v12, v11, {sr(S_WSB)} sc1
    s_waitcnt vmcnt(0)
    v_cmp_eq_u32 vcc, s{S_NON}, v12
    s_cmp_eq_u64 vcc, -1
    s_cbranch_scc1 M_wfld
    s_sub_u32 s{S_SPIN}, s{S_SPIN}, 1
    s_cmp_gt_i32 s{S_SPIN}, 0
    s_cbranch_scc1 M_wfchk
    """)
    a.label("M_wfld")
    wload(a, 11, [0, 1, 2, 3, 8, 9, 10, 11])
    a.label("M_wfok")
    late = [12, 13, 14, 15, 16, 17, 18, 19, 4, 5, 6, 7]
    wload(a, 11, late)
    a(f"""
    v_and_b32 v12, 15, v10
    v_lshrrev_b32 v13, 4, v10
    v_mul_u32_u24 v14, {PSTR}, v12
    v_add_u32 v14, {L_P}, v14
    """)
    for k4 in range(4):
        a(f"""
        v_add_u32 v15, {4*k4}, v13
        v_xor_b32 v15, v15, v12
        v_lshl_add_u32 v{1+k4}, v15, 4, v14
        v_add_u32 v{5+k4}, {32*PSTR}, v{1+k4}
        """)
    a(f"""
    s_lshl_b32 s{S_T+1}, s{S_G}, 5
    s_add_u32 s{S_T+1}, s{S_T+1}, {L_LIST - 128}
    v_mul_u32_u24 v9, {OSTR}, v12
    v_lshl_add_u32 v9, v13, 3, v9
    v_add_u32 v9, s{S_T+1}, v9
    s_mov_b32 s{S_T+2}, 0xbfb8aa3b
    v_mov_b32 v14, {L_FC}
    """)
    a.label("M_fcw")
    a(f"""
    ds_read_b32 v15, v14
    s_waitcnt lgkmcnt(0)
    v_readfirstlane_b32 s{S_T}, v15
    s_cmp_ge_u32 s{S_T}, {NG}
    s_cbranch_scc1 M_fcok
    s_sleep 2
    s_branch M_fcw
    """)
    a.label("M_fcok")
    if not OPT.get("pst"): stamp(a, 12)
    st1 = []; st2 = []
    for t in range(3):
        for k4 in range(4):
            st1.append((t, 0, 0, k4, k4))
            for i in range(3): st1.append((t, 1+i, comp011(i), k4, 8 + k4))
    for t in range(3):
        for k4 in range(4):
            st1.append((t, 1, comp101(0), k4, 12 + k4))
            st1.append((t, 2, comp101(1), k4, 12 + k4))
    for t in range(3):
        for k4 in range(4):
            st1.append((t, 3, comp111(2), k4, 16 + k4))
    for k4 in range(4):
        for t in range(3):
            st2.append((t, 0, 1, k4, 4 + k4))
    for t in range(3):
        for k4 in range(4):
            st2.append((t, 3, comp101(2), k4, 12 + k4))
            st2.append((t, 1, comp111(0), k4, 16 + k4))
            st2.append((t, 2, comp111(1), k4, 16 + k4))
    started = set()
    wmax = [-2]
    def run(steps, fill):
        q = []
        def rd(n):
            t, o, c, k4, ws = steps[n]
            base = (1 + k4) if t < 2 else (5 + k4)
            off = c*256 + (16*PSTR if t == 1 else 0)
            a(f"ds_read_b128 {vr(BB+4*(n%NBB),4)}, v{base} offset:{off}")
            q.append(n)
        n_steps = len(steps)
        for n in range(NBB - 1): rd(n)
        for n in range(n_steps):
            t, o, c, k4, ws = steps[n]
            if n + NBB - 1 < n_steps: rd(n + NBB - 1)
            pend = len(q) - 1 - q.index(n)
            assert pend <= 15
            idx = late.index(ws) if ws in late else -1
            w = f"lgkmcnt({pend})"
            if idx > wmax[0]:
                w = f"vmcnt({len(late) - 1 - idx}) " + w
                wmax[0] = idx
            a("s_waitcnt " + w)
            acc = vr(ACC[t] + 4*o, 4)
            first = (t, o) not in started
            started.add((t, o))
            a(f"v_mfma_f32_16x16x32_bf16 {acc}, {vr(WREG[ws],4)}, {vr(BB+4*(n%NBB),4)}, {'0' if first else acc}")
            for x in fill.get(n, []):
                a(x)
                if x.startswith("ds_"): q.append(-1)
    GT = 136
    PK = int(OPT.get("pk", 1))
    gate_ops = []
    for t in range(3):
        A0 = ACC[t]; g = GT + 4*t
        gate_ops += [f"v_mul_f32 v{g+r}, s{S_T+2}, v{A0+r}" for r in range(4)]
        gate_ops += [f"v_exp_f32 v{g+r}, v{g+r}" for r in range(4)]
        gate_ops += [f"v_cvt_pk_bf16_f32 v{A0}, v{A0}, v{A0+1}", f"v_cvt_pk_bf16_f32 v{A0+1}, v{A0+2}, v{A0+3}"]
        gate_ops += [f"ds_write_b64 v9, {vr(A0,2)} offset:{16*OSTR*t}"]
        gate_ops += [f"v_add_f32 v{g+r}, 1.0, v{g+r}" for r in range(4)]
        gate_ops += [f"v_rcp_f32 v{g+r}, v{g+r}" for r in range(4)]
    def fin_ops(t):
        o = []
        for i in [2, 0, 1]:
            B0 = ACC[t] + 4 + 4*i
            if PK:
                o += [f"v_pk_mul_f32 {vr(B0+r,2)}, {vr(B0+r,2)}, {vr(GT+4*t+r,2)}" for r in (0, 2)]
            else:
                o += [f"v_mul_f32 v{B0+r}, v{B0+r}, v{GT+4*t+r}" for r in range(4)]
            o += [f"v_cvt_pk_bf16_f32 v{B0}, v{B0}, v{B0+1}", f"v_cvt_pk_bf16_f32 v{B0+1}, v{B0+2}, v{B0+3}"]
            o += [f"ds_write_b64 v9, {vr(B0,2)} offset:{16*OSTR*t + 256*(i+1)}"]
        return o
    fill = {}
    def spread(ops, n0, n1):
        cnt = n1 - n0
        for j, op in enumerate(ops):
            fill.setdefault(n0 + j * cnt // len(ops), []).append(op)
    spread(gate_ops, 15, 34)
    spread(fin_ops(0), 34, 40)
    spread(fin_ops(1), 40, 47)
    run(st1, {})
    if not OPT.get("pst"): stamp(a, 14)
    a("s_barrier")
    stamp(a, 7)
    run(st2, fill)
    a("s_nop 5")
    for x in fin_ops(2): a(x)
    a("s_waitcnt lgkmcnt(0)")
    if OPT.get("st13"): stamp(a, 13)
    a.label("M_st")
    a(f"""
    v_and_b32 v10, 63, v0
    s_mul_i32 s{S_T}, s{S_G}, {OSTR}
    s_add_u32 s{S_T}, s{S_T}, {L_LIST}
    v_lshl_add_u32 v11, v10, 4, s{S_T}
    s_lshl_b32 s{S_T}, s{S_G}, 18
    s_lshl_b32 s{S_T+1}, s2, 10
    s_add_u32 s{S_T}, s{S_T}, s{S_T+1}
    v_lshl_add_u32 v12, v10, 4, s{S_T}
    s_barrier
    """)
    stamp(a, 8)
    for k in range(3):
        a(f"ds_read_b128 {vr(16+4*k,4)}, v11 offset:{12*OSTR*k}")
    a(f"""
    s_cmp_ge_u32 s{S_G}, 4
    s_cbranch_scc1 M_st3
    ds_read_b128 v[28:31], v11 offset:{36*OSTR}
    v_add_u32 v13, {36 << 18}, v12
    s_waitcnt lgkmcnt(0)
    buffer_store_dwordx4 v[28:31], v13, {sr(S_OUT,4)}, 0 offen {fl('of')}
    """)
    a.label("M_st3")
    for k in range(3):
        a(f"s_waitcnt lgkmcnt({2-k})")
        a(f"buffer_store_dwordx4 {vr(16+4*k,4)}, v12, {sr(S_OUT,4)}, 0 offen {fl('of')}")
        if k < 2: a(f"v_add_u32 v12, {12 << 18}, v12")
    stamp_dump(a)

def kd(a, name, vg, sg):
    acc = (vg + 3) // 4 * 4
    a.raw(f""".p2align 6
.amdhsa_kernel {name}
  .amdhsa_next_free_vgpr {vg}
  .amdhsa_next_free_sgpr {sg}
  .amdhsa_accum_offset {acc}
  .amdhsa_group_segment_fixed_size 0
  .amdhsa_kernarg_size 96
  .amdhsa_user_sgpr_count 2
  .amdhsa_user_sgpr_kernarg_segment_ptr 1
  .amdhsa_system_sgpr_workgroup_id_x 1
  .amdhsa_float_denorm_mode_32 3
.end_amdhsa_kernel""")

def main():
    global DBG
    OPT.update(dict(x.split("=") for x in sys.argv[2:]))
    DBG = bool(int(OPT.get("dbg", 0)))
    a = Asm()
    ref = open(f"cdna_kernels/{NAME}.s.ref").read().split("\n")
    for ln in ref:
        if ln.startswith(";") and "@launch" not in ln and "Override" not in ln and "grid=ceil" not in ln:
            a.raw(ln)
    a.raw(f"; @launch kernel={NAME}_kernel grid=({NB},1,1) block=({NT},1,1) lds={L_TOT}")
    a.raw('.amdgcn_target "amdgcn-amd-amdhsa--gfx950"')
    a.raw(".text")
    gen_main(a)
    a.raw('.section .rodata,"a"')
    kd(a, NAME + "_kernel", NVG, 102 if DBG else 70)
    open(sys.argv[1], "w").write(a.text())

main()
```

```python
import sys

NAME = "gather_scatter__tensor_product_equiv_equiformer__graph"
N = 10000
E = 320000
NB = 256
CH = 1250
WS_OFF = 0x500000
WS_WF = 0x600000
WS_WFLAG = 0x640000
WS_PF32 = 0x1000000
SPIN_MAX = 1 << 18
TAGM = 0xffc00000

NG = 12
NT = NG * 64
CAP = 224
PSTR = 2816
L_CC = 512
L_BASE = L_CC + NG * 64
L_ACNT = L_BASE + NG * 64
L_MORE = L_ACNT + 60
L_NONCE = L_ACNT + 64
L_FC3 = L_ACNT + 84
L_FC0 = L_ACNT + 88
L_LC = L_ACNT + 92
L_FC = L_ACNT + 80
OSTR = 1040
L_P = L_ACNT + 256
L_LIST = L_P + 40 * PSTR
L_TOT = L_LIST + NG * CAP * 16
assert L_TOT <= 163840 and L_P % 256 == 0
OOBOFF = 0x00FFFC00

OPT = {}
DBG = False

class Asm:
    def __init__(self):
        self.l = []
    def __call__(self, s):
        for x in s.split("\n"):
            x = x.strip()
            if x:
                self.l.append("    " + x)
    def label(self, s):
        self.l.append(s + ":")
    def raw(self, s):
        self.l.append(s)
    def text(self):
        return "\n".join(self.l) + "\n"

def vr(a, n):
    return f"v[{a}:{a+n-1}]"
def sr(a, n=2):
    return f"s[{a}:{a+n-1}]"
def fl(k):
    return OPT.get(k, {'of': 'sc1'}.get(k, '')).replace('+', ' ')

V_C = 1; V_N16 = 2; V_VS = 4; V_VC = 5; V_PB = 6; V_JB = 7; V_DONE = 8
V_OFF = 9
V_T = 12
V_OH = 16; V_CA = 18; V_TCH = 19
V_SC = 20; V_IX = 24
V_A = [32, 36]
V_B = [40, 44]
V_ACC = 48
V_SV = 80
V_L = [104, 136]
NVG = 168
S_X = 4; S_OUT = 8; S_REC = 12; S_OFFS = 16; S_WF = 20
S_G = 22; S_S = 23; S_S1 = 24; S_B1 = 25; S_S2 = 26; S_PLO = 27; S_PHI = 28; S_NLAST = 29
S_RND = 30; S_MORE = 31; S_T = 32
S_M = 40
S_IN = 40
S_ACT = 52; S_PEND = 54; S_TM = 56; S_FEX = 58; S_RET = 60; S_HI = 62; S_FIRST = 63
S_NON = 64; S_DBG = 66; S_WSB = 68; S_SPIN = 0; S_WOK = 1; S_FLP = 63
S_ST = 70

def stamp(a, k, real=False):
    if DBG:
        a(f"s_mem{'realtime' if real else 'time'} {sr(S_ST+2*k)}")
def stamp_dump(a):
    if DBG:
        a("s_waitcnt lgkmcnt(0) vmcnt(0)")
        stamp(a, 9)
        stamp(a, 11, True)
        a("s_waitcnt lgkmcnt(0)")
        if OPT.get("hwid"):
            a(f"s_getreg_b32 s{S_ST+26}, hwreg(HW_REG_HW_ID)")
            a(f"s_mov_b32 s{S_ST+27}, 0")
        a(f"s_mul_i32 s{S_T}, s2, {NG}")
        a(f"s_add_u32 s{S_T}, s{S_T}, s{S_G}")
        a(f"s_lshl_b32 s{S_T}, s{S_T}, 7")
        a(f"s_add_u32 s{S_T}, s{S_T}, 0x800000")
        a(f"v_mov_b32 v1, s{S_T}")
        for k in range(0, 32, 2):
            a(f"v_mov_b32 v2, s{S_ST+k}")
            a(f"v_mov_b32 v3, s{S_ST+k+1}")
            a(f"global_store_dwordx2 v1, v[2:3], {sr(S_WSB)} offset:{4*k}")
            a("s_nop 1")

def comp011(i): return 2 + 3*i
def comp101(i): return 3 + 3*i
def comp111(i): return 4 + 3*i

def touch(a, beta, part, va, vd):
    a(f"""
    s_mul_i32 s{S_T+6}, s3, 79
    s_add_u32 s{S_T+6}, s{S_T+6}, {64*part}
    v_and_b32 v{va}, 63, v0
    v_add_u32 v{va}, s{S_T+6}, v{va}
    v_and_b32 v{vd}, 1, v{va}
    v_lshrrev_b32 v{va}, 1, v{va}
    v_lshlrev_b32 v{va}, 10, v{va}
    v_lshl_add_u32 v{va}, v{vd}, 7, v{va}
    """)
    if part: a("s_mov_b64 exec, 0x7fff")
    a(f"buffer_load_dword v{vd}, v{va}, {sr(S_X,4)}, 0 offen offset:{256*beta}")
    if part: a("s_mov_b64 exec, -1")

WREG = {}
for n_, ks_ in enumerate([0, 1, 2, 3, 8, 9, 10, 11]): WREG[ks_] = 136 + 4*n_
for n_, ks_ in enumerate([4, 5, 6, 7, 12, 13, 14, 15, 16, 17, 18, 19]): WREG[ks_] = 88 + 4*n_
def wload(a, va, kss):
    a(f"""
    s_sub_u32 s{S_T+6}, s{S_G}, 4
    s_mul_i32 s{S_T+6}, s{S_T+6}, {20*1024}
    v_and_b32 v{va}, 63, v0
    v_lshl_add_u32 v{va}, v{va}, 4, s{S_T+6}
    """)
    cur = 0
    for ks in kss:
        blk = ks // 4 * 4096
        if blk != cur:
            if blk > cur: a(f"v_add_u32 v{va}, {blk - cur}, v{va}")
            else: a(f"v_subrev_u32 v{va}, {cur - blk}, v{va}")
            cur = blk
        a(f"global_load_dwordx4 {vr(WREG[ks],4)}, v{va}, {sr(S_WF)} offset:{1024*(ks%4)} sc1")

def meta_reads(a):
    a(f"""
    s_lshl_b32 s{S_T}, s{S_S2}, 9
    v_add_u32 v{V_T}, s{S_T}, v{V_VS}
    v_add_u32 v{V_CA}, s{S_T}, v{V_VC}
    """)
    for i in range(0, 8, 2):
        a(f"ds_read2_b32 {vr(V_IX+i,2)}, v{V_T} offset0:{16*i+2} offset1:{16*(i+1)+2}")
    a(f"ds_read2_b32 {vr(V_OH,2)}, v{V_CA} offset0:3 offset1:67")

def stage_x(a, p, tag, wait=True):
    L = V_L[p]; A = V_A[p]
    for i in range(0, 8, 2):
        a(f"v_pk_add_f32 {vr(V_IX+i,2)}, {vr(V_IX+i,2)}, {vr(V_N16,2)}")
    a(f"""
    v_bfe_i32 v{V_OH}, v{V_OH}, v{V_C}, 1
    v_bfe_i32 v{V_OH+1}, v{V_OH+1}, v{V_C}, 1
    s_add_u32 s{S_S2}, s{S_S1}, 1
    v_and_b32 v{V_OH}, v{V_OH}, v{V_CA}
    v_and_b32 v{V_OH+1}, v{V_OH+1}, v{V_CA}
    s_cmp_eq_u32 s{S_S2}, s{S_S}
    ds_read_b64_tr_b16 {vr(A,2)}, v{V_OH}
    ds_read_b64_tr_b16 {vr(A+2,2)}, v{V_OH+1} offset:256
    s_cbranch_scc1 M_part{tag}
    """)
    def load(i):
        a(f"buffer_load_dwordx4 {vr(L+4*i,4)}, v{V_IX+i}, {sr(S_X,4)}, s{S_B1} offen")
    a.label(f"M_full{tag}")
    for i in range(8):
        load(i)
    meta_reads(a)
    if wait: a("s_waitcnt vmcnt(8)")
    a(f"s_branch M_go{tag}")
    a.label(f"M_part{tag}")
    a(f"""
    s_mov_b32 s{S_S2}, 0
    s_cmp_eq_u32 s{S_NLAST}, 8
    s_cbranch_scc1 M_full{tag}
    """)
    for i in range(7):
        a(f"s_cmp_eq_u32 s{S_NLAST}, {i}")
        a(f"s_cbranch_scc1 M_w{tag}_{i}")
        load(i)
    for i in range(7, -1, -1):
        a.label(f"M_w{tag}_{i}")
        if wait:
            a(f"s_waitcnt vmcnt({i})")
            if i > 0: a(f"s_branch M_pm{tag}")
    a.label(f"M_pm{tag}")
    meta_reads(a)

def advance(a):
    a(f"""
    s_mov_b32 s{S_S1}, s{S_S2}
    s_cmp_eq_u32 s{S_S2}, 0
    s_cselect_b32 s{S_T}, 256, 0
    s_add_u32 s{S_B1}, s{S_B1}, s{S_T}
    """)

def compute(a, p, first):
    L = V_L[p]; A = V_A[p]
    def perms(j):
        B = V_B[j % 2]
        sel = S_PHI if j % 2 else S_PLO
        for q in range(4):
            a(f"v_perm_b32 v{B+q}, v{L+4*(2*q+1)+j//2}, v{L+4*(2*q)+j//2}, s{sel}")
    perms(0)
    for j in range(8):
        if j + 1 < 8:
            perms(j + 1)
        else:
            a("s_nop 1")
        acc = vr(V_ACC+4*j,4)
        a(f"v_mfma_f32_16x16x32_bf16 {acc}, {vr(A,4)}, {vr(V_B[j%2],4)}, {'0' if first else acc}")

wc_n = [0]
def write_comp(a, comp, regs):
    n = wc_n[0]; wc_n[0] += 1
    TM = V_B[0]
    a(f"""
    s_or_b32 s{S_T}, s{S_RND}, s{S_MORE}
    s_cmp_eq_u32 s{S_T}, 0
    s_cbranch_scc1 M_wc{n}
    s_mul_i32 s{S_T}, s3, {NG}
    s_add_u32 s{S_T}, s{S_T}, s{S_G}
    s_mul_i32 s{S_T}, s{S_T}, {11*2048}
    s_add_u32 s{S_T}, s{S_T}, {WS_PF32 + comp*2048}
    v_and_b32 v{V_T}, 63, v0
    v_lshl_add_u32 v{V_T}, v{V_T}, 2, s{S_T}
    s_waitcnt lgkmcnt(0)
    s_cmp_eq_u32 s{S_RND}, 0
    s_cbranch_scc1 M_wd{n}
    """)
    for j in range(8):
        a(f"global_load_dword v{TM+j}, v{V_T}, {sr(S_WSB)} offset:{256*j} sc1")
    a("s_waitcnt vmcnt(0)")
    for j in range(8):
        a(f"v_add_f32 v{regs[j]}, v{regs[j]}, v{TM+j}")
    a.label(f"M_wd{n}")
    for j in range(8):
        a(f"global_store_dword v{V_T}, v{regs[j]}, {sr(S_WSB)} offset:{256*j} sc1")
    a("s_waitcnt vmcnt(0)")
    a.label(f"M_wc{n}")
    sc = [V_B[0], V_B[1]][n % 2]
    for d in range(4):
        a(f"v_cvt_pk_bf16_f32 v{sc+d}, v{regs[2*d]}, v{regs[2*d+1]}")
    if comp in (5, 6, 7):
        a(f"""
        s_cmp_ge_u32 s{S_G}, 4
        s_cselect_b32 s{S_TM+1}, 0xffff, 0
        s_mov_b32 s{S_TM}, 0
        v_xor_b32 v{V_T+1}, 128, v{V_PB}
        v_cndmask_b32 v{V_T+1}, v{V_PB}, v{V_T+1}, {sr(S_TM)}
        ds_write_b128 v{V_T+1}, {vr(sc,4)} offset:{comp*256}
        """)
    else:
        a(f"ds_write_b128 v{V_PB}, {vr(sc,4)} offset:{comp*256}")

def setprio(a, ph):
    pl = OPT.get("pl", "3210"); phv = OPT.get("ph", "3210")
    if pl[ph] == phv[ph]:
        a(f"s_setprio {pl[ph]}")
    else:
        a(f"""
        s_setprio {pl[ph]}
        s_cmp_ge_u32 s{S_G}, 4
        s_cbranch_scc1 M_pr{ph}
        s_setprio {phv[ph]}
        """)
        a.label(f"M_pr{ph}")

def throttle(a, tag, pre=False):
    a(f"""
    s_lshr_b32 s{S_T+1}, s{S_B1}, 5
    s_sub_u32 s{S_T+1}, s{S_T+1}, {OPT.get('slack', 0)}
    v_mov_b32 v{V_T+2}, {L_LC}
    """)
    a.label(f"M_th{tag}")
    a(f"""
    ds_read_b32 v{V_T+3}, v{V_T+2}
    s_waitcnt lgkmcnt(0)
    v_readfirstlane_b32 s{S_T}, v{V_T+3}
    s_cmp_ge_i32 s{S_T}, s{S_T+1}
    s_cbranch_scc1 M_tk{tag}
    s_sleep 2
    s_branch M_th{tag}
    """)
    a.label(f"M_tk{tag}")

def flush_sub(a):
    acc = lambda r: [V_ACC + 4*j + r for j in range(8)]
    sv = lambda k: [V_SV + 8*k + j for j in range(8)]
    a.label("M_flush")
    a(f"""
    s_mov_b64 exec, {sr(S_FEX)}
    s_cmp_eq_u32 s{S_B1}, 512
    s_cbranch_scc1 M_fl1
    s_cmp_eq_u32 s{S_B1}, 768
    s_cbranch_scc1 M_fl2
    s_cmp_eq_u32 s{S_B1}, 1024
    s_cbranch_scc1 M_fl3
    s_nop 1
    """)
    def ret(ph, k):
        if ph is not None:
            a(f"""
            s_cmp_lt_u32 s{S_G}, 4
            s_cbranch_scc1 M_lc{k}
            s_mov_b64 exec, 1
            v_mov_b32 v{V_T+2}, {L_LC}
            v_mov_b32 v{V_T+3}, 1
            ds_add_u32 v{V_T+2}, v{V_T+3}
            """)
            a.label(f"M_lc{k}")
        if not (OPT.get("pst") and k == 3): stamp(a, k)
        if ph is not None: setprio(a, ph)
        a(f"s_mov_b64 exec, -1")
        a(f"s_setpc_b64 {sr(S_RET)}")
    write_comp(a, 0, acc(0))
    for i in range(3): write_comp(a, comp011(i), acc(1+i))
    a(f"""
    s_mov_b64 exec, 1
    v_mov_b32 v{V_T+2}, {L_FC0}
    v_mov_b32 v{V_T+3}, 1
    ds_add_u32 v{V_T+2}, v{V_T+3}
    """)
    a("s_mov_b64 exec, -1")
    for n, b in enumerate(OPT.get("t3", "x").replace("x", "")):
        for k in range(2):
            a(f"s_cmp_lg_u32 s{S_G}, {4+2*n+k}")
            a(f"s_cbranch_scc1 M_t3_{n}_{k}")
            touch(a, int(b), k, V_T+2, V_TCH)
            a.label(f"M_t3_{n}_{k}")
    ret(1, 3)
    a.label("M_fl1")
    a("s_nop 4")
    write_comp(a, comp101(0), acc(0))
    for k in range(3):
        for j in range(8): a(f"v_mov_b32 v{sv(k)[j]}, v{acc(1+k)[j]}")
    ret(2, 4)
    a.label("M_fl2")
    a("s_nop 2")
    write_comp(a, comp101(1), acc(0))
    for j in range(8): a(f"v_sub_f32 v{acc(1)[j]}, v{acc(1)[j]}, v{sv(1)[j]}")
    write_comp(a, comp111(2), acc(1))
    for j in range(8): a(f"v_add_f32 v{sv(0)[j]}, v{sv(0)[j]}, v{acc(2)[j]}")
    for j in range(8): a(f"v_mov_b32 v{sv(1)[j]}, v{acc(3)[j]}")
    a(f"""
    s_mov_b64 exec, 1
    v_mov_b32 v{V_T+2}, {L_FC}
    v_mov_b32 v{V_T+3}, 1
    ds_add_u32 v{V_T+2}, v{V_T+3}
    """)
    ret(3, 5)
    a.label("M_fl3")
    write_comp(a, comp101(2), acc(0))
    for j in range(8): a(f"v_sub_f32 v{sv(2)[j]}, v{sv(2)[j]}, v{acc(1)[j]}")
    write_comp(a, comp111(1), sv(2))
    for j in range(8): a(f"v_sub_f32 v{acc(2)[j]}, v{acc(2)[j]}, v{sv(1)[j]}")
    write_comp(a, comp111(0), acc(2))
    for j in range(8): a(f"v_add_f32 v{sv(0)[j]}, v{sv(0)[j]}, v{acc(3)[j]}")
    write_comp(a, 1, sv(0))
    a(f"""
    s_cmp_lt_u32 s{S_G}, 4
    s_cbranch_scc1 M_fl3b
    s_mov_b64 exec, 1
    v_mov_b32 v{V_T+2}, {L_FC3}
    v_mov_b32 v{V_T+3}, 1
    ds_add_u32 v{V_T+2}, v{V_T+3}
    """)
    a.label("M_fl3b")
    ret(None, 6)

A_H = L_P; A_BS = L_P + 4096; A_STG = L_P + 8192; A_OFS = L_P + 32768

def phase_a(a):
    RH = S_IN; EA = S_IN + 2; SRC = S_IN + 4; DST = S_IN + 6; WR = S_IN + 8; W0 = S_IN + 10; W1 = S_IN + 12
    WSB = sr(S_WSB)
    def read_nonce(wait=True):
        a(f"""
        v_mov_b32 v2, {L_NONCE}
        ds_read_b64 v[2:3], v2
        s_waitcnt lgkmcnt(0)
        v_readfirstlane_b32 s{S_NON}, v2
        v_readfirstlane_b32 s{S_NON+1}, v3
        """)
    a(f"""
    s_cmp_eq_u32 s{S_G}, 10
    s_cbranch_scc1 A_scan
    s_cmp_eq_u32 s{S_G}, 11
    s_cbranch_scc1 A_aux
    s_movk_i32 s{S_T+1}, 625
    s_mul_i32 s{S_T}, s3, {CH}
    v_cmp_gt_u32 vcc, s{S_T+1}, v0
    v_lshl_add_u32 v1, v0, 1, s{S_T}
    v_lshlrev_b32 v2, 2, v1
    v_mul_u32_u24 v3, 6, v1
    v_lshlrev_b32 v20, 1, v1
    s_mov_b64 exec, vcc
    global_load_dwordx2 v[4:5], v2, {sr(DST)} nt
    global_load_dwordx2 v[8:9], v2, {sr(SRC)} nt
    global_load_dwordx3 v[12:14], v3, {sr(RH)} nt
    global_load_dword v18, v20, {sr(EA)} nt
    v_mov_b32 v23, 1
    s_mul_i32 s{S_T}, s3, {CH * 16}
    v_lshlrev_b32 v20, 4, v0
    v_add_u32 v21, s{S_T}, v20
    s_barrier
    s_waitcnt vmcnt(3)
    """)
    for i in range(2):
        a(f"""
        v_and_b32 v{24+i}, 7, v{4+i}
        v_bfe_u32 v1, v{4+i}, 3, 5
        v_lshlrev_b32 v{24+i}, 7, v{24+i}
        v_lshl_or_b32 v{24+i}, v1, 2, v{24+i}
        ds_add_rtn_u32 v{28+i}, v{24+i}, v23 offset:{A_H}
        """)
    a("""
    s_waitcnt lgkmcnt(0)
    s_barrier
    """)
    for i in range(2):
        a(f"""
        v_lshrrev_b32 v{4+i}, 8, v{4+i}
        v_mul_u32_u24 v1, 43, v{4+i}
        v_lshrrev_b32 v1, 9, v1
        v_mul_u32_u24 v2, 12, v1
        v_sub_u32 v{4+i}, v{4+i}, v2
        v_lshlrev_b32 v1, 14, v1
        v_lshl_or_b32 v{32+4*i+2}, v{4+i}, 16, v1
        """)
    a(f"s_waitcnt vmcnt(0)")
    def half(dst, base, idx):
        r = base + idx // 2
        if idx % 2 == 0:
            a(f"v_lshlrev_b32 v{dst}, 16, v{r}")
        else:
            a(f"v_and_b32 v{dst}, s{S_HI}, v{r}")
    for i in range(2):
        half(4, 18, i)
        half(5, 12, 3*i+0)
        half(6, 12, 3*i+1)
        half(7, 12, 3*i+2)
        a(f"""
        v_mul_f32 v5, v4, v5
        v_mul_f32 v6, v4, v6
        v_mul_f32 v7, v4, v7
        v_cvt_pk_bf16_f32 v{32+4*i}, v4, v5
        v_cvt_pk_bf16_f32 v{32+4*i+1}, v6, v7
        """)
    a(f"""
    v_mov_b32 v2, {L_NONCE}
    s_barrier
    ds_read_b32 v4, v24 offset:{A_BS}
    ds_read_b32 v5, v25 offset:{A_BS}
    ds_read_b64 v[2:3], v2
    s_waitcnt lgkmcnt(0)
    """)
    for i in range(2):
        a(f"""
        v_add_lshl_u32 v{4+i}, v{4+i}, v{28+i}, 4
        v_or3_b32 v{32+4*i+2}, v{32+4*i+2}, v{8+i}, v3
        v_mov_b32 v{32+4*i+3}, v2
        ds_write_b128 v{4+i}, {vr(32+4*i,4)} offset:{A_STG}
        """)
    a(f"""
    v_readfirstlane_b32 s{S_NON}, v2
    v_readfirstlane_b32 s{S_NON+1}, v3
    s_waitcnt lgkmcnt(0)
    s_barrier
    ds_read_b128 v[32:35], v20 offset:{A_STG}
    ds_read_b128 v[36:39], v20 offset:{A_STG+10000}
    v_add_u32 v22, 10000, v21
    s_waitcnt lgkmcnt(1)
    global_store_dwordx4 v21, v[32:35], {WSB} {OPT.get("rs", "sc1").replace("+", " ")}
    s_waitcnt lgkmcnt(0)
    {"" if OPT.get("halfst") else "global_store_dwordx4 v22, v[36:39], " + WSB + " " + OPT.get("rs", "sc1").replace("+", " ")}
    """)
    PW = int(OPT.get("pw", 0))
    if PW:
        a(f"""
        s_lshr_b32 s{S_T}, s3, 3
        s_mul_i32 s{S_T}, s{S_T}, 625
        v_add_u32 v40, s{S_T}, v0
        """)
        if PW == 1:
            a("""
            v_and_b32 v41, 3, v40
            v_lshrrev_b32 v40, 2, v40
            v_lshlrev_b32 v40, 11, v40
            """)
        else:
            a("""
            v_and_b32 v41, 1, v40
            v_lshrrev_b32 v40, 1, v40
            v_lshlrev_b32 v40, 10, v40
            """)
        a(f"""
        v_lshl_add_u32 v40, v41, 7, v40
        buffer_load_dword v41, v40, {sr(S_X,4)}, 0 offen
        """)
    a(f"""
    s_mov_b64 exec, -1
    s_branch A_end
    """)
    a.label("A_scan")
    a(f"""
    v_and_b32 v1, 63, v0
    v_lshlrev_b32 v1, 4, v1
    s_lshl_b32 s{S_T}, s3, 11
    s_add_u32 s{S_T}, s{S_T}, {WS_OFF}
    v_lshl_add_u32 v20, v1, 1, s{S_T}
    """)
    a(f"""
    s_barrier
    """)
    for n, b in enumerate(OPT.get("t0", "x").replace("x", "")):
        touch(a, int(b), 0, 60+4*n, 61+4*n)
        touch(a, int(b), 1, 62+4*n, 63+4*n)
    a(f"""
    s_barrier
    ds_read_b128 v[4:7], v1 offset:{A_H}
    """)
    if int(OPT.get("cpf", 1)):
        a(f"""
        s_lshr_b32 s{S_T+4}, s3, 3
        s_cmp_lg_u32 s{S_T+4}, 1
        s_cbranch_scc1 A_nocpf
        s_getpc_b64 {sr(S_T+2)}
        """)
        a.label("A_pc")
        a(f"""
        v_lshlrev_b32 v50, 3, v1
        s_mov_b32 s{S_T+4}, M_done-A_pc
        v_add_u32 v51, 8192, v50
        v_min_u32 v51, s{S_T+4}, v51
        v_add_u32 v54, 16384, v50
        v_min_u32 v54, s{S_T+4}, v54
        global_load_dword v52, v50, {sr(S_T+2)}
        global_load_dword v53, v51, {sr(S_T+2)}
        global_load_dword v55, v54, {sr(S_T+2)}
        """)
        a.label("A_nocpf")
    a(f"""
    s_waitcnt lgkmcnt(0)
    v_add_u32 v9, v4, v5
    v_add_u32 v10, v9, v6
    v_add_u32 v11, v10, v7
    v_mov_b32 v12, v11
    s_nop 1
    v_add_u32_dpp v12, v12, v12 row_shr:1 row_mask:0xf bank_mask:0xf bound_ctrl:0
    s_nop 1
    v_add_u32_dpp v12, v12, v12 row_shr:2 row_mask:0xf bank_mask:0xf bound_ctrl:0
    s_nop 1
    v_add_u32_dpp v12, v12, v12 row_shr:4 row_mask:0xf bank_mask:0xf bound_ctrl:0
    s_nop 1
    v_add_u32_dpp v12, v12, v12 row_shr:8 row_mask:0xf bank_mask:0xf bound_ctrl:0
    s_nop 1
    v_add_u32_dpp v12, v12, v12 row_bcast:15 row_mask:0xa bank_mask:0xf
    s_nop 1
    v_add_u32_dpp v12, v12, v12 row_bcast:31 row_mask:0xc bank_mask:0xf
    v_sub_u32 v12, v12, v11
    v_add_u32 v13, v12, v4
    v_add_u32 v14, v12, v9
    v_add_u32 v15, v12, v10
    ds_write_b128 v1, v[12:15] offset:{A_BS}
    """)
    for i in range(4):
        a(f"v_lshl_or_b32 v{24+2*i}, v{4+i}, 11, v{12+i}")
    a(f"""
    v_mov_b32 v2, {L_NONCE}
    s_waitcnt lgkmcnt(0)
    s_barrier
    ds_read_b64 v[2:3], v2
    s_waitcnt lgkmcnt(0)
    """)
    for i in range(4):
        a(f"""
        v_or_b32 v{24+2*i}, v3, v{24+2*i}
        v_mov_b32 v{25+2*i}, v2
        """)
    a(f"""
    global_store_dwordx4 v20, v[24:27], {WSB} sc1
    global_store_dwordx4 v20, v[28:31], {WSB} offset:16 sc1
    v_readfirstlane_b32 s{S_NON}, v2
    v_readfirstlane_b32 s{S_NON+1}, v3
    v_lshlrev_b32 v40, 7, v1
    s_lshl_b32 s{S_T}, s2, 3
    v_add_u32 v40, s{S_T}, v40
    v_add_u32 v41, {64*2048}, v40
    v_add_u32 v42, {128*2048}, v40
    v_add_u32 v43, {192*2048}, v40
    s_mov_b32 s{S_T+7}, {TAGM}
    s_barrier
    s_waitcnt vmcnt(0)
    """)
    a.label("A_poll")
    for r in range(4):
        a(f"buffer_load_dwordx2 {vr(32+2*r,2)}, v{40+r}, {sr(S_OFFS,4)}, 0 offen sc1")
    a(f"""
    s_mov_b64 {sr(S_TM)}, -1
    s_waitcnt vmcnt(0)
    """)
    for r in range(4):
        a(f"""
        v_and_b32 v4, s{S_T+7}, v{32+2*r}
        v_cmp_eq_u32 {sr(S_PEND)}, s{S_NON+1}, v4
        v_cmp_eq_u32 vcc, s{S_NON}, v{33+2*r}
        s_and_b64 {sr(S_TM)}, {sr(S_TM)}, {sr(S_PEND)}
        s_and_b64 {sr(S_TM)}, {sr(S_TM)}, vcc
        """)
    a(f"""
    s_cmp_eq_u64 {sr(S_TM)}, -1
    s_cbranch_scc1 A_polled
    s_sleep {OPT.get('slp', 2)}
    s_sub_u32 s{S_SPIN}, s{S_SPIN}, 1
    s_cmp_gt_i32 s{S_SPIN}, 0
    s_cbranch_scc1 A_poll
    """)
    a.label("A_polled")
    a(f"""
    v_lshrrev_b32 v1, 2, v1
    v_mov_b32 v5, 0
    """)
    for r in range(4):
        a(f"""
        v_and_b32 v{32+2*r}, 0x3fffff, v{32+2*r}
        ds_write_b32 v1, v{32+2*r} offset:{A_OFS+256*r}
        """)
    a(f"""
    ds_write_b32 v1, v5 offset:{A_OFS+1024}
    s_branch A_end
    """)
    a.label("A_aux")
    a(f"""
    v_and_b32 v1, 63, v0
    s_cmp_ge_u32 s3, 160
    s_cbranch_scc1 A_wp1
    s_lshr_b32 s{S_T+3}, s3, 3
    s_and_b32 s{S_T+4}, s3, 3
    s_and_b32 s{S_T+5}, s3, 4
    s_lshl_b32 s{S_T+5}, s{S_T+5}, 1
    s_or_b32 s{S_T+4}, s{S_T+4}, s{S_T+5}
    s_cmp_lt_u32 s3, 64
    s_cbranch_scc1 A_wa
    s_sub_u32 s{S_T+5}, s3, 64
    s_and_b32 s{S_T+3}, s{S_T+5}, 7
    s_lshr_b32 s{S_T+4}, s{S_T+5}, 3
    s_cmp_lt_u32 s{S_T+4}, 4
    s_cselect_b32 s{S_T+5}, 4, 8
    s_add_u32 s{S_T+4}, s{S_T+4}, s{S_T+5}
    """)
    a.label("A_wa")
    a(f"""
    s_mul_i32 s{S_T+2}, s{S_T+3}, 20
    s_add_u32 s{S_T+2}, s{S_T+2}, s{S_T+4}
    v_and_b32 v2, 15, v1
    v_lshrrev_b32 v3, 4, v1
    s_lshl_b32 s{S_T+5}, s{S_T+4}, 5
    v_lshl_add_u32 v4, v3, 3, s{S_T+5}
    v_lshlrev_b32 v5, 1, v4
    s_lshl_b32 s{S_T+5}, s{S_T+3}, 4
    v_add_u32 v2, s{S_T+5}, v2
    v_lshlrev_b32 v2, 1, v2
    v_lshl_add_u32 v6, v4, 8, v2
    s_sub_u32 s{S_T+6}, s{W1}, {256*256}
    s_subb_u32 s{S_T+7}, s{W1+1}, 0
    s_cmp_lt_u32 s{S_T+4}, 8
    s_cselect_b32 s{S_T+6}, s{W0}, s{S_T+6}
    s_cselect_b32 s{S_T+7}, s{W0+1}, s{S_T+7}
    global_load_dwordx4 v[8:11], v5, {sr(WR)}
    """)
    for i in range(8):
        a(f"global_load_ushort v{12+i}, v6, {sr(S_T+6)} offset:{256*i}")
    a.label("A_wp1")
    a(f"""
    v_mov_b32 v2, 0
    s_barrier
    s_sleep {OPT.get('ns', 16)}
    global_load_dwordx2 v[4:5], v2, {sr(S_DBG)} sc1
    s_barrier
    """)
    T1 = OPT.get("t1", "0").replace("x", "")
    a(f"""
    s_cmp_ge_u32 s3, 160
    s_cbranch_scc1 A_nw
    s_lshl_b32 s{S_T+3}, s{S_T+2}, 10
    s_add_u32 s{S_T+3}, s{S_T+3}, {WS_WF}
    v_lshl_add_u32 v7, v1, 4, s{S_T+3}
    s_waitcnt vmcnt(1)
    """)
    for i in range(8):
        if i % 2 == 0:
            a(f"v_lshlrev_b32 v20, 16, v{8+i//2}")
        else:
            a(f"v_and_b32 v20, s{S_HI}, v{8+i//2}")
        a(f"v_lshlrev_b32 v{12+i}, 16, v{12+i}")
        a(f"v_mul_f32 v{12+i}, v20, v{12+i}")
    for i in range(4):
        a(f"v_cvt_pk_bf16_f32 v{24+i}, v{12+2*i}, v{13+2*i}")
    a(f"""
    global_store_dwordx4 v7, v[24:27], {WSB} sc1
    s_waitcnt vmcnt(1)
    s_branch A_nw1
    """)
    a.label("A_nw")
    a("s_waitcnt vmcnt(0)")
    a.label("A_nw1")
    for n, b in enumerate(T1):
        touch(a, int(b), 0, 32+4*n, 33+4*n)
        touch(a, int(b), 1, 34+4*n, 35+4*n)
    a("s_branch A_pn1")
    a.label("A_pn")
    a("s_waitcnt vmcnt(0)")
    a.label("A_pn1")
    a(f"""
    v_readfirstlane_b32 s{S_NON}, v4
    v_readfirstlane_b32 s{S_NON+1}, v5
    s_cmp_lg_u32 s{S_NON}, 0
    s_cbranch_scc1 A_pd
    global_load_dwordx2 v[4:5], v2, {sr(S_DBG)} sc1
    s_sub_u32 s{S_SPIN}, s{S_SPIN}, 1
    s_cmp_gt_i32 s{S_SPIN}, 0
    s_cbranch_scc1 A_pn
    s_waitcnt vmcnt(0)
    """)
    a.label("A_pd")
    a(f"""
    v_mov_b32 v2, {L_NONCE}
    ds_write_b64 v2, v[4:5]
    s_waitcnt lgkmcnt(0)
    s_barrier
    s_barrier
    s_cmp_ge_u32 s3, 160
    s_cbranch_scc1 A_end
    s_lshl_b32 s{S_T+3}, s{S_T+2}, 10
    s_add_u32 s{S_T+3}, s{S_T+3}, {WS_WFLAG}
    v_lshl_add_u32 v7, v1, 4, s{S_T+3}
    v_mov_b32 v5, v4
    v_mov_b32 v6, v4
    v_mov_b32 v11, v7
    v_mov_b32 v7, v4
    s_waitcnt vmcnt({2*len(T1)})
    global_store_dwordx4 v11, v[4:7], {WSB} sc1
    s_nop 1
    """)
    a.label("A_end")

def gen_main(a):
    K = NAME + "_kernel"
    a.raw(".p2align 8")
    a.raw(f".globl {K}")
    a.raw(f".type {K},@function")
    a.label(K)
    a(f"""
    s_cmp_ge_u32 s2, {NB}
    s_cbranch_scc1 M_done
    """)
    if OPT.get("empty"): a("s_endpgm")
    if DBG:
        for k in range(S_ST, S_ST+32): a(f"s_mov_b32 s{k}, 0")
    stamp(a, 0)
    stamp(a, 10, True)
    T = V_T
    a(f"""
    s_load_dwordx8 s[{S_IN}:{S_IN+7}], s[0:1], 8
    s_load_dwordx4 s[{S_IN+8}:{S_IN+11}], s[0:1], 40
    s_load_dwordx2 {sr(S_IN+12)}, s[0:1], 56
    s_load_dwordx2 {sr(S_X)}, s[0:1], 0
    s_load_dwordx2 {sr(S_OUT)}, s[0:1], 72
    s_load_dwordx2 {sr(S_DBG)}, s[0:1], 80
    s_load_dwordx2 {sr(S_WSB)}, s[0:1], 88
    s_memrealtime {sr(S_NON)}
    s_mov_b32 s3, s2
    s_and_b32 s{S_T}, s2, 7
    s_lshr_b32 s2, s2, 3
    s_lshl_b32 s{S_T}, s{S_T}, 5
    s_or_b32 s2, s2, s{S_T}
    v_lshrrev_b32 v1, 6, v0
    v_mov_b32 v3, 0
    v_readfirstlane_b32 s{S_G}, v1
    v_lshlrev_b32 v2, 2, v0
    ds_write_b32 v2, v3
    ds_write_b32 v2, v3 offset:{A_H}
    s_mov_b32 s{S_X+2}, {N*1024}
    s_mov_b32 s{S_X+3}, 0x20000
    s_mov_b32 s{S_OUT+2}, {N*1024}
    s_mov_b32 s{S_OUT+3}, 0x20000
    s_mov_b32 s{S_REC+2}, {E*16}
    s_mov_b32 s{S_REC+3}, 0x20000
    s_mov_b32 s{S_OFFS+2}, {NB*2048}
    s_mov_b32 s{S_OFFS+3}, 0x20000
    s_mov_b32 s{S_HI}, 0xffff0000
    s_waitcnt lgkmcnt(0)
    s_cmp_lg_u32 s3, 0
    s_cbranch_scc1 M_nonon
    s_cmp_lg_u32 s{S_G}, 0
    s_cbranch_scc1 M_nonon
    s_lshl_b32 s{S_NON+1}, s{S_NON+1}, 22
    s_or_b32 s{S_NON}, s{S_NON}, 1
    v_mov_b32 v4, s{S_NON}
    v_mov_b32 v5, s{S_NON+1}
    s_mov_b64 exec, 1
    global_store_dwordx2 v3, v[4:5], {sr(S_DBG)} sc1
    s_mov_b64 exec, -1
    """)
    a.label("M_nonon")
    assert L_P // 4 <= NT
    a(f"""
    s_mov_b32 s{S_SPIN}, {SPIN_MAX}
    s_mov_b32 s{S_REC}, s{S_WSB}
    s_and_b32 s{S_REC+1}, s{S_WSB+1}, 0xffff
    s_add_u32 s{S_OFFS}, s{S_WSB}, {WS_OFF}
    s_addc_u32 s{S_OFFS+1}, s{S_WSB+1}, 0
    s_add_u32 s{S_WF}, s{S_WSB}, {WS_WF}
    s_addc_u32 s{S_WF+1}, s{S_WSB+1}, 0
    s_and_b32 s{S_OFFS+1}, s{S_OFFS+1}, 0xffff
    s_and_b32 s{S_X+1}, s{S_X+1}, 0xffff
    s_and_b32 s{S_OUT+1}, s{S_OUT+1}, 0xffff
    """)
    phase_a(a)
    if int(OPT.get("rm", 1)):
        a(f"""
        s_add_u32 s{S_G}, s{S_G}, 4
        s_cmp_ge_u32 s{S_G}, 12
        s_cselect_b32 s{S_T}, 12, 0
        s_sub_u32 s{S_G}, s{S_G}, s{S_T}
        """)
    a(f"""
    v_mov_b32 v{V_JB}, 0
    v_mov_b32 v{V_DONE}, 0
    s_mov_b32 s{S_PLO}, 0x05040100
    s_mov_b32 s{S_PHI}, 0x07060302
    s_mov_b32 s{S_RND}, 0
    v_and_b32 v{T}, 63, v0
    v_and_b32 v{T+1}, 15, v{T}
    v_lshrrev_b32 v{T+2}, 4, v{T}
    v_lshlrev_b32 v{V_N16}, 4, v{T+1}
    v_lshlrev_b32 v{V_N16+1}, 4, v{T+1}
    v_and_b32 v{V_C}, 3, v{T}
    v_bfe_u32 v{T+3}, v{T}, 2, 2
    s_mul_i32 s{S_T}, s{S_G}, {CAP*16}
    s_add_u32 s{S_T}, s{S_T}, {L_LIST}
    v_lshl_add_u32 v{V_VS}, v{T+2}, 4, s{S_T}
    v_lshl_add_u32 v{V_VC}, v{T+3}, 6, v{V_VS}
    s_cmp_lt_u32 s{S_G}, 4
    s_cselect_b32 s{S_T}, 2, 3
    s_cselect_b32 s{S_T+1}, 0, 12
    s_add_u32 s{S_T+1}, s{S_T+1}, s{S_G}
    v_lshlrev_b32 v{T+2}, s{S_T}, v{T+2}
    v_add_u32 v{T+2}, s{S_T+1}, v{T+2}
    v_cmp_gt_u32 {sr(S_FEX)}, 40, v{T+2}
    v_mul_u32_u24 v{V_PB}, {PSTR}, v{T+2}
    v_and_b32 v{T+2}, 15, v{T+2}
    v_xor_b32 v{T+2}, v{T+2}, v{T+1}
    v_lshl_add_u32 v{V_PB}, v{T+2}, 4, v{V_PB}
    v_add_u32 v{V_PB}, {L_P}, v{V_PB}
    s_mov_b32 s{S_T+7}, {TAGM}
    """)
    L = V_L[0]; L2 = V_L[1]
    if OPT.get("pst"): stamp(a, 12)
    a(f"""
    v_lshrrev_b32 v{T}, 3, v0
    v_lshlrev_b32 v{T}, 2, v{T}
    s_max_u32 s{S_T}, s{S_G}, 4
    s_sub_u32 s{S_T}, s{S_T}, 4
    s_mul_i32 s{S_T}, s{S_T}, {20*1024}
    s_lshl_b32 s{S_T+1}, s2, 2
    s_add_u32 s{S_T}, s{S_T}, s{S_T+1}
    s_add_u32 s{S_T}, s{S_T}, {WS_WFLAG}
    v_and_b32 v{V_ACC+44}, 63, v0
    v_min_u32 v{V_ACC+44}, 19, v{V_ACC+44}
    v_lshl_add_u32 v{V_ACC+44}, v{V_ACC+44}, 10, s{S_T}
    s_waitcnt {"vmcnt(0) " if OPT.get("ack") else ""}lgkmcnt(0)
    """)
    if OPT.get("pst"): stamp(a, 3)
    a("s_barrier")
    for r in range(3):
        a(f"ds_read_b32 v{V_OFF+r}, v{T} offset:{A_OFS+384*r}")
    a(f"""
    s_mov_b64 {sr(S_ACT)}, -1
    s_mov_b32 s{S_FIRST}, 0
    s_waitcnt lgkmcnt(0)
    s_branch M_w0
    """)
    a.label("M_init")
    a(f"""
    v_mov_b32 v{T+1}, 0
    v_lshlrev_b32 v{T}, 2, v0
    s_movk_i32 s{S_T}, {L_P//4}
    v_cmp_gt_u32 vcc, s{S_T}, v0
    s_and_saveexec_b64 {sr(S_TM)}, vcc
    ds_write_b32 v{T}, v{T+1}
    s_mov_b64 exec, {sr(S_TM)}
    s_mov_b64 {sr(S_ACT)}, -1
    s_waitcnt lgkmcnt(0)
    s_barrier
    s_mov_b32 s{S_FIRST}, 1
    """)
    a.label("M_w0")
    stamp(a, 1)
    a.label("M_window")
    L2 = V_ACC + 16
    REM = L2; ADR = L2 + 3; CTR = L2 + 6; RNK = L2 + 12; BAS = L2 + 18; ONE = L2 + 24
    WFV = L2 + 26; WFA = L2 + 28; TCA = L2 + 29
    a(f"""
    v_and_b32 v{T}, 7, v0
    v_add_u32 v{T}, v{T}, v{V_JB}
    v_lshrrev_b32 v{T+1}, 3, v0
    v_mul_u32_u24 v{T+1}, {CH}, v{T+1}
    v_add_u32 v{T+1}, v{T+1}, v{T}
    v_mov_b32 v{ONE}, 1
    """)
    for r in range(3):
        a(f"""
        v_lshrrev_b32 v{REM+r}, 11, v{V_OFF+r}
        v_sub_u32 v{REM+r}, v{REM+r}, v{T}
        v_and_b32 v{ADR+r}, 0x7ff, v{V_OFF+r}
        v_add_lshl_u32 v{ADR+r}, v{ADR+r}, v{T+1}, 4
        """)
        if r: a(f"v_add_u32 v{ADR+r}, {96*CH*16*r}, v{ADR+r}")
    for k in range(6):
        r = k % 3; h = k // 3
        a(f"v_cmp_lt_i32 {sr(S_M+2*k)}, {8*h}, v{REM+r}")
    a(f"""
    s_cmp_eq_u32 s{S_FIRST}, 0
    s_cbranch_scc1 M_rload
    """)
    for k in range(6):
        m = sr(S_M + 2*k)
        a(f"""
        v_and_b32 v{T+2}, {1<<k}, v{V_DONE}
        v_cmp_eq_u32 vcc, 0, v{T+2}
        s_and_b64 {m}, {m}, vcc
        s_and_b64 {m}, {m}, {sr(S_ACT)}
        """)
    a.label("M_rload")
    for k in range(6):
        r = k % 3; h = k // 3
        a(f"""
        s_mov_b64 exec, {sr(S_M+2*k)}
        s_cbranch_execz M_sl{k}
        buffer_load_dwordx4 {vr(L+4*k,4)}, v{ADR+r}, {sr(S_REC,4)}, 0 offen offset:{128*h} sc1
        """)
        a.label(f"M_sl{k}")
    a(f"""
    s_mov_b64 exec, -1
    s_cmp_lg_u32 s{S_FIRST}, 0
    s_cbranch_scc1 M_nofld
    global_load_dword v{WFV}, v{WFA}, {sr(S_WSB)} sc1
    """)
    a.label("M_nofld")
    a(f"""
    s_mov_b64 {sr(S_PEND)}, 0
    s_mov_b32 s{S_T}, {TAGM}
    s_waitcnt vmcnt(0)
    """)
    for k in range(6):
        a(f"""
        s_mov_b64 exec, {sr(S_M+2*k)}
        s_cbranch_execz M_sc{k}
        v_and_b32 v{T}, s{S_T}, v{L+4*k+2}
        v_cmp_ne_u32 {sr(S_TM)}, s{S_NON+1}, v{T}
        v_cmp_ne_u32 vcc, s{S_NON}, v{L+4*k+3}
        v_bfe_u32 v{CTR+k}, v{L+4*k+2}, 16, 4
        v_and_b32 v{T}, 15, v{L+4*k+2}
        s_or_b64 {sr(S_PEND)}, {sr(S_PEND)}, {sr(S_TM)}
        s_or_b64 {sr(S_PEND)}, {sr(S_PEND)}, vcc
        v_lshl_or_b32 v{T}, v{CTR+k}, 4, v{T}
        v_lshlrev_b32 v{BAS+k}, 2, v{T}
        """)
        a.label(f"M_sc{k}")
    a(f"""
    s_mov_b64 exec, -1
    s_cmp_eq_u64 {sr(S_PEND)}, 0
    {"s_branch M_rok" if OPT.get("halfst") or OPT.get("noretry") else ""}
    s_cbranch_scc1 M_rok
    s_sleep {OPT.get('slp', 4)}
    s_sub_u32 s{S_SPIN}, s{S_SPIN}, 1
    s_cmp_gt_i32 s{S_SPIN}, 0
    s_cbranch_scc1 M_rload
    """)
    a.label("M_rok")
    if OPT.get("dl13"): a(f"s_sleep {OPT['dl13']}")
    stamp(a, 13)
    a(f"""
    s_cmp_lg_u32 s{S_FIRST}, 0
    s_cbranch_scc1 M_append
    """)
    for k in range(6):
        a(f"""
        s_mov_b64 exec, {sr(S_M+2*k)}
        s_cbranch_execz M_sa{k}
        ds_add_rtn_u32 v{RNK+k}, v{BAS+k}, v{ONE} offset:{L_CC}
        """)
        a.label(f"M_sa{k}")
    SCN = V_ACC
    a(f"""
    s_mov_b64 exec, -1
    v_cmp_eq_u32 vcc, s{S_NON}, v{WFV}
    s_cmp_eq_u64 vcc, -1
    s_cselect_b32 s{S_WOK}, 1, 0
    s_cbranch_scc0 M_nowpre
    s_cmp_lt_u32 s{S_G}, {16 if OPT.get("db") else 4}
    s_cbranch_scc1 M_nowpre
    """)
    wload(a, WFA, [0, 1, 2, 3, 8, 9, 10, 11])
    a.label("M_nowpre")
    a(f"""
    v_and_b32 v{T}, 63, v0
    v_lshlrev_b32 v{T}, 4, v{T}
    v_cmp_lt_u32 vcc, 0, v{V_C}
    v_cmp_lt_u32 {sr(S_TM)}, 1, v{V_C}
    s_waitcnt lgkmcnt(0)
    s_barrier
    ds_read_b128 {vr(SCN,4)}, v{T} offset:{L_CC}
    """)
    if int(OPT.get("t2m", 0)):
        a(f"""
        s_cmp_ge_u32 s{S_G}, 4
        s_cbranch_scc1 M_t2m
        s_mul_i32 s{S_T+6}, s3, 236
        s_mul_i32 s{S_T+5}, s{S_G}, 59
        s_add_u32 s{S_T+6}, s{S_T+6}, s{S_T+5}
        v_and_b32 v{TCA}, 63, v0
        v_add_u32 v{TCA}, s{S_T+6}, v{TCA}
        v_and_b32 v{TCA+1}, 3, v{TCA}
        v_lshrrev_b32 v{TCA}, 2, v{TCA}
        s_movk_i32 s{S_T+5}, 5000
        v_cmp_gt_u32 {sr(S_PEND)}, s{S_T+5}, v{TCA}
        v_lshlrev_b32 v{TCA+2}, 11, v{TCA}
        v_add_u32 v{TCA+2}, 1024, v{TCA+2}
        v_subrev_u32 v{TCA}, s{S_T+5}, v{TCA}
        v_lshlrev_b32 v{TCA}, 10, v{TCA}
        v_add_u32 v{TCA}, 512, v{TCA}
        v_cndmask_b32 v{TCA}, v{TCA}, v{TCA+2}, {sr(S_PEND)}
        v_lshl_add_u32 v{TCA}, v{TCA+1}, 7, v{TCA}
        s_mov_b32 exec_hi, 0x7ffffff
        buffer_load_dword v{V_TCH}, v{TCA}, {sr(S_X,4)}, 0 offen
        s_mov_b64 exec, -1
        """)
        a.label("M_t2m")
    for n, b in enumerate(OPT.get("t2", "123").replace("x", "")):
        a(f"s_cmp_lg_u32 s{S_G}, {n}")
        a(f"s_cbranch_scc1 M_t2_{n}")
        touch(a, int(b), 0, TCA, V_TCH)
        touch(a, int(b), 1, TCA, TCA+1)
        a.label(f"M_t2_{n}")
    a(f"""
    s_waitcnt lgkmcnt(0)
    v_add_u32 v{SCN+4}, v{SCN}, v{SCN+1}
    v_add_u32 v{SCN+5}, v{SCN+4}, v{SCN+2}
    v_add_u32 v{SCN+6}, v{SCN+5}, v{SCN+3}
    s_nop 1
    v_mov_b32_dpp v{SCN+7}, v{SCN+6} quad_perm:[0,0,1,2] row_mask:0xf bank_mask:0xf
    v_cndmask_b32 v{SCN+7}, 0, v{SCN+7}, vcc
    v_add_u32 v{SCN+7}, v{SCN+7}, v{SCN+6}
    s_nop 1
    v_mov_b32_dpp v{SCN+8}, v{SCN+7} quad_perm:[0,0,0,1] row_mask:0xf bank_mask:0xf
    v_cndmask_b32 v{SCN+8}, 0, v{SCN+8}, {sr(S_TM)}
    v_add_u32 v{SCN+8}, v{SCN+8}, v{SCN+7}
    v_sub_u32 v{SCN+8}, v{SCN+8}, v{SCN+6}
    v_add_u32 v{SCN+9}, v{SCN+8}, v{SCN}
    v_add_u32 v{SCN+10}, v{SCN+8}, v{SCN+4}
    v_add_u32 v{SCN+11}, v{SCN+8}, v{SCN+5}
    s_mov_b32 exec_hi, 0xffff
    ds_write_b128 v{T}, {vr(SCN+8,4)} offset:{L_BASE}
    """)
    for k in range(6):
        a(f"""
        s_mov_b64 exec, {sr(S_M+2*k)}
        s_cbranch_execz M_sb{k}
        ds_read_b32 v{BAS+k}, v{BAS+k} offset:{L_BASE}
        """)
        a.label(f"M_sb{k}")
    a("s_branch M_place")
    a.label("M_append")
    for k in range(6):
        a(f"""
        s_mov_b64 exec, {sr(S_M+2*k)}
        v_lshlrev_b32 v{T+1}, 2, v{CTR+k}
        v_lshlrev_b32 v{T}, 6, v{CTR+k}
        ds_add_rtn_u32 v{RNK+k}, v{T+1}, v{ONE} offset:{L_ACNT}
        ds_read_b32 v{BAS+k}, v{T} offset:{L_BASE+60}
        ds_read_b32 v{T+2}, v{T} offset:{L_CC+60}
        s_waitcnt lgkmcnt(0)
        v_add_u32 v{BAS+k}, v{BAS+k}, v{T+2}
        """)
    a.label("M_place")
    a(f"""
    s_mov_b64 exec, -1
    s_mov_b64 {sr(S_PEND)}, 0
    s_mov_b32 s{S_T}, {L_LIST}
    s_movk_i32 s{S_T+2}, {CAP}
    s_mov_b32 s{S_FIRST}, 1
    """)
    for k in range(6):
        a(f"""
        s_cmp_eq_u64 {sr(S_M+2*k)}, 0
        s_cbranch_scc1 M_se{k}
        v_bfe_u32 v{T+1}, v{L+4*k+2}, 14, 2
        v_and_b32 v{L+4*k+2}, 0x3fff, v{L+4*k+2}
        v_lshlrev_b32 v{L+4*k+3}, v{T+1}, v{ONE}
        v_lshlrev_b32 v{L+4*k+2}, 10, v{L+4*k+2}
        v_mul_u32_u24 v{CTR+k}, s{S_T+2}, v{CTR+k}
        """)
        a.label(f"M_se{k}")
    a("s_waitcnt lgkmcnt(0)")
    for k in range(6):
        m = sr(S_M + 2*k)
        a(f"""
        s_mov_b64 exec, {m}
        s_cbranch_execz M_sp{k}
        v_add_u32 v{RNK+k}, v{RNK+k}, v{BAS+k}
        v_cmp_gt_u32 vcc, s{S_T+2}, v{RNK+k}
        v_add_u32 v{T}, v{CTR+k}, v{RNK+k}
        v_lshl_add_u32 v{CTR+k}, v{T}, 4, s{S_T}
        s_andn2_b64 {sr(S_TM)}, {m}, vcc
        s_or_b64 {sr(S_PEND)}, {sr(S_PEND)}, {sr(S_TM)}
        s_mov_b64 exec, vcc
        ds_write_b128 v{CTR+k}, {vr(L+4*k,4)}
        v_or_b32 v{V_DONE}, {1<<k}, v{V_DONE}
        """)
        a.label(f"M_sp{k}")
    a(f"""
    s_mov_b64 exec, -1
    v_mov_b32 v{T+2}, {L_MORE}
    v_max3_i32 v{T}, v{REM}, v{REM+1}, v{REM+2}
    s_mov_b64 exec, {sr(S_PEND)}
    ds_write_b32 v{T+2}, v{ONE}
    s_andn2_b64 {sr(S_ACT)}, {sr(S_ACT)}, {sr(S_PEND)}
    s_mov_b64 exec, {sr(S_ACT)}
    v_add_u32 v{V_JB}, 16, v{V_JB}
    v_mov_b32 v{V_DONE}, 0
    v_cmp_lt_i32 vcc, 16, v{T}
    s_mov_b64 exec, -1
    s_cmp_lg_u64 vcc, 0
    s_cbranch_scc1 M_window
    s_lshl_b32 s{S_T}, s{S_G}, 6
    v_mov_b32 v{T}, s{S_T}
    s_lshl_b32 s{S_T}, s{S_G}, 2
    v_mov_b32 v{T+1}, s{S_T}
    s_waitcnt lgkmcnt(0)
    """)
    stamp(a, 15)
    if OPT.get("dl15"): a(f"s_sleep {OPT['dl15']}")
    a(f"""
    s_barrier
    ds_read_b32 v{V_A[0]}, v{T} offset:{L_BASE+60}
    ds_read_b32 v{V_A[0]+1}, v{T} offset:{L_CC+60}
    ds_read_b32 v{V_A[0]+2}, v{T+1} offset:{L_ACNT}
    ds_read_b32 v{V_A[0]+3}, v{T+2}
    v_and_b32 v{T}, 63, v0
    v_mov_b32 v{V_B[0]}, {OOBOFF}
    v_mov_b32 v{V_B[0]+1}, 0
    s_mov_b32 s{S_S1}, 0
    s_mov_b32 s{S_S2}, 0
    s_mov_b32 s{S_B1}, 0
    s_waitcnt lgkmcnt(0)
    v_add3_u32 v{T+1}, v{V_A[0]}, v{V_A[0]+1}, v{V_A[0]+2}
    v_readfirstlane_b32 s{S_MORE}, v{V_A[0]+3}
    v_readfirstlane_b32 s{S_T}, v{T+1}
    s_min_u32 s{S_T}, s{S_T}, {CAP}
    s_add_u32 s{S_S}, s{S_T}, 31
    s_lshr_b32 s{S_S}, s{S_S}, 5
    s_max_u32 s{S_S}, s{S_S}, 1
    s_lshl_b32 s{S_T+1}, s{S_S}, 5
    v_add_u32 v{T}, s{S_T}, v{T}
    v_cmp_gt_u32 vcc, s{S_T+1}, v{T}
    s_mul_i32 s{S_T+2}, s{S_G}, {CAP*16}
    s_add_u32 s{S_T+2}, s{S_T+2}, {L_LIST+8}
    v_lshl_add_u32 v{T}, v{T}, 4, s{S_T+2}
    s_mov_b64 exec, vcc
    ds_write_b64 v{T}, {vr(V_B[0],2)}
    s_mov_b64 exec, -1
    s_sub_u32 s{S_NLAST}, s{S_T}, s{S_T+1}
    s_add_u32 s{S_NLAST}, s{S_NLAST}, 35
    s_lshr_b32 s{S_NLAST}, s{S_NLAST}, 2
    """)
    meta_reads(a)
    a(f"""
    s_cmp_gt_u32 s{S_S}, 2
    s_cbranch_scc1 M_nozl
    """)
    for k in range(32):
        a(f"v_mov_b32 v{V_L[0]+k}, 0")
    a(f"""
    s_cmp_ge_u32 s{S_G}, {16 if OPT.get("db") else 4}
    s_cbranch_scc1 M_nozl
    """)
    for k in range(32):
        a(f"v_mov_b32 v{V_L[1]+k}, 0")
    a.label("M_nozl")
    stamp(a, 2)
    setprio(a, 0)
    a(f"""
    s_waitcnt lgkmcnt(0)
    s_cmp_ge_u32 s{S_G}, {16 if OPT.get("db") else 4}
    s_cbranch_scc1 M_sglb
    """)
    stage_x(a, 0, "i", wait=False)
    a.label("M_goi")
    advance(a)
    a(f"s_mov_b32 s{S_FIRST}, 1")
    for p in range(2):
        a.label(f"M_it{p}")
        a(f"""
        s_waitcnt lgkmcnt(0)
        s_cmp_eq_u32 s{S_B1}, 1024
        s_cbranch_scc1 M_w{p}_0
        """)
        stage_x(a, p ^ 1, str(p))
        a.label(f"M_go{p}")
        a(f"""
        s_cmp_eq_u32 s{S_FIRST}, 0
        s_cbranch_scc1 M_cn{p}
        """)
        compute(a, p, True)
        a(f"s_branch M_cd{p}")
        a.label(f"M_cn{p}")
        compute(a, p, False)
        a.label(f"M_cd{p}")
        a(f"""
        s_mov_b32 s{S_FIRST}, 0
        s_cmp_lg_u32 s{S_S1}, 0
        s_cbranch_scc1 M_nofl{p}
        s_mov_b32 s{S_FIRST}, 1
        s_call_b64 {sr(S_RET)}, M_flush
        s_cmp_eq_u32 s{S_B1}, 1024
        s_cbranch_scc1 M_end
        """)
        if "h" in OPT.get("thr", "lh"): throttle(a, f"h{p}")
        a.label(f"M_nofl{p}")
        advance(a)
        if p == 1:
            a("s_branch M_it0")
    def prep():
        for i in range(0, 8, 2):
            a(f"v_pk_add_f32 {vr(V_IX+i,2)}, {vr(V_IX+i,2)}, {vr(V_N16,2)}")
        a(f"""
        v_bfe_i32 v{V_OH}, v{V_OH}, v{V_C}, 1
        v_bfe_i32 v{V_OH+1}, v{V_OH+1}, v{V_C}, 1
        v_and_b32 v{V_OH}, v{V_OH}, v{V_CA}
        v_and_b32 v{V_OH+1}, v{V_OH+1}, v{V_CA}
        """)
    def load(i):
        a(f"buffer_load_dwordx4 {vr(V_L[0]+4*i,4)}, v{V_IX+i}, {sr(S_X,4)}, s{S_B1} offen")
    a.label("M_sglb")
    a(f"s_mov_b32 s{S_FLP}, 0")
    prep()
    a.label("M_its")
    a(f"""
    s_add_u32 s{S_S2}, s{S_S1}, 1
    s_cmp_eq_u32 s{S_S2}, s{S_S}
    s_cbranch_scc1 M_parts
    """)
    a.label("M_fulls")
    for i in range(8): load(i)
    a("s_branch M_pms")
    a.label("M_parts")
    a(f"""
    s_mov_b32 s{S_S2}, 0
    s_cmp_eq_u32 s{S_NLAST}, 8
    s_cbranch_scc1 M_fulls
    """)
    for i in range(7):
        a(f"s_cmp_eq_u32 s{S_NLAST}, {i}")
        a(f"s_cbranch_scc1 M_pms")
        load(i)
    a.label("M_pms")
    a(f"""
    ds_read_b64_tr_b16 {vr(V_A[0],2)}, v{V_OH}
    ds_read_b64_tr_b16 {vr(V_A[0]+2,2)}, v{V_OH+1} offset:256
    """)
    meta_reads(a)
    a(f"""
    s_cmp_eq_u32 s{S_FLP}, 0
    s_cbranch_scc1 M_nofls
    """)
    a.label("M_dofl")
    a(f"""
    s_call_b64 {sr(S_RET)}, M_flush
    s_cmp_eq_u32 s{S_B1}, 1024
    s_cbranch_scc1 M_end
    s_cmp_lg_u32 s{S_B1}, {OPT.get("midb", 512)}
    s_cbranch_scc1 M_nofls
    s_cmp_lg_u32 s{S_MORE}, 0
    s_cbranch_scc1 M_nofls
    """)
    mid_stage(a)
    a.label("M_nofls")
    a("s_waitcnt lgkmcnt(0)")
    prep()
    a(f"""
    s_cmp_eq_u32 s{S_S1}, 0
    s_mov_b32 s{S_S1}, s{S_S2}
    s_waitcnt vmcnt(0)
    s_cbranch_scc0 M_cns
    """)
    compute(a, 0, True)
    if "l" in OPT.get("thr", "lh"): throttle(a, "s")
    a("s_branch M_cds")
    a.label("M_cns")
    compute(a, 0, False)
    a.label("M_cds")
    a(f"""
    s_cmp_eq_u32 s{S_S2}, 0
    s_cselect_b32 s{S_FLP}, 256, 0
    s_add_u32 s{S_B1}, s{S_B1}, s{S_FLP}
    s_cmp_eq_u32 s{S_B1}, 1024
    s_cbranch_scc0 M_its
    s_cmp_lg_u32 s{S_MORE}, 0
    s_cbranch_scc1 M_dofl
    """)
    wload(a, V_T+2, [12, 13, 14, 15, 16, 17, 18, 19])
    a("s_branch M_dofl")
    flush_sub(a)
    a.label("M_end")
    a(f"""
    s_cmp_eq_u32 s{S_MORE}, 0
    s_cbranch_scc1 M_gemm
    s_mov_b32 s{S_RND}, 1
    s_waitcnt lgkmcnt(0)
    s_barrier
    s_branch M_init
    """)
    a.label("M_gemm")
    if OPT.get("nogemm"): a("s_endpgm")
    gemm(a)
    a.label("M_done")
    a("s_endpgm")

OACC = {(0, 0): 8, (1, 0): 20, (2, 0): 36}
O1 = [(0, 1), (0, 2), (0, 3), (1, 1), (1, 2), (1, 3), (2, 1), (2, 3)]
for n_, k_ in enumerate(O1): OACC[k_] = 136 + 4*n_

def wflag_spin(a, tag, va, vd):
    a(f"""
    s_sub_u32 s{S_T}, s{S_G}, 4
    s_mul_i32 s{S_T}, s{S_T}, {20*1024}
    s_lshl_b32 s{S_T+1}, s2, 2
    s_add_u32 s{S_T}, s{S_T}, s{S_T+1}
    s_add_u32 s{S_T}, s{S_T}, {WS_WFLAG}
    v_and_b32 v{va}, 63, v0
    v_min_u32 v{va}, 19, v{va}
    v_lshl_add_u32 v{va}, v{va}, 10, s{S_T}
    """)
    a.label(f"M_wfchk{tag}")
    a(f"""
    global_load_dword v{vd}, v{va}, {sr(S_WSB)} sc1
    s_waitcnt vmcnt(0)
    v_cmp_eq_u32 vcc, s{S_NON}, v{vd}
    s_cmp_eq_u64 vcc, -1
    s_cbranch_scc1 M_wfld{tag}
    s_sub_u32 s{S_SPIN}, s{S_SPIN}, 1
    s_cmp_gt_i32 s{S_SPIN}, 0
    s_cbranch_scc1 M_wfchk{tag}
    """)
    a.label(f"M_wfld{tag}")

def mid_stage(a):
    B0 = 7; DL = 19; X0 = 12; X2 = 13; XP = 14; TT = 15
    bufs = [40, 44, 64, 68, 72, 76]
    TR = {k: 48 + 4*n for n, k in enumerate(O1[4:])}
    a(f"""
    s_cmp_lg_u32 s{S_WOK}, 0
    s_cbranch_scc1 M_midw
    """)
    wflag_spin(a, "m", X0, X2)
    wload(a, X0, [0, 1, 2, 3, 8, 9, 10, 11])
    a(f"""
    s_waitcnt vmcnt(0)
    s_mov_b32 s{S_WOK}, 1
    """)
    a.label("M_midw")
    a(f"""
    v_mov_b32 v{XP}, {L_FC0}
    ds_read_b32 v{TT}, v{XP}
    v_and_b32 v{X0}, 15, v0
    v_bfe_u32 v{X2}, v0, 4, 2
    v_mul_u32_u24 v{DL}, {PSTR}, v{X0}
    v_xor_b32 v{B0}, v{X2}, v{X0}
    v_lshl_add_u32 v{B0}, v{B0}, 4, v{DL}
    v_add_u32 v{B0}, {L_P}, v{B0}
    v_lshrrev_b32 v{DL}, 3, v{X0}
    v_mul_i32_i24 v{DL}, {768 - 8*PSTR}, v{DL}
    """)
    a.label("M_midf")
    a(f"""
    s_waitcnt lgkmcnt(0)
    v_readfirstlane_b32 s{S_T}, v{TT}
    s_cmp_ge_u32 s{S_T}, {NG}
    s_cbranch_scc1 M_midg
    s_sleep 1
    ds_read_b32 v{TT}, v{XP}
    s_branch M_midf
    """)
    a.label("M_midg")
    steps = []
    for k4 in range(4):
        for t in range(3): steps.append((t, 0, 0, k4, k4))
    for k4 in range(4):
        for (t, o) in O1[4:] + O1[:4]: steps.append((t, o, comp011(o-1), k4, 8 + k4))
    NBF = len(bufs)
    cur = [None]
    def rd(n):
        t, o, c, k4, ws = steps[n]
        key = (k4, ws >= 8)
        if cur[0] != key:
            cur[0] = key
            a(f"v_xor_b32 v{X0}, {64*k4}, v{B0}")
            a(f"v_add_u32 v{X2}, {32*PSTR}, v{X0}")
            if ws >= 8: a(f"v_add_u32 v{XP}, v{X2}, v{DL}")
        base = X0 if t < 2 else (XP if o == 1 else X2)
        off = c*256 + (16*PSTR if t == 1 else 0)
        a(f"ds_read_b128 {vr(bufs[n % NBF],4)}, v{base} offset:{off}")
    for n in range(NBF - 1): rd(n)
    for n in range(len(steps)):
        t, o, c, k4, ws = steps[n]
        if n + NBF - 1 < len(steps): rd(n + NBF - 1)
        a(f"s_waitcnt lgkmcnt({min(NBF - 1, len(steps) - 1 - n)})")
        acc = vr(TR.get((t, o), OACC[(t, o)]), 4)
        a(f"v_mfma_f32_16x16x32_bf16 {acc}, {vr(WREG[ws],4)}, {vr(bufs[n % NBF],4)}, {'0' if k4 == 0 else acc}")
    for k in O1[4:]:
        for r in range(4): a(f"v_mov_b32 v{OACC[k]+r}, v{TR[k]+r}")

def gemm(a):
    BB = 40; NBB = 6
    PKB = 80; PKO = 0; T2B = 76; LN = 16; OA = 17; WA = 18
    def store_row(rho_s, vb, light):
        a(f"""
        s_mul_i32 s{S_T}, s{rho_s}, {OSTR}
        s_add_u32 s{S_T}, s{S_T}, {L_LIST}
        v_add_u32 v{WA}, s{S_T}, v{LN}
        ds_read_b128 {vr(vb,4)}, v{WA}
        """)
    def row_off(rho_s, dst, light):
        if light:
            a(f"""
            s_sub_u32 s{S_T}, s{rho_s}, 16
            s_lshr_b32 s{S_T+1}, s{S_T}, 3
            s_and_b32 s{S_T}, s{S_T}, 7
            s_add_u32 s{S_T}, s{S_T}, 4
            """)
        else:
            a(f"""
            s_lshr_b32 s{S_T+1}, s{rho_s}, 2
            s_and_b32 s{S_T}, s{rho_s}, 3
            """)
        a(f"""
        s_mul_i32 s{S_T+1}, s{S_T+1}, 12
        s_add_u32 s{S_T}, s{S_T}, s{S_T+1}
        s_lshl_b32 s{S_T}, s{S_T}, 18
        s_lshl_b32 s{S_T+1}, s3, 10
        s_add_u32 s{S_T}, s{S_T}, s{S_T+1}
        v_add_u32 v{dst}, s{S_T}, v{LN}
        """)
    a(f"""
    s_setprio {OPT.get("pg", 0)}
    s_waitcnt lgkmcnt(0)
    v_and_b32 v{LN}, 63, v0
    s_cmp_ge_u32 s{S_G}, 4
    s_cbranch_scc1 M_gw
    v_lshlrev_b32 v{LN}, 4, v{LN}
    """)
    for k in range(6):
        a(f"s_add_u32 s{S_T+3}, s{S_G}, {16 + 4*k}")
        row_off(S_T+3, 40 + k, True)
    a(f"""
    s_mul_i32 s{S_T}, s{S_G}, {OSTR}
    s_add_u32 s{S_T}, s{S_T}, {L_LIST + 16*OSTR}
    v_add_u32 v{WA}, s{S_T}, v{LN}
    s_waitcnt lgkmcnt(0)
    s_barrier
    """)
    for k in range(6):
        a(f"ds_read_b128 {vr(48+4*k,4)}, v{WA} offset:{4*OSTR*k}")
    for k in range(6):
        a(f"s_waitcnt lgkmcnt({5-k})")
        a(f"buffer_store_dwordx4 {vr(48+4*k,4)}, v{40+k}, {sr(S_OUT,4)}, 0 offen {fl('of')}")
    a("s_branch M_st")
    a.label("M_gw")
    a(f"""
    s_waitcnt lgkmcnt(0)
    """)
    late = [12, 13, 14, 15, 16, 17, 18, 19, 4, 5, 6, 7]
    wload(a, WA, [4, 5, 6, 7])
    a(f"""
    v_mov_b32 v14, {L_FC}
    ds_read_b32 v15, v14
    v_and_b32 v12, 15, v{LN}
    v_lshrrev_b32 v13, 4, v{LN}
    v_mul_u32_u24 v{OA}, {PSTR}, v12
    v_xor_b32 v1, v13, v12
    v_lshl_add_u32 v1, v1, 4, v{OA}
    v_add_u32 v1, {L_P}, v1
    v_xor_b32 v2, 64, v1
    v_xor_b32 v3, 128, v1
    v_xor_b32 v4, 192, v1
    """)
    setup = [f"v_add_u32 v{T2B+k4}, {32*PSTR}, v{1+k4}" for k4 in range(4)]
    setup += [f"v_lshrrev_b32 v{PKO}, 3, v12", f"v_mul_i32_i24 v{PKB+3}, {768 - 8*PSTR}, v{PKO}"]
    setup += [f"v_add_u32 v{PKB+k4}, v{T2B+k4}, v{PKB+3}" for k4 in range(4)]
    setup += [f"s_lshl_b32 s{S_T+1}, s{S_G}, 5", f"s_add_u32 s{S_T+1}, s{S_T+1}, {L_LIST - 128}",
              f"v_mul_u32_u24 v{OA}, {OSTR}, v12", f"v_lshl_add_u32 v{OA}, v13, 3, v{OA}", f"v_add_u32 v{OA}, s{S_T+1}, v{OA}",
              f"v_mul_i32_i24 v{PKO}, {256 - 8*OSTR}, v{PKO}", f"v_add_u32 v{PKO}, v{PKO}, v{OA}",
              f"s_mov_b32 s{S_T+2}, 0xbfb8aa3b", f"v_lshlrev_b32 v{LN}, 4, v{LN}"]
    for x in setup: a(x)
    def spin(tag, off, n):
        a.label(f"M_fcw{tag}")
        a(f"""
        s_waitcnt lgkmcnt(0)
        v_readfirstlane_b32 s{S_T}, v15
        s_cmp_ge_u32 s{S_T}, {n}
        s_cbranch_scc1 M_fcok{tag}
        s_sleep 1
        ds_read_b32 v15, v14 offset:{off}
        s_branch M_fcw{tag}
        """)
        a.label(f"M_fcok{tag}")
    spin("a", 0, NG)
    if not OPT.get("pst"): stamp(a, 12)
    st1 = []
    for k4 in range(4):
        for t in range(3):
            st1.append((t, 1, comp101(0), k4, 12 + k4))
            st1.append((t, 2, comp101(1), k4, 12 + k4))
    for k4 in range(4):
        for t in range(3):
            st1.append((t, 3, comp111(2), k4, 16 + k4))
    st1 = [x for x in st1 if not (x[0] == 2 and x[1] == 2)]
    def late_steps(tiles):
        st = []
        for k4 in range(4):
            for t in tiles: st.append((t, 0, 1, k4, 4 + k4))
        for t in tiles:
            for k4 in range(4):
                st.append((t, 3, comp101(2), k4, 12 + k4))
                st.append((t, 1, comp111(0), k4, 16 + k4))
                st.append((t, 2, comp111(1), k4, 16 + k4))
        return [x for x in st if not (x[0] == 2 and x[1] == 2)]
    started = set()
    wmax = [-1]
    def run(steps, fill):
        q = []
        def rd(n):
            t, o, c, k4, ws = steps[n]
            base = (1 + k4) if t < 2 else ((PKB + k4) if o == 1 else (T2B + k4))
            off = c*256 + (16*PSTR if t == 1 else 0)
            a(f"ds_read_b128 {vr(BB+4*(n%NBB),4)}, v{base} offset:{off}")
            q.append(n)
        n_steps = len(steps)
        for n in range(NBB - 1): rd(n)
        for n in range(n_steps):
            t, o, c, k4, ws = steps[n]
            if n + NBB - 1 < n_steps: rd(n + NBB - 1)
            pend = len(q) - 1 - q.index(n)
            assert pend <= 15
            idx = late.index(ws) if ws in late else -1
            w = f"lgkmcnt({pend})"
            if idx > wmax[0]:
                w = f"vmcnt({len(late) - 1 - idx}) " + w
                wmax[0] = idx
            a("s_waitcnt " + w)
            acc = vr(OACC[(t, o)], 4)
            first = False
            a(f"v_mfma_f32_16x16x32_bf16 {acc}, {vr(WREG[ws],4)}, {vr(BB+4*(n%NBB),4)}, {'0' if first else acc}")
            for x in fill.get(n, []):
                a(x)
                if x.startswith("ds_"): q.append(-1)
    GT = 64
    def gate_ops(t):
        A0 = OACC[(t, 0)]; g = GT + 4*t
        o = [f"v_mul_f32 v{g+r}, s{S_T+2}, v{A0+r}" for r in range(4)]
        o += [f"v_exp_f32 v{g+r}, v{g+r}" for r in range(4)]
        o += [f"v_cvt_pk_bf16_f32 v{A0}, v{A0}, v{A0+1}", f"v_cvt_pk_bf16_f32 v{A0+1}, v{A0+2}, v{A0+3}"]
        o += [f"ds_write_b64 v{OA}, {vr(A0,2)} offset:{16*OSTR*t}"]
        o += [f"v_add_f32 v{g+r}, 1.0, v{g+r}" for r in range(4)]
        o += [f"v_rcp_f32 v{g+r}, v{g+r}" for r in range(4)]
        if t == 2:
            o += ["s_nop 1"]
            o += [f"v_mov_b32_dpp v{g+r}, v{g+r} row_shr:8 row_mask:0xf bank_mask:0xc" for r in range(4)]
        return o
    def fin_ops(t):
        o = []
        for i in ([2, 0, 1] if t < 2 else [2, 0]):
            B0 = OACC[(t, 1 + i)]
            o += [f"v_pk_mul_f32 {vr(B0+r,2)}, {vr(B0+r,2)}, {vr(GT+4*t+r,2)}" for r in (0, 2)]
            o += [f"v_cvt_pk_bf16_f32 v{B0}, v{B0}, v{B0+1}", f"v_cvt_pk_bf16_f32 v{B0+1}, v{B0+2}, v{B0+3}"]
            if t == 2 and i == 0: o += [f"ds_write_b64 v{PKO}, {vr(B0,2)} offset:{32*OSTR + 256}"]
            else: o += [f"ds_write_b64 v{OA}, {vr(B0,2)} offset:{16*OSTR*t + 256*(i+1)}"]
        return o
    def spread(fill, ops, n0, n1):
        cnt = n1 - n0
        for j, op in enumerate(ops):
            fill.setdefault(n0 + j * cnt // len(ops), []).append(op)
    f1 = {}
    f1.setdefault(len(st1) - 4, []).append(f"ds_read_b32 v15, v14 offset:4")
    run(st1, f1)
    a("s_setprio 0")
    spin("b", 4, 8)
    f2 = {}
    spread(f2, gate_ops(1) + gate_ops(2), 11, 23)
    spread(f2, fin_ops(1), 23, 27)
    run(late_steps([1, 2]), f2)
    a("s_nop 5")
    for x in fin_ops(2): a(x)
    a("s_waitcnt lgkmcnt(0)")
    if not OPT.get("pst"): stamp(a, 14)
    a("s_barrier")
    stamp(a, 7)
    f3 = {}
    spread(f3, gate_ops(0), 7, 15)
    run(late_steps([0]), f3)
    a("s_nop 5")
    for x in fin_ops(0): a(x)
    a.label("M_st")
    row_off(S_G, 12, False)
    a(f"""
    s_add_u32 s{S_T+3}, s{S_G}, 8
    """)
    row_off(S_T+3, 13, False)
    a(f"""
    s_mul_i32 s{S_T}, s{S_G}, {OSTR}
    s_add_u32 s{S_T}, s{S_T}, {L_LIST}
    v_add_u32 v{WA}, s{S_T}, v{LN}
    s_waitcnt lgkmcnt(0)
    s_barrier
    """)
    stamp(a, 8)
    a(f"""
    ds_read_b128 v[72:75], v{WA}
    s_and_b32 s{S_T}, s{S_G}, 12
    s_cmp_lg_u32 s{S_T}, 4
    s_cbranch_scc1 M_st3
    ds_read_b128 v[76:79], v{WA} offset:{8*OSTR}
    s_waitcnt lgkmcnt(0)
    buffer_store_dwordx4 v[76:79], v13, {sr(S_OUT,4)}, 0 offen {fl('of')}
    """)
    a.label("M_st3")
    a(f"""
    s_waitcnt lgkmcnt(0)
    buffer_store_dwordx4 v[72:75], v12, {sr(S_OUT,4)}, 0 offen {fl('of')}
    """)
    stamp_dump(a)

def kd(a, name, vg, sg):
    acc = (vg + 3) // 4 * 4
    a.raw(f""".p2align 6
.amdhsa_kernel {name}
  .amdhsa_next_free_vgpr {vg}
  .amdhsa_next_free_sgpr {sg}
  .amdhsa_accum_offset {acc}
  .amdhsa_group_segment_fixed_size 0
  .amdhsa_kernarg_size 96
  .amdhsa_user_sgpr_count 2
  .amdhsa_user_sgpr_kernarg_segment_ptr 1
  .amdhsa_system_sgpr_workgroup_id_x 1
  .amdhsa_float_denorm_mode_32 3
.end_amdhsa_kernel""")

def main():
    global DBG
    OPT.update(dict(x.split("=") for x in sys.argv[2:]))
    DBG = bool(int(OPT.get("dbg", 0)))
    a = Asm()
    ref = open(f"cdna_kernels/{NAME}.s.ref").read().split("\n")
    for ln in ref:
        if ln.startswith(";") and "@launch" not in ln and "Override" not in ln and "grid=ceil" not in ln:
            a.raw(ln)
    a.raw(f"; @launch kernel={NAME}_kernel grid=({NB},1,1) block=({NT},1,1) lds={L_TOT}")
    a.raw('.amdgcn_target "amdgcn-amd-amdhsa--gfx950"')
    a.raw(".text")
    gen_main(a)
    a.raw('.section .rodata,"a"')
    kd(a, NAME + "_kernel", NVG, 102 if DBG else 70)
    open(sys.argv[1], "w").write(a.text())

main()
```

```python
import sys

NAME = "gather_scatter__tensor_product_equiv_equiformer__graph"
N = 10000
E = 320000
NB = 256
CH = 1250
WS_OFF = 0x500000
WS_WF = 0x600000
WS_WFLAG = 0x640000
WS_PF32 = 0x1000000
SPIN_MAX = 1 << 18
TAGM = 0xffc00000

NG = 12
NT = NG * 64
CAP = 224
PSTR = 2816
L_CC = 512
L_BASE = L_CC + NG * 64
L_ACNT = L_BASE + NG * 64
L_MORE = L_ACNT + 60
L_NONCE = L_ACNT + 64
L_FC3 = L_ACNT + 84
L_FC0 = L_ACNT + 88
L_FC = L_ACNT + 80
OSTR = 1040
L_P = L_ACNT + 256
L_LIST = L_P + 40 * PSTR
L_TOT = L_LIST + NG * CAP * 16
assert L_TOT <= 163840 and L_P % 256 == 0
OOBOFF = 0x00FFFC00

OPT = {}
DBG = False

class Asm:
    def __init__(self):
        self.l = []
    def __call__(self, s):
        for x in s.split("\n"):
            x = x.strip()
            if x:
                self.l.append("    " + x)
    def label(self, s):
        self.l.append(s + ":")
    def raw(self, s):
        self.l.append(s)
    def text(self):
        return "\n".join(self.l) + "\n"

def vr(a, n):
    return f"v[{a}:{a+n-1}]"
def sr(a, n=2):
    return f"s[{a}:{a+n-1}]"
def fl(k):
    return OPT.get(k, {'of': 'sc1'}.get(k, '')).replace('+', ' ')

V_C = 1; V_N16 = 2; V_VS = 4; V_VC = 5; V_PB = 6; V_JB = 7; V_DONE = 8
V_OFF = 9
V_T = 12
V_OH = 16; V_CA = 18; V_TCH = 19
V_SC = 20; V_IX = 24
V_A = [32, 36]
V_B = [40, 44]
V_ACC = 48
V_SV = 80
V_L = [104, 136]
NVG = 168
S_X = 4; S_OUT = 8; S_REC = 12; S_OFFS = 16; S_WF = 20
S_G = 22; S_S = 23; S_S1 = 24; S_B1 = 25; S_S2 = 26; S_PLO = 27; S_PHI = 28; S_NLAST = 29
S_RND = 30; S_MORE = 31; S_T = 32
S_M = 40
S_IN = 40
S_ACT = 52; S_PEND = 54; S_TM = 56; S_FEX = 58; S_RET = 60; S_HI = 62; S_FIRST = 63
S_NON = 64; S_DBG = 66; S_WSB = 68; S_SPIN = 0; S_WOK = 1; S_FLP = 63
S_ST = 70

def stamp(a, k, real=False):
    if OPT.get("prof") and k in (1, 13, 15, 3, 4, 5): return
    if DBG:
        a(f"s_mem{'realtime' if real else 'time'} {sr(S_ST+2*k)}")
def stamp_dump(a):
    if DBG:
        a("s_waitcnt lgkmcnt(0) vmcnt(0)")
        stamp(a, 9)
        stamp(a, 11, True)
        a("s_waitcnt lgkmcnt(0)")
        if OPT.get("hwid"):
            a(f"s_getreg_b32 s{S_ST+26}, hwreg(HW_REG_HW_ID)")
            a(f"s_mov_b32 s{S_ST+27}, 0")
        a(f"s_mul_i32 s{S_T}, s2, {NG}")
        a(f"s_add_u32 s{S_T}, s{S_T}, s{S_G}")
        a(f"s_lshl_b32 s{S_T}, s{S_T}, 7")
        a(f"s_add_u32 s{S_T}, s{S_T}, 0x800000")
        a(f"v_mov_b32 v1, s{S_T}")
        for k in range(0, 32, 2):
            a(f"v_mov_b32 v2, s{S_ST+k}")
            a(f"v_mov_b32 v3, s{S_ST+k+1}")
            a(f"global_store_dwordx2 v1, v[2:3], {sr(S_WSB)} offset:{4*k}")
            a("s_nop 1")

def comp011(i): return 2 + 3*i
def comp101(i): return 3 + 3*i
def comp111(i): return 4 + 3*i

def touch(a, beta, part, va, vd):
    a(f"""
    s_mul_i32 s{S_T+6}, s3, 79
    s_add_u32 s{S_T+6}, s{S_T+6}, {64*part}
    v_and_b32 v{va}, 63, v0
    v_add_u32 v{va}, s{S_T+6}, v{va}
    v_and_b32 v{vd}, 1, v{va}
    v_lshrrev_b32 v{va}, 1, v{va}
    v_lshlrev_b32 v{va}, 10, v{va}
    v_lshl_add_u32 v{va}, v{vd}, 7, v{va}
    """)
    if part: a("s_mov_b64 exec, 0x7fff")
    a(f"buffer_load_dword v{vd}, v{va}, {sr(S_X,4)}, 0 offen offset:{256*beta}")
    if part: a("s_mov_b64 exec, -1")

WREG = {}
for n_, ks_ in enumerate([0, 1, 2, 3, 8, 9, 10, 11]): WREG[ks_] = 136 + 4*n_
for n_, ks_ in enumerate([4, 5, 6, 7, 12, 13, 14, 15, 16, 17, 18, 19]): WREG[ks_] = 88 + 4*n_
def wload(a, va, kss):
    a(f"""
    s_sub_u32 s{S_T+6}, s{S_G}, 4
    s_mul_i32 s{S_T+6}, s{S_T+6}, {20*1024}
    v_and_b32 v{va}, 63, v0
    v_lshl_add_u32 v{va}, v{va}, 4, s{S_T+6}
    """)
    cur = 0
    for ks in kss:
        blk = ks // 4 * 4096
        if blk != cur:
            if blk > cur: a(f"v_add_u32 v{va}, {blk - cur}, v{va}")
            else: a(f"v_subrev_u32 v{va}, {cur - blk}, v{va}")
            cur = blk
        a(f"global_load_dwordx4 {vr(WREG[ks],4)}, v{va}, {sr(S_WF)} offset:{1024*(ks%4)} sc1")

def meta_reads(a):
    a(f"""
    s_lshl_b32 s{S_T}, s{S_S2}, 9
    v_add_u32 v{V_T}, s{S_T}, v{V_VS}
    v_add_u32 v{V_CA}, s{S_T}, v{V_VC}
    """)
    for i in range(0, 8, 2):
        a(f"ds_read2_b32 {vr(V_IX+i,2)}, v{V_T} offset0:{16*i+2} offset1:{16*(i+1)+2}")
    a(f"ds_read2_b32 {vr(V_OH,2)}, v{V_CA} offset0:3 offset1:67")

def stage_x(a, p, tag, wait=True):
    L = V_L[p]; A = V_A[p]
    for i in range(0, 8, 2):
        a(f"v_pk_add_f32 {vr(V_IX+i,2)}, {vr(V_IX+i,2)}, {vr(V_N16,2)}")
    a(f"""
    v_bfe_i32 v{V_OH}, v{V_OH}, v{V_C}, 1
    v_bfe_i32 v{V_OH+1}, v{V_OH+1}, v{V_C}, 1
    s_add_u32 s{S_S2}, s{S_S1}, 1
    v_and_b32 v{V_OH}, v{V_OH}, v{V_CA}
    v_and_b32 v{V_OH+1}, v{V_OH+1}, v{V_CA}
    s_cmp_eq_u32 s{S_S2}, s{S_S}
    ds_read_b64_tr_b16 {vr(A,2)}, v{V_OH}
    ds_read_b64_tr_b16 {vr(A+2,2)}, v{V_OH+1} offset:256
    s_cbranch_scc1 M_part{tag}
    """)
    def load(i):
        a(f"buffer_load_dwordx4 {vr(L+4*i,4)}, v{V_IX+i}, {sr(S_X,4)}, s{S_B1} offen")
    a.label(f"M_full{tag}")
    for i in range(8):
        load(i)
    meta_reads(a)
    if wait: a("s_waitcnt vmcnt(8)")
    a(f"s_branch M_go{tag}")
    a.label(f"M_part{tag}")
    a(f"""
    s_mov_b32 s{S_S2}, 0
    s_cmp_eq_u32 s{S_NLAST}, 8
    s_cbranch_scc1 M_full{tag}
    """)
    for i in range(7):
        a(f"s_cmp_eq_u32 s{S_NLAST}, {i}")
        a(f"s_cbranch_scc1 M_w{tag}_{i}")
        load(i)
    for i in range(7, -1, -1):
        a.label(f"M_w{tag}_{i}")
        if wait:
            a(f"s_waitcnt vmcnt({i})")
            if i > 0: a(f"s_branch M_pm{tag}")
    a.label(f"M_pm{tag}")
    meta_reads(a)

def advance(a):
    a(f"""
    s_mov_b32 s{S_S1}, s{S_S2}
    s_cmp_eq_u32 s{S_S2}, 0
    s_cselect_b32 s{S_T}, 256, 0
    s_add_u32 s{S_B1}, s{S_B1}, s{S_T}
    """)

def compute(a, p, first):
    L = V_L[p]; A = V_A[p]
    def perms(j):
        B = V_B[j % 2]
        sel = S_PHI if j % 2 else S_PLO
        for q in range(4):
            a(f"v_perm_b32 v{B+q}, v{L+4*(2*q+1)+j//2}, v{L+4*(2*q)+j//2}, s{sel}")
    perms(0)
    for j in range(8):
        if j + 1 < 8:
            perms(j + 1)
        else:
            a("s_nop 1")
        acc = vr(V_ACC+4*j,4)
        a(f"v_mfma_f32_16x16x32_bf16 {acc}, {vr(A,4)}, {vr(V_B[j%2],4)}, {'0' if first else acc}")

wc_n = [0]
def write_comp(a, comp, regs):
    n = wc_n[0]; wc_n[0] += 1
    TM = V_B[0]
    a(f"""
    s_or_b32 s{S_T}, s{S_RND}, s{S_MORE}
    s_cmp_eq_u32 s{S_T}, 0
    s_cbranch_scc1 M_wc{n}
    s_mul_i32 s{S_T}, s3, {NG}
    s_add_u32 s{S_T}, s{S_T}, s{S_G}
    s_mul_i32 s{S_T}, s{S_T}, {11*2048}
    s_add_u32 s{S_T}, s{S_T}, {WS_PF32 + comp*2048}
    v_and_b32 v{V_T}, 63, v0
    v_lshl_add_u32 v{V_T}, v{V_T}, 2, s{S_T}
    s_waitcnt lgkmcnt(0)
    s_cmp_eq_u32 s{S_RND}, 0
    s_cbranch_scc1 M_wd{n}
    """)
    for j in range(8):
        a(f"global_load_dword v{TM+j}, v{V_T}, {sr(S_WSB)} offset:{256*j} sc1")
    a("s_waitcnt vmcnt(0)")
    for j in range(8):
        a(f"v_add_f32 v{regs[j]}, v{regs[j]}, v{TM+j}")
    a.label(f"M_wd{n}")
    for j in range(8):
        a(f"global_store_dword v{V_T}, v{regs[j]}, {sr(S_WSB)} offset:{256*j} sc1")
    a("s_waitcnt vmcnt(0)")
    a.label(f"M_wc{n}")
    sc = [V_B[0], V_B[1]][n % 2]
    for d in range(4):
        a(f"v_cvt_pk_bf16_f32 v{sc+d}, v{regs[2*d]}, v{regs[2*d+1]}")
    if comp in (5, 6, 7):
        a(f"""
        s_cmp_ge_u32 s{S_G}, 4
        s_cselect_b32 s{S_TM+1}, 0xffff, 0
        s_mov_b32 s{S_TM}, 0
        v_xor_b32 v{V_T+1}, 128, v{V_PB}
        v_cndmask_b32 v{V_T+1}, v{V_PB}, v{V_T+1}, {sr(S_TM)}
        ds_write_b128 v{V_T+1}, {vr(sc,4)} offset:{comp*256}
        """)
    else:
        a(f"ds_write_b128 v{V_PB}, {vr(sc,4)} offset:{comp*256}")

def setprio(a, ph):
    pl = OPT.get("pl", "3210"); phv = OPT.get("ph", "3210")
    if pl[ph] == phv[ph]:
        a(f"s_setprio {pl[ph]}")
    else:
        a(f"""
        s_setprio {pl[ph]}
        s_cmp_ge_u32 s{S_G}, 4
        s_cbranch_scc1 M_pr{ph}
        s_setprio {phv[ph]}
        """)
        a.label(f"M_pr{ph}")

def tick(a, slot):
    if OPT.get("prof"):
        a(f"""
        s_memtime {sr(S_M)}
        s_waitcnt lgkmcnt(0)
        s_sub_u32 s{S_M+3}, s{S_M}, s{S_M+2}
        s_mov_b32 s{S_M+2}, s{S_M}
        """)
        if slot is not None: a(f"s_add_u32 s{S_ST+2*slot}, s{S_ST+2*slot}, s{S_M+3}")

def flush_sub(a):
    acc = lambda r: [V_ACC + 4*j + r for j in range(8)]
    sv = lambda k: [V_SV + 8*k + j for j in range(8)]
    a.label("M_flush")
    a(f"""
    s_mov_b64 exec, {sr(S_FEX)}
    s_cmp_eq_u32 s{S_B1}, 512
    s_cbranch_scc1 M_fl1
    s_cmp_eq_u32 s{S_B1}, 768
    s_cbranch_scc1 M_fl2
    s_cmp_eq_u32 s{S_B1}, 1024
    s_cbranch_scc1 M_fl3
    s_nop 1
    """)
    def ret(ph, k):
        if not (OPT.get("pst") and k == 3): stamp(a, k)
        if ph is not None: setprio(a, ph)
        a(f"s_mov_b64 exec, -1")
        a(f"s_setpc_b64 {sr(S_RET)}")
    write_comp(a, 0, acc(0))
    for i in range(3): write_comp(a, comp011(i), acc(1+i))
    a(f"""
    s_mov_b64 exec, 1
    v_mov_b32 v{V_T+2}, {L_FC0}
    v_mov_b32 v{V_T+3}, 1
    ds_add_u32 v{V_T+2}, v{V_T+3}
    """)
    a("s_mov_b64 exec, -1")
    for n, b in enumerate(OPT.get("t3", "x").replace("x", "")):
        for k in range(2):
            a(f"s_cmp_lg_u32 s{S_G}, {4+2*n+k}")
            a(f"s_cbranch_scc1 M_t3_{n}_{k}")
            touch(a, int(b), k, V_T+2, V_TCH)
            a.label(f"M_t3_{n}_{k}")
    ret(1, 3)
    a.label("M_fl1")
    a("s_nop 4")
    write_comp(a, comp101(0), acc(0))
    for k in range(3):
        for j in range(8): a(f"v_mov_b32 v{sv(k)[j]}, v{acc(1+k)[j]}")
    ret(2, 4)
    a.label("M_fl2")
    a("s_nop 2")
    write_comp(a, comp101(1), acc(0))
    for j in range(8): a(f"v_sub_f32 v{acc(1)[j]}, v{acc(1)[j]}, v{sv(1)[j]}")
    write_comp(a, comp111(2), acc(1))
    for j in range(8): a(f"v_add_f32 v{sv(0)[j]}, v{sv(0)[j]}, v{acc(2)[j]}")
    for j in range(8): a(f"v_mov_b32 v{sv(1)[j]}, v{acc(3)[j]}")
    a(f"""
    s_mov_b64 exec, 1
    v_mov_b32 v{V_T+2}, {L_FC}
    v_mov_b32 v{V_T+3}, 1
    ds_add_u32 v{V_T+2}, v{V_T+3}
    """)
    ret(3, 5)
    a.label("M_fl3")
    write_comp(a, comp101(2), acc(0))
    for j in range(8): a(f"v_sub_f32 v{sv(2)[j]}, v{sv(2)[j]}, v{acc(1)[j]}")
    write_comp(a, comp111(1), sv(2))
    for j in range(8): a(f"v_sub_f32 v{acc(2)[j]}, v{acc(2)[j]}, v{sv(1)[j]}")
    write_comp(a, comp111(0), acc(2))
    for j in range(8): a(f"v_add_f32 v{sv(0)[j]}, v{sv(0)[j]}, v{acc(3)[j]}")
    write_comp(a, 1, sv(0))
    a(f"""
    s_cmp_lt_u32 s{S_G}, 4
    s_cbranch_scc1 M_fl3b
    s_mov_b64 exec, 1
    v_mov_b32 v{V_T+2}, {L_FC3}
    v_mov_b32 v{V_T+3}, 1
    ds_add_u32 v{V_T+2}, v{V_T+3}
    """)
    a.label("M_fl3b")
    ret(None, 6)

A_H = L_P; A_BS = L_P + 4096; A_STG = L_P + 8192; A_OFS = L_P + 32768

def cpf(a):
    K = NAME + "_kernel"
    a(f"""
    s_lshr_b32 s{S_T+4}, s3, 3
    s_cmp_lg_u32 s{S_T+4}, {OPT.get('cpw', 0)}
    s_cbranch_scc1 A_nocpf
    s_getpc_b64 {sr(S_T+2)}
    """)
    a.label("A_pc")
    a(f"""
    s_sub_u32 s{S_T+2}, s{S_T+2}, A_pc-{K}
    s_subb_u32 s{S_T+3}, s{S_T+3}, 0
    v_lshlrev_b32 v50, 3, v1
    s_mov_b32 s{S_T+4}, M_done-{K}
    v_add_u32 v51, 8192, v50
    v_min_u32 v51, s{S_T+4}, v51
    v_add_u32 v54, 16384, v50
    v_min_u32 v54, s{S_T+4}, v54
    global_load_dword v52, v50, {sr(S_T+2)}
    global_load_dword v53, v51, {sr(S_T+2)}
    global_load_dword v55, v54, {sr(S_T+2)}
    """)
    a.label("A_nocpf")

def phase_a(a):
    RH = S_IN; EA = S_IN + 2; SRC = S_IN + 4; DST = S_IN + 6; WR = S_IN + 8; W0 = S_IN + 10; W1 = S_IN + 12
    WSB = sr(S_WSB)
    def read_nonce(wait=True):
        a(f"""
        v_mov_b32 v2, {L_NONCE}
        ds_read_b64 v[2:3], v2
        s_waitcnt lgkmcnt(0)
        v_readfirstlane_b32 s{S_NON}, v2
        v_readfirstlane_b32 s{S_NON+1}, v3
        """)
    a(f"""
    s_cmp_eq_u32 s{S_G}, 10
    s_cbranch_scc1 A_scan
    s_cmp_eq_u32 s{S_G}, 11
    s_cbranch_scc1 A_aux
    s_movk_i32 s{S_T+1}, 625
    s_mul_i32 s{S_T}, s3, {CH}
    v_cmp_gt_u32 vcc, s{S_T+1}, v0
    v_lshl_add_u32 v1, v0, 1, s{S_T}
    v_lshlrev_b32 v2, 2, v1
    v_mul_u32_u24 v3, 6, v1
    v_lshlrev_b32 v20, 1, v1
    s_mov_b64 exec, vcc
    global_load_dwordx2 v[4:5], v2, {sr(DST)} nt
    global_load_dwordx2 v[8:9], v2, {sr(SRC)} nt
    global_load_dwordx3 v[12:14], v3, {sr(RH)} nt
    global_load_dword v18, v20, {sr(EA)} nt
    v_mov_b32 v23, 1
    s_mul_i32 s{S_T}, s3, {CH * 16}
    v_lshlrev_b32 v20, 4, v0
    v_add_u32 v21, s{S_T}, v20
    s_barrier
    s_waitcnt vmcnt(3)
    """)
    for i in range(2):
        a(f"""
        v_and_b32 v{24+i}, 7, v{4+i}
        v_bfe_u32 v1, v{4+i}, 3, 5
        v_lshlrev_b32 v{24+i}, 7, v{24+i}
        v_lshl_or_b32 v{24+i}, v1, 2, v{24+i}
        ds_add_rtn_u32 v{28+i}, v{24+i}, v23 offset:{A_H}
        """)
    a("""
    s_waitcnt lgkmcnt(0)
    s_barrier
    """)
    for i in range(2):
        a(f"""
        v_lshrrev_b32 v{4+i}, 8, v{4+i}
        v_mul_u32_u24 v1, 43, v{4+i}
        v_lshrrev_b32 v1, 9, v1
        v_mul_u32_u24 v2, 12, v1
        v_sub_u32 v{4+i}, v{4+i}, v2
        v_lshlrev_b32 v1, 14, v1
        v_lshl_or_b32 v{32+4*i+2}, v{4+i}, 16, v1
        """)
    a(f"s_waitcnt vmcnt(0)")
    def half(dst, base, idx):
        r = base + idx // 2
        if idx % 2 == 0:
            a(f"v_lshlrev_b32 v{dst}, 16, v{r}")
        else:
            a(f"v_and_b32 v{dst}, s{S_HI}, v{r}")
    for i in range(2):
        half(4, 18, i)
        half(5, 12, 3*i+0)
        half(6, 12, 3*i+1)
        half(7, 12, 3*i+2)
        a(f"""
        v_mul_f32 v5, v4, v5
        v_mul_f32 v6, v4, v6
        v_mul_f32 v7, v4, v7
        v_cvt_pk_bf16_f32 v{32+4*i}, v4, v5
        v_cvt_pk_bf16_f32 v{32+4*i+1}, v6, v7
        """)
    a(f"""
    v_mov_b32 v2, {L_NONCE}
    s_barrier
    ds_read_b32 v4, v24 offset:{A_BS}
    ds_read_b32 v5, v25 offset:{A_BS}
    ds_read_b64 v[2:3], v2
    s_waitcnt lgkmcnt(0)
    """)
    for i in range(2):
        a(f"""
        v_add_lshl_u32 v{4+i}, v{4+i}, v{28+i}, 4
        v_or3_b32 v{32+4*i+2}, v{32+4*i+2}, v{8+i}, v3
        v_mov_b32 v{32+4*i+3}, v2
        ds_write_b128 v{4+i}, {vr(32+4*i,4)} offset:{A_STG}
        """)
    a(f"""
    v_readfirstlane_b32 s{S_NON}, v2
    v_readfirstlane_b32 s{S_NON+1}, v3
    s_waitcnt lgkmcnt(0)
    s_barrier
    ds_read_b128 v[32:35], v20 offset:{A_STG}
    ds_read_b128 v[36:39], v20 offset:{A_STG+10000}
    v_add_u32 v22, 10000, v21
    s_waitcnt lgkmcnt(1)
    global_store_dwordx4 v21, v[32:35], {WSB} {OPT.get("rs", "sc1").replace("+", " ")}
    s_waitcnt lgkmcnt(0)
    {"" if OPT.get("halfst") else "global_store_dwordx4 v22, v[36:39], " + WSB + " " + OPT.get("rs", "sc1").replace("+", " ")}
    """)
    PW = int(OPT.get("pw", 0))
    if PW:
        a(f"""
        s_lshr_b32 s{S_T}, s3, 3
        s_mul_i32 s{S_T}, s{S_T}, 625
        v_add_u32 v40, s{S_T}, v0
        """)
        if PW == 1:
            a("""
            v_and_b32 v41, 3, v40
            v_lshrrev_b32 v40, 2, v40
            v_lshlrev_b32 v40, 11, v40
            """)
        else:
            a("""
            v_and_b32 v41, 1, v40
            v_lshrrev_b32 v40, 1, v40
            v_lshlrev_b32 v40, 10, v40
            """)
        a(f"""
        v_lshl_add_u32 v40, v41, 7, v40
        buffer_load_dword v41, v40, {sr(S_X,4)}, 0 offen
        """)
    a(f"""
    s_mov_b64 exec, -1
    s_branch A_end
    """)
    a.label("A_scan")
    a(f"""
    v_and_b32 v1, 63, v0
    v_lshlrev_b32 v1, 4, v1
    s_lshl_b32 s{S_T}, s3, 11
    s_add_u32 s{S_T}, s{S_T}, {WS_OFF}
    v_lshl_add_u32 v20, v1, 1, s{S_T}
    """)
    a(f"""
    s_barrier
    """)
    if int(OPT.get("cpf", 2)) == 2: cpf(a)
    for n, b in enumerate(OPT.get("t0", "x").replace("x", "")):
        touch(a, int(b), 0, 60+4*n, 61+4*n)
        touch(a, int(b), 1, 62+4*n, 63+4*n)
    a(f"""
    s_barrier
    ds_read_b128 v[4:7], v1 offset:{A_H}
    """)
    if int(OPT.get("cpf", 2)) == 1: cpf(a)
    a(f"""
    s_waitcnt lgkmcnt(0)
    v_add_u32 v9, v4, v5
    v_add_u32 v10, v9, v6
    v_add_u32 v11, v10, v7
    v_mov_b32 v12, v11
    s_nop 1
    v_add_u32_dpp v12, v12, v12 row_shr:1 row_mask:0xf bank_mask:0xf bound_ctrl:0
    s_nop 1
    v_add_u32_dpp v12, v12, v12 row_shr:2 row_mask:0xf bank_mask:0xf bound_ctrl:0
    s_nop 1
    v_add_u32_dpp v12, v12, v12 row_shr:4 row_mask:0xf bank_mask:0xf bound_ctrl:0
    s_nop 1
    v_add_u32_dpp v12, v12, v12 row_shr:8 row_mask:0xf bank_mask:0xf bound_ctrl:0
    s_nop 1
    v_add_u32_dpp v12, v12, v12 row_bcast:15 row_mask:0xa bank_mask:0xf
    s_nop 1
    v_add_u32_dpp v12, v12, v12 row_bcast:31 row_mask:0xc bank_mask:0xf
    v_sub_u32 v12, v12, v11
    v_add_u32 v13, v12, v4
    v_add_u32 v14, v12, v9
    v_add_u32 v15, v12, v10
    ds_write_b128 v1, v[12:15] offset:{A_BS}
    """)
    for i in range(4):
        a(f"v_lshl_or_b32 v{24+2*i}, v{4+i}, 11, v{12+i}")
    a(f"""
    v_mov_b32 v2, {L_NONCE}
    s_waitcnt lgkmcnt(0)
    s_barrier
    ds_read_b64 v[2:3], v2
    s_waitcnt lgkmcnt(0)
    """)
    for i in range(4):
        a(f"""
        v_or_b32 v{24+2*i}, v3, v{24+2*i}
        v_mov_b32 v{25+2*i}, v2
        """)
    a(f"""
    global_store_dwordx4 v20, v[24:27], {WSB} sc1
    global_store_dwordx4 v20, v[28:31], {WSB} offset:16 sc1
    v_readfirstlane_b32 s{S_NON}, v2
    v_readfirstlane_b32 s{S_NON+1}, v3
    v_lshlrev_b32 v40, 7, v1
    s_lshl_b32 s{S_T}, s2, 3
    v_add_u32 v40, s{S_T}, v40
    v_add_u32 v41, {64*2048}, v40
    v_add_u32 v42, {128*2048}, v40
    v_add_u32 v43, {192*2048}, v40
    s_mov_b32 s{S_T+7}, {TAGM}
    s_barrier
    s_waitcnt vmcnt(0)
    """)
    a.label("A_poll")
    for r in range(4):
        a(f"buffer_load_dwordx2 {vr(32+2*r,2)}, v{40+r}, {sr(S_OFFS,4)}, 0 offen sc1")
    a(f"""
    s_mov_b64 {sr(S_TM)}, -1
    s_waitcnt vmcnt(0)
    """)
    for r in range(4):
        a(f"""
        v_and_b32 v4, s{S_T+7}, v{32+2*r}
        v_cmp_eq_u32 {sr(S_PEND)}, s{S_NON+1}, v4
        v_cmp_eq_u32 vcc, s{S_NON}, v{33+2*r}
        s_and_b64 {sr(S_TM)}, {sr(S_TM)}, {sr(S_PEND)}
        s_and_b64 {sr(S_TM)}, {sr(S_TM)}, vcc
        """)
    a(f"""
    s_cmp_eq_u64 {sr(S_TM)}, -1
    s_cbranch_scc1 A_polled
    s_sleep {OPT.get('slp', 2)}
    s_sub_u32 s{S_SPIN}, s{S_SPIN}, 1
    s_cmp_gt_i32 s{S_SPIN}, 0
    s_cbranch_scc1 A_poll
    """)
    a.label("A_polled")
    a(f"""
    v_lshrrev_b32 v1, 2, v1
    v_mov_b32 v5, 0
    """)
    for r in range(4):
        a(f"""
        v_and_b32 v{32+2*r}, 0x3fffff, v{32+2*r}
        ds_write_b32 v1, v{32+2*r} offset:{A_OFS+256*r}
        """)
    a(f"""
    ds_write_b32 v1, v5 offset:{A_OFS+1024}
    s_branch A_end
    """)
    a.label("A_aux")
    a(f"""
    v_and_b32 v1, 63, v0
    s_cmp_ge_u32 s3, 160
    s_cbranch_scc1 A_wp1
    s_lshr_b32 s{S_T+3}, s3, 3
    s_and_b32 s{S_T+4}, s3, 3
    s_and_b32 s{S_T+5}, s3, 4
    s_lshl_b32 s{S_T+5}, s{S_T+5}, 1
    s_or_b32 s{S_T+4}, s{S_T+4}, s{S_T+5}
    s_cmp_lt_u32 s3, 64
    s_cbranch_scc1 A_wa
    s_sub_u32 s{S_T+5}, s3, 64
    s_and_b32 s{S_T+3}, s{S_T+5}, 7
    s_lshr_b32 s{S_T+4}, s{S_T+5}, 3
    s_cmp_lt_u32 s{S_T+4}, 4
    s_cselect_b32 s{S_T+5}, 4, 8
    s_add_u32 s{S_T+4}, s{S_T+4}, s{S_T+5}
    """)
    a.label("A_wa")
    a(f"""
    s_mul_i32 s{S_T+2}, s{S_T+3}, 20
    s_add_u32 s{S_T+2}, s{S_T+2}, s{S_T+4}
    v_and_b32 v2, 15, v1
    v_lshrrev_b32 v3, 4, v1
    s_lshl_b32 s{S_T+5}, s{S_T+4}, 5
    v_lshl_add_u32 v4, v3, 3, s{S_T+5}
    v_lshlrev_b32 v5, 1, v4
    s_lshl_b32 s{S_T+5}, s{S_T+3}, 4
    v_add_u32 v2, s{S_T+5}, v2
    v_lshlrev_b32 v2, 1, v2
    v_lshl_add_u32 v6, v4, 8, v2
    s_sub_u32 s{S_T+6}, s{W1}, {256*256}
    s_subb_u32 s{S_T+7}, s{W1+1}, 0
    s_cmp_lt_u32 s{S_T+4}, 8
    s_cselect_b32 s{S_T+6}, s{W0}, s{S_T+6}
    s_cselect_b32 s{S_T+7}, s{W0+1}, s{S_T+7}
    global_load_dwordx4 v[8:11], v5, {sr(WR)}
    """)
    for i in range(8):
        a(f"global_load_ushort v{12+i}, v6, {sr(S_T+6)} offset:{256*i}")
    a.label("A_wp1")
    a(f"""
    v_mov_b32 v2, 0
    s_barrier
    s_sleep {OPT.get('ns', 16)}
    global_load_dwordx2 v[4:5], v2, {sr(S_DBG)} sc1
    s_barrier
    """)
    T1 = OPT.get("t1", "0").replace("x", "")
    a(f"""
    s_cmp_ge_u32 s3, 160
    s_cbranch_scc1 A_nw
    s_lshl_b32 s{S_T+3}, s{S_T+2}, 10
    s_add_u32 s{S_T+3}, s{S_T+3}, {WS_WF}
    v_lshl_add_u32 v7, v1, 4, s{S_T+3}
    s_waitcnt vmcnt(1)
    """)
    for i in range(8):
        if i % 2 == 0:
            a(f"v_lshlrev_b32 v20, 16, v{8+i//2}")
        else:
            a(f"v_and_b32 v20, s{S_HI}, v{8+i//2}")
        a(f"v_lshlrev_b32 v{12+i}, 16, v{12+i}")
        a(f"v_mul_f32 v{12+i}, v20, v{12+i}")
    for i in range(4):
        a(f"v_cvt_pk_bf16_f32 v{24+i}, v{12+2*i}, v{13+2*i}")
    a(f"""
    global_store_dwordx4 v7, v[24:27], {WSB} sc1
    s_waitcnt vmcnt(1)
    s_branch A_nw1
    """)
    a.label("A_nw")
    a("s_waitcnt vmcnt(0)")
    a.label("A_nw1")
    for n, b in enumerate(T1):
        touch(a, int(b), 0, 32+4*n, 33+4*n)
        touch(a, int(b), 1, 34+4*n, 35+4*n)
    a("s_branch A_pn1")
    a.label("A_pn")
    a("s_waitcnt vmcnt(0)")
    a.label("A_pn1")
    a(f"""
    v_readfirstlane_b32 s{S_NON}, v4
    v_readfirstlane_b32 s{S_NON+1}, v5
    s_cmp_lg_u32 s{S_NON}, 0
    s_cbranch_scc1 A_pd
    global_load_dwordx2 v[4:5], v2, {sr(S_DBG)} sc1
    s_sub_u32 s{S_SPIN}, s{S_SPIN}, 1
    s_cmp_gt_i32 s{S_SPIN}, 0
    s_cbranch_scc1 A_pn
    s_waitcnt vmcnt(0)
    """)
    a.label("A_pd")
    a(f"""
    v_mov_b32 v2, {L_NONCE}
    ds_write_b64 v2, v[4:5]
    s_waitcnt lgkmcnt(0)
    s_barrier
    s_barrier
    s_cmp_ge_u32 s3, 160
    s_cbranch_scc1 A_end
    s_lshl_b32 s{S_T+3}, s{S_T+2}, 10
    s_add_u32 s{S_T+3}, s{S_T+3}, {WS_WFLAG}
    v_lshl_add_u32 v7, v1, 4, s{S_T+3}
    v_mov_b32 v5, v4
    v_mov_b32 v6, v4
    v_mov_b32 v11, v7
    v_mov_b32 v7, v4
    s_waitcnt vmcnt({2*len(T1)})
    global_store_dwordx4 v11, v[4:7], {WSB} sc1
    s_nop 1
    """)
    a.label("A_end")

def gen_main(a):
    K = NAME + "_kernel"
    a.raw(".p2align 8")
    a.raw(f".globl {K}")
    a.raw(f".type {K},@function")
    a.label(K)
    a(f"""
    s_cmp_ge_u32 s2, {NB}
    s_cbranch_scc1 M_done
    """)
    if OPT.get("empty"): a("s_endpgm")
    if DBG:
        for k in range(S_ST, S_ST+32): a(f"s_mov_b32 s{k}, 0")
    stamp(a, 0)
    stamp(a, 10, True)
    T = V_T
    a(f"""
    s_load_dwordx8 s[{S_IN}:{S_IN+7}], s[0:1], 8
    s_load_dwordx4 s[{S_IN+8}:{S_IN+11}], s[0:1], 40
    s_load_dwordx2 {sr(S_IN+12)}, s[0:1], 56
    s_load_dwordx2 {sr(S_X)}, s[0:1], 0
    s_load_dwordx2 {sr(S_OUT)}, s[0:1], 72
    s_load_dwordx2 {sr(S_DBG)}, s[0:1], 80
    s_load_dwordx2 {sr(S_WSB)}, s[0:1], 88
    s_memrealtime {sr(S_NON)}
    s_mov_b32 s3, s2
    s_and_b32 s{S_T}, s2, 7
    s_lshr_b32 s2, s2, 3
    s_lshl_b32 s{S_T}, s{S_T}, 5
    s_or_b32 s2, s2, s{S_T}
    v_lshrrev_b32 v1, 6, v0
    v_mov_b32 v3, 0
    v_readfirstlane_b32 s{S_G}, v1
    v_lshlrev_b32 v2, 2, v0
    ds_write_b32 v2, v3
    ds_write_b32 v2, v3 offset:{A_H}
    s_mov_b32 s{S_X+2}, {N*1024}
    s_mov_b32 s{S_X+3}, 0x20000
    s_mov_b32 s{S_OUT+2}, {N*1024}
    s_mov_b32 s{S_OUT+3}, 0x20000
    s_mov_b32 s{S_REC+2}, {E*16}
    s_mov_b32 s{S_REC+3}, 0x20000
    s_mov_b32 s{S_OFFS+2}, {NB*2048}
    s_mov_b32 s{S_OFFS+3}, 0x20000
    s_mov_b32 s{S_HI}, 0xffff0000
    s_waitcnt lgkmcnt(0)
    s_cmp_lg_u32 s3, 0
    s_cbranch_scc1 M_nonon
    s_cmp_lg_u32 s{S_G}, 0
    s_cbranch_scc1 M_nonon
    s_lshl_b32 s{S_NON+1}, s{S_NON+1}, 22
    s_or_b32 s{S_NON}, s{S_NON}, 1
    v_mov_b32 v4, s{S_NON}
    v_mov_b32 v5, s{S_NON+1}
    s_mov_b64 exec, 1
    global_store_dwordx2 v3, v[4:5], {sr(S_DBG)} sc1
    s_mov_b64 exec, -1
    """)
    a.label("M_nonon")
    assert L_P // 4 <= NT
    a(f"""
    s_mov_b32 s{S_SPIN}, {SPIN_MAX}
    s_mov_b32 s{S_REC}, s{S_WSB}
    s_and_b32 s{S_REC+1}, s{S_WSB+1}, 0xffff
    s_add_u32 s{S_OFFS}, s{S_WSB}, {WS_OFF}
    s_addc_u32 s{S_OFFS+1}, s{S_WSB+1}, 0
    s_add_u32 s{S_WF}, s{S_WSB}, {WS_WF}
    s_addc_u32 s{S_WF+1}, s{S_WSB+1}, 0
    s_and_b32 s{S_OFFS+1}, s{S_OFFS+1}, 0xffff
    s_and_b32 s{S_X+1}, s{S_X+1}, 0xffff
    s_and_b32 s{S_OUT+1}, s{S_OUT+1}, 0xffff
    """)
    phase_a(a)
    if int(OPT.get("rm", 1)):
        a(f"""
        s_add_u32 s{S_G}, s{S_G}, 4
        s_cmp_ge_u32 s{S_G}, 12
        s_cselect_b32 s{S_T}, 12, 0
        s_sub_u32 s{S_G}, s{S_G}, s{S_T}
        """)
    a(f"""
    v_mov_b32 v{V_JB}, 0
    v_mov_b32 v{V_DONE}, 0
    s_mov_b32 s{S_PLO}, 0x05040100
    s_mov_b32 s{S_PHI}, 0x07060302
    s_mov_b32 s{S_RND}, 0
    v_and_b32 v{T}, 63, v0
    v_and_b32 v{T+1}, 15, v{T}
    v_lshrrev_b32 v{T+2}, 4, v{T}
    v_lshlrev_b32 v{V_N16}, 4, v{T+1}
    v_lshlrev_b32 v{V_N16+1}, 4, v{T+1}
    v_and_b32 v{V_C}, 3, v{T}
    v_bfe_u32 v{T+3}, v{T}, 2, 2
    s_mul_i32 s{S_T}, s{S_G}, {CAP*16}
    s_add_u32 s{S_T}, s{S_T}, {L_LIST}
    v_lshl_add_u32 v{V_VS}, v{T+2}, 4, s{S_T}
    v_lshl_add_u32 v{V_VC}, v{T+3}, 6, v{V_VS}
    s_cmp_lt_u32 s{S_G}, 4
    s_cselect_b32 s{S_T}, 2, 3
    s_cselect_b32 s{S_T+1}, 0, 12
    s_add_u32 s{S_T+1}, s{S_T+1}, s{S_G}
    v_lshlrev_b32 v{T+2}, s{S_T}, v{T+2}
    v_add_u32 v{T+2}, s{S_T+1}, v{T+2}
    v_cmp_gt_u32 {sr(S_FEX)}, 40, v{T+2}
    v_mul_u32_u24 v{V_PB}, {PSTR}, v{T+2}
    v_and_b32 v{T+2}, 15, v{T+2}
    v_xor_b32 v{T+2}, v{T+2}, v{T+1}
    v_lshl_add_u32 v{V_PB}, v{T+2}, 4, v{V_PB}
    v_add_u32 v{V_PB}, {L_P}, v{V_PB}
    s_mov_b32 s{S_T+7}, {TAGM}
    """)
    L = V_L[0]; L2 = V_L[1]
    if OPT.get("pst"): stamp(a, 12)
    a(f"""
    v_lshrrev_b32 v{T}, 3, v0
    v_lshlrev_b32 v{T}, 2, v{T}
    s_max_u32 s{S_T}, s{S_G}, 4
    s_sub_u32 s{S_T}, s{S_T}, 4
    s_mul_i32 s{S_T}, s{S_T}, {20*1024}
    s_lshl_b32 s{S_T+1}, s2, 2
    s_add_u32 s{S_T}, s{S_T}, s{S_T+1}
    s_add_u32 s{S_T}, s{S_T}, {WS_WFLAG}
    v_and_b32 v{V_ACC+44}, 63, v0
    v_min_u32 v{V_ACC+44}, 19, v{V_ACC+44}
    v_lshl_add_u32 v{V_ACC+44}, v{V_ACC+44}, 10, s{S_T}
    s_waitcnt {"vmcnt(0) " if OPT.get("ack") else ""}lgkmcnt(0)
    """)
    if OPT.get("pst"): stamp(a, 3)
    a("s_barrier")
    for r in range(3):
        a(f"ds_read_b32 v{V_OFF+r}, v{T} offset:{A_OFS+384*r}")
    a(f"""
    s_mov_b64 {sr(S_ACT)}, -1
    s_mov_b32 s{S_FIRST}, 0
    s_waitcnt lgkmcnt(0)
    s_branch M_w0
    """)
    a.label("M_init")
    a(f"""
    v_mov_b32 v{T+1}, 0
    v_lshlrev_b32 v{T}, 2, v0
    s_movk_i32 s{S_T}, {L_P//4}
    v_cmp_gt_u32 vcc, s{S_T}, v0
    s_and_saveexec_b64 {sr(S_TM)}, vcc
    ds_write_b32 v{T}, v{T+1}
    s_mov_b64 exec, {sr(S_TM)}
    s_mov_b64 {sr(S_ACT)}, -1
    s_waitcnt lgkmcnt(0)
    s_barrier
    s_mov_b32 s{S_FIRST}, 1
    """)
    a.label("M_w0")
    stamp(a, 1)
    a.label("M_window")
    L2 = V_ACC + 16
    REM = L2; ADR = L2 + 3; CTR = L2 + 6; RNK = L2 + 12; BAS = L2 + 18; ONE = L2 + 24
    WFV = L2 + 26; WFA = L2 + 28; TCA = L2 + 29
    a(f"""
    v_and_b32 v{T}, 7, v0
    v_add_u32 v{T}, v{T}, v{V_JB}
    v_lshrrev_b32 v{T+1}, 3, v0
    v_mul_u32_u24 v{T+1}, {CH}, v{T+1}
    v_add_u32 v{T+1}, v{T+1}, v{T}
    v_mov_b32 v{ONE}, 1
    """)
    for r in range(3):
        a(f"""
        v_lshrrev_b32 v{REM+r}, 11, v{V_OFF+r}
        v_sub_u32 v{REM+r}, v{REM+r}, v{T}
        v_and_b32 v{ADR+r}, 0x7ff, v{V_OFF+r}
        v_add_lshl_u32 v{ADR+r}, v{ADR+r}, v{T+1}, 4
        """)
        if r: a(f"v_add_u32 v{ADR+r}, {96*CH*16*r}, v{ADR+r}")
    for k in range(6):
        r = k % 3; h = k // 3
        a(f"v_cmp_lt_i32 {sr(S_M+2*k)}, {8*h}, v{REM+r}")
    a(f"""
    s_cmp_eq_u32 s{S_FIRST}, 0
    s_cbranch_scc1 M_rload
    """)
    for k in range(6):
        m = sr(S_M + 2*k)
        a(f"""
        v_and_b32 v{T+2}, {1<<k}, v{V_DONE}
        v_cmp_eq_u32 vcc, 0, v{T+2}
        s_and_b64 {m}, {m}, vcc
        s_and_b64 {m}, {m}, {sr(S_ACT)}
        """)
    a.label("M_rload")
    for k in range(6):
        r = k % 3; h = k // 3
        a(f"""
        s_mov_b64 exec, {sr(S_M+2*k)}
        s_cbranch_execz M_sl{k}
        buffer_load_dwordx4 {vr(L+4*k,4)}, v{ADR+r}, {sr(S_REC,4)}, 0 offen offset:{128*h} sc1
        """)
        a.label(f"M_sl{k}")
    a(f"""
    s_mov_b64 exec, -1
    s_cmp_lg_u32 s{S_FIRST}, 0
    s_cbranch_scc1 M_nofld
    global_load_dword v{WFV}, v{WFA}, {sr(S_WSB)} sc1
    """)
    a.label("M_nofld")
    a(f"""
    s_mov_b64 {sr(S_PEND)}, 0
    s_mov_b32 s{S_T}, {TAGM}
    s_waitcnt vmcnt(0)
    """)
    for k in range(6):
        a(f"""
        s_mov_b64 exec, {sr(S_M+2*k)}
        s_cbranch_execz M_sc{k}
        v_and_b32 v{T}, s{S_T}, v{L+4*k+2}
        v_cmp_ne_u32 {sr(S_TM)}, s{S_NON+1}, v{T}
        v_cmp_ne_u32 vcc, s{S_NON}, v{L+4*k+3}
        v_bfe_u32 v{CTR+k}, v{L+4*k+2}, 16, 4
        v_and_b32 v{T}, 15, v{L+4*k+2}
        s_or_b64 {sr(S_PEND)}, {sr(S_PEND)}, {sr(S_TM)}
        s_or_b64 {sr(S_PEND)}, {sr(S_PEND)}, vcc
        v_lshl_or_b32 v{T}, v{CTR+k}, 4, v{T}
        v_lshlrev_b32 v{BAS+k}, 2, v{T}
        """)
        a.label(f"M_sc{k}")
    a(f"""
    s_mov_b64 exec, -1
    s_cmp_eq_u64 {sr(S_PEND)}, 0
    {"s_branch M_rok" if OPT.get("halfst") or OPT.get("noretry") else ""}
    s_cbranch_scc1 M_rok
    s_sleep {OPT.get('slp', 4)}
    s_sub_u32 s{S_SPIN}, s{S_SPIN}, 1
    s_cmp_gt_i32 s{S_SPIN}, 0
    s_cbranch_scc1 M_rload
    """)
    a.label("M_rok")
    if OPT.get("dl13"): a(f"s_sleep {OPT['dl13']}")
    stamp(a, 13)
    a(f"""
    s_cmp_lg_u32 s{S_FIRST}, 0
    s_cbranch_scc1 M_append
    """)
    for k in range(6):
        a(f"""
        s_mov_b64 exec, {sr(S_M+2*k)}
        s_cbranch_execz M_sa{k}
        ds_add_rtn_u32 v{RNK+k}, v{BAS+k}, v{ONE} offset:{L_CC}
        """)
        a.label(f"M_sa{k}")
    SCN = V_ACC
    a(f"""
    s_mov_b64 exec, -1
    v_cmp_eq_u32 vcc, s{S_NON}, v{WFV}
    s_cmp_eq_u64 vcc, -1
    s_cselect_b32 s{S_WOK}, 1, 0
    s_cbranch_scc0 M_nowpre
    s_cmp_lt_u32 s{S_G}, {16 if OPT.get("db") else 4}
    s_cbranch_scc1 M_nowpre
    """)
    wload(a, WFA, [0, 1, 2, 3, 8, 9, 10, 11])
    a.label("M_nowpre")
    a(f"""
    v_and_b32 v{T}, 63, v0
    v_lshlrev_b32 v{T}, 4, v{T}
    v_cmp_lt_u32 vcc, 0, v{V_C}
    v_cmp_lt_u32 {sr(S_TM)}, 1, v{V_C}
    s_waitcnt lgkmcnt(0)
    s_barrier
    ds_read_b128 {vr(SCN,4)}, v{T} offset:{L_CC}
    """)
    if int(OPT.get("t2m", 0)):
        a(f"""
        s_cmp_ge_u32 s{S_G}, 4
        s_cbranch_scc1 M_t2m
        s_mul_i32 s{S_T+6}, s3, 236
        s_mul_i32 s{S_T+5}, s{S_G}, 59
        s_add_u32 s{S_T+6}, s{S_T+6}, s{S_T+5}
        v_and_b32 v{TCA}, 63, v0
        v_add_u32 v{TCA}, s{S_T+6}, v{TCA}
        v_and_b32 v{TCA+1}, 3, v{TCA}
        v_lshrrev_b32 v{TCA}, 2, v{TCA}
        s_movk_i32 s{S_T+5}, 5000
        v_cmp_gt_u32 {sr(S_PEND)}, s{S_T+5}, v{TCA}
        v_lshlrev_b32 v{TCA+2}, 11, v{TCA}
        v_add_u32 v{TCA+2}, 1024, v{TCA+2}
        v_subrev_u32 v{TCA}, s{S_T+5}, v{TCA}
        v_lshlrev_b32 v{TCA}, 10, v{TCA}
        v_add_u32 v{TCA}, 512, v{TCA}
        v_cndmask_b32 v{TCA}, v{TCA}, v{TCA+2}, {sr(S_PEND)}
        v_lshl_add_u32 v{TCA}, v{TCA+1}, 7, v{TCA}
        s_mov_b32 exec_hi, 0x7ffffff
        buffer_load_dword v{V_TCH}, v{TCA}, {sr(S_X,4)}, 0 offen
        s_mov_b64 exec, -1
        """)
        a.label("M_t2m")
    for n, b in enumerate(OPT.get("t2", "12").replace("x", "")):
        a(f"s_cmp_lg_u32 s{S_G}, {n}")
        a(f"s_cbranch_scc1 M_t2_{n}")
        touch(a, int(b), 0, TCA, V_TCH)
        touch(a, int(b), 1, TCA, TCA+1)
        a.label(f"M_t2_{n}")
    a(f"""
    s_waitcnt lgkmcnt(0)
    v_add_u32 v{SCN+4}, v{SCN}, v{SCN+1}
    v_add_u32 v{SCN+5}, v{SCN+4}, v{SCN+2}
    v_add_u32 v{SCN+6}, v{SCN+5}, v{SCN+3}
    s_nop 1
    v_mov_b32_dpp v{SCN+7}, v{SCN+6} quad_perm:[0,0,1,2] row_mask:0xf bank_mask:0xf
    v_cndmask_b32 v{SCN+7}, 0, v{SCN+7}, vcc
    v_add_u32 v{SCN+7}, v{SCN+7}, v{SCN+6}
    s_nop 1
    v_mov_b32_dpp v{SCN+8}, v{SCN+7} quad_perm:[0,0,0,1] row_mask:0xf bank_mask:0xf
    v_cndmask_b32 v{SCN+8}, 0, v{SCN+8}, {sr(S_TM)}
    v_add_u32 v{SCN+8}, v{SCN+8}, v{SCN+7}
    v_sub_u32 v{SCN+8}, v{SCN+8}, v{SCN+6}
    v_add_u32 v{SCN+9}, v{SCN+8}, v{SCN}
    v_add_u32 v{SCN+10}, v{SCN+8}, v{SCN+4}
    v_add_u32 v{SCN+11}, v{SCN+8}, v{SCN+5}
    s_mov_b32 exec_hi, 0xffff
    ds_write_b128 v{T}, {vr(SCN+8,4)} offset:{L_BASE}
    """)
    for k in range(6):
        a(f"""
        s_mov_b64 exec, {sr(S_M+2*k)}
        s_cbranch_execz M_sb{k}
        ds_read_b32 v{BAS+k}, v{BAS+k} offset:{L_BASE}
        """)
        a.label(f"M_sb{k}")
    a("s_branch M_place")
    a.label("M_append")
    for k in range(6):
        a(f"""
        s_mov_b64 exec, {sr(S_M+2*k)}
        v_lshlrev_b32 v{T+1}, 2, v{CTR+k}
        v_lshlrev_b32 v{T}, 6, v{CTR+k}
        ds_add_rtn_u32 v{RNK+k}, v{T+1}, v{ONE} offset:{L_ACNT}
        ds_read_b32 v{BAS+k}, v{T} offset:{L_BASE+60}
        ds_read_b32 v{T+2}, v{T} offset:{L_CC+60}
        s_waitcnt lgkmcnt(0)
        v_add_u32 v{BAS+k}, v{BAS+k}, v{T+2}
        """)
    a.label("M_place")
    a(f"""
    s_mov_b64 exec, -1
    s_mov_b64 {sr(S_PEND)}, 0
    s_mov_b32 s{S_T}, {L_LIST}
    s_movk_i32 s{S_T+2}, {CAP}
    s_mov_b32 s{S_FIRST}, 1
    """)
    for k in range(6):
        a(f"""
        s_cmp_eq_u64 {sr(S_M+2*k)}, 0
        s_cbranch_scc1 M_se{k}
        v_bfe_u32 v{T+1}, v{L+4*k+2}, 14, 2
        v_and_b32 v{L+4*k+2}, 0x3fff, v{L+4*k+2}
        v_lshlrev_b32 v{L+4*k+3}, v{T+1}, v{ONE}
        v_lshlrev_b32 v{L+4*k+2}, 10, v{L+4*k+2}
        v_mul_u32_u24 v{CTR+k}, s{S_T+2}, v{CTR+k}
        """)
        a.label(f"M_se{k}")
    a("s_waitcnt lgkmcnt(0)")
    for k in range(6):
        m = sr(S_M + 2*k)
        a(f"""
        s_mov_b64 exec, {m}
        s_cbranch_execz M_sp{k}
        v_add_u32 v{RNK+k}, v{RNK+k}, v{BAS+k}
        v_cmp_gt_u32 vcc, s{S_T+2}, v{RNK+k}
        v_add_u32 v{T}, v{CTR+k}, v{RNK+k}
        v_lshl_add_u32 v{CTR+k}, v{T}, 4, s{S_T}
        s_andn2_b64 {sr(S_TM)}, {m}, vcc
        s_or_b64 {sr(S_PEND)}, {sr(S_PEND)}, {sr(S_TM)}
        s_mov_b64 exec, vcc
        ds_write_b128 v{CTR+k}, {vr(L+4*k,4)}
        v_or_b32 v{V_DONE}, {1<<k}, v{V_DONE}
        """)
        a.label(f"M_sp{k}")
    a(f"""
    s_mov_b64 exec, -1
    v_mov_b32 v{T+2}, {L_MORE}
    v_max3_i32 v{T}, v{REM}, v{REM+1}, v{REM+2}
    s_mov_b64 exec, {sr(S_PEND)}
    ds_write_b32 v{T+2}, v{ONE}
    s_andn2_b64 {sr(S_ACT)}, {sr(S_ACT)}, {sr(S_PEND)}
    s_mov_b64 exec, {sr(S_ACT)}
    v_add_u32 v{V_JB}, 16, v{V_JB}
    v_mov_b32 v{V_DONE}, 0
    v_cmp_lt_i32 vcc, 16, v{T}
    s_mov_b64 exec, -1
    s_cmp_lg_u64 vcc, 0
    s_cbranch_scc1 M_window
    s_lshl_b32 s{S_T}, s{S_G}, 6
    v_mov_b32 v{T}, s{S_T}
    s_lshl_b32 s{S_T}, s{S_G}, 2
    v_mov_b32 v{T+1}, s{S_T}
    s_waitcnt lgkmcnt(0)
    """)
    stamp(a, 15)
    if OPT.get("dl15"): a(f"s_sleep {OPT['dl15']}")
    a(f"""
    s_barrier
    ds_read_b32 v{V_A[0]}, v{T} offset:{L_BASE+60}
    ds_read_b32 v{V_A[0]+1}, v{T} offset:{L_CC+60}
    ds_read_b32 v{V_A[0]+2}, v{T+1} offset:{L_ACNT}
    ds_read_b32 v{V_A[0]+3}, v{T+2}
    v_and_b32 v{T}, 63, v0
    v_mov_b32 v{V_B[0]}, {OOBOFF}
    v_mov_b32 v{V_B[0]+1}, 0
    s_mov_b32 s{S_S1}, 0
    s_mov_b32 s{S_S2}, 0
    s_mov_b32 s{S_B1}, 0
    s_waitcnt lgkmcnt(0)
    v_add3_u32 v{T+1}, v{V_A[0]}, v{V_A[0]+1}, v{V_A[0]+2}
    v_readfirstlane_b32 s{S_MORE}, v{V_A[0]+3}
    v_readfirstlane_b32 s{S_T}, v{T+1}
    s_min_u32 s{S_T}, s{S_T}, {CAP}
    s_add_u32 s{S_S}, s{S_T}, 31
    s_lshr_b32 s{S_S}, s{S_S}, 5
    s_max_u32 s{S_S}, s{S_S}, 1
    s_lshl_b32 s{S_T+1}, s{S_S}, 5
    v_add_u32 v{T}, s{S_T}, v{T}
    v_cmp_gt_u32 vcc, s{S_T+1}, v{T}
    s_mul_i32 s{S_T+2}, s{S_G}, {CAP*16}
    s_add_u32 s{S_T+2}, s{S_T+2}, {L_LIST+8}
    v_lshl_add_u32 v{T}, v{T}, 4, s{S_T+2}
    s_mov_b64 exec, vcc
    ds_write_b64 v{T}, {vr(V_B[0],2)}
    s_mov_b64 exec, -1
    s_sub_u32 s{S_NLAST}, s{S_T}, s{S_T+1}
    s_add_u32 s{S_NLAST}, s{S_NLAST}, 35
    s_lshr_b32 s{S_NLAST}, s{S_NLAST}, 2
    """)
    meta_reads(a)
    a(f"""
    s_cmp_gt_u32 s{S_S}, 2
    s_cbranch_scc1 M_nozl
    """)
    for k in range(32):
        a(f"v_mov_b32 v{V_L[0]+k}, 0")
    a(f"""
    s_cmp_ge_u32 s{S_G}, {16 if OPT.get("db") else 4}
    s_cbranch_scc1 M_nozl
    """)
    for k in range(32):
        a(f"v_mov_b32 v{V_L[1]+k}, 0")
    a.label("M_nozl")
    stamp(a, 2)
    setprio(a, 0)
    a(f"""
    s_waitcnt lgkmcnt(0)
    s_cmp_ge_u32 s{S_G}, {16 if OPT.get("db") else 4}
    s_cbranch_scc1 M_sglb
    """)
    stage_x(a, 0, "i", wait=False)
    a.label("M_goi")
    advance(a)
    a(f"s_mov_b32 s{S_FIRST}, 1")
    for p in range(2):
        a.label(f"M_it{p}")
        a(f"""
        s_waitcnt lgkmcnt(0)
        s_cmp_eq_u32 s{S_B1}, 1024
        s_cbranch_scc1 M_w{p}_0
        """)
        if OPT.get("hx"):
            a(f"""
            s_cmp_ge_u32 s{S_B1}, {OPT['hx']}
            s_cbranch_scc1 M_hx{p}
            s_waitcnt vmcnt({OPT.get('hw', 0)})
            """)
            a.label(f"M_hx{p}")
        stage_x(a, p ^ 1, str(p))
        a.label(f"M_go{p}")
        a(f"""
        s_cmp_eq_u32 s{S_FIRST}, 0
        s_cbranch_scc1 M_cn{p}
        """)
        compute(a, p, True)
        a(f"s_branch M_cd{p}")
        a.label(f"M_cn{p}")
        compute(a, p, False)
        a.label(f"M_cd{p}")
        a(f"""
        s_mov_b32 s{S_FIRST}, 0
        s_cmp_lg_u32 s{S_S1}, 0
        s_cbranch_scc1 M_nofl{p}
        s_mov_b32 s{S_FIRST}, 1
        s_call_b64 {sr(S_RET)}, M_flush
        s_cmp_eq_u32 s{S_B1}, 1024
        s_cbranch_scc1 M_end
        """)
        a.label(f"M_nofl{p}")
        advance(a)
        if p == 1:
            a("s_branch M_it0")
    def prep():
        for i in range(0, 8, 2):
            a(f"v_pk_add_f32 {vr(V_IX+i,2)}, {vr(V_IX+i,2)}, {vr(V_N16,2)}")
        a(f"""
        v_bfe_i32 v{V_OH}, v{V_OH}, v{V_C}, 1
        v_bfe_i32 v{V_OH+1}, v{V_OH+1}, v{V_C}, 1
        v_and_b32 v{V_OH}, v{V_OH}, v{V_CA}
        v_and_b32 v{V_OH+1}, v{V_OH+1}, v{V_CA}
        """)
    def load(i):
        a(f"buffer_load_dwordx4 {vr(V_L[0]+4*i,4)}, v{V_IX+i}, {sr(S_X,4)}, s{S_B1} offen")
    a.label("M_sglb")
    a(f"s_mov_b32 s{S_FLP}, 0")
    prep()
    tick(a, None)
    a.label("M_its")
    a(f"""
    s_add_u32 s{S_S2}, s{S_S1}, 1
    s_cmp_eq_u32 s{S_S2}, s{S_S}
    s_cbranch_scc1 M_parts
    """)
    a.label("M_fulls")
    for i in range(8): load(i)
    a("s_branch M_pms")
    a.label("M_parts")
    a(f"""
    s_mov_b32 s{S_S2}, 0
    s_cmp_eq_u32 s{S_NLAST}, 8
    s_cbranch_scc1 M_fulls
    """)
    for i in range(7):
        a(f"s_cmp_eq_u32 s{S_NLAST}, {i}")
        a(f"s_cbranch_scc1 M_pms")
        load(i)
    a.label("M_pms")
    tick(a, 1)
    a(f"""
    ds_read_b64_tr_b16 {vr(V_A[0],2)}, v{V_OH}
    ds_read_b64_tr_b16 {vr(V_A[0]+2,2)}, v{V_OH+1} offset:256
    """)
    meta_reads(a)
    a(f"""
    s_cmp_eq_u32 s{S_FLP}, 0
    s_cbranch_scc1 M_nofls
    """)
    a.label("M_dofl")
    a(f"""
    s_call_b64 {sr(S_RET)}, M_flush
    s_cmp_eq_u32 s{S_B1}, 1024
    s_cbranch_scc1 M_end
    s_cmp_lg_u32 s{S_B1}, {OPT.get("midb", 512)}
    s_cbranch_scc1 M_nofls
    s_cmp_lg_u32 s{S_MORE}, 0
    s_cbranch_scc1 M_nofls
    """)
    mid_stage(a)
    a.label("M_nofls")
    a("s_waitcnt lgkmcnt(0)")
    prep()
    tick(a, 13)
    if OPT.get("prof"):
        a("s_waitcnt vmcnt(0)")
        tick(a, 15)
        a(f"s_add_u32 s{S_ST+8}, s{S_ST+8}, 1")
    a(f"""
    s_cmp_eq_u32 s{S_S1}, 0
    s_mov_b32 s{S_S1}, s{S_S2}
    s_waitcnt vmcnt(0)
    s_cbranch_scc0 M_cns
    """)
    compute(a, 0, True)
    a("s_branch M_cds")
    a.label("M_cns")
    compute(a, 0, False)
    a.label("M_cds")
    tick(a, 3)
    a(f"""
    s_cmp_eq_u32 s{S_S2}, 0
    s_cselect_b32 s{S_FLP}, 256, 0
    s_add_u32 s{S_B1}, s{S_B1}, s{S_FLP}
    s_cmp_eq_u32 s{S_B1}, 1024
    s_cbranch_scc0 M_its
    s_cmp_lg_u32 s{S_MORE}, 0
    s_cbranch_scc1 M_dofl
    """)
    wload(a, V_T+2, [12, 13, 14, 15, 16, 17, 18, 19])
    a("s_branch M_dofl")
    flush_sub(a)
    a.label("M_end")
    a(f"""
    s_cmp_eq_u32 s{S_MORE}, 0
    s_cbranch_scc1 M_gemm
    s_mov_b32 s{S_RND}, 1
    s_waitcnt lgkmcnt(0)
    s_barrier
    s_branch M_init
    """)
    a.label("M_gemm")
    if OPT.get("nogemm"): a("s_endpgm")
    gemm(a)
    a.label("M_done")
    a("s_endpgm")

OACC = {(0, 0): 8, (1, 0): 20, (2, 0): 36}
O1 = [(0, 1), (0, 2), (0, 3), (1, 1), (1, 2), (1, 3), (2, 1), (2, 3)]
for n_, k_ in enumerate(O1): OACC[k_] = 136 + 4*n_

def wflag_spin(a, tag, va, vd):
    a(f"""
    s_sub_u32 s{S_T}, s{S_G}, 4
    s_mul_i32 s{S_T}, s{S_T}, {20*1024}
    s_lshl_b32 s{S_T+1}, s2, 2
    s_add_u32 s{S_T}, s{S_T}, s{S_T+1}
    s_add_u32 s{S_T}, s{S_T}, {WS_WFLAG}
    v_and_b32 v{va}, 63, v0
    v_min_u32 v{va}, 19, v{va}
    v_lshl_add_u32 v{va}, v{va}, 10, s{S_T}
    """)
    a.label(f"M_wfchk{tag}")
    a(f"""
    global_load_dword v{vd}, v{va}, {sr(S_WSB)} sc1
    s_waitcnt vmcnt(0)
    v_cmp_eq_u32 vcc, s{S_NON}, v{vd}
    s_cmp_eq_u64 vcc, -1
    s_cbranch_scc1 M_wfld{tag}
    s_sub_u32 s{S_SPIN}, s{S_SPIN}, 1
    s_cmp_gt_i32 s{S_SPIN}, 0
    s_cbranch_scc1 M_wfchk{tag}
    """)
    a.label(f"M_wfld{tag}")

def mid_stage(a):
    B0 = 7; DL = 19; X0 = 12; X2 = 13; XP = 14; TT = 15
    bufs = [40, 44, 64, 68, 72, 76]
    TR = {k: 48 + 4*n for n, k in enumerate(O1[4:])}
    a(f"""
    s_cmp_lg_u32 s{S_WOK}, 0
    s_cbranch_scc1 M_midw
    """)
    wflag_spin(a, "m", X0, X2)
    wload(a, X0, [0, 1, 2, 3, 8, 9, 10, 11])
    a(f"""
    s_waitcnt vmcnt(0)
    s_mov_b32 s{S_WOK}, 1
    """)
    a.label("M_midw")
    a(f"""
    v_mov_b32 v{XP}, {L_FC0}
    ds_read_b32 v{TT}, v{XP}
    v_and_b32 v{X0}, 15, v0
    v_bfe_u32 v{X2}, v0, 4, 2
    v_mul_u32_u24 v{DL}, {PSTR}, v{X0}
    v_xor_b32 v{B0}, v{X2}, v{X0}
    v_lshl_add_u32 v{B0}, v{B0}, 4, v{DL}
    v_add_u32 v{B0}, {L_P}, v{B0}
    v_lshrrev_b32 v{DL}, 3, v{X0}
    v_mul_i32_i24 v{DL}, {768 - 8*PSTR}, v{DL}
    """)
    a.label("M_midf")
    a(f"""
    s_waitcnt lgkmcnt(0)
    v_readfirstlane_b32 s{S_T}, v{TT}
    s_cmp_ge_u32 s{S_T}, {NG}
    s_cbranch_scc1 M_midg
    s_sleep 1
    ds_read_b32 v{TT}, v{XP}
    s_branch M_midf
    """)
    a.label("M_midg")
    steps = []
    for k4 in range(4):
        for t in range(3): steps.append((t, 0, 0, k4, k4))
    for k4 in range(4):
        for (t, o) in O1[4:] + O1[:4]: steps.append((t, o, comp011(o-1), k4, 8 + k4))
    NBF = len(bufs)
    cur = [None]
    def rd(n):
        t, o, c, k4, ws = steps[n]
        key = (k4, ws >= 8)
        if cur[0] != key:
            cur[0] = key
            a(f"v_xor_b32 v{X0}, {64*k4}, v{B0}")
            a(f"v_add_u32 v{X2}, {32*PSTR}, v{X0}")
            if ws >= 8: a(f"v_add_u32 v{XP}, v{X2}, v{DL}")
        base = X0 if t < 2 else (XP if o == 1 else X2)
        off = c*256 + (16*PSTR if t == 1 else 0)
        a(f"ds_read_b128 {vr(bufs[n % NBF],4)}, v{base} offset:{off}")
    for n in range(NBF - 1): rd(n)
    for n in range(len(steps)):
        t, o, c, k4, ws = steps[n]
        if n + NBF - 1 < len(steps): rd(n + NBF - 1)
        a(f"s_waitcnt lgkmcnt({min(NBF - 1, len(steps) - 1 - n)})")
        acc = vr(TR.get((t, o), OACC[(t, o)]), 4)
        a(f"v_mfma_f32_16x16x32_bf16 {acc}, {vr(WREG[ws],4)}, {vr(bufs[n % NBF],4)}, {'0' if k4 == 0 else acc}")
    for k in O1[4:]:
        for r in range(4): a(f"v_mov_b32 v{OACC[k]+r}, v{TR[k]+r}")

def gemm(a):
    BB = 40; NBB = 6
    PKB = 80; PKO = 0; T2B = 76; LN = 16; OA = 17; WA = 18
    def store_row(rho_s, vb, light):
        a(f"""
        s_mul_i32 s{S_T}, s{rho_s}, {OSTR}
        s_add_u32 s{S_T}, s{S_T}, {L_LIST}
        v_add_u32 v{WA}, s{S_T}, v{LN}
        ds_read_b128 {vr(vb,4)}, v{WA}
        """)
    def row_off(rho_s, dst, light):
        if light:
            a(f"""
            s_sub_u32 s{S_T}, s{rho_s}, 16
            s_lshr_b32 s{S_T+1}, s{S_T}, 3
            s_and_b32 s{S_T}, s{S_T}, 7
            s_add_u32 s{S_T}, s{S_T}, 4
            """)
        else:
            a(f"""
            s_lshr_b32 s{S_T+1}, s{rho_s}, 2
            s_and_b32 s{S_T}, s{rho_s}, 3
            """)
        a(f"""
        s_mul_i32 s{S_T+1}, s{S_T+1}, 12
        s_add_u32 s{S_T}, s{S_T}, s{S_T+1}
        s_lshl_b32 s{S_T}, s{S_T}, 18
        s_lshl_b32 s{S_T+1}, s3, 10
        s_add_u32 s{S_T}, s{S_T}, s{S_T+1}
        v_add_u32 v{dst}, s{S_T}, v{LN}
        """)
    a(f"""
    s_setprio {OPT.get("pg", 0)}
    s_waitcnt lgkmcnt(0)
    v_and_b32 v{LN}, 63, v0
    s_cmp_ge_u32 s{S_G}, 4
    s_cbranch_scc1 M_gw
    v_lshlrev_b32 v{LN}, 4, v{LN}
    """)
    for k in range(6):
        a(f"s_add_u32 s{S_T+3}, s{S_G}, {16 + 4*k}")
        row_off(S_T+3, 40 + k, True)
    a(f"""
    s_mul_i32 s{S_T}, s{S_G}, {OSTR}
    s_add_u32 s{S_T}, s{S_T}, {L_LIST + 16*OSTR}
    v_add_u32 v{WA}, s{S_T}, v{LN}
    s_waitcnt lgkmcnt(0)
    s_barrier
    """)
    for k in range(6):
        a(f"ds_read_b128 {vr(48+4*k,4)}, v{WA} offset:{4*OSTR*k}")
    for k in range(6):
        a(f"s_waitcnt lgkmcnt({5-k})")
        a(f"buffer_store_dwordx4 {vr(48+4*k,4)}, v{40+k}, {sr(S_OUT,4)}, 0 offen {fl('of')}")
    a("s_branch M_st")
    a.label("M_gw")
    a(f"""
    s_waitcnt lgkmcnt(0)
    """)
    late = [12, 13, 14, 15, 16, 17, 18, 19, 4, 5, 6, 7]
    wload(a, WA, [4, 5, 6, 7])
    a(f"""
    v_mov_b32 v14, {L_FC}
    ds_read_b32 v15, v14
    v_and_b32 v12, 15, v{LN}
    v_lshrrev_b32 v13, 4, v{LN}
    v_mul_u32_u24 v{OA}, {PSTR}, v12
    v_xor_b32 v1, v13, v12
    v_lshl_add_u32 v1, v1, 4, v{OA}
    v_add_u32 v1, {L_P}, v1
    v_xor_b32 v2, 64, v1
    v_xor_b32 v3, 128, v1
    v_xor_b32 v4, 192, v1
    """)
    setup = [f"v_add_u32 v{T2B+k4}, {32*PSTR}, v{1+k4}" for k4 in range(4)]
    setup += [f"v_lshrrev_b32 v{PKO}, 3, v12", f"v_mul_i32_i24 v{PKB+3}, {768 - 8*PSTR}, v{PKO}"]
    setup += [f"v_add_u32 v{PKB+k4}, v{T2B+k4}, v{PKB+3}" for k4 in range(4)]
    setup += [f"s_lshl_b32 s{S_T+1}, s{S_G}, 5", f"s_add_u32 s{S_T+1}, s{S_T+1}, {L_LIST - 128}",
              f"v_mul_u32_u24 v{OA}, {OSTR}, v12", f"v_lshl_add_u32 v{OA}, v13, 3, v{OA}", f"v_add_u32 v{OA}, s{S_T+1}, v{OA}",
              f"v_mul_i32_i24 v{PKO}, {256 - 8*OSTR}, v{PKO}", f"v_add_u32 v{PKO}, v{PKO}, v{OA}",
              f"s_mov_b32 s{S_T+2}, 0xbfb8aa3b", f"v_lshlrev_b32 v{LN}, 4, v{LN}"]
    for x in setup: a(x)
    def spin(tag, off, n):
        a.label(f"M_fcw{tag}")
        a(f"""
        s_waitcnt lgkmcnt(0)
        v_readfirstlane_b32 s{S_T}, v15
        s_cmp_ge_u32 s{S_T}, {n}
        s_cbranch_scc1 M_fcok{tag}
        s_sleep 1
        ds_read_b32 v15, v14 offset:{off}
        s_branch M_fcw{tag}
        """)
        a.label(f"M_fcok{tag}")
    spin("a", 0, NG)
    if not OPT.get("pst"): stamp(a, 12)
    st1 = []
    for k4 in range(4):
        for t in range(3):
            st1.append((t, 1, comp101(0), k4, 12 + k4))
            st1.append((t, 2, comp101(1), k4, 12 + k4))
    for k4 in range(4):
        for t in range(3):
            st1.append((t, 3, comp111(2), k4, 16 + k4))
    st1 = [x for x in st1 if not (x[0] == 2 and x[1] == 2)]
    def late_steps(tiles):
        st = []
        for k4 in range(4):
            for t in tiles: st.append((t, 0, 1, k4, 4 + k4))
        for t in tiles:
            for k4 in range(4):
                st.append((t, 3, comp101(2), k4, 12 + k4))
                st.append((t, 1, comp111(0), k4, 16 + k4))
                st.append((t, 2, comp111(1), k4, 16 + k4))
        return [x for x in st if not (x[0] == 2 and x[1] == 2)]
    started = set()
    wmax = [-1]
    def run(steps, fill):
        q = []
        def rd(n):
            t, o, c, k4, ws = steps[n]
            base = (1 + k4) if t < 2 else ((PKB + k4) if o == 1 else (T2B + k4))
            off = c*256 + (16*PSTR if t == 1 else 0)
            a(f"ds_read_b128 {vr(BB+4*(n%NBB),4)}, v{base} offset:{off}")
            q.append(n)
        n_steps = len(steps)
        for n in range(NBB - 1): rd(n)
        for n in range(n_steps):
            t, o, c, k4, ws = steps[n]
            if n + NBB - 1 < n_steps: rd(n + NBB - 1)
            pend = len(q) - 1 - q.index(n)
            assert pend <= 15
            idx = late.index(ws) if ws in late else -1
            w = f"lgkmcnt({pend})"
            if idx > wmax[0]:
                w = f"vmcnt({len(late) - 1 - idx}) " + w
                wmax[0] = idx
            a("s_waitcnt " + w)
            acc = vr(OACC[(t, o)], 4)
            first = False
            a(f"v_mfma_f32_16x16x32_bf16 {acc}, {vr(WREG[ws],4)}, {vr(BB+4*(n%NBB),4)}, {'0' if first else acc}")
            for x in fill.get(n, []):
                a(x)
                if x.startswith("ds_"): q.append(-1)
    GT = 64
    def gate_ops(t):
        A0 = OACC[(t, 0)]; g = GT + 4*t
        o = [f"v_mul_f32 v{g+r}, s{S_T+2}, v{A0+r}" for r in range(4)]
        o += [f"v_exp_f32 v{g+r}, v{g+r}" for r in range(4)]
        o += [f"v_cvt_pk_bf16_f32 v{A0}, v{A0}, v{A0+1}", f"v_cvt_pk_bf16_f32 v{A0+1}, v{A0+2}, v{A0+3}"]
        o += [f"ds_write_b64 v{OA}, {vr(A0,2)} offset:{16*OSTR*t}"]
        o += [f"v_add_f32 v{g+r}, 1.0, v{g+r}" for r in range(4)]
        o += [f"v_rcp_f32 v{g+r}, v{g+r}" for r in range(4)]
        if t == 2:
            o += ["s_nop 1"]
            o += [f"v_mov_b32_dpp v{g+r}, v{g+r} row_shr:8 row_mask:0xf bank_mask:0xc" for r in range(4)]
        return o
    def fin_ops(t):
        o = []
        for i in ([2, 0, 1] if t < 2 else [2, 0]):
            B0 = OACC[(t, 1 + i)]
            o += [f"v_pk_mul_f32 {vr(B0+r,2)}, {vr(B0+r,2)}, {vr(GT+4*t+r,2)}" for r in (0, 2)]
            o += [f"v_cvt_pk_bf16_f32 v{B0}, v{B0}, v{B0+1}", f"v_cvt_pk_bf16_f32 v{B0+1}, v{B0+2}, v{B0+3}"]
            if t == 2 and i == 0: o += [f"ds_write_b64 v{PKO}, {vr(B0,2)} offset:{32*OSTR + 256}"]
            else: o += [f"ds_write_b64 v{OA}, {vr(B0,2)} offset:{16*OSTR*t + 256*(i+1)}"]
        return o
    def spread(fill, ops, n0, n1):
        cnt = n1 - n0
        for j, op in enumerate(ops):
            fill.setdefault(n0 + j * cnt // len(ops), []).append(op)
    f1 = {}
    f1.setdefault(len(st1) - 4, []).append(f"ds_read_b32 v15, v14 offset:4")
    run(st1, f1)
    a("s_setprio 0")
    spin("b", 4, 8)
    f2 = {}
    spread(f2, gate_ops(1) + gate_ops(2), 11, 23)
    spread(f2, fin_ops(1), 23, 27)
    run(late_steps([1, 2]), f2)
    a("s_nop 5")
    for x in fin_ops(2): a(x)
    a("s_waitcnt lgkmcnt(0)")
    if not OPT.get("pst"): stamp(a, 14)
    a("s_barrier")
    stamp(a, 7)
    f3 = {}
    spread(f3, gate_ops(0), 7, 15)
    run(late_steps([0]), f3)
    a("s_nop 5")
    for x in fin_ops(0): a(x)
    a.label("M_st")
    row_off(S_G, 12, False)
    a(f"""
    s_add_u32 s{S_T+3}, s{S_G}, 8
    """)
    row_off(S_T+3, 13, False)
    a(f"""
    s_mul_i32 s{S_T}, s{S_G}, {OSTR}
    s_add_u32 s{S_T}, s{S_T}, {L_LIST}
    v_add_u32 v{WA}, s{S_T}, v{LN}
    s_waitcnt lgkmcnt(0)
    s_barrier
    """)
    stamp(a, 8)
    a(f"""
    ds_read_b128 v[72:75], v{WA}
    s_and_b32 s{S_T}, s{S_G}, 12
    s_cmp_lg_u32 s{S_T}, 4
    s_cbranch_scc1 M_st3
    ds_read_b128 v[76:79], v{WA} offset:{8*OSTR}
    s_waitcnt lgkmcnt(0)
    buffer_store_dwordx4 v[76:79], v13, {sr(S_OUT,4)}, 0 offen {fl('of')}
    """)
    a.label("M_st3")
    a(f"""
    s_waitcnt lgkmcnt(0)
    buffer_store_dwordx4 v[72:75], v12, {sr(S_OUT,4)}, 0 offen {fl('of')}
    """)
    stamp_dump(a)

def kd(a, name, vg, sg):
    acc = (vg + 3) // 4 * 4
    a.raw(f""".p2align 6
.amdhsa_kernel {name}
  .amdhsa_next_free_vgpr {vg}
  .amdhsa_next_free_sgpr {sg}
  .amdhsa_accum_offset {acc}
  .amdhsa_group_segment_fixed_size 0
  .amdhsa_kernarg_size 96
  .amdhsa_user_sgpr_count 2
  .amdhsa_user_sgpr_kernarg_segment_ptr 1
  .amdhsa_system_sgpr_workgroup_id_x 1
  .amdhsa_float_denorm_mode_32 3
.end_amdhsa_kernel""")

def main():
    global DBG
    OPT.update(dict(x.split("=") for x in sys.argv[2:]))
    DBG = bool(int(OPT.get("dbg", 0)))
    a = Asm()
    ref = open(f"cdna_kernels/{NAME}.s.ref").read().split("\n")
    for ln in ref:
        if ln.startswith(";") and "@launch" not in ln and "Override" not in ln and "grid=ceil" not in ln:
            a.raw(ln)
    a.raw(f"; @launch kernel={NAME}_kernel grid=({NB},1,1) block=({NT},1,1) lds={L_TOT}")
    a.raw('.amdgcn_target "amdgcn-amd-amdhsa--gfx950"')
    a.raw(".text")
    gen_main(a)
    a.raw('.section .rodata,"a"')
    kd(a, NAME + "_kernel", NVG, 102 if DBG else 70)
    open(sys.argv[1], "w").write(a.text())

main()
```

```python
import sys

NAME = "gather_scatter__tensor_product_equiv_equiformer__graph"
N = 10000
E = 320000
NB = 256
CH = 1250
WS_OFF = 0x500000
WS_WF = 0x600000
WS_WFLAG = 0x640000
WS_PF32 = 0x1000000
SPIN_MAX = 1 << 18
TAGM = 0xffc00000

NG = 12
NT = NG * 64
CAP = 224
PSTR = 2816
L_CC = 512
L_BASE = L_CC + NG * 64
L_ACNT = L_BASE + NG * 64
L_MORE = L_ACNT + 60
L_NONCE = L_ACNT + 64
L_FC3 = L_ACNT + 84
L_FC0 = L_ACNT + 88
L_FC = L_ACNT + 80
OSTR = 1040
L_P = L_ACNT + 256
L_LIST = L_P + 40 * PSTR
L_TOT = L_LIST + NG * CAP * 16
assert L_TOT <= 163840 and L_P % 256 == 0
OOBOFF = 0x00FFFC00

OPT = {}
DBG = False

class Asm:
    def __init__(self):
        self.l = []
    def __call__(self, s):
        for x in s.split("\n"):
            x = x.strip()
            if x:
                self.l.append("    " + x)
    def label(self, s):
        self.l.append(s + ":")
    def raw(self, s):
        self.l.append(s)
    def text(self):
        return "\n".join(self.l) + "\n"

def vr(a, n):
    return f"v[{a}:{a+n-1}]"
def sr(a, n=2):
    return f"s[{a}:{a+n-1}]"
def fl(k):
    return OPT.get(k, {'of': 'sc1'}.get(k, '')).replace('+', ' ')

V_C = 1; V_N16 = 2; V_VS = 4; V_VC = 5; V_PB = 6; V_JB = 7; V_DONE = 8
V_OFF = 9
V_T = 12
V_OH = 16; V_CA = 18; V_TCH = 19
V_SC = 20; V_IX = 24
V_A = [32, 36]
V_B = [40, 44]
V_ACC = 48
V_SV = 80
V_L = [104, 136]
NVG = 168
S_X = 4; S_OUT = 8; S_REC = 12; S_OFFS = 16; S_WF = 20
S_G = 22; S_S = 23; S_S1 = 24; S_B1 = 25; S_S2 = 26; S_PLO = 27; S_PHI = 28; S_NLAST = 29
S_RND = 30; S_MORE = 31; S_T = 32
S_M = 40
S_IN = 40
S_ACT = 52; S_PEND = 54; S_TM = 56; S_FEX = 58; S_RET = 60; S_HI = 62; S_FIRST = 63
S_NON = 64; S_DBG = 66; S_WSB = 68; S_SPIN = 0; S_WOK = 1; S_FLP = 63; S_ANY2 = 23
S_ST = 70

def pa(a, k):
    if OPT.get("pa"): a(f"s_memtime {sr(S_ST+2*k)}")
def stamp(a, k, real=False):
    if OPT.get("pa") and k in (4, 5, 6, 7, 8, 14): return
    if OPT.get("prof") and k in (1, 13, 15, 3, 4, 5): return
    if DBG:
        a(f"s_mem{'realtime' if real else 'time'} {sr(S_ST+2*k)}")
def stamp_dump(a):
    if DBG:
        a("s_waitcnt lgkmcnt(0) vmcnt(0)")
        stamp(a, 9)
        stamp(a, 11, True)
        a("s_waitcnt lgkmcnt(0)")
        if OPT.get("hwid"):
            a(f"s_getreg_b32 s{S_ST+26}, hwreg(HW_REG_HW_ID)")
            a(f"s_mov_b32 s{S_ST+27}, 0")
        a(f"s_mul_i32 s{S_T}, s2, {NG}")
        a(f"s_add_u32 s{S_T}, s{S_T}, s{S_G}")
        a(f"s_lshl_b32 s{S_T}, s{S_T}, 7")
        a(f"s_add_u32 s{S_T}, s{S_T}, 0x800000")
        a(f"v_mov_b32 v1, s{S_T}")
        for k in range(0, 32, 2):
            a(f"v_mov_b32 v2, s{S_ST+k}")
            a(f"v_mov_b32 v3, s{S_ST+k+1}")
            a(f"global_store_dwordx2 v1, v[2:3], {sr(S_WSB)} offset:{4*k}")
            a("s_nop 1")

def comp011(i): return 2 + 3*i
def comp101(i): return 3 + 3*i
def comp111(i): return 4 + 3*i

def touch(a, beta, part, va, vd):
    a(f"""
    s_mul_i32 s{S_T+6}, s3, 79
    s_add_u32 s{S_T+6}, s{S_T+6}, {64*part}
    v_and_b32 v{va}, 63, v0
    v_add_u32 v{va}, s{S_T+6}, v{va}
    v_and_b32 v{vd}, 1, v{va}
    v_lshrrev_b32 v{va}, 1, v{va}
    v_lshlrev_b32 v{va}, 10, v{va}
    v_lshl_add_u32 v{va}, v{vd}, 7, v{va}
    """)
    if part: a("s_mov_b64 exec, 0x7fff")
    a(f"buffer_load_dword v{vd}, v{va}, {sr(S_X,4)}, 0 offen offset:{256*beta}")
    if part: a("s_mov_b64 exec, -1")

WREG = {}
for n_, ks_ in enumerate([0, 1, 2, 3, 8, 9, 10, 11]): WREG[ks_] = 136 + 4*n_
for n_, ks_ in enumerate([4, 5, 6, 7, 12, 13, 14, 15, 16, 17, 18, 19]): WREG[ks_] = 88 + 4*n_
def wload(a, va, kss):
    a(f"""
    s_sub_u32 s{S_T+6}, s{S_G}, 4
    s_mul_i32 s{S_T+6}, s{S_T+6}, {20*1024}
    v_and_b32 v{va}, 63, v0
    v_lshl_add_u32 v{va}, v{va}, 4, s{S_T+6}
    """)
    cur = 0
    for ks in kss:
        blk = ks // 4 * 4096
        if blk != cur:
            if blk > cur: a(f"v_add_u32 v{va}, {blk - cur}, v{va}")
            else: a(f"v_subrev_u32 v{va}, {cur - blk}, v{va}")
            cur = blk
        a(f"global_load_dwordx4 {vr(WREG[ks],4)}, v{va}, {sr(S_WF)} offset:{1024*(ks%4)} sc1")

def meta_reads(a):
    a(f"""
    s_lshl_b32 s{S_T}, s{S_S2}, 9
    v_add_u32 v{V_T}, s{S_T}, v{V_VS}
    v_add_u32 v{V_CA}, s{S_T}, v{V_VC}
    """)
    for i in range(0, 8, 2):
        a(f"ds_read2_b32 {vr(V_IX+i,2)}, v{V_T} offset0:{16*i+2} offset1:{16*(i+1)+2}")
    a(f"ds_read2_b32 {vr(V_OH,2)}, v{V_CA} offset0:3 offset1:67")

def stage_x(a, p, tag, wait=True):
    L = V_L[p]; A = V_A[p]
    for i in range(0, 8, 2):
        a(f"v_pk_add_f32 {vr(V_IX+i,2)}, {vr(V_IX+i,2)}, {vr(V_N16,2)}")
    a(f"""
    v_bfe_i32 v{V_OH}, v{V_OH}, v{V_C}, 1
    v_bfe_i32 v{V_OH+1}, v{V_OH+1}, v{V_C}, 1
    s_add_u32 s{S_S2}, s{S_S1}, 1
    v_and_b32 v{V_OH}, v{V_OH}, v{V_CA}
    v_and_b32 v{V_OH+1}, v{V_OH+1}, v{V_CA}
    s_cmp_eq_u32 s{S_S2}, s{S_S}
    ds_read_b64_tr_b16 {vr(A,2)}, v{V_OH}
    ds_read_b64_tr_b16 {vr(A+2,2)}, v{V_OH+1} offset:256
    s_cbranch_scc1 M_part{tag}
    """)
    def load(i):
        a(f"buffer_load_dwordx4 {vr(L+4*i,4)}, v{V_IX+i}, {sr(S_X,4)}, s{S_B1} offen")
    a.label(f"M_full{tag}")
    for i in range(8):
        load(i)
    meta_reads(a)
    if wait: a("s_waitcnt vmcnt(8)")
    a(f"s_branch M_go{tag}")
    a.label(f"M_part{tag}")
    a(f"""
    s_mov_b32 s{S_S2}, 0
    s_cmp_eq_u32 s{S_NLAST}, 8
    s_cbranch_scc1 M_full{tag}
    """)
    for i in range(7):
        a(f"s_cmp_eq_u32 s{S_NLAST}, {i}")
        a(f"s_cbranch_scc1 M_w{tag}_{i}")
        load(i)
    for i in range(7, -1, -1):
        a.label(f"M_w{tag}_{i}")
        if wait:
            a(f"s_waitcnt vmcnt({i})")
            if i > 0: a(f"s_branch M_pm{tag}")
    a.label(f"M_pm{tag}")
    meta_reads(a)

def advance(a):
    a(f"""
    s_mov_b32 s{S_S1}, s{S_S2}
    s_cmp_eq_u32 s{S_S2}, 0
    s_cselect_b32 s{S_T}, 256, 0
    s_add_u32 s{S_B1}, s{S_B1}, s{S_T}
    """)

def compute(a, p, first):
    L = V_L[p]; A = V_A[p]
    def perms(j):
        B = V_B[j % 2]
        sel = S_PHI if j % 2 else S_PLO
        for q in range(4):
            if OPT.get("noperm"): continue
            a(f"v_perm_b32 v{B+q}, v{L+4*(2*q+1)+j//2}, v{L+4*(2*q)+j//2}, s{sel}")
    perms(0)
    for j in range(8):
        if j + 1 < 8:
            perms(j + 1)
        else:
            a("s_nop 1")
        acc = vr(V_ACC+4*j,4)
        if OPT.get("nomfma"): continue
        Bop = vr(L+4*j,4) if OPT.get("noperm") else vr(V_B[j%2],4)
        a(f"v_mfma_f32_16x16x32_bf16 {acc}, {vr(A,4)}, {Bop}, {'0' if first else acc}")

wc_n = [0]
def write_comp(a, comp, regs):
    n = wc_n[0]; wc_n[0] += 1
    TM = V_B[0]
    a(f"""
    s_or_b32 s{S_T}, s{S_RND}, s{S_MORE}
    s_cmp_eq_u32 s{S_T}, 0
    s_cbranch_scc1 M_wc{n}
    s_mul_i32 s{S_T}, s3, {NG}
    s_add_u32 s{S_T}, s{S_T}, s{S_G}
    s_mul_i32 s{S_T}, s{S_T}, {11*2048}
    s_add_u32 s{S_T}, s{S_T}, {WS_PF32 + comp*2048}
    v_and_b32 v{V_T}, 63, v0
    v_lshl_add_u32 v{V_T}, v{V_T}, 2, s{S_T}
    s_waitcnt lgkmcnt(0)
    s_cmp_eq_u32 s{S_RND}, 0
    s_cbranch_scc1 M_wd{n}
    """)
    for j in range(8):
        a(f"global_load_dword v{TM+j}, v{V_T}, {sr(S_WSB)} offset:{256*j} sc1")
    a("s_waitcnt vmcnt(0)")
    for j in range(8):
        a(f"v_add_f32 v{regs[j]}, v{regs[j]}, v{TM+j}")
    a.label(f"M_wd{n}")
    for j in range(8):
        a(f"global_store_dword v{V_T}, v{regs[j]}, {sr(S_WSB)} offset:{256*j} sc1")
    a("s_waitcnt vmcnt(0)")
    a.label(f"M_wc{n}")
    sc = [V_B[0], V_B[1]][n % 2]
    for d in range(4):
        a(f"v_cvt_pk_bf16_f32 v{sc+d}, v{regs[2*d]}, v{regs[2*d+1]}")
    if comp in (5, 6, 7):
        a(f"""
        s_cmp_ge_u32 s{S_G}, 4
        s_cselect_b32 s{S_TM+1}, 0xffff, 0
        s_mov_b32 s{S_TM}, 0
        v_xor_b32 v{V_T+1}, 128, v{V_PB}
        v_cndmask_b32 v{V_T+1}, v{V_PB}, v{V_T+1}, {sr(S_TM)}
        ds_write_b128 v{V_T+1}, {vr(sc,4)} offset:{comp*256}
        """)
    else:
        a(f"ds_write_b128 v{V_PB}, {vr(sc,4)} offset:{comp*256}")

def setprio(a, ph):
    pl = OPT.get("pl", "3210"); phv = OPT.get("ph", "3210")
    if pl[ph] == phv[ph]:
        a(f"s_setprio {pl[ph]}")
    else:
        a(f"""
        s_setprio {pl[ph]}
        s_cmp_ge_u32 s{S_G}, 4
        s_cbranch_scc1 M_pr{ph}
        s_setprio {phv[ph]}
        """)
        a.label(f"M_pr{ph}")

def tick(a, slot):
    if OPT.get("prof"):
        a(f"""
        s_memtime {sr(S_M)}
        s_waitcnt lgkmcnt(0)
        s_sub_u32 s{S_M+3}, s{S_M}, s{S_M+2}
        s_mov_b32 s{S_M+2}, s{S_M}
        """)
        if slot is not None: a(f"s_add_u32 s{S_ST+2*slot}, s{S_ST+2*slot}, s{S_M+3}")

def flush_sub(a):
    acc = lambda r: [V_ACC + 4*j + r for j in range(8)]
    sv = lambda k: [V_SV + 8*k + j for j in range(8)]
    a.label("M_flush")
    a(f"""
    s_mov_b64 exec, {sr(S_FEX)}
    s_cmp_eq_u32 s{S_B1}, 512
    s_cbranch_scc1 M_fl1
    s_cmp_eq_u32 s{S_B1}, 768
    s_cbranch_scc1 M_fl2
    s_cmp_eq_u32 s{S_B1}, 1024
    s_cbranch_scc1 M_fl3
    s_nop 1
    """)
    def ret(ph, k):
        if not (OPT.get("pst") and k == 3): stamp(a, k)
        if ph is not None: setprio(a, ph)
        a(f"s_mov_b64 exec, -1")
        a(f"s_setpc_b64 {sr(S_RET)}")
    write_comp(a, 0, acc(0))
    for i in range(3): write_comp(a, comp011(i), acc(1+i))
    a(f"""
    s_mov_b64 exec, 1
    v_mov_b32 v{V_T+2}, {L_FC0}
    v_mov_b32 v{V_T+3}, 1
    ds_add_u32 v{V_T+2}, v{V_T+3}
    """)
    a("s_mov_b64 exec, -1")
    for n, b in enumerate(OPT.get("t3", "x").replace("x", "")):
        for k in range(2):
            a(f"s_cmp_lg_u32 s{S_G}, {4+2*n+k}")
            a(f"s_cbranch_scc1 M_t3_{n}_{k}")
            touch(a, int(b), k, V_T+2, V_TCH)
            a.label(f"M_t3_{n}_{k}")
    ret(1, 3)
    a.label("M_fl1")
    a("s_nop 4")
    write_comp(a, comp101(0), acc(0))
    for k in range(3):
        for j in range(8): a(f"v_mov_b32 v{sv(k)[j]}, v{acc(1+k)[j]}")
    ret(2, 4)
    a.label("M_fl2")
    a("s_nop 2")
    write_comp(a, comp101(1), acc(0))
    for j in range(8): a(f"v_sub_f32 v{acc(1)[j]}, v{acc(1)[j]}, v{sv(1)[j]}")
    write_comp(a, comp111(2), acc(1))
    for j in range(8): a(f"v_add_f32 v{sv(0)[j]}, v{sv(0)[j]}, v{acc(2)[j]}")
    for j in range(8): a(f"v_mov_b32 v{sv(1)[j]}, v{acc(3)[j]}")
    a(f"""
    s_mov_b64 exec, 1
    v_mov_b32 v{V_T+2}, {L_FC}
    v_mov_b32 v{V_T+3}, 1
    ds_add_u32 v{V_T+2}, v{V_T+3}
    """)
    ret(3, 5)
    a.label("M_fl3")
    write_comp(a, comp101(2), acc(0))
    for j in range(8): a(f"v_sub_f32 v{sv(2)[j]}, v{sv(2)[j]}, v{acc(1)[j]}")
    write_comp(a, comp111(1), sv(2))
    for j in range(8): a(f"v_sub_f32 v{acc(2)[j]}, v{acc(2)[j]}, v{sv(1)[j]}")
    write_comp(a, comp111(0), acc(2))
    for j in range(8): a(f"v_add_f32 v{sv(0)[j]}, v{sv(0)[j]}, v{acc(3)[j]}")
    write_comp(a, 1, sv(0))
    a(f"""
    s_cmp_lt_u32 s{S_G}, 4
    s_cbranch_scc1 M_fl3b
    s_mov_b64 exec, 1
    v_mov_b32 v{V_T+2}, {L_FC3}
    v_mov_b32 v{V_T+3}, 1
    ds_add_u32 v{V_T+2}, v{V_T+3}
    """)
    a.label("M_fl3b")
    ret(None, 6)

A_H = L_P; A_BS = L_P + 4096; A_STG = L_P + 8192; A_OFS = L_P + 32768

def cpf(a):
    K = NAME + "_kernel"
    a(f"""
    s_lshr_b32 s{S_T+4}, s3, 3
    s_cmp_lg_u32 s{S_T+4}, {OPT.get('cpw', 0)}
    s_cbranch_scc1 A_nocpf
    s_getpc_b64 {sr(S_T+2)}
    """)
    a.label("A_pc")
    a(f"""
    s_sub_u32 s{S_T+2}, s{S_T+2}, A_pc-{K}
    s_subb_u32 s{S_T+3}, s{S_T+3}, 0
    v_lshlrev_b32 v50, 3, v1
    s_mov_b32 s{S_T+4}, M_done-{K}
    v_add_u32 v51, 8192, v50
    v_min_u32 v51, s{S_T+4}, v51
    v_add_u32 v54, 16384, v50
    v_min_u32 v54, s{S_T+4}, v54
    global_load_dword v52, v50, {sr(S_T+2)}
    global_load_dword v53, v51, {sr(S_T+2)}
    global_load_dword v55, v54, {sr(S_T+2)}
    """)
    a.label("A_nocpf")

def phase_a(a):
    RH = 38; EA = 40; SRC = 42; DST = 44; WR = 46; W0 = 48; W1 = 50
    WSB = sr(S_WSB)
    def read_nonce(wait=True):
        a(f"""
        v_mov_b32 v2, {L_NONCE}
        ds_read_b64 v[2:3], v2
        s_waitcnt lgkmcnt(0)
        v_readfirstlane_b32 s{S_NON}, v2
        v_readfirstlane_b32 s{S_NON+1}, v3
        """)
    a(f"""
    s_cmp_eq_u32 s{S_G}, 10
    s_cbranch_scc1 A_scan
    s_cmp_eq_u32 s{S_G}, 11
    s_cbranch_scc1 A_aux
    v_lshrrev_b32 v20, 1, v6
    v_add_u32 v3, v6, v20
    s_mov_b64 exec, vcc
    """)
    LB = int(OPT.get("lb", 0))
    if LB: a("s_waitcnt lgkmcnt(0)\ns_barrier")
    a(f"""
    global_load_dwordx2 v[8:9], v6, {sr(SRC)} nt
    global_load_dwordx3 v[12:14], v3, {sr(RH)} nt
    global_load_dword v18, v20, {sr(EA)} nt
    v_mov_b32 v23, 1
    s_mul_i32 s{S_T}, s3, {CH * 16}
    v_lshlrev_b32 v20, 4, v0
    v_add_u32 v21, s{S_T}, v20
    """)
    pa(a, 4)
    if not LB: a("s_waitcnt lgkmcnt(0)\ns_barrier")
    a("s_waitcnt vmcnt(3)")
    pa(a, 5)
    for i in range(2):
        a(f"""
        v_and_b32 v{24+i}, 7, v{4+i}
        v_bfe_u32 v1, v{4+i}, 3, 5
        v_lshlrev_b32 v{24+i}, 7, v{24+i}
        v_lshl_or_b32 v{24+i}, v1, 2, v{24+i}
        ds_add_rtn_u32 v{28+i}, v{24+i}, v23 offset:{A_H}
        """)
    a("""
    s_waitcnt lgkmcnt(0)
    s_barrier
    """)
    pa(a, 6)
    for i in range(2):
        a(f"""
        v_lshrrev_b32 v{4+i}, 8, v{4+i}
        v_mul_u32_u24 v1, 43, v{4+i}
        v_lshrrev_b32 v1, 9, v1
        v_mul_u32_u24 v2, 12, v1
        v_sub_u32 v{4+i}, v{4+i}, v2
        v_lshlrev_b32 v1, 14, v1
        v_lshl_or_b32 v{32+4*i+2}, v{4+i}, 16, v1
        """)
    a(f"""
    s_barrier
    ds_read_b32 v30, v24 offset:{A_BS}
    ds_read_b32 v31, v25 offset:{A_BS}
    """)
    pa(a, 8)
    a(f"s_waitcnt vmcnt(0)")
    def half(dst, base, idx):
        r = base + idx // 2
        if idx % 2 == 0:
            a(f"v_lshlrev_b32 v{dst}, 16, v{r}")
        else:
            a(f"v_and_b32 v{dst}, s{S_HI}, v{r}")
    for i in range(2):
        half(4, 18, i)
        half(5, 12, 3*i+0)
        half(6, 12, 3*i+1)
        half(7, 12, 3*i+2)
        a(f"""
        v_mul_f32 v5, v4, v5
        v_mul_f32 v6, v4, v6
        v_mul_f32 v7, v4, v7
        v_cvt_pk_bf16_f32 v{32+4*i}, v4, v5
        v_cvt_pk_bf16_f32 v{32+4*i+1}, v6, v7
        """)
    pa(a, 7)
    a("s_waitcnt lgkmcnt(0)")
    for i in range(2):
        a(f"""
        v_add_lshl_u32 v{4+i}, v{30+i}, v{28+i}, 4
        v_or_b32 v{32+4*i+2}, v{32+4*i+2}, v{8+i}
        ds_write_b96 v{4+i}, {vr(32+4*i,3)} offset:{A_STG}
        """)
    a(f"""
    v_mov_b32 v2, {L_NONCE}
    v_add_u32 v22, 10000, v21
    s_waitcnt lgkmcnt(0)
    s_barrier
    """)
    pa(a, 14)
    a(f"""
    ds_read_b64 v[2:3], v2
    ds_read_b128 v[32:35], v20 offset:{A_STG}
    ds_read_b128 v[36:39], v20 offset:{A_STG+10000}
    s_waitcnt lgkmcnt(1)
    v_or_b32 v34, v34, v3
    v_mov_b32 v35, v2
    global_store_dwordx4 v21, v[32:35], {WSB} sc1
    s_waitcnt lgkmcnt(0)
    v_or_b32 v38, v38, v3
    v_mov_b32 v39, v2
    global_store_dwordx4 v22, v[36:39], {WSB} sc1
    v_readfirstlane_b32 s{S_NON}, v2
    v_readfirstlane_b32 s{S_NON+1}, v3
    """)
    PW = int(OPT.get("pw", 0))
    if PW:
        a(f"""
        s_lshr_b32 s{S_T}, s3, 3
        s_mul_i32 s{S_T}, s{S_T}, 625
        v_add_u32 v40, s{S_T}, v0
        """)
        if PW == 1:
            a("""
            v_and_b32 v41, 3, v40
            v_lshrrev_b32 v40, 2, v40
            v_lshlrev_b32 v40, 11, v40
            """)
        else:
            a("""
            v_and_b32 v41, 1, v40
            v_lshrrev_b32 v40, 1, v40
            v_lshlrev_b32 v40, 10, v40
            """)
        a(f"""
        v_lshl_add_u32 v40, v41, 7, v40
        buffer_load_dword v41, v40, {sr(S_X,4)}, 0 offen
        """)
    a(f"""
    s_mov_b64 exec, -1
    s_branch A_end
    """)
    a.label("A_scan")
    a(f"""
    s_setprio 3
    s_waitcnt lgkmcnt(0)
    v_and_b32 v1, 63, v0
    v_lshlrev_b32 v1, 4, v1
    s_lshl_b32 s{S_T}, s3, 11
    s_add_u32 s{S_T}, s{S_T}, {WS_OFF}
    v_lshl_add_u32 v20, v1, 1, s{S_T}
    """)
    a(f"""
    s_barrier
    """)
    if int(OPT.get("cpf", 2)) == 2: cpf(a)
    for n, b in enumerate(OPT.get("t0", "x").replace("x", "")):
        touch(a, int(b), 0, 60+4*n, 61+4*n)
        touch(a, int(b), 1, 62+4*n, 63+4*n)
    a(f"""
    v_mov_b32 v16, 0
    s_barrier
    ds_read_b128 v[4:7], v1 offset:{A_H}
    global_load_dwordx2 v[2:3], v16, {sr(S_DBG)} sc1
    """)
    if int(OPT.get("cpf", 2)) == 1: cpf(a)
    a(f"""
    s_waitcnt lgkmcnt(0)
    v_add_u32 v9, v4, v5
    v_add_u32 v10, v9, v6
    v_add_u32 v11, v10, v7
    v_mov_b32 v12, v11
    s_nop 1
    v_add_u32_dpp v12, v12, v12 row_shr:1 row_mask:0xf bank_mask:0xf bound_ctrl:0
    s_nop 1
    v_add_u32_dpp v12, v12, v12 row_shr:2 row_mask:0xf bank_mask:0xf bound_ctrl:0
    s_nop 1
    v_add_u32_dpp v12, v12, v12 row_shr:4 row_mask:0xf bank_mask:0xf bound_ctrl:0
    s_nop 1
    v_add_u32_dpp v12, v12, v12 row_shr:8 row_mask:0xf bank_mask:0xf bound_ctrl:0
    s_nop 1
    v_add_u32_dpp v12, v12, v12 row_bcast:15 row_mask:0xa bank_mask:0xf
    s_nop 1
    v_add_u32_dpp v12, v12, v12 row_bcast:31 row_mask:0xc bank_mask:0xf
    v_sub_u32 v12, v12, v11
    v_add_u32 v13, v12, v4
    v_add_u32 v14, v12, v9
    v_add_u32 v15, v12, v10
    ds_write_b128 v1, v[12:15] offset:{A_BS}
    s_waitcnt lgkmcnt(0)
    s_barrier
    """)
    for i in range(4):
        a(f"v_lshl_or_b32 v{24+2*i}, v{4+i}, 11, v{12+i}")
    a(f"v_mov_b32 v17, {L_NONCE}")
    a.label("A_pn")
    a(f"""
    s_waitcnt vmcnt(0)
    v_readfirstlane_b32 s{S_NON}, v2
    s_cmp_lg_u32 s{S_NON}, 0
    s_cbranch_scc1 A_pd
    global_load_dwordx2 v[2:3], v16, {sr(S_DBG)} sc1
    s_sub_u32 s{S_SPIN}, s{S_SPIN}, 1
    s_cmp_gt_i32 s{S_SPIN}, 0
    s_cbranch_scc1 A_pn
    s_waitcnt vmcnt(0)
    """)
    a.label("A_pd")
    a("ds_write_b64 v17, v[2:3]")
    for i in range(4):
        a(f"""
        v_or_b32 v{24+2*i}, v3, v{24+2*i}
        v_mov_b32 v{25+2*i}, v2
        """)
    a(f"""
    global_store_dwordx4 v20, v[24:27], {WSB} sc1
    global_store_dwordx4 v20, v[28:31], {WSB} offset:16 sc1
    v_readfirstlane_b32 s{S_NON}, v2
    v_readfirstlane_b32 s{S_NON+1}, v3
    v_lshlrev_b32 v40, 7, v1
    s_lshl_b32 s{S_T}, s2, 3
    v_add_u32 v40, s{S_T}, v40
    v_add_u32 v41, {64*2048}, v40
    v_add_u32 v42, {128*2048}, v40
    v_add_u32 v43, {192*2048}, v40
    s_mov_b32 s{S_T+7}, {TAGM}
    s_mov_b64 s[40:41], -1
    s_mov_b64 s[42:43], -1
    s_mov_b64 s[44:45], -1
    s_mov_b64 s[46:47], -1
    s_waitcnt lgkmcnt(0)
    s_barrier
    {"s_waitcnt vmcnt(0)" if int(OPT.get("pw0", 1)) else ""}
    """)
    a.label("A_poll")
    for r in range(4):
        a(f"""
        s_mov_b64 exec, {sr(40+2*r)}
        s_cbranch_execz A_ps{r}
        buffer_load_dwordx2 {vr(32+2*r,2)}, v{40+r}, {sr(S_OFFS,4)}, 0 offen sc1
        """)
        a.label(f"A_ps{r}")
    a(f"""
    s_mov_b64 exec, -1
    s_mov_b64 {sr(S_TM)}, 0
    s_waitcnt vmcnt(0)
    """)
    for r in range(4):
        a(f"""
        v_and_b32 v4, s{S_T+7}, v{32+2*r}
        v_cmp_ne_u32 {sr(40+2*r)}, s{S_NON+1}, v4
        v_cmp_ne_u32 vcc, s{S_NON}, v{33+2*r}
        s_or_b64 {sr(40+2*r)}, {sr(40+2*r)}, vcc
        s_or_b64 {sr(S_TM)}, {sr(S_TM)}, {sr(40+2*r)}
        """)
    a(f"""
    s_cmp_eq_u64 {sr(S_TM)}, 0
    s_cbranch_scc1 A_polled
    {"s_sleep " + OPT["slp"] if OPT.get("slp") else ""}
    s_sub_u32 s{S_SPIN}, s{S_SPIN}, 1
    s_cmp_gt_i32 s{S_SPIN}, 0
    s_cbranch_scc1 A_poll
    """)
    a.label("A_polled")
    a(f"""
    v_lshrrev_b32 v1, 2, v1
    v_mov_b32 v5, 0
    """)
    for r in range(4):
        a(f"""
        v_and_b32 v{32+2*r}, 0x3fffff, v{32+2*r}
        ds_write_b32 v1, v{32+2*r} offset:{A_OFS+256*r}
        """)
    a(f"""
    ds_write_b32 v1, v5 offset:{A_OFS+1024}
    s_branch A_end
    """)
    a.label("A_aux")
    a(f"""
    s_setprio 3
    s_waitcnt lgkmcnt(0)
    v_and_b32 v1, 63, v0
    s_cmp_ge_u32 s3, 160
    s_cbranch_scc1 A_wp1
    s_lshr_b32 s{S_T+3}, s3, 3
    s_and_b32 s{S_T+4}, s3, 3
    s_and_b32 s{S_T+5}, s3, 4
    s_lshl_b32 s{S_T+5}, s{S_T+5}, 1
    s_or_b32 s{S_T+4}, s{S_T+4}, s{S_T+5}
    s_cmp_lt_u32 s3, 64
    s_cbranch_scc1 A_wa
    s_sub_u32 s{S_T+5}, s3, 64
    s_and_b32 s{S_T+3}, s{S_T+5}, 7
    s_lshr_b32 s{S_T+4}, s{S_T+5}, 3
    s_cmp_lt_u32 s{S_T+4}, 4
    s_cselect_b32 s{S_T+5}, 4, 8
    s_add_u32 s{S_T+4}, s{S_T+4}, s{S_T+5}
    """)
    a.label("A_wa")
    a(f"""
    s_mul_i32 s{S_T+2}, s{S_T+3}, 20
    s_add_u32 s{S_T+2}, s{S_T+2}, s{S_T+4}
    v_and_b32 v2, 15, v1
    v_lshrrev_b32 v3, 4, v1
    s_lshl_b32 s{S_T+5}, s{S_T+4}, 5
    v_lshl_add_u32 v4, v3, 3, s{S_T+5}
    v_lshlrev_b32 v5, 1, v4
    s_lshl_b32 s{S_T+5}, s{S_T+3}, 4
    v_add_u32 v2, s{S_T+5}, v2
    v_lshlrev_b32 v2, 1, v2
    v_lshl_add_u32 v6, v4, 8, v2
    s_sub_u32 s{S_T+6}, s{W1}, {256*256}
    s_subb_u32 s{S_T+7}, s{W1+1}, 0
    s_cmp_lt_u32 s{S_T+4}, 8
    s_cselect_b32 s{S_T+6}, s{W0}, s{S_T+6}
    s_cselect_b32 s{S_T+7}, s{W0+1}, s{S_T+7}
    global_load_dwordx4 v[8:11], v5, {sr(WR)} {OPT.get('wnt', '')}
    """)
    for i in range(8):
        a(f"global_load_ushort v{12+i}, v6, {sr(S_T+6)} offset:{256*i} {OPT.get('wnt', '')}")
    a.label("A_wp1")
    T1 = OPT.get("t1", "0").replace("x", "")
    a(f"""
    s_barrier
    s_barrier
    s_barrier
    s_cmp_ge_u32 s3, 160
    s_cbranch_scc1 A_nw1
    s_lshl_b32 s{S_T+3}, s{S_T+2}, 10
    s_add_u32 s{S_T+3}, s{S_T+3}, {WS_WF}
    v_lshl_add_u32 v7, v1, 4, s{S_T+3}
    s_waitcnt vmcnt(0)
    """)
    for i in range(8):
        if i % 2 == 0:
            a(f"v_lshlrev_b32 v20, 16, v{8+i//2}")
        else:
            a(f"v_and_b32 v20, s{S_HI}, v{8+i//2}")
        a(f"v_lshlrev_b32 v{12+i}, 16, v{12+i}")
        a(f"v_mul_f32 v{12+i}, v20, v{12+i}")
    for i in range(4):
        a(f"v_cvt_pk_bf16_f32 v{24+i}, v{12+2*i}, v{13+2*i}")
    a(f"global_store_dwordx4 v7, v[24:27], {WSB} sc1")
    a.label("A_nw1")
    if not OPT.get("t1late"):
        for n, b in enumerate(T1):
            touch(a, int(b), 0, 32+4*n, 33+4*n)
            touch(a, int(b), 1, 34+4*n, 35+4*n)
    a(f"""
    v_mov_b32 v2, {L_NONCE}
    s_barrier
    ds_read_b64 v[4:5], v2
    """)
    if OPT.get("t1late"):
        for n, b in enumerate(T1):
            touch(a, int(b), 0, 32+4*n, 33+4*n)
            touch(a, int(b), 1, 34+4*n, 35+4*n)
    a(f"""
    s_waitcnt lgkmcnt(0)
    v_readfirstlane_b32 s{S_NON}, v4
    v_readfirstlane_b32 s{S_NON+1}, v5
    s_cmp_ge_u32 s3, 160
    s_cbranch_scc1 A_end
    s_lshl_b32 s{S_T+3}, s{S_T+2}, 10
    s_add_u32 s{S_T+3}, s{S_T+3}, {WS_WFLAG}
    v_lshl_add_u32 v11, v1, 4, s{S_T+3}
    v_mov_b32 v5, v4
    v_mov_b32 v6, v4
    v_mov_b32 v7, v4
    s_waitcnt vmcnt({2*len(T1)})
    global_store_dwordx4 v11, v[4:7], {WSB} sc1
    s_nop 1
    """)
    a.label("A_end")

def gen_main(a):
    K = NAME + "_kernel"
    a.raw(".p2align 8")
    a.raw(f".globl {K}")
    a.raw(f".type {K},@function")
    a.label(K)
    a(f"""
    s_cmp_ge_u32 s2, {NB}
    s_cbranch_scc1 M_done
    """)
    if OPT.get("empty"): a("s_endpgm")
    if DBG:
        for k in range(S_ST, S_ST+32): a(f"s_mov_b32 s{k}, 0")
    stamp(a, 0)
    stamp(a, 10, True)
    T = V_T
    a(f"""
    s_load_dwordx16 s[36:51], s[0:1], 0
    s_load_dwordx8 s[52:59], s[0:1], 64
    s_memrealtime {sr(S_NON)}
    s_mul_i32 s{S_T}, s2, {CH*4}
    v_lshl_add_u32 v6, v0, 3, s{S_T}
    v_cmp_gt_u32 vcc, 625, v0
    s_waitcnt lgkmcnt(0)
    s_mov_b64 exec, vcc
    s_cbranch_execz E_nod
    global_load_dwordx2 v[4:5], v6, s[44:45] nt
    """)
    a.label("E_nod")
    a(f"""
    s_mov_b64 exec, -1
    v_lshrrev_b32 v1, 6, v0
    v_mov_b32 v3, 0
    v_readfirstlane_b32 s{S_G}, v1
    v_lshlrev_b32 v2, 2, v0
    ds_write_b32 v2, v3
    ds_write_b32 v2, v3 offset:{A_H}
    s_mov_b64 {sr(S_X)}, s[36:37]
    s_mov_b64 {sr(S_OUT)}, s[54:55]
    s_mov_b64 {sr(S_DBG)}, s[56:57]
    s_mov_b64 {sr(S_WSB)}, s[58:59]
    s_or_b32 s{S_T}, s2, s{S_G}
    s_cmp_lg_u32 s{S_T}, 0
    s_cbranch_scc1 M_nonon
    s_lshl_b32 s{S_NON+1}, s{S_NON+1}, 22
    s_or_b32 s{S_NON}, s{S_NON}, 1
    v_mov_b32 v10, s{S_NON}
    v_mov_b32 v11, s{S_NON+1}
    s_mov_b64 exec, 1
    global_store_dwordx2 v3, v[10:11], {sr(S_DBG)} sc1
    s_mov_b64 exec, -1
    """)
    a.label("M_nonon")
    assert L_P // 4 <= NT
    a(f"""
    s_mov_b32 s3, s2
    s_and_b32 s{S_T}, s2, 7
    s_lshr_b32 s2, s2, 3
    s_lshl_b32 s{S_T}, s{S_T}, 5
    s_or_b32 s2, s2, s{S_T}
    s_mov_b32 s{S_X+2}, {N*1024}
    s_mov_b32 s{S_X+3}, 0x20000
    s_mov_b32 s{S_OUT+2}, {N*1024}
    s_mov_b32 s{S_OUT+3}, 0x20000
    s_mov_b32 s{S_REC+2}, {E*16}
    s_mov_b32 s{S_REC+3}, 0x20000
    s_mov_b32 s{S_OFFS+2}, {NB*2048}
    s_mov_b32 s{S_OFFS+3}, 0x20000
    s_mov_b32 s{S_HI}, 0xffff0000
    s_mov_b32 s{S_SPIN}, {SPIN_MAX}
    s_mov_b32 s{S_REC}, s{S_WSB}
    s_and_b32 s{S_REC+1}, s{S_WSB+1}, 0xffff
    s_add_u32 s{S_OFFS}, s{S_WSB}, {WS_OFF}
    s_addc_u32 s{S_OFFS+1}, s{S_WSB+1}, 0
    s_add_u32 s{S_WF}, s{S_WSB}, {WS_WF}
    s_addc_u32 s{S_WF+1}, s{S_WSB+1}, 0
    s_and_b32 s{S_OFFS+1}, s{S_OFFS+1}, 0xffff
    s_and_b32 s{S_X+1}, s{S_X+1}, 0xffff
    s_and_b32 s{S_OUT+1}, s{S_OUT+1}, 0xffff
    """)
    phase_a(a)
    a("s_setprio 0")
    if int(OPT.get("rm", 1)):
        a(f"""
        s_add_u32 s{S_G}, s{S_G}, 4
        s_cmp_ge_u32 s{S_G}, 12
        s_cselect_b32 s{S_T}, 12, 0
        s_sub_u32 s{S_G}, s{S_G}, s{S_T}
        """)
    a(f"""
    v_mov_b32 v{V_JB}, 0
    v_mov_b32 v{V_DONE}, 0
    s_mov_b32 s{S_RND}, 0
    v_and_b32 v{T}, 63, v0
    v_and_b32 v{T+1}, 15, v{T}
    v_lshrrev_b32 v{T+2}, 4, v{T}
    v_lshlrev_b32 v{V_N16}, 4, v{T+1}
    v_lshlrev_b32 v{V_N16+1}, 4, v{T+1}
    v_and_b32 v{V_C}, 3, v{T}
    v_bfe_u32 v{T+3}, v{T}, 2, 2
    s_mul_i32 s{S_T}, s{S_G}, {CAP*16}
    s_add_u32 s{S_T}, s{S_T}, {L_LIST}
    v_lshl_add_u32 v{V_VS}, v{T+2}, 4, s{S_T}
    v_lshl_add_u32 v{V_VC}, v{T+3}, 6, v{V_VS}
    s_cmp_lt_u32 s{S_G}, 4
    s_cselect_b32 s{S_T}, 2, 3
    s_cselect_b32 s{S_T+1}, 0, 12
    s_add_u32 s{S_T+1}, s{S_T+1}, s{S_G}
    v_lshlrev_b32 v{T+2}, s{S_T}, v{T+2}
    v_add_u32 v{T+2}, s{S_T+1}, v{T+2}
    v_cmp_gt_u32 {sr(S_FEX)}, 40, v{T+2}
    v_mul_u32_u24 v{V_PB}, {PSTR}, v{T+2}
    v_and_b32 v{T+2}, 15, v{T+2}
    v_xor_b32 v{T+2}, v{T+2}, v{T+1}
    v_lshl_add_u32 v{V_PB}, v{T+2}, 4, v{V_PB}
    v_add_u32 v{V_PB}, {L_P}, v{V_PB}
    s_mov_b32 s{S_T+7}, {TAGM}
    """)
    L = V_L[0]; L2 = V_L[1]
    if OPT.get("pst"): stamp(a, 12)
    a(f"""
    v_lshrrev_b32 v{T}, 3, v0
    v_lshlrev_b32 v{T}, 2, v{T}
    s_max_u32 s{S_T}, s{S_G}, 4
    s_sub_u32 s{S_T}, s{S_T}, 4
    s_mul_i32 s{S_T}, s{S_T}, {20*1024}
    s_lshl_b32 s{S_T+1}, s2, 2
    s_add_u32 s{S_T}, s{S_T}, s{S_T+1}
    s_add_u32 s{S_T}, s{S_T}, {WS_WFLAG}
    v_and_b32 v{V_ACC+51}, 63, v0
    v_min_u32 v{V_ACC+51}, 19, v{V_ACC+51}
    v_lshl_add_u32 v{V_ACC+51}, v{V_ACC+51}, 10, s{S_T}
    s_waitcnt {"vmcnt(0) " if OPT.get("ack") else ""}lgkmcnt(0)
    """)
    if OPT.get("pst"): stamp(a, 3)
    a("s_barrier")
    for r in range(3):
        a(f"ds_read_b32 v{V_OFF+r}, v{T} offset:{A_OFS+384*r}")
    a(f"""
    s_mov_b64 {sr(S_ACT)}, -1
    s_mov_b32 s{S_FIRST}, 0
    s_waitcnt lgkmcnt(0)
    s_branch M_w0
    """)
    a.label("M_init")
    a(f"""
    v_mov_b32 v{T+1}, 0
    v_lshlrev_b32 v{T}, 2, v0
    s_movk_i32 s{S_T}, {L_P//4}
    v_cmp_gt_u32 vcc, s{S_T}, v0
    s_and_saveexec_b64 {sr(S_TM)}, vcc
    ds_write_b32 v{T}, v{T+1}
    s_mov_b64 exec, {sr(S_TM)}
    s_mov_b64 {sr(S_ACT)}, -1
    s_waitcnt lgkmcnt(0)
    s_barrier
    s_mov_b32 s{S_FIRST}, 1
    """)
    a.label("M_w0")
    stamp(a, 1)
    a.label("M_window")
    L2 = V_ACC + 16
    REM = L2; ADR = L2 + 3; CTR = L2 + 6; RNK = L2 + 15; BAS = L2 + 24; ONE = L2 + 33
    WFV = L2 + 34; WFA = L2 + 35; TCA = 60; L = 100
    MK = [40, 42, 44, 46, 48, 50, 24, 26, 28]
    a(f"""
    v_and_b32 v{T}, 7, v0
    v_add_u32 v{T}, v{T}, v{V_JB}
    v_lshrrev_b32 v{T+1}, 3, v0
    v_mul_u32_u24 v{T+1}, {CH}, v{T+1}
    v_add_u32 v{T+1}, v{T+1}, v{T}
    v_mov_b32 v{ONE}, 1
    """)
    for r in range(3):
        a(f"""
        v_lshrrev_b32 v{REM+r}, 11, v{V_OFF+r}
        v_sub_u32 v{REM+r}, v{REM+r}, v{T}
        v_and_b32 v{ADR+r}, 0x7ff, v{V_OFF+r}
        v_add_lshl_u32 v{ADR+r}, v{ADR+r}, v{T+1}, 4
        """)
        if r: a(f"v_add_u32 v{ADR+r}, {96*CH*16*r}, v{ADR+r}")
    for k in range(9):
        r = k % 3; h = k // 3
        a(f"v_cmp_lt_i32 {sr(MK[k])}, {8*h}, v{REM+r}")
    a(f"""
    s_cmp_eq_u32 s{S_FIRST}, 0
    s_cbranch_scc1 M_rload
    """)
    for k in range(9):
        m = sr(MK[k])
        a(f"""
        v_and_b32 v{T+2}, {1<<k}, v{V_DONE}
        v_cmp_eq_u32 vcc, 0, v{T+2}
        s_and_b64 {m}, {m}, vcc
        s_and_b64 {m}, {m}, {sr(S_ACT)}
        """)
    a.label("M_rload")
    a(f"""
    s_or_b64 {sr(S_TM)}, {sr(MK[6])}, {sr(MK[7])}
    s_or_b64 {sr(S_TM)}, {sr(S_TM)}, {sr(MK[8])}
    s_cselect_b32 s{S_ANY2}, 1, 0
    """)
    for k in range(9):
        if k == 6:
            a(f"s_cmp_eq_u32 s{S_ANY2}, 0")
            a("s_cbranch_scc1 M_sl8")
        r = k % 3; h = k // 3
        a(f"""
        s_mov_b64 exec, {sr(MK[k])}
        {"s_cbranch_execz M_sl" + str(k) if k >= 2 else ""}
        buffer_load_dwordx4 {vr(L+4*k,4)}, v{ADR+r}, {sr(S_REC,4)}, 0 offen offset:{128*h} sc1
        """)
        a.label(f"M_sl{k}")
    a(f"""
    s_mov_b64 exec, -1
    s_cmp_lg_u32 s{S_FIRST}, 0
    s_cbranch_scc1 M_nofld
    global_load_dword v{WFV}, v{WFA}, {sr(S_WSB)} sc1
    """)
    a.label("M_nofld")
    a(f"""
    s_mov_b64 {sr(S_PEND)}, 0
    s_mov_b32 s{S_T}, {TAGM}
    s_waitcnt vmcnt(0)
    """)
    for k in range(9):
        if k == 6:
            a(f"s_cmp_eq_u32 s{S_ANY2}, 0")
            a("s_cbranch_scc1 M_sc8")
        a(f"""
        s_mov_b64 exec, {sr(MK[k])}
        {"s_cbranch_execz M_sc" + str(k) if k >= 3 else ""}
        v_and_b32 v{T}, s{S_T}, v{L+4*k+2}
        v_cmp_ne_u32 {sr(S_TM)}, s{S_NON+1}, v{T}
        v_cmp_ne_u32 vcc, s{S_NON}, v{L+4*k+3}
        v_bfe_u32 v{CTR+k}, v{L+4*k+2}, 16, 4
        v_and_b32 v{T}, 15, v{L+4*k+2}
        s_or_b64 {sr(S_PEND)}, {sr(S_PEND)}, {sr(S_TM)}
        s_or_b64 {sr(S_PEND)}, {sr(S_PEND)}, vcc
        v_lshl_or_b32 v{T}, v{CTR+k}, 4, v{T}
        v_lshlrev_b32 v{BAS+k}, 2, v{T}
        """)
        a.label(f"M_sc{k}")
    a(f"""
    s_mov_b64 exec, -1
    s_cmp_eq_u64 {sr(S_PEND)}, 0
    {"s_branch M_rok" if OPT.get("halfst") or OPT.get("noretry") else ""}
    s_cbranch_scc1 M_rok
    s_sleep {OPT.get('slp', 4)}
    s_sub_u32 s{S_SPIN}, s{S_SPIN}, 1
    s_cmp_gt_i32 s{S_SPIN}, 0
    s_cbranch_scc1 M_rload
    """)
    a.label("M_rok")
    if OPT.get("dl13"): a(f"s_sleep {OPT['dl13']}")
    stamp(a, 13)
    a(f"""
    s_cmp_lg_u32 s{S_FIRST}, 0
    s_cbranch_scc1 M_append
    """)
    for k in range(9):
        if k == 6:
            a(f"s_cmp_eq_u32 s{S_ANY2}, 0")
            a("s_cbranch_scc1 M_sa8")
        a(f"""
        s_mov_b64 exec, {sr(MK[k])}
        {"s_cbranch_execz M_sa" + str(k) if k >= 9 else ""}
        ds_add_rtn_u32 v{RNK+k}, v{BAS+k}, v{ONE} offset:{L_CC}
        """)
        a.label(f"M_sa{k}")
    SCN = V_ACC
    a(f"""
    s_mov_b64 exec, -1
    v_cmp_eq_u32 vcc, s{S_NON}, v{WFV}
    s_cmp_eq_u64 vcc, -1
    s_cselect_b32 s{S_WOK}, 1, 0
    s_cbranch_scc0 M_nowpre
    s_cmp_lt_u32 s{S_G}, {16 if OPT.get("db") else 4}
    s_cbranch_scc1 M_nowpre
    """)
    wload(a, WFA, [0, 1, 2, 3, 8, 9, 10, 11])
    a.label("M_nowpre")
    a(f"""
    v_and_b32 v{T}, 63, v0
    v_lshlrev_b32 v{T}, 4, v{T}
    v_cmp_lt_u32 vcc, 0, v{V_C}
    v_cmp_lt_u32 {sr(S_TM)}, 1, v{V_C}
    s_waitcnt lgkmcnt(0)
    s_barrier
    ds_read_b128 {vr(SCN,4)}, v{T} offset:{L_CC}
    """)
    if int(OPT.get("t2m", 0)):
        a(f"""
        s_cmp_ge_u32 s{S_G}, 4
        s_cbranch_scc1 M_t2m
        s_mul_i32 s{S_T+6}, s3, 236
        s_mul_i32 s{S_T+5}, s{S_G}, 59
        s_add_u32 s{S_T+6}, s{S_T+6}, s{S_T+5}
        v_and_b32 v{TCA}, 63, v0
        v_add_u32 v{TCA}, s{S_T+6}, v{TCA}
        v_and_b32 v{TCA+1}, 3, v{TCA}
        v_lshrrev_b32 v{TCA}, 2, v{TCA}
        s_movk_i32 s{S_T+5}, 5000
        v_cmp_gt_u32 {sr(S_PEND)}, s{S_T+5}, v{TCA}
        v_lshlrev_b32 v{TCA+2}, 11, v{TCA}
        v_add_u32 v{TCA+2}, 1024, v{TCA+2}
        v_subrev_u32 v{TCA}, s{S_T+5}, v{TCA}
        v_lshlrev_b32 v{TCA}, 10, v{TCA}
        v_add_u32 v{TCA}, 512, v{TCA}
        v_cndmask_b32 v{TCA}, v{TCA}, v{TCA+2}, {sr(S_PEND)}
        v_lshl_add_u32 v{TCA}, v{TCA+1}, 7, v{TCA}
        s_mov_b32 exec_hi, 0x7ffffff
        buffer_load_dword v{V_TCH}, v{TCA}, {sr(S_X,4)}, 0 offen
        s_mov_b64 exec, -1
        """)
        a.label("M_t2m")
    for n, b in enumerate(OPT.get("t2", "12").replace("x", "")):
        a(f"s_cmp_lg_u32 s{S_G}, {n}")
        a(f"s_cbranch_scc1 M_t2_{n}")
        touch(a, int(b), 0, TCA, V_TCH)
        touch(a, int(b), 1, TCA, TCA+1)
        a.label(f"M_t2_{n}")
    a(f"""
    s_waitcnt lgkmcnt(0)
    v_add_u32 v{SCN+4}, v{SCN}, v{SCN+1}
    v_add_u32 v{SCN+5}, v{SCN+4}, v{SCN+2}
    v_add_u32 v{SCN+6}, v{SCN+5}, v{SCN+3}
    s_nop 1
    v_mov_b32_dpp v{SCN+7}, v{SCN+6} quad_perm:[0,0,1,2] row_mask:0xf bank_mask:0xf
    v_cndmask_b32 v{SCN+7}, 0, v{SCN+7}, vcc
    v_add_u32 v{SCN+7}, v{SCN+7}, v{SCN+6}
    s_nop 1
    v_mov_b32_dpp v{SCN+8}, v{SCN+7} quad_perm:[0,0,0,1] row_mask:0xf bank_mask:0xf
    v_cndmask_b32 v{SCN+8}, 0, v{SCN+8}, {sr(S_TM)}
    v_add_u32 v{SCN+8}, v{SCN+8}, v{SCN+7}
    v_sub_u32 v{SCN+8}, v{SCN+8}, v{SCN+6}
    v_add_u32 v{SCN+9}, v{SCN+8}, v{SCN}
    v_add_u32 v{SCN+10}, v{SCN+8}, v{SCN+4}
    v_add_u32 v{SCN+11}, v{SCN+8}, v{SCN+5}
    s_mov_b32 exec_hi, 0xffff
    ds_write_b128 v{T}, {vr(SCN+8,4)} offset:{L_BASE}
    """)
    for k in range(9):
        if k == 6:
            a(f"s_cmp_eq_u32 s{S_ANY2}, 0")
            a("s_cbranch_scc1 M_sb8")
        a(f"""
        s_mov_b64 exec, {sr(MK[k])}
        {"s_cbranch_execz M_sb" + str(k) if k >= 9 else ""}
        ds_read_b32 v{BAS+k}, v{BAS+k} offset:{L_BASE}
        """)
        a.label(f"M_sb{k}")
    a("s_branch M_place")
    a.label("M_append")
    for k in range(9):
        a(f"""
        s_mov_b64 exec, {sr(MK[k])}
        v_lshlrev_b32 v{T+1}, 2, v{CTR+k}
        v_lshlrev_b32 v{T}, 6, v{CTR+k}
        ds_add_rtn_u32 v{RNK+k}, v{T+1}, v{ONE} offset:{L_ACNT}
        ds_read_b32 v{BAS+k}, v{T} offset:{L_BASE+60}
        ds_read_b32 v{T+2}, v{T} offset:{L_CC+60}
        s_waitcnt lgkmcnt(0)
        v_add_u32 v{BAS+k}, v{BAS+k}, v{T+2}
        """)
    a.label("M_place")
    a(f"""
    s_mov_b64 exec, -1
    s_mov_b64 {sr(S_PEND)}, 0
    s_mov_b32 s{S_T}, {L_LIST}
    s_movk_i32 s{S_T+2}, {CAP}
    s_mov_b32 s{S_FIRST}, 1
    """)
    for k in range(9):
        if k == 6:
            a(f"s_cmp_eq_u32 s{S_ANY2}, 0")
            a("s_cbranch_scc1 M_se8")
        a(f"""
        {"s_cmp_eq_u64 " + sr(MK[k]) + ", 0" if k >= 3 else ""}
        {"s_cbranch_scc1 M_se" + str(k) if k >= 3 else ""}
        v_bfe_u32 v{T+1}, v{L+4*k+2}, 14, 2
        v_and_b32 v{L+4*k+2}, 0x3fff, v{L+4*k+2}
        v_lshlrev_b32 v{L+4*k+3}, v{T+1}, v{ONE}
        v_lshlrev_b32 v{L+4*k+2}, 10, v{L+4*k+2}
        v_mul_u32_u24 v{CTR+k}, s{S_T+2}, v{CTR+k}
        """)
        a.label(f"M_se{k}")
    a("s_waitcnt lgkmcnt(0)")
    for k in range(9):
        if k == 6:
            a(f"s_cmp_eq_u32 s{S_ANY2}, 0")
            a("s_cbranch_scc1 M_sp8")
        m = sr(MK[k])
        a(f"""
        s_mov_b64 exec, {m}
        {"s_cbranch_execz M_sp" + str(k) if k >= 3 else ""}
        v_add_u32 v{RNK+k}, v{RNK+k}, v{BAS+k}
        v_cmp_gt_u32 vcc, s{S_T+2}, v{RNK+k}
        v_add_u32 v{T}, v{CTR+k}, v{RNK+k}
        v_lshl_add_u32 v{CTR+k}, v{T}, 4, s{S_T}
        s_andn2_b64 {sr(S_TM)}, {m}, vcc
        s_or_b64 {sr(S_PEND)}, {sr(S_PEND)}, {sr(S_TM)}
        s_mov_b64 exec, vcc
        ds_write_b128 v{CTR+k}, {vr(L+4*k,4)}
        v_or_b32 v{V_DONE}, {1<<k}, v{V_DONE}
        """)
        a.label(f"M_sp{k}")
    a(f"""
    s_mov_b64 exec, -1
    v_mov_b32 v{T+2}, {L_MORE}
    v_max3_i32 v{T}, v{REM}, v{REM+1}, v{REM+2}
    s_mov_b64 exec, {sr(S_PEND)}
    ds_write_b32 v{T+2}, v{ONE}
    s_andn2_b64 {sr(S_ACT)}, {sr(S_ACT)}, {sr(S_PEND)}
    s_mov_b64 exec, {sr(S_ACT)}
    v_add_u32 v{V_JB}, 24, v{V_JB}
    v_mov_b32 v{V_DONE}, 0
    v_cmp_lt_i32 vcc, 24, v{T}
    s_mov_b64 exec, -1
    s_cmp_lg_u64 vcc, 0
    s_cbranch_scc1 M_window
    s_lshl_b32 s{S_T}, s{S_G}, 6
    v_mov_b32 v{T}, s{S_T}
    s_lshl_b32 s{S_T}, s{S_G}, 2
    v_mov_b32 v{T+1}, s{S_T}
    s_waitcnt lgkmcnt(0)
    """)
    stamp(a, 15)
    if OPT.get("dl15"): a(f"s_sleep {OPT['dl15']}")
    a(f"""
    s_barrier
    ds_read_b32 v{V_A[0]}, v{T} offset:{L_BASE+60}
    ds_read_b32 v{V_A[0]+1}, v{T} offset:{L_CC+60}
    ds_read_b32 v{V_A[0]+2}, v{T+1} offset:{L_ACNT}
    ds_read_b32 v{V_A[0]+3}, v{T+2}
    v_and_b32 v{T}, 63, v0
    v_mov_b32 v{V_B[0]}, {OOBOFF}
    v_mov_b32 v{V_B[0]+1}, 0
    s_mov_b32 s{S_S1}, 0
    s_mov_b32 s{S_S2}, 0
    s_mov_b32 s{S_B1}, 0
    s_mov_b32 s{S_PLO}, 0x05040100
    s_mov_b32 s{S_PHI}, 0x07060302
    s_waitcnt lgkmcnt(0)
    v_add3_u32 v{T+1}, v{V_A[0]}, v{V_A[0]+1}, v{V_A[0]+2}
    v_readfirstlane_b32 s{S_MORE}, v{V_A[0]+3}
    v_readfirstlane_b32 s{S_T}, v{T+1}
    s_min_u32 s{S_T}, s{S_T}, {CAP}
    s_add_u32 s{S_S}, s{S_T}, 31
    s_lshr_b32 s{S_S}, s{S_S}, 5
    s_max_u32 s{S_S}, s{S_S}, 1
    s_lshl_b32 s{S_T+1}, s{S_S}, 5
    v_add_u32 v{T}, s{S_T}, v{T}
    v_cmp_gt_u32 vcc, s{S_T+1}, v{T}
    s_mul_i32 s{S_T+2}, s{S_G}, {CAP*16}
    s_add_u32 s{S_T+2}, s{S_T+2}, {L_LIST+8}
    v_lshl_add_u32 v{T}, v{T}, 4, s{S_T+2}
    s_mov_b64 exec, vcc
    ds_write_b64 v{T}, {vr(V_B[0],2)}
    s_mov_b64 exec, -1
    s_sub_u32 s{S_NLAST}, s{S_T}, s{S_T+1}
    s_add_u32 s{S_NLAST}, s{S_NLAST}, 35
    s_lshr_b32 s{S_NLAST}, s{S_NLAST}, 2
    """)
    meta_reads(a)
    a(f"""
    s_cmp_gt_u32 s{S_S}, 2
    s_cbranch_scc1 M_nozl
    """)
    for k in range(32):
        a(f"v_mov_b32 v{V_L[0]+k}, 0")
    a(f"""
    s_cmp_ge_u32 s{S_G}, {16 if OPT.get("db") else 4}
    s_cbranch_scc1 M_nozl
    """)
    for k in range(32):
        a(f"v_mov_b32 v{V_L[1]+k}, 0")
    a.label("M_nozl")
    stamp(a, 2)
    setprio(a, 0)
    a(f"""
    s_waitcnt lgkmcnt(0)
    s_cmp_ge_u32 s{S_G}, {16 if OPT.get("db") else 4}
    s_cbranch_scc1 M_sglb
    """)
    stage_x(a, 0, "i", wait=False)
    a.label("M_goi")
    advance(a)
    a(f"s_mov_b32 s{S_FIRST}, 1")
    for p in range(2):
        a.label(f"M_it{p}")
        a(f"""
        s_waitcnt lgkmcnt(0)
        s_cmp_eq_u32 s{S_B1}, 1024
        s_cbranch_scc1 M_w{p}_0
        """)
        if OPT.get("hx"):
            a(f"""
            s_cmp_ge_u32 s{S_B1}, {OPT['hx']}
            s_cbranch_scc1 M_hx{p}
            s_waitcnt vmcnt({OPT.get('hw', 0)})
            """)
            a.label(f"M_hx{p}")
        stage_x(a, p ^ 1, str(p))
        a.label(f"M_go{p}")
        a(f"""
        s_cmp_eq_u32 s{S_FIRST}, 0
        s_cbranch_scc1 M_cn{p}
        """)
        compute(a, p, True)
        a(f"s_branch M_cd{p}")
        a.label(f"M_cn{p}")
        compute(a, p, False)
        a.label(f"M_cd{p}")
        a(f"""
        s_mov_b32 s{S_FIRST}, 0
        s_cmp_lg_u32 s{S_S1}, 0
        s_cbranch_scc1 M_nofl{p}
        s_mov_b32 s{S_FIRST}, 1
        s_call_b64 {sr(S_RET)}, M_flush
        s_cmp_eq_u32 s{S_B1}, 1024
        s_cbranch_scc1 M_end
        """)
        a.label(f"M_nofl{p}")
        advance(a)
        if p == 1:
            a("s_branch M_it0")
    def prep():
        for i in range(0, 8, 2):
            a(f"v_pk_add_f32 {vr(V_IX+i,2)}, {vr(V_IX+i,2)}, {vr(V_N16,2)}")
        a(f"""
        v_bfe_i32 v{V_OH}, v{V_OH}, v{V_C}, 1
        v_bfe_i32 v{V_OH+1}, v{V_OH+1}, v{V_C}, 1
        v_and_b32 v{V_OH}, v{V_OH}, v{V_CA}
        v_and_b32 v{V_OH+1}, v{V_OH+1}, v{V_CA}
        """)
    def load(i):
        a(f"buffer_load_dwordx4 {vr(V_L[0]+4*i,4)}, v{V_IX+i}, {sr(S_X,4)}, s{S_B1} offen")
    a.label("M_sglb")
    a(f"s_mov_b32 s{S_FLP}, 0")
    prep()
    tick(a, None)
    a.label("M_its")
    a(f"""
    s_add_u32 s{S_S2}, s{S_S1}, 1
    s_cmp_eq_u32 s{S_S2}, s{S_S}
    s_cbranch_scc1 M_parts
    """)
    a.label("M_fulls")
    for i in range(8): load(i)
    a("s_branch M_pms")
    a.label("M_parts")
    a(f"""
    s_mov_b32 s{S_S2}, 0
    s_cmp_eq_u32 s{S_NLAST}, 8
    s_cbranch_scc1 M_fulls
    """)
    for i in range(7):
        a(f"s_cmp_eq_u32 s{S_NLAST}, {i}")
        a(f"s_cbranch_scc1 M_pms")
        load(i)
    a.label("M_pms")
    tick(a, 1)
    a(f"""
    ds_read_b64_tr_b16 {vr(V_A[0],2)}, v{V_OH}
    ds_read_b64_tr_b16 {vr(V_A[0]+2,2)}, v{V_OH+1} offset:256
    """)
    meta_reads(a)
    a(f"""
    s_cmp_eq_u32 s{S_FLP}, 0
    s_cbranch_scc1 M_nofls
    """)
    a.label("M_dofl")
    a(f"""
    s_call_b64 {sr(S_RET)}, M_flush
    s_cmp_eq_u32 s{S_B1}, 1024
    s_cbranch_scc1 M_end
    s_cmp_lg_u32 s{S_B1}, {OPT.get("midb", 512)}
    s_cbranch_scc1 M_nofls
    s_cmp_lg_u32 s{S_MORE}, 0
    s_cbranch_scc1 M_nofls
    """)
    mid_stage(a)
    a.label("M_nofls")
    a("s_waitcnt lgkmcnt(0)")
    prep()
    tick(a, 13)
    if OPT.get("prof"):
        a("s_waitcnt vmcnt(0)")
        tick(a, 15)
        a(f"s_add_u32 s{S_ST+8}, s{S_ST+8}, 1")
    a(f"""
    s_cmp_eq_u32 s{S_S1}, 0
    s_mov_b32 s{S_S1}, s{S_S2}
    s_waitcnt vmcnt(0)
    s_cbranch_scc0 M_cns
    """)
    compute(a, 0, True)
    a("s_branch M_cds")
    a.label("M_cns")
    compute(a, 0, False)
    a.label("M_cds")
    tick(a, 3)
    a(f"""
    s_cmp_eq_u32 s{S_S2}, 0
    s_cselect_b32 s{S_FLP}, 256, 0
    s_add_u32 s{S_B1}, s{S_B1}, s{S_FLP}
    s_cmp_eq_u32 s{S_B1}, 1024
    s_cbranch_scc0 M_its
    s_cmp_lg_u32 s{S_MORE}, 0
    s_cbranch_scc1 M_dofl
    """)
    wload(a, V_T+2, [12, 13, 14, 15, 16, 17, 18, 19])
    a("s_branch M_dofl")
    flush_sub(a)
    a.label("M_end")
    a(f"""
    s_cmp_eq_u32 s{S_MORE}, 0
    s_cbranch_scc1 M_gemm
    s_mov_b32 s{S_RND}, 1
    s_waitcnt lgkmcnt(0)
    s_barrier
    s_branch M_init
    """)
    a.label("M_gemm")
    if OPT.get("nogemm"): a("s_endpgm")
    gemm(a)
    a.label("M_done")
    a("s_endpgm")

OACC = {(0, 0): 8, (1, 0): 20, (2, 0): 36}
O1 = [(0, 1), (0, 2), (0, 3), (1, 1), (1, 2), (1, 3), (2, 1), (2, 3)]
for n_, k_ in enumerate(O1): OACC[k_] = 136 + 4*n_

def wflag_spin(a, tag, va, vd):
    a(f"""
    s_sub_u32 s{S_T}, s{S_G}, 4
    s_mul_i32 s{S_T}, s{S_T}, {20*1024}
    s_lshl_b32 s{S_T+1}, s2, 2
    s_add_u32 s{S_T}, s{S_T}, s{S_T+1}
    s_add_u32 s{S_T}, s{S_T}, {WS_WFLAG}
    v_and_b32 v{va}, 63, v0
    v_min_u32 v{va}, 19, v{va}
    v_lshl_add_u32 v{va}, v{va}, 10, s{S_T}
    """)
    a.label(f"M_wfchk{tag}")
    a(f"""
    global_load_dword v{vd}, v{va}, {sr(S_WSB)} sc1
    s_waitcnt vmcnt(0)
    v_cmp_eq_u32 vcc, s{S_NON}, v{vd}
    s_cmp_eq_u64 vcc, -1
    s_cbranch_scc1 M_wfld{tag}
    s_sub_u32 s{S_SPIN}, s{S_SPIN}, 1
    s_cmp_gt_i32 s{S_SPIN}, 0
    s_cbranch_scc1 M_wfchk{tag}
    """)
    a.label(f"M_wfld{tag}")

def mid_stage(a):
    B0 = 7; DL = 19; X0 = 12; X2 = 13; XP = 14; TT = 15
    bufs = [40, 44, 64, 68, 72, 76]
    TR = {k: 48 + 4*n for n, k in enumerate(O1[4:])}
    a(f"""
    s_cmp_lg_u32 s{S_WOK}, 0
    s_cbranch_scc1 M_midw
    """)
    wflag_spin(a, "m", X0, X2)
    wload(a, X0, [0, 1, 2, 3, 8, 9, 10, 11])
    a(f"""
    s_waitcnt vmcnt(0)
    s_mov_b32 s{S_WOK}, 1
    """)
    a.label("M_midw")
    a(f"""
    v_mov_b32 v{XP}, {L_FC0}
    ds_read_b32 v{TT}, v{XP}
    v_and_b32 v{X0}, 15, v0
    v_bfe_u32 v{X2}, v0, 4, 2
    v_mul_u32_u24 v{DL}, {PSTR}, v{X0}
    v_xor_b32 v{B0}, v{X2}, v{X0}
    v_lshl_add_u32 v{B0}, v{B0}, 4, v{DL}
    v_add_u32 v{B0}, {L_P}, v{B0}
    v_lshrrev_b32 v{DL}, 3, v{X0}
    v_mul_i32_i24 v{DL}, {768 - 8*PSTR}, v{DL}
    """)
    a.label("M_midf")
    a(f"""
    s_waitcnt lgkmcnt(0)
    v_readfirstlane_b32 s{S_T}, v{TT}
    s_cmp_ge_u32 s{S_T}, {NG}
    s_cbranch_scc1 M_midg
    s_sleep 1
    ds_read_b32 v{TT}, v{XP}
    s_branch M_midf
    """)
    a.label("M_midg")
    steps = []
    for k4 in range(4):
        for t in range(3): steps.append((t, 0, 0, k4, k4))
    for k4 in range(4):
        for (t, o) in O1[4:] + O1[:4]: steps.append((t, o, comp011(o-1), k4, 8 + k4))
    NBF = len(bufs)
    cur = [None]
    def rd(n):
        t, o, c, k4, ws = steps[n]
        key = (k4, ws >= 8)
        if cur[0] != key:
            cur[0] = key
            a(f"v_xor_b32 v{X0}, {64*k4}, v{B0}")
            a(f"v_add_u32 v{X2}, {32*PSTR}, v{X0}")
            if ws >= 8: a(f"v_add_u32 v{XP}, v{X2}, v{DL}")
        base = X0 if t < 2 else (XP if o == 1 else X2)
        off = c*256 + (16*PSTR if t == 1 else 0)
        a(f"ds_read_b128 {vr(bufs[n % NBF],4)}, v{base} offset:{off}")
    for n in range(NBF - 1): rd(n)
    for n in range(len(steps)):
        t, o, c, k4, ws = steps[n]
        if n + NBF - 1 < len(steps): rd(n + NBF - 1)
        a(f"s_waitcnt lgkmcnt({min(NBF - 1, len(steps) - 1 - n)})")
        acc = vr(TR.get((t, o), OACC[(t, o)]), 4)
        a(f"v_mfma_f32_16x16x32_bf16 {acc}, {vr(WREG[ws],4)}, {vr(bufs[n % NBF],4)}, {'0' if k4 == 0 else acc}")
    for k in O1[4:]:
        for r in range(4): a(f"v_mov_b32 v{OACC[k]+r}, v{TR[k]+r}")

def gemm(a):
    BB = 40; NBB = 6
    PKB = 80; PKO = 0; T2B = 76; LN = 16; OA = 17; WA = 18
    def store_row(rho_s, vb, light):
        a(f"""
        s_mul_i32 s{S_T}, s{rho_s}, {OSTR}
        s_add_u32 s{S_T}, s{S_T}, {L_LIST}
        v_add_u32 v{WA}, s{S_T}, v{LN}
        ds_read_b128 {vr(vb,4)}, v{WA}
        """)
    def row_off(rho_s, dst, light):
        if light:
            a(f"""
            s_sub_u32 s{S_T}, s{rho_s}, 16
            s_lshr_b32 s{S_T+1}, s{S_T}, 3
            s_and_b32 s{S_T}, s{S_T}, 7
            s_add_u32 s{S_T}, s{S_T}, 4
            """)
        else:
            a(f"""
            s_lshr_b32 s{S_T+1}, s{rho_s}, 2
            s_and_b32 s{S_T}, s{rho_s}, 3
            """)
        a(f"""
        s_mul_i32 s{S_T+1}, s{S_T+1}, 12
        s_add_u32 s{S_T}, s{S_T}, s{S_T+1}
        s_lshl_b32 s{S_T}, s{S_T}, 18
        s_lshl_b32 s{S_T+1}, s3, 10
        s_add_u32 s{S_T}, s{S_T}, s{S_T+1}
        v_add_u32 v{dst}, s{S_T}, v{LN}
        """)
    a(f"""
    s_setprio {OPT.get("pg", 0)}
    s_waitcnt lgkmcnt(0)
    v_and_b32 v{LN}, 63, v0
    s_cmp_ge_u32 s{S_G}, 4
    s_cbranch_scc1 M_gw
    v_lshlrev_b32 v{LN}, 4, v{LN}
    """)
    for k in range(6):
        a(f"s_add_u32 s{S_T+3}, s{S_G}, {16 + 4*k}")
        row_off(S_T+3, 40 + k, True)
    a(f"""
    s_mul_i32 s{S_T}, s{S_G}, {OSTR}
    s_add_u32 s{S_T}, s{S_T}, {L_LIST + 16*OSTR}
    v_add_u32 v{WA}, s{S_T}, v{LN}
    s_waitcnt lgkmcnt(0)
    s_barrier
    """)
    for k in range(6):
        a(f"ds_read_b128 {vr(48+4*k,4)}, v{WA} offset:{4*OSTR*k}")
    for k in range(6):
        a(f"s_waitcnt lgkmcnt({5-k})")
        a(f"buffer_store_dwordx4 {vr(48+4*k,4)}, v{40+k}, {sr(S_OUT,4)}, 0 offen {fl('of')}")
    a("s_branch M_st")
    a.label("M_gw")
    a(f"""
    s_waitcnt lgkmcnt(0)
    """)
    late = [12, 13, 14, 15, 16, 17, 18, 19, 4, 5, 6, 7]
    wload(a, WA, [4, 5, 6, 7])
    a(f"""
    v_mov_b32 v14, {L_FC}
    ds_read_b32 v15, v14
    v_and_b32 v12, 15, v{LN}
    v_lshrrev_b32 v13, 4, v{LN}
    v_mul_u32_u24 v{OA}, {PSTR}, v12
    v_xor_b32 v1, v13, v12
    v_lshl_add_u32 v1, v1, 4, v{OA}
    v_add_u32 v1, {L_P}, v1
    v_xor_b32 v2, 64, v1
    v_xor_b32 v3, 128, v1
    v_xor_b32 v4, 192, v1
    """)
    setup = [f"v_add_u32 v{T2B+k4}, {32*PSTR}, v{1+k4}" for k4 in range(4)]
    setup += [f"v_lshrrev_b32 v{PKO}, 3, v12", f"v_mul_i32_i24 v{PKB+3}, {768 - 8*PSTR}, v{PKO}"]
    setup += [f"v_add_u32 v{PKB+k4}, v{T2B+k4}, v{PKB+3}" for k4 in range(4)]
    setup += [f"s_lshl_b32 s{S_T+1}, s{S_G}, 5", f"s_add_u32 s{S_T+1}, s{S_T+1}, {L_LIST - 128}",
              f"v_mul_u32_u24 v{OA}, {OSTR}, v12", f"v_lshl_add_u32 v{OA}, v13, 3, v{OA}", f"v_add_u32 v{OA}, s{S_T+1}, v{OA}",
              f"v_mul_i32_i24 v{PKO}, {256 - 8*OSTR}, v{PKO}", f"v_add_u32 v{PKO}, v{PKO}, v{OA}",
              f"s_mov_b32 s{S_T+2}, 0xbfb8aa3b", f"v_lshlrev_b32 v{LN}, 4, v{LN}"]
    for x in setup: a(x)
    def spin(tag, off, n):
        a.label(f"M_fcw{tag}")
        a(f"""
        s_waitcnt lgkmcnt(0)
        v_readfirstlane_b32 s{S_T}, v15
        s_cmp_ge_u32 s{S_T}, {n}
        s_cbranch_scc1 M_fcok{tag}
        s_sleep 1
        ds_read_b32 v15, v14 offset:{off}
        s_branch M_fcw{tag}
        """)
        a.label(f"M_fcok{tag}")
    spin("a", 0, NG)
    if not OPT.get("pst"): stamp(a, 12)
    st1 = []
    for k4 in range(4):
        for t in range(3):
            st1.append((t, 1, comp101(0), k4, 12 + k4))
            st1.append((t, 2, comp101(1), k4, 12 + k4))
    for k4 in range(4):
        for t in range(3):
            st1.append((t, 3, comp111(2), k4, 16 + k4))
    st1 = [x for x in st1 if not (x[0] == 2 and x[1] == 2)]
    def late_steps(tiles):
        st = []
        for k4 in range(4):
            for t in tiles: st.append((t, 0, 1, k4, 4 + k4))
        for t in tiles:
            for k4 in range(4):
                st.append((t, 3, comp101(2), k4, 12 + k4))
                st.append((t, 1, comp111(0), k4, 16 + k4))
                st.append((t, 2, comp111(1), k4, 16 + k4))
        return [x for x in st if not (x[0] == 2 and x[1] == 2)]
    started = set()
    wmax = [-1]
    def run(steps, fill):
        q = []
        def rd(n):
            t, o, c, k4, ws = steps[n]
            base = (1 + k4) if t < 2 else ((PKB + k4) if o == 1 else (T2B + k4))
            off = c*256 + (16*PSTR if t == 1 else 0)
            a(f"ds_read_b128 {vr(BB+4*(n%NBB),4)}, v{base} offset:{off}")
            q.append(n)
        n_steps = len(steps)
        for n in range(NBB - 1): rd(n)
        for n in range(n_steps):
            t, o, c, k4, ws = steps[n]
            if n + NBB - 1 < n_steps: rd(n + NBB - 1)
            pend = len(q) - 1 - q.index(n)
            assert pend <= 15
            idx = late.index(ws) if ws in late else -1
            w = f"lgkmcnt({pend})"
            if idx > wmax[0]:
                w = f"vmcnt({len(late) - 1 - idx}) " + w
                wmax[0] = idx
            a("s_waitcnt " + w)
            acc = vr(OACC[(t, o)], 4)
            first = False
            a(f"v_mfma_f32_16x16x32_bf16 {acc}, {vr(WREG[ws],4)}, {vr(BB+4*(n%NBB),4)}, {'0' if first else acc}")
            for x in fill.get(n, []):
                a(x)
                if x.startswith("ds_"): q.append(-1)
    GT = 64
    def gate_ops(t):
        A0 = OACC[(t, 0)]; g = GT + 4*t
        o = [f"v_mul_f32 v{g+r}, s{S_T+2}, v{A0+r}" for r in range(4)]
        o += [f"v_exp_f32 v{g+r}, v{g+r}" for r in range(4)]
        o += [f"v_cvt_pk_bf16_f32 v{A0}, v{A0}, v{A0+1}", f"v_cvt_pk_bf16_f32 v{A0+1}, v{A0+2}, v{A0+3}"]
        o += [f"ds_write_b64 v{OA}, {vr(A0,2)} offset:{16*OSTR*t}"]
        o += [f"v_add_f32 v{g+r}, 1.0, v{g+r}" for r in range(4)]
        o += [f"v_rcp_f32 v{g+r}, v{g+r}" for r in range(4)]
        if t == 2:
            o += ["s_nop 1"]
            o += [f"v_mov_b32_dpp v{g+r}, v{g+r} row_shr:8 row_mask:0xf bank_mask:0xc" for r in range(4)]
        return o
    def fin_ops(t):
        o = []
        for i in ([2, 0, 1] if t < 2 else [2, 0]):
            B0 = OACC[(t, 1 + i)]
            o += [f"v_pk_mul_f32 {vr(B0+r,2)}, {vr(B0+r,2)}, {vr(GT+4*t+r,2)}" for r in (0, 2)]
            o += [f"v_cvt_pk_bf16_f32 v{B0}, v{B0}, v{B0+1}", f"v_cvt_pk_bf16_f32 v{B0+1}, v{B0+2}, v{B0+3}"]
            if t == 2 and i == 0: o += [f"ds_write_b64 v{PKO}, {vr(B0,2)} offset:{32*OSTR + 256}"]
            else: o += [f"ds_write_b64 v{OA}, {vr(B0,2)} offset:{16*OSTR*t + 256*(i+1)}"]
        return o
    def spread(fill, ops, n0, n1):
        cnt = n1 - n0
        for j, op in enumerate(ops):
            fill.setdefault(n0 + j * cnt // len(ops), []).append(op)
    f1 = {}
    f1.setdefault(len(st1) - 4, []).append(f"ds_read_b32 v15, v14 offset:4")
    run(st1, f1)
    a("s_setprio 0")
    spin("b", 4, 8)
    f2 = {}
    spread(f2, gate_ops(1) + gate_ops(2), 11, 23)
    spread(f2, fin_ops(1), 23, 27)
    run(late_steps([1, 2]), f2)
    a("s_nop 5")
    for x in fin_ops(2): a(x)
    a("s_waitcnt lgkmcnt(0)")
    if not OPT.get("pst"): stamp(a, 14)
    a("s_barrier")
    stamp(a, 7)
    f3 = {}
    spread(f3, gate_ops(0), 7, 15)
    run(late_steps([0]), f3)
    a("s_nop 5")
    for x in fin_ops(0): a(x)
    a.label("M_st")
    row_off(S_G, 12, False)
    a(f"""
    s_add_u32 s{S_T+3}, s{S_G}, 8
    """)
    row_off(S_T+3, 13, False)
    a(f"""
    s_mul_i32 s{S_T}, s{S_G}, {OSTR}
    s_add_u32 s{S_T}, s{S_T}, {L_LIST}
    v_add_u32 v{WA}, s{S_T}, v{LN}
    s_waitcnt lgkmcnt(0)
    s_barrier
    """)
    stamp(a, 8)
    a(f"""
    ds_read_b128 v[72:75], v{WA}
    s_and_b32 s{S_T}, s{S_G}, 12
    s_cmp_lg_u32 s{S_T}, 4
    s_cbranch_scc1 M_st3
    ds_read_b128 v[76:79], v{WA} offset:{8*OSTR}
    s_waitcnt lgkmcnt(0)
    buffer_store_dwordx4 v[76:79], v13, {sr(S_OUT,4)}, 0 offen {fl('of')}
    """)
    a.label("M_st3")
    a(f"""
    s_waitcnt lgkmcnt(0)
    buffer_store_dwordx4 v[72:75], v12, {sr(S_OUT,4)}, 0 offen {fl('of')}
    """)
    stamp_dump(a)

def kd(a, name, vg, sg):
    acc = (vg + 3) // 4 * 4
    a.raw(f""".p2align 6
.amdhsa_kernel {name}
  .amdhsa_next_free_vgpr {vg}
  .amdhsa_next_free_sgpr {sg}
  .amdhsa_accum_offset {acc}
  .amdhsa_group_segment_fixed_size 0
  .amdhsa_kernarg_size 96
  .amdhsa_user_sgpr_count 2
  .amdhsa_user_sgpr_kernarg_segment_ptr 1
  .amdhsa_system_sgpr_workgroup_id_x 1
  .amdhsa_float_denorm_mode_32 3
.end_amdhsa_kernel""")

def main():
    global DBG
    OPT.update(dict(x.split("=") for x in sys.argv[2:]))
    DBG = bool(int(OPT.get("dbg", 0)))
    a = Asm()
    ref = open(f"cdna_kernels/{NAME}.s.ref").read().split("\n")
    for ln in ref:
        if ln.startswith(";") and "@launch" not in ln and "Override" not in ln and "grid=ceil" not in ln:
            a.raw(ln)
    a.raw(f"; @launch kernel={NAME}_kernel grid=({NB},1,1) block=({NT},1,1) lds={L_TOT}")
    a.raw('.amdgcn_target "amdgcn-amd-amdhsa--gfx950"')
    a.raw(".text")
    gen_main(a)
    a.raw('.section .rodata,"a"')
    kd(a, NAME + "_kernel", NVG, 102 if DBG else 70)
    open(sys.argv[1], "w").write(a.text())

main()
```

```python
import sys

NAME = "gather_scatter__tensor_product_equiv_equiformer__graph"
N = 10000
E = 320000
NB = 256
CH = 1250
WS_OFF = 0x500000
WS_WF = 0x600000
WS_WFLAG = 0x640000
WS_PF32 = 0x1000000
SPIN_MAX = 1 << 18
TAGM = 0xffc00000

NG = 12
NT = NG * 64
CAP = 224
PSTR = 2816
L_CC = 512
L_BASE = L_CC + NG * 64
L_ACNT = L_BASE + NG * 64
L_MORE = L_ACNT + 60
L_NONCE = L_ACNT + 64
L_FC3 = L_ACNT + 84
L_FC0 = L_ACNT + 88
L_FC = L_ACNT + 80
OSTR = 1040
L_P = L_ACNT + 256
L_LIST = L_P + 40 * PSTR
L_TOT = L_LIST + NG * CAP * 16
assert L_TOT <= 163840 and L_P % 256 == 0
OOBOFF = 0x00FFFC00

OPT = {}
DBG = False

class Asm:
    def __init__(self):
        self.l = []
    def __call__(self, s):
        for x in s.split("\n"):
            x = x.strip()
            if x:
                self.l.append("    " + x)
    def label(self, s):
        self.l.append(s + ":")
    def raw(self, s):
        self.l.append(s)
    def text(self):
        return "\n".join(self.l) + "\n"

def vr(a, n):
    return f"v[{a}:{a+n-1}]"
def sr(a, n=2):
    return f"s[{a}:{a+n-1}]"
def fl(k):
    return OPT.get(k, {'of': 'sc1'}.get(k, '')).replace('+', ' ')

V_C = 1; V_N16 = 2; V_VS = 4; V_VC = 5; V_PB = 6; V_JB = 7; V_DONE = 8
V_OFF = 9
V_T = 12
V_OH = 16; V_CA = 18; V_TCH = 19
V_SC = 20; V_IX = 24
V_A = [32, 36]
V_B = [40, 44]
V_ACC = 48
V_SV = 80
V_L = [104, 136]
NVG = 168
S_X = 4; S_OUT = 8; S_REC = 12; S_OFFS = 16; S_WF = 20
S_G = 22; S_S = 23; S_S1 = 24; S_B1 = 25; S_S2 = 26; S_PLO = 27; S_PHI = 28; S_NLAST = 29
S_RND = 30; S_MORE = 31; S_T = 32
S_M = 40
S_IN = 40
S_ACT = 52; S_PEND = 54; S_TM = 56; S_FEX = 58; S_RET = 60; S_HI = 62; S_FIRST = 63
S_NON = 64; S_DBG = 66; S_WSB = 68; S_SPIN = 0; S_WOK = 1; S_FLP = 63; S_ANY2 = 23
S_ST = 70

def pa(a, k):
    if OPT.get("pa"): a(f"s_memtime {sr(S_ST+2*k)}")
spn = [0]
def stamp(a, k, real=False):
    if OPT.get("spinat") and int(OPT["spinat"]) == k:
        spn[0] += 1
        a.label(f"D_spin{spn[0]}")
        a(f"""
        s_memrealtime s[70:71]
        s_waitcnt lgkmcnt(0)
        s_sub_u32 s70, s70, s{S_NON}
        s_cmp_lt_u32 s70, {OPT["spint"]}
        s_cbranch_scc1 D_spin{spn[0]}
        """)
    if OPT.get("pa") and k in (4, 5, 6, 7, 8, 14): return
    if OPT.get("prof") and k in (1, 13, 15, 3, 4, 5): return
    if DBG:
        a(f"s_mem{'realtime' if real else 'time'} {sr(S_ST+2*k)}")
def stamp_dump(a):
    if OPT.get("spinat") == "9":
        a("s_waitcnt vmcnt(0)")
        stamp(a, 9)
    if DBG:
        a("s_waitcnt lgkmcnt(0) vmcnt(0)")
        stamp(a, 9)
        stamp(a, 11, True)
        a("s_waitcnt lgkmcnt(0)")
        if OPT.get("hwid"):
            a(f"s_getreg_b32 s{S_ST+26}, hwreg(HW_REG_HW_ID)")
            a(f"s_mov_b32 s{S_ST+27}, 0")
        a(f"s_mul_i32 s{S_T}, s2, {NG}")
        a(f"s_add_u32 s{S_T}, s{S_T}, s{S_G}")
        a(f"s_lshl_b32 s{S_T}, s{S_T}, 7")
        a(f"s_add_u32 s{S_T}, s{S_T}, 0x800000")
        a(f"v_mov_b32 v1, s{S_T}")
        for k in range(0, 32, 2):
            a(f"v_mov_b32 v2, s{S_ST+k}")
            a(f"v_mov_b32 v3, s{S_ST+k+1}")
            a(f"global_store_dwordx2 v1, v[2:3], {sr(S_WSB)} offset:{4*k}")
            a("s_nop 1")

def comp011(i): return 2 + 3*i
def comp101(i): return 3 + 3*i
def comp111(i): return 4 + 3*i

def touch(a, beta, part, va, vd):
    a(f"""
    s_mul_i32 s{S_T+6}, s3, 79
    s_add_u32 s{S_T+6}, s{S_T+6}, {64*part}
    v_and_b32 v{va}, 63, v0
    v_add_u32 v{va}, s{S_T+6}, v{va}
    v_and_b32 v{vd}, 1, v{va}
    v_lshrrev_b32 v{va}, 1, v{va}
    v_lshlrev_b32 v{va}, 10, v{va}
    v_lshl_add_u32 v{va}, v{vd}, 7, v{va}
    """)
    if part: a("s_mov_b64 exec, 0x7fff")
    a(f"buffer_load_dword v{vd}, v{va}, {sr(S_X,4)}, 0 offen offset:{256*beta}")
    if part: a("s_mov_b64 exec, -1")

WREG = {}
for n_, ks_ in enumerate([0, 1, 2, 3, 8, 9, 10, 11]): WREG[ks_] = 136 + 4*n_
for n_, ks_ in enumerate([4, 5, 6, 7, 12, 13, 14, 15, 16, 17, 18, 19]): WREG[ks_] = 88 + 4*n_
def wload(a, va, kss):
    a(f"""
    s_sub_u32 s{S_T+6}, s{S_G}, 4
    s_mul_i32 s{S_T+6}, s{S_T+6}, {20*1024}
    v_and_b32 v{va}, 63, v0
    v_lshl_add_u32 v{va}, v{va}, 4, s{S_T+6}
    """)
    cur = 0
    for ks in kss:
        blk = ks // 4 * 4096
        if blk != cur:
            if blk > cur: a(f"v_add_u32 v{va}, {blk - cur}, v{va}")
            else: a(f"v_subrev_u32 v{va}, {cur - blk}, v{va}")
            cur = blk
        a(f"global_load_dwordx4 {vr(WREG[ks],4)}, v{va}, {sr(S_WF)} offset:{1024*(ks%4)} sc1")

def meta_reads(a):
    a(f"""
    s_lshl_b32 s{S_T}, s{S_S2}, 9
    v_add_u32 v{V_T}, s{S_T}, v{V_VS}
    v_add_u32 v{V_CA}, s{S_T}, v{V_VC}
    """)
    for i in range(0, 8, 2):
        a(f"ds_read2_b32 {vr(V_IX+i,2)}, v{V_T} offset0:{16*i+2} offset1:{16*(i+1)+2}")
    a(f"ds_read2_b32 {vr(V_OH,2)}, v{V_CA} offset0:3 offset1:67")

def stage_x(a, p, tag, wait=True):
    L = V_L[p]; A = V_A[p]
    for i in range(0, 8, 2):
        a(f"v_pk_add_f32 {vr(V_IX+i,2)}, {vr(V_IX+i,2)}, {vr(V_N16,2)}")
    a(f"""
    v_bfe_i32 v{V_OH}, v{V_OH}, v{V_C}, 1
    v_bfe_i32 v{V_OH+1}, v{V_OH+1}, v{V_C}, 1
    s_add_u32 s{S_S2}, s{S_S1}, 1
    v_and_b32 v{V_OH}, v{V_OH}, v{V_CA}
    v_and_b32 v{V_OH+1}, v{V_OH+1}, v{V_CA}
    s_cmp_eq_u32 s{S_S2}, s{S_S}
    ds_read_b64_tr_b16 {vr(A,2)}, v{V_OH}
    ds_read_b64_tr_b16 {vr(A+2,2)}, v{V_OH+1} offset:256
    s_cbranch_scc1 M_part{tag}
    """)
    def load(i):
        a(f"buffer_load_dwordx4 {vr(L+4*i,4)}, v{V_IX+i}, {sr(S_X,4)}, s{S_B1} offen")
    a.label(f"M_full{tag}")
    for i in range(8):
        load(i)
    meta_reads(a)
    if wait: a("s_waitcnt vmcnt(8)")
    a(f"s_branch M_go{tag}")
    a.label(f"M_part{tag}")
    a(f"""
    s_mov_b32 s{S_S2}, 0
    s_cmp_eq_u32 s{S_NLAST}, 8
    s_cbranch_scc1 M_full{tag}
    """)
    for i in range(7):
        a(f"s_cmp_eq_u32 s{S_NLAST}, {i}")
        a(f"s_cbranch_scc1 M_w{tag}_{i}")
        load(i)
    for i in range(7, -1, -1):
        a.label(f"M_w{tag}_{i}")
        if wait:
            a(f"s_waitcnt vmcnt({i})")
            if i > 0: a(f"s_branch M_pm{tag}")
    a.label(f"M_pm{tag}")
    meta_reads(a)

def advance(a):
    a(f"""
    s_mov_b32 s{S_S1}, s{S_S2}
    s_cmp_eq_u32 s{S_S2}, 0
    s_cselect_b32 s{S_T}, 256, 0
    s_add_u32 s{S_B1}, s{S_B1}, s{S_T}
    """)

def compute(a, p, first):
    L = V_L[p]; A = V_A[p]
    def perms(j):
        B = V_B[j % 2]
        sel = S_PHI if j % 2 else S_PLO
        for q in range(4):
            if OPT.get("noperm"): continue
            a(f"v_perm_b32 v{B+q}, v{L+4*(2*q+1)+j//2}, v{L+4*(2*q)+j//2}, s{sel}")
    perms(0)
    for j in range(8):
        if j + 1 < 8:
            perms(j + 1)
        else:
            a("s_nop 1")
        acc = vr(V_ACC+4*j,4)
        if OPT.get("nomfma"): continue
        Bop = vr(L+4*j,4) if OPT.get("noperm") else vr(V_B[j%2],4)
        a(f"v_mfma_f32_16x16x32_bf16 {acc}, {vr(A,4)}, {Bop}, {'0' if first else acc}")

wc_n = [0]
def write_comp(a, comp, regs):
    n = wc_n[0]; wc_n[0] += 1
    TM = V_B[0]
    a(f"""
    s_or_b32 s{S_T}, s{S_RND}, s{S_MORE}
    s_cmp_eq_u32 s{S_T}, 0
    s_cbranch_scc1 M_wc{n}
    s_mul_i32 s{S_T}, s3, {NG}
    s_add_u32 s{S_T}, s{S_T}, s{S_G}
    s_mul_i32 s{S_T}, s{S_T}, {11*2048}
    s_add_u32 s{S_T}, s{S_T}, {WS_PF32 + comp*2048}
    v_and_b32 v{V_T}, 63, v0
    v_lshl_add_u32 v{V_T}, v{V_T}, 2, s{S_T}
    s_waitcnt lgkmcnt(0)
    s_cmp_eq_u32 s{S_RND}, 0
    s_cbranch_scc1 M_wd{n}
    """)
    for j in range(8):
        a(f"global_load_dword v{TM+j}, v{V_T}, {sr(S_WSB)} offset:{256*j} sc1")
    a("s_waitcnt vmcnt(0)")
    for j in range(8):
        a(f"v_add_f32 v{regs[j]}, v{regs[j]}, v{TM+j}")
    a.label(f"M_wd{n}")
    for j in range(8):
        a(f"global_store_dword v{V_T}, v{regs[j]}, {sr(S_WSB)} offset:{256*j} sc1")
    a("s_waitcnt vmcnt(0)")
    a.label(f"M_wc{n}")
    sc = [V_B[0], V_B[1]][n % 2]
    for d in range(4):
        a(f"v_cvt_pk_bf16_f32 v{sc+d}, v{regs[2*d]}, v{regs[2*d+1]}")
    if comp in (5, 6, 7):
        a(f"""
        s_cmp_ge_u32 s{S_G}, 4
        s_cselect_b32 s{S_TM+1}, 0xffff, 0
        s_mov_b32 s{S_TM}, 0
        v_xor_b32 v{V_T+1}, 128, v{V_PB}
        v_cndmask_b32 v{V_T+1}, v{V_PB}, v{V_T+1}, {sr(S_TM)}
        ds_write_b128 v{V_T+1}, {vr(sc,4)} offset:{comp*256}
        """)
    else:
        a(f"ds_write_b128 v{V_PB}, {vr(sc,4)} offset:{comp*256}")

def setprio(a, ph):
    pl = OPT.get("pl", "3210"); phv = OPT.get("ph", "3210")
    if pl[ph] == phv[ph]:
        a(f"s_setprio {pl[ph]}")
    else:
        a(f"""
        s_setprio {pl[ph]}
        s_cmp_ge_u32 s{S_G}, 4
        s_cbranch_scc1 M_pr{ph}
        s_setprio {phv[ph]}
        """)
        a.label(f"M_pr{ph}")

def tick(a, slot):
    if OPT.get("prof"):
        a(f"""
        s_memtime {sr(S_M)}
        s_waitcnt lgkmcnt(0)
        s_sub_u32 s{S_M+3}, s{S_M}, s{S_M+2}
        s_mov_b32 s{S_M+2}, s{S_M}
        """)
        if slot is not None: a(f"s_add_u32 s{S_ST+2*slot}, s{S_ST+2*slot}, s{S_M+3}")

def flush_sub(a):
    acc = lambda r: [V_ACC + 4*j + r for j in range(8)]
    sv = lambda k: [V_SV + 8*k + j for j in range(8)]
    a.label("M_flush")
    a(f"""
    s_mov_b64 exec, {sr(S_FEX)}
    s_cmp_eq_u32 s{S_B1}, 512
    s_cbranch_scc1 M_fl1
    s_cmp_eq_u32 s{S_B1}, 768
    s_cbranch_scc1 M_fl2
    s_cmp_eq_u32 s{S_B1}, 1024
    s_cbranch_scc1 M_fl3
    s_nop 1
    """)
    def ret(ph, k):
        if not (OPT.get("pst") and k == 3): stamp(a, k)
        if ph is not None: setprio(a, ph)
        a(f"s_mov_b64 exec, -1")
        a(f"s_setpc_b64 {sr(S_RET)}")
    write_comp(a, 0, acc(0))
    for i in range(3): write_comp(a, comp011(i), acc(1+i))
    a(f"""
    s_mov_b64 exec, 1
    v_mov_b32 v{V_T+2}, {L_FC0}
    v_mov_b32 v{V_T+3}, 1
    ds_add_u32 v{V_T+2}, v{V_T+3}
    """)
    a("s_mov_b64 exec, -1")
    for n, b in enumerate(OPT.get("t3", "x").replace("x", "")):
        for k in range(2):
            a(f"s_cmp_lg_u32 s{S_G}, {4+2*n+k}")
            a(f"s_cbranch_scc1 M_t3_{n}_{k}")
            touch(a, int(b), k, V_T+2, V_TCH)
            a.label(f"M_t3_{n}_{k}")
    ret(1, 3)
    a.label("M_fl1")
    a("s_nop 4")
    write_comp(a, comp101(0), acc(0))
    for k in range(3):
        for j in range(8): a(f"v_mov_b32 v{sv(k)[j]}, v{acc(1+k)[j]}")
    ret(2, 4)
    a.label("M_fl2")
    a("s_nop 2")
    write_comp(a, comp101(1), acc(0))
    for j in range(8): a(f"v_sub_f32 v{acc(1)[j]}, v{acc(1)[j]}, v{sv(1)[j]}")
    write_comp(a, comp111(2), acc(1))
    for j in range(8): a(f"v_add_f32 v{sv(0)[j]}, v{sv(0)[j]}, v{acc(2)[j]}")
    for j in range(8): a(f"v_mov_b32 v{sv(1)[j]}, v{acc(3)[j]}")
    a(f"""
    s_mov_b64 exec, 1
    v_mov_b32 v{V_T+2}, {L_FC}
    v_mov_b32 v{V_T+3}, 1
    ds_add_u32 v{V_T+2}, v{V_T+3}
    """)
    ret(3, 5)
    a.label("M_fl3")
    write_comp(a, comp101(2), acc(0))
    for j in range(8): a(f"v_sub_f32 v{sv(2)[j]}, v{sv(2)[j]}, v{acc(1)[j]}")
    write_comp(a, comp111(1), sv(2))
    for j in range(8): a(f"v_sub_f32 v{acc(2)[j]}, v{acc(2)[j]}, v{sv(1)[j]}")
    write_comp(a, comp111(0), acc(2))
    for j in range(8): a(f"v_add_f32 v{sv(0)[j]}, v{sv(0)[j]}, v{acc(3)[j]}")
    write_comp(a, 1, sv(0))
    a(f"""
    s_cmp_lt_u32 s{S_G}, 4
    s_cbranch_scc1 M_fl3b
    s_mov_b64 exec, 1
    v_mov_b32 v{V_T+2}, {L_FC3}
    v_mov_b32 v{V_T+3}, 1
    ds_add_u32 v{V_T+2}, v{V_T+3}
    """)
    a.label("M_fl3b")
    ret(None, 6)

A_H = L_P; A_BS = L_P + 4096; A_STG = L_P + 8192; A_OFS = L_P + 32768

def cpf(a):
    K = NAME + "_kernel"
    a(f"""
    s_lshr_b32 s{S_T+4}, s3, 3
    s_cmp_lg_u32 s{S_T+4}, {OPT.get('cpw', 0)}
    s_cbranch_scc1 A_nocpf
    s_getpc_b64 {sr(S_T+2)}
    """)
    a.label("A_pc")
    a(f"""
    s_sub_u32 s{S_T+2}, s{S_T+2}, A_pc-{K}
    s_subb_u32 s{S_T+3}, s{S_T+3}, 0
    v_lshlrev_b32 v50, 3, v1
    s_mov_b32 s{S_T+4}, M_done-{K}
    v_add_u32 v51, 8192, v50
    v_min_u32 v51, s{S_T+4}, v51
    v_add_u32 v54, 16384, v50
    v_min_u32 v54, s{S_T+4}, v54
    global_load_dword v52, v50, {sr(S_T+2)}
    global_load_dword v53, v51, {sr(S_T+2)}
    global_load_dword v55, v54, {sr(S_T+2)}
    """)
    a.label("A_nocpf")

def phase_a(a):
    RH = 38; EA = 40; SRC = 42; DST = 44; WR = 46; W0 = 48; W1 = 50
    WSB = sr(S_WSB)
    def read_nonce(wait=True):
        a(f"""
        v_mov_b32 v2, {L_NONCE}
        ds_read_b64 v[2:3], v2
        s_waitcnt lgkmcnt(0)
        v_readfirstlane_b32 s{S_NON}, v2
        v_readfirstlane_b32 s{S_NON+1}, v3
        """)
    a(f"""
    s_cmp_eq_u32 s{S_G}, 10
    s_cbranch_scc1 A_scan
    s_cmp_eq_u32 s{S_G}, 11
    s_cbranch_scc1 A_aux
    v_lshrrev_b32 v20, 1, v6
    v_add_u32 v3, v6, v20
    s_mov_b64 exec, vcc
    """)
    LB = int(OPT.get("lb", 0))
    if LB: a("s_waitcnt lgkmcnt(0)\ns_barrier")
    a(f"""
    global_load_dwordx2 v[8:9], v6, {sr(SRC)} nt
    global_load_dwordx3 v[12:14], v3, {sr(RH)} nt
    global_load_dword v18, v20, {sr(EA)} nt
    v_mov_b32 v23, 1
    s_mul_i32 s{S_T}, s3, {CH * 16}
    v_lshlrev_b32 v20, 4, v0
    v_add_u32 v21, s{S_T}, v20
    """)
    pa(a, 4)
    if not LB: a("s_waitcnt lgkmcnt(0)\ns_barrier")
    a("s_waitcnt vmcnt(3)")
    pa(a, 5)
    for i in range(2):
        a(f"""
        v_and_b32 v{24+i}, 7, v{4+i}
        v_bfe_u32 v1, v{4+i}, 3, 5
        v_lshlrev_b32 v{24+i}, 7, v{24+i}
        v_lshl_or_b32 v{24+i}, v1, 2, v{24+i}
        ds_add_rtn_u32 v{28+i}, v{24+i}, v23 offset:{A_H}
        """)
    a("""
    s_waitcnt lgkmcnt(0)
    s_barrier
    """)
    pa(a, 6)
    for i in range(2):
        a(f"""
        v_lshrrev_b32 v{4+i}, 8, v{4+i}
        v_mul_u32_u24 v1, 43, v{4+i}
        v_lshrrev_b32 v1, 9, v1
        v_mul_u32_u24 v2, 12, v1
        v_sub_u32 v{4+i}, v{4+i}, v2
        v_lshlrev_b32 v1, 14, v1
        v_lshl_or_b32 v{32+4*i+2}, v{4+i}, 16, v1
        """)
    a(f"""
    s_barrier
    ds_read_b32 v30, v24 offset:{A_BS}
    ds_read_b32 v31, v25 offset:{A_BS}
    """)
    pa(a, 8)
    a(f"s_waitcnt vmcnt(0)")
    def half(dst, base, idx):
        r = base + idx // 2
        if idx % 2 == 0:
            a(f"v_lshlrev_b32 v{dst}, 16, v{r}")
        else:
            a(f"v_and_b32 v{dst}, s{S_HI}, v{r}")
    for i in range(2):
        half(4, 18, i)
        half(5, 12, 3*i+0)
        half(6, 12, 3*i+1)
        half(7, 12, 3*i+2)
        a(f"""
        v_mul_f32 v5, v4, v5
        v_mul_f32 v6, v4, v6
        v_mul_f32 v7, v4, v7
        v_cvt_pk_bf16_f32 v{32+4*i}, v4, v5
        v_cvt_pk_bf16_f32 v{32+4*i+1}, v6, v7
        """)
    pa(a, 7)
    a("s_waitcnt lgkmcnt(0)")
    for i in range(2):
        a(f"""
        v_add_lshl_u32 v{4+i}, v{30+i}, v{28+i}, 4
        v_or_b32 v{32+4*i+2}, v{32+4*i+2}, v{8+i}
        ds_write_b96 v{4+i}, {vr(32+4*i,3)} offset:{A_STG}
        """)
    a(f"""
    v_mov_b32 v2, {L_NONCE}
    v_add_u32 v22, 10000, v21
    s_waitcnt lgkmcnt(0)
    s_barrier
    """)
    pa(a, 14)
    a(f"""
    ds_read_b64 v[2:3], v2
    ds_read_b128 v[32:35], v20 offset:{A_STG}
    ds_read_b128 v[36:39], v20 offset:{A_STG+10000}
    s_waitcnt lgkmcnt(1)
    v_or_b32 v34, v34, v3
    v_mov_b32 v35, v2
    global_store_dwordx4 v21, v[32:35], {WSB} sc1
    s_waitcnt lgkmcnt(0)
    v_or_b32 v38, v38, v3
    v_mov_b32 v39, v2
    global_store_dwordx4 v22, v[36:39], {WSB} sc1
    v_readfirstlane_b32 s{S_NON}, v2
    v_readfirstlane_b32 s{S_NON+1}, v3
    """)
    PW = int(OPT.get("pw", 0))
    if PW:
        a(f"""
        s_lshr_b32 s{S_T}, s3, 3
        s_mul_i32 s{S_T}, s{S_T}, 625
        v_add_u32 v40, s{S_T}, v0
        """)
        if PW == 1:
            a("""
            v_and_b32 v41, 3, v40
            v_lshrrev_b32 v40, 2, v40
            v_lshlrev_b32 v40, 11, v40
            """)
        else:
            a("""
            v_and_b32 v41, 1, v40
            v_lshrrev_b32 v40, 1, v40
            v_lshlrev_b32 v40, 10, v40
            """)
        a(f"""
        v_lshl_add_u32 v40, v41, 7, v40
        buffer_load_dword v41, v40, {sr(S_X,4)}, 0 offen
        """)
    a(f"""
    s_mov_b64 exec, -1
    s_branch A_end
    """)
    a.label("A_scan")
    a(f"""
    s_setprio 3
    s_waitcnt lgkmcnt(0)
    v_and_b32 v1, 63, v0
    v_lshlrev_b32 v1, 4, v1
    s_lshl_b32 s{S_T}, s3, 11
    s_add_u32 s{S_T}, s{S_T}, {WS_OFF}
    v_lshl_add_u32 v20, v1, 1, s{S_T}
    """)
    a(f"""
    s_barrier
    """)
    if int(OPT.get("cpf", 2)) == 2: cpf(a)
    for n, b in enumerate(OPT.get("t0", "x").replace("x", "")):
        touch(a, int(b), 0, 60+4*n, 61+4*n)
        touch(a, int(b), 1, 62+4*n, 63+4*n)
    a(f"""
    v_mov_b32 v16, 0
    s_barrier
    ds_read_b128 v[4:7], v1 offset:{A_H}
    global_load_dwordx2 v[2:3], v16, {sr(S_DBG)} sc1
    """)
    if int(OPT.get("cpf", 2)) == 1: cpf(a)
    a(f"""
    s_waitcnt lgkmcnt(0)
    v_add_u32 v9, v4, v5
    v_add_u32 v10, v9, v6
    v_add_u32 v11, v10, v7
    v_mov_b32 v12, v11
    s_nop 1
    v_add_u32_dpp v12, v12, v12 row_shr:1 row_mask:0xf bank_mask:0xf bound_ctrl:0
    s_nop 1
    v_add_u32_dpp v12, v12, v12 row_shr:2 row_mask:0xf bank_mask:0xf bound_ctrl:0
    s_nop 1
    v_add_u32_dpp v12, v12, v12 row_shr:4 row_mask:0xf bank_mask:0xf bound_ctrl:0
    s_nop 1
    v_add_u32_dpp v12, v12, v12 row_shr:8 row_mask:0xf bank_mask:0xf bound_ctrl:0
    s_nop 1
    v_add_u32_dpp v12, v12, v12 row_bcast:15 row_mask:0xa bank_mask:0xf
    s_nop 1
    v_add_u32_dpp v12, v12, v12 row_bcast:31 row_mask:0xc bank_mask:0xf
    v_sub_u32 v12, v12, v11
    v_add_u32 v13, v12, v4
    v_add_u32 v14, v12, v9
    v_add_u32 v15, v12, v10
    ds_write_b128 v1, v[12:15] offset:{A_BS}
    s_waitcnt lgkmcnt(0)
    s_barrier
    """)
    for i in range(4):
        a(f"v_lshl_or_b32 v{24+2*i}, v{4+i}, 11, v{12+i}")
    a(f"v_mov_b32 v17, {L_NONCE}")
    a.label("A_pn")
    a(f"""
    s_waitcnt vmcnt(0)
    v_readfirstlane_b32 s{S_NON}, v2
    s_cmp_lg_u32 s{S_NON}, 0
    s_cbranch_scc1 A_pd
    global_load_dwordx2 v[2:3], v16, {sr(S_DBG)} sc1
    s_sub_u32 s{S_SPIN}, s{S_SPIN}, 1
    s_cmp_gt_i32 s{S_SPIN}, 0
    s_cbranch_scc1 A_pn
    s_waitcnt vmcnt(0)
    """)
    a.label("A_pd")
    a("ds_write_b64 v17, v[2:3]")
    for i in range(4):
        a(f"""
        v_or_b32 v{24+2*i}, v3, v{24+2*i}
        v_mov_b32 v{25+2*i}, v2
        """)
    a(f"""
    global_store_dwordx4 v20, v[24:27], {WSB} sc1
    global_store_dwordx4 v20, v[28:31], {WSB} offset:16 sc1
    v_readfirstlane_b32 s{S_NON}, v2
    v_readfirstlane_b32 s{S_NON+1}, v3
    v_lshlrev_b32 v40, 7, v1
    s_lshl_b32 s{S_T}, s2, 3
    v_add_u32 v40, s{S_T}, v40
    v_add_u32 v41, {64*2048}, v40
    v_add_u32 v42, {128*2048}, v40
    v_add_u32 v43, {192*2048}, v40
    s_mov_b32 s{S_T+7}, {TAGM}
    s_mov_b64 s[40:41], -1
    s_mov_b64 s[42:43], -1
    s_mov_b64 s[44:45], -1
    s_mov_b64 s[46:47], -1
    s_waitcnt lgkmcnt(0)
    s_barrier
    {"s_waitcnt vmcnt(0)" if int(OPT.get("pw0", 1)) else ""}
    """)
    a.label("A_poll")
    for r in range(4):
        a(f"""
        s_mov_b64 exec, {sr(40+2*r)}
        s_cbranch_execz A_ps{r}
        buffer_load_dwordx2 {vr(32+2*r,2)}, v{40+r}, {sr(S_OFFS,4)}, 0 offen sc1
        """)
        a.label(f"A_ps{r}")
    a(f"""
    s_mov_b64 exec, -1
    s_mov_b64 {sr(S_TM)}, 0
    s_waitcnt vmcnt(0)
    """)
    for r in range(4):
        a(f"""
        v_and_b32 v4, s{S_T+7}, v{32+2*r}
        v_cmp_ne_u32 {sr(40+2*r)}, s{S_NON+1}, v4
        v_cmp_ne_u32 vcc, s{S_NON}, v{33+2*r}
        s_or_b64 {sr(40+2*r)}, {sr(40+2*r)}, vcc
        s_or_b64 {sr(S_TM)}, {sr(S_TM)}, {sr(40+2*r)}
        """)
    a(f"""
    s_cmp_eq_u64 {sr(S_TM)}, 0
    s_cbranch_scc1 A_polled
    {"s_sleep " + OPT["slp"] if OPT.get("slp") else ""}
    s_sub_u32 s{S_SPIN}, s{S_SPIN}, 1
    s_cmp_gt_i32 s{S_SPIN}, 0
    s_cbranch_scc1 A_poll
    """)
    a.label("A_polled")
    a(f"""
    v_lshrrev_b32 v1, 2, v1
    v_mov_b32 v5, 0
    """)
    for r in range(4):
        a(f"""
        v_and_b32 v{32+2*r}, 0x3fffff, v{32+2*r}
        ds_write_b32 v1, v{32+2*r} offset:{A_OFS+256*r}
        """)
    a(f"""
    ds_write_b32 v1, v5 offset:{A_OFS+1024}
    s_branch A_end
    """)
    a.label("A_aux")
    a(f"""
    s_setprio 3
    s_waitcnt lgkmcnt(0)
    v_and_b32 v1, 63, v0
    s_cmp_ge_u32 s3, 160
    s_cbranch_scc1 A_wp1
    s_lshr_b32 s{S_T+3}, s3, 3
    s_and_b32 s{S_T+4}, s3, 3
    s_and_b32 s{S_T+5}, s3, 4
    s_lshl_b32 s{S_T+5}, s{S_T+5}, 1
    s_or_b32 s{S_T+4}, s{S_T+4}, s{S_T+5}
    s_cmp_lt_u32 s3, 64
    s_cbranch_scc1 A_wa
    s_sub_u32 s{S_T+5}, s3, 64
    s_and_b32 s{S_T+3}, s{S_T+5}, 7
    s_lshr_b32 s{S_T+4}, s{S_T+5}, 3
    s_cmp_lt_u32 s{S_T+4}, 4
    s_cselect_b32 s{S_T+5}, 4, 8
    s_add_u32 s{S_T+4}, s{S_T+4}, s{S_T+5}
    """)
    a.label("A_wa")
    a(f"""
    s_mul_i32 s{S_T+2}, s{S_T+3}, 20
    s_add_u32 s{S_T+2}, s{S_T+2}, s{S_T+4}
    v_and_b32 v2, 15, v1
    v_lshrrev_b32 v3, 4, v1
    s_lshl_b32 s{S_T+5}, s{S_T+4}, 5
    v_lshl_add_u32 v4, v3, 3, s{S_T+5}
    v_lshlrev_b32 v5, 1, v4
    s_lshl_b32 s{S_T+5}, s{S_T+3}, 4
    v_add_u32 v2, s{S_T+5}, v2
    v_lshlrev_b32 v2, 1, v2
    v_lshl_add_u32 v6, v4, 8, v2
    s_sub_u32 s{S_T+6}, s{W1}, {256*256}
    s_subb_u32 s{S_T+7}, s{W1+1}, 0
    s_cmp_lt_u32 s{S_T+4}, 8
    s_cselect_b32 s{S_T+6}, s{W0}, s{S_T+6}
    s_cselect_b32 s{S_T+7}, s{W0+1}, s{S_T+7}
    global_load_dwordx4 v[8:11], v5, {sr(WR)} {OPT.get('wnt', '')}
    """)
    for i in range(8):
        a(f"global_load_ushort v{12+i}, v6, {sr(S_T+6)} offset:{256*i} {OPT.get('wnt', '')}")
    a.label("A_wp1")
    T1 = OPT.get("t1", "0").replace("x", "")
    a(f"""
    s_barrier
    s_barrier
    s_barrier
    s_cmp_ge_u32 s3, 160
    s_cbranch_scc1 A_nw1
    s_lshl_b32 s{S_T+3}, s{S_T+2}, 10
    s_add_u32 s{S_T+3}, s{S_T+3}, {WS_WF}
    v_lshl_add_u32 v7, v1, 4, s{S_T+3}
    s_waitcnt vmcnt(0)
    """)
    for i in range(8):
        if i % 2 == 0:
            a(f"v_lshlrev_b32 v20, 16, v{8+i//2}")
        else:
            a(f"v_and_b32 v20, s{S_HI}, v{8+i//2}")
        a(f"v_lshlrev_b32 v{12+i}, 16, v{12+i}")
        a(f"v_mul_f32 v{12+i}, v20, v{12+i}")
    for i in range(4):
        a(f"v_cvt_pk_bf16_f32 v{24+i}, v{12+2*i}, v{13+2*i}")
    a(f"global_store_dwordx4 v7, v[24:27], {WSB} sc1")
    a.label("A_nw1")
    if not OPT.get("t1late"):
        for n, b in enumerate(T1):
            touch(a, int(b), 0, 32+4*n, 33+4*n)
            touch(a, int(b), 1, 34+4*n, 35+4*n)
    a(f"""
    v_mov_b32 v2, {L_NONCE}
    s_barrier
    ds_read_b64 v[4:5], v2
    """)
    if OPT.get("t1late"):
        for n, b in enumerate(T1):
            touch(a, int(b), 0, 32+4*n, 33+4*n)
            touch(a, int(b), 1, 34+4*n, 35+4*n)
    a(f"""
    s_waitcnt lgkmcnt(0)
    v_readfirstlane_b32 s{S_NON}, v4
    v_readfirstlane_b32 s{S_NON+1}, v5
    s_cmp_ge_u32 s3, 160
    s_cbranch_scc1 A_end
    s_lshl_b32 s{S_T+3}, s{S_T+2}, 10
    s_add_u32 s{S_T+3}, s{S_T+3}, {WS_WFLAG}
    v_lshl_add_u32 v11, v1, 4, s{S_T+3}
    v_mov_b32 v5, v4
    v_mov_b32 v6, v4
    v_mov_b32 v7, v4
    s_waitcnt vmcnt({2*len(T1)})
    global_store_dwordx4 v11, v[4:7], {WSB} sc1
    s_nop 1
    """)
    a.label("A_end")

def gen_main(a):
    K = NAME + "_kernel"
    a.raw(".p2align 8")
    a.raw(f".globl {K}")
    a.raw(f".type {K},@function")
    a.label(K)
    a(f"""
    s_cmp_ge_u32 s2, {NB}
    s_cbranch_scc1 M_done
    """)
    if OPT.get("empty"): a("s_endpgm")
    if DBG:
        for k in range(S_ST, S_ST+32): a(f"s_mov_b32 s{k}, 0")
    stamp(a, 0)
    stamp(a, 10, True)
    T = V_T
    a(f"""
    s_load_dwordx16 s[36:51], s[0:1], 0
    s_load_dwordx8 s[52:59], s[0:1], 64
    s_memrealtime {sr(S_NON)}
    s_mul_i32 s{S_T}, s2, {CH*4}
    v_lshl_add_u32 v6, v0, 3, s{S_T}
    v_cmp_gt_u32 vcc, 625, v0
    s_waitcnt lgkmcnt(0)
    s_mov_b64 exec, vcc
    s_cbranch_execz E_nod
    global_load_dwordx2 v[4:5], v6, s[44:45] nt
    """)
    a.label("E_nod")
    a(f"""
    s_mov_b64 exec, -1
    v_lshrrev_b32 v1, 6, v0
    v_mov_b32 v3, 0
    v_readfirstlane_b32 s{S_G}, v1
    v_lshlrev_b32 v2, 2, v0
    ds_write_b32 v2, v3
    ds_write_b32 v2, v3 offset:{A_H}
    s_mov_b64 {sr(S_X)}, s[36:37]
    s_mov_b64 {sr(S_OUT)}, s[54:55]
    s_mov_b64 {sr(S_DBG)}, s[56:57]
    s_mov_b64 {sr(S_WSB)}, s[58:59]
    s_or_b32 s{S_T}, s2, s{S_G}
    s_cmp_lg_u32 s{S_T}, 0
    s_cbranch_scc1 M_nonon
    s_lshl_b32 s{S_NON+1}, s{S_NON+1}, 22
    s_or_b32 s{S_NON}, s{S_NON}, 1
    v_mov_b32 v10, s{S_NON}
    v_mov_b32 v11, s{S_NON+1}
    s_mov_b64 exec, 1
    global_store_dwordx2 v3, v[10:11], {sr(S_DBG)} sc1
    s_mov_b64 exec, -1
    """)
    a.label("M_nonon")
    assert L_P // 4 <= NT
    a(f"""
    s_mov_b32 s3, s2
    s_and_b32 s{S_T}, s2, 7
    s_lshr_b32 s2, s2, 3
    s_lshl_b32 s{S_T}, s{S_T}, 5
    s_or_b32 s2, s2, s{S_T}
    s_mov_b32 s{S_X+2}, {N*1024}
    s_mov_b32 s{S_X+3}, 0x20000
    s_mov_b32 s{S_OUT+2}, {N*1024}
    s_mov_b32 s{S_OUT+3}, 0x20000
    s_mov_b32 s{S_REC+2}, {E*16}
    s_mov_b32 s{S_REC+3}, 0x20000
    s_mov_b32 s{S_OFFS+2}, {NB*2048}
    s_mov_b32 s{S_OFFS+3}, 0x20000
    s_mov_b32 s{S_HI}, 0xffff0000
    s_mov_b32 s{S_SPIN}, {SPIN_MAX}
    s_mov_b32 s{S_REC}, s{S_WSB}
    s_and_b32 s{S_REC+1}, s{S_WSB+1}, 0xffff
    s_add_u32 s{S_OFFS}, s{S_WSB}, {WS_OFF}
    s_addc_u32 s{S_OFFS+1}, s{S_WSB+1}, 0
    s_add_u32 s{S_WF}, s{S_WSB}, {WS_WF}
    s_addc_u32 s{S_WF+1}, s{S_WSB+1}, 0
    s_and_b32 s{S_OFFS+1}, s{S_OFFS+1}, 0xffff
    s_and_b32 s{S_X+1}, s{S_X+1}, 0xffff
    s_and_b32 s{S_OUT+1}, s{S_OUT+1}, 0xffff
    """)
    phase_a(a)
    a("s_setprio 0")
    if int(OPT.get("rm", 1)):
        a(f"""
        s_add_u32 s{S_G}, s{S_G}, 4
        s_cmp_ge_u32 s{S_G}, 12
        s_cselect_b32 s{S_T}, 12, 0
        s_sub_u32 s{S_G}, s{S_G}, s{S_T}
        """)
    a(f"""
    v_mov_b32 v{V_JB}, 0
    v_mov_b32 v{V_DONE}, 0
    s_mov_b32 s{S_RND}, 0
    v_and_b32 v{T}, 63, v0
    v_and_b32 v{T+1}, 15, v{T}
    v_lshrrev_b32 v{T+2}, 4, v{T}
    v_lshlrev_b32 v{V_N16}, 4, v{T+1}
    v_lshlrev_b32 v{V_N16+1}, 4, v{T+1}
    v_and_b32 v{V_C}, 3, v{T}
    v_bfe_u32 v{T+3}, v{T}, 2, 2
    s_mul_i32 s{S_T}, s{S_G}, {CAP*16}
    s_add_u32 s{S_T}, s{S_T}, {L_LIST}
    v_lshl_add_u32 v{V_VS}, v{T+2}, 4, s{S_T}
    v_lshl_add_u32 v{V_VC}, v{T+3}, 6, v{V_VS}
    s_cmp_lt_u32 s{S_G}, 4
    s_cselect_b32 s{S_T}, 2, 3
    s_cselect_b32 s{S_T+1}, 0, 12
    s_add_u32 s{S_T+1}, s{S_T+1}, s{S_G}
    v_lshlrev_b32 v{T+2}, s{S_T}, v{T+2}
    v_add_u32 v{T+2}, s{S_T+1}, v{T+2}
    v_cmp_gt_u32 {sr(S_FEX)}, 40, v{T+2}
    v_mul_u32_u24 v{V_PB}, {PSTR}, v{T+2}
    v_and_b32 v{T+2}, 15, v{T+2}
    v_xor_b32 v{T+2}, v{T+2}, v{T+1}
    v_lshl_add_u32 v{V_PB}, v{T+2}, 4, v{V_PB}
    v_add_u32 v{V_PB}, {L_P}, v{V_PB}
    s_mov_b32 s{S_T+7}, {TAGM}
    """)
    L = V_L[0]; L2 = V_L[1]
    if OPT.get("pst"): stamp(a, 12)
    a(f"""
    v_lshrrev_b32 v{T}, 3, v0
    v_lshlrev_b32 v{T}, 2, v{T}
    s_max_u32 s{S_T}, s{S_G}, 4
    s_sub_u32 s{S_T}, s{S_T}, 4
    s_mul_i32 s{S_T}, s{S_T}, {20*1024}
    s_lshl_b32 s{S_T+1}, s2, 2
    s_add_u32 s{S_T}, s{S_T}, s{S_T+1}
    s_add_u32 s{S_T}, s{S_T}, {WS_WFLAG}
    v_and_b32 v{V_ACC+51}, 63, v0
    v_min_u32 v{V_ACC+51}, 19, v{V_ACC+51}
    v_lshl_add_u32 v{V_ACC+51}, v{V_ACC+51}, 10, s{S_T}
    s_waitcnt {"vmcnt(0) " if OPT.get("ack") else ""}lgkmcnt(0)
    """)
    if OPT.get("pst"): stamp(a, 3)
    a("s_barrier")
    for r in range(3):
        a(f"ds_read_b32 v{V_OFF+r}, v{T} offset:{A_OFS+384*r}")
    a(f"""
    s_mov_b64 {sr(S_ACT)}, -1
    s_mov_b32 s{S_FIRST}, 0
    s_waitcnt lgkmcnt(0)
    s_branch M_w0
    """)
    a.label("M_init")
    a(f"""
    v_mov_b32 v{T+1}, 0
    v_lshlrev_b32 v{T}, 2, v0
    s_movk_i32 s{S_T}, {L_P//4}
    v_cmp_gt_u32 vcc, s{S_T}, v0
    s_and_saveexec_b64 {sr(S_TM)}, vcc
    ds_write_b32 v{T}, v{T+1}
    s_mov_b64 exec, {sr(S_TM)}
    s_mov_b64 {sr(S_ACT)}, -1
    s_waitcnt lgkmcnt(0)
    s_barrier
    s_mov_b32 s{S_FIRST}, 1
    """)
    a.label("M_w0")
    stamp(a, 1)
    a.label("M_window")
    L2 = V_ACC + 16
    REM = L2; ADR = L2 + 3; CTR = L2 + 6; RNK = L2 + 15; BAS = L2 + 24; ONE = L2 + 33
    WFV = L2 + 34; WFA = L2 + 35; TCA = 60; L = 100
    MK = [40, 42, 44, 46, 48, 50, 24, 26, 28]
    a(f"""
    v_and_b32 v{T}, 7, v0
    v_add_u32 v{T}, v{T}, v{V_JB}
    v_lshrrev_b32 v{T+1}, 3, v0
    v_mul_u32_u24 v{T+1}, {CH}, v{T+1}
    v_add_u32 v{T+1}, v{T+1}, v{T}
    v_mov_b32 v{ONE}, 1
    """)
    for r in range(3):
        a(f"""
        v_lshrrev_b32 v{REM+r}, 11, v{V_OFF+r}
        v_sub_u32 v{REM+r}, v{REM+r}, v{T}
        v_and_b32 v{ADR+r}, 0x7ff, v{V_OFF+r}
        v_add_lshl_u32 v{ADR+r}, v{ADR+r}, v{T+1}, 4
        """)
        if r: a(f"v_add_u32 v{ADR+r}, {96*CH*16*r}, v{ADR+r}")
    for k in range(9):
        r = k % 3; h = k // 3
        a(f"v_cmp_lt_i32 {sr(MK[k])}, {8*h}, v{REM+r}")
    a(f"""
    s_cmp_eq_u32 s{S_FIRST}, 0
    s_cbranch_scc1 M_rload
    """)
    for k in range(9):
        m = sr(MK[k])
        a(f"""
        v_and_b32 v{T+2}, {1<<k}, v{V_DONE}
        v_cmp_eq_u32 vcc, 0, v{T+2}
        s_and_b64 {m}, {m}, vcc
        s_and_b64 {m}, {m}, {sr(S_ACT)}
        """)
    a.label("M_rload")
    a(f"""
    s_or_b64 {sr(S_TM)}, {sr(MK[6])}, {sr(MK[7])}
    s_or_b64 {sr(S_TM)}, {sr(S_TM)}, {sr(MK[8])}
    s_cselect_b32 s{S_ANY2}, 1, 0
    """)
    for k in range(9):
        if k == 6:
            a(f"s_cmp_eq_u32 s{S_ANY2}, 0")
            a("s_cbranch_scc1 M_sl8")
        r = k % 3; h = k // 3
        a(f"""
        s_mov_b64 exec, {sr(MK[k])}
        {"s_cbranch_execz M_sl" + str(k) if k >= 2 else ""}
        buffer_load_dwordx4 {vr(L+4*k,4)}, v{ADR+r}, {sr(S_REC,4)}, 0 offen offset:{128*h} sc1
        """)
        a.label(f"M_sl{k}")
    a(f"""
    s_mov_b64 exec, -1
    s_cmp_lg_u32 s{S_FIRST}, 0
    s_cbranch_scc1 M_nofld
    global_load_dword v{WFV}, v{WFA}, {sr(S_WSB)} sc1
    """)
    a.label("M_nofld")
    a(f"""
    s_mov_b64 {sr(S_PEND)}, 0
    s_mov_b32 s{S_T}, {TAGM}
    s_waitcnt vmcnt(0)
    """)
    for k in range(9):
        if k == 6:
            a(f"s_cmp_eq_u32 s{S_ANY2}, 0")
            a("s_cbranch_scc1 M_sc8")
        a(f"""
        s_mov_b64 exec, {sr(MK[k])}
        {"s_cbranch_execz M_sc" + str(k) if k >= 3 else ""}
        v_and_b32 v{T}, s{S_T}, v{L+4*k+2}
        v_cmp_ne_u32 {sr(S_TM)}, s{S_NON+1}, v{T}
        v_cmp_ne_u32 vcc, s{S_NON}, v{L+4*k+3}
        v_bfe_u32 v{CTR+k}, v{L+4*k+2}, 16, 4
        v_and_b32 v{T}, 15, v{L+4*k+2}
        s_or_b64 {sr(S_PEND)}, {sr(S_PEND)}, {sr(S_TM)}
        s_or_b64 {sr(S_PEND)}, {sr(S_PEND)}, vcc
        v_lshl_or_b32 v{T}, v{CTR+k}, 4, v{T}
        v_lshlrev_b32 v{BAS+k}, 2, v{T}
        """)
        a.label(f"M_sc{k}")
    a(f"""
    s_mov_b64 exec, -1
    s_cmp_eq_u64 {sr(S_PEND)}, 0
    {"s_branch M_rok" if OPT.get("halfst") or OPT.get("noretry") else ""}
    s_cbranch_scc1 M_rok
    s_sleep {OPT.get('slp', 4)}
    s_sub_u32 s{S_SPIN}, s{S_SPIN}, 1
    s_cmp_gt_i32 s{S_SPIN}, 0
    s_cbranch_scc1 M_rload
    """)
    a.label("M_rok")
    if OPT.get("dl13"): a(f"s_sleep {OPT['dl13']}")
    stamp(a, 13)
    a(f"""
    s_cmp_lg_u32 s{S_FIRST}, 0
    s_cbranch_scc1 M_append
    """)
    for k in range(9):
        if k == 6:
            a(f"s_cmp_eq_u32 s{S_ANY2}, 0")
            a("s_cbranch_scc1 M_sa8")
        a(f"""
        s_mov_b64 exec, {sr(MK[k])}
        {"s_cbranch_execz M_sa" + str(k) if k >= 9 else ""}
        ds_add_rtn_u32 v{RNK+k}, v{BAS+k}, v{ONE} offset:{L_CC}
        """)
        a.label(f"M_sa{k}")
    SCN = V_ACC
    a(f"""
    s_mov_b64 exec, -1
    v_cmp_eq_u32 vcc, s{S_NON}, v{WFV}
    s_cmp_eq_u64 vcc, -1
    s_cselect_b32 s{S_WOK}, 1, 0
    s_cbranch_scc0 M_nowpre
    s_cmp_lt_u32 s{S_G}, {16 if OPT.get("db") else 4}
    s_cbranch_scc1 M_nowpre
    """)
    wload(a, WFA, [0, 1, 2, 3, 8, 9, 10, 11])
    a.label("M_nowpre")
    a(f"""
    v_and_b32 v{T}, 63, v0
    v_lshlrev_b32 v{T}, 4, v{T}
    v_cmp_lt_u32 vcc, 0, v{V_C}
    v_cmp_lt_u32 {sr(S_TM)}, 1, v{V_C}
    s_waitcnt lgkmcnt(0)
    s_barrier
    ds_read_b128 {vr(SCN,4)}, v{T} offset:{L_CC}
    """)
    if int(OPT.get("t2m", 0)):
        a(f"""
        s_cmp_ge_u32 s{S_G}, 4
        s_cbranch_scc1 M_t2m
        s_mul_i32 s{S_T+6}, s3, 236
        s_mul_i32 s{S_T+5}, s{S_G}, 59
        s_add_u32 s{S_T+6}, s{S_T+6}, s{S_T+5}
        v_and_b32 v{TCA}, 63, v0
        v_add_u32 v{TCA}, s{S_T+6}, v{TCA}
        v_and_b32 v{TCA+1}, 3, v{TCA}
        v_lshrrev_b32 v{TCA}, 2, v{TCA}
        s_movk_i32 s{S_T+5}, 5000
        v_cmp_gt_u32 {sr(S_PEND)}, s{S_T+5}, v{TCA}
        v_lshlrev_b32 v{TCA+2}, 11, v{TCA}
        v_add_u32 v{TCA+2}, 1024, v{TCA+2}
        v_subrev_u32 v{TCA}, s{S_T+5}, v{TCA}
        v_lshlrev_b32 v{TCA}, 10, v{TCA}
        v_add_u32 v{TCA}, 512, v{TCA}
        v_cndmask_b32 v{TCA}, v{TCA}, v{TCA+2}, {sr(S_PEND)}
        v_lshl_add_u32 v{TCA}, v{TCA+1}, 7, v{TCA}
        s_mov_b32 exec_hi, 0x7ffffff
        buffer_load_dword v{V_TCH}, v{TCA}, {sr(S_X,4)}, 0 offen
        s_mov_b64 exec, -1
        """)
        a.label("M_t2m")
    for n, b in enumerate(OPT.get("t2", "12").replace("x", "")):
        a(f"s_cmp_lg_u32 s{S_G}, {n}")
        a(f"s_cbranch_scc1 M_t2_{n}")
        touch(a, int(b), 0, TCA, V_TCH)
        touch(a, int(b), 1, TCA, TCA+1)
        a.label(f"M_t2_{n}")
    a(f"""
    s_waitcnt lgkmcnt(0)
    v_add_u32 v{SCN+4}, v{SCN}, v{SCN+1}
    v_add_u32 v{SCN+5}, v{SCN+4}, v{SCN+2}
    v_add_u32 v{SCN+6}, v{SCN+5}, v{SCN+3}
    s_nop 1
    v_mov_b32_dpp v{SCN+7}, v{SCN+6} quad_perm:[0,0,1,2] row_mask:0xf bank_mask:0xf
    v_cndmask_b32 v{SCN+7}, 0, v{SCN+7}, vcc
    v_add_u32 v{SCN+7}, v{SCN+7}, v{SCN+6}
    s_nop 1
    v_mov_b32_dpp v{SCN+8}, v{SCN+7} quad_perm:[0,0,0,1] row_mask:0xf bank_mask:0xf
    v_cndmask_b32 v{SCN+8}, 0, v{SCN+8}, {sr(S_TM)}
    v_add_u32 v{SCN+8}, v{SCN+8}, v{SCN+7}
    v_sub_u32 v{SCN+8}, v{SCN+8}, v{SCN+6}
    v_add_u32 v{SCN+9}, v{SCN+8}, v{SCN}
    v_add_u32 v{SCN+10}, v{SCN+8}, v{SCN+4}
    v_add_u32 v{SCN+11}, v{SCN+8}, v{SCN+5}
    s_mov_b32 exec_hi, 0xffff
    ds_write_b128 v{T}, {vr(SCN+8,4)} offset:{L_BASE}
    """)
    for k in range(9):
        if k == 6:
            a(f"s_cmp_eq_u32 s{S_ANY2}, 0")
            a("s_cbranch_scc1 M_sb8")
        a(f"""
        s_mov_b64 exec, {sr(MK[k])}
        {"s_cbranch_execz M_sb" + str(k) if k >= 9 else ""}
        ds_read_b32 v{BAS+k}, v{BAS+k} offset:{L_BASE}
        """)
        a.label(f"M_sb{k}")
    a("s_branch M_place")
    a.label("M_append")
    for k in range(9):
        a(f"""
        s_mov_b64 exec, {sr(MK[k])}
        v_lshlrev_b32 v{T+1}, 2, v{CTR+k}
        v_lshlrev_b32 v{T}, 6, v{CTR+k}
        ds_add_rtn_u32 v{RNK+k}, v{T+1}, v{ONE} offset:{L_ACNT}
        ds_read_b32 v{BAS+k}, v{T} offset:{L_BASE+60}
        ds_read_b32 v{T+2}, v{T} offset:{L_CC+60}
        s_waitcnt lgkmcnt(0)
        v_add_u32 v{BAS+k}, v{BAS+k}, v{T+2}
        """)
    a.label("M_place")
    a(f"""
    s_mov_b64 exec, -1
    s_mov_b64 {sr(S_PEND)}, 0
    s_mov_b32 s{S_T}, {L_LIST}
    s_movk_i32 s{S_T+2}, {CAP}
    s_mov_b32 s{S_FIRST}, 1
    """)
    for k in range(9):
        if k == 6:
            a(f"s_cmp_eq_u32 s{S_ANY2}, 0")
            a("s_cbranch_scc1 M_se8")
        a(f"""
        {"s_cmp_eq_u64 " + sr(MK[k]) + ", 0" if k >= 3 else ""}
        {"s_cbranch_scc1 M_se" + str(k) if k >= 3 else ""}
        v_bfe_u32 v{T+1}, v{L+4*k+2}, 14, 2
        v_and_b32 v{L+4*k+2}, 0x3fff, v{L+4*k+2}
        v_lshlrev_b32 v{L+4*k+3}, v{T+1}, v{ONE}
        v_lshlrev_b32 v{L+4*k+2}, 10, v{L+4*k+2}
        v_mul_u32_u24 v{CTR+k}, s{S_T+2}, v{CTR+k}
        """)
        a.label(f"M_se{k}")
    a("s_waitcnt lgkmcnt(0)")
    for k in range(9):
        if k == 6:
            a(f"s_cmp_eq_u32 s{S_ANY2}, 0")
            a("s_cbranch_scc1 M_sp8")
        m = sr(MK[k])
        a(f"""
        s_mov_b64 exec, {m}
        {"s_cbranch_execz M_sp" + str(k) if k >= 3 else ""}
        v_add_u32 v{RNK+k}, v{RNK+k}, v{BAS+k}
        v_cmp_gt_u32 vcc, s{S_T+2}, v{RNK+k}
        v_add_u32 v{T}, v{CTR+k}, v{RNK+k}
        v_lshl_add_u32 v{CTR+k}, v{T}, 4, s{S_T}
        s_andn2_b64 {sr(S_TM)}, {m}, vcc
        s_or_b64 {sr(S_PEND)}, {sr(S_PEND)}, {sr(S_TM)}
        s_mov_b64 exec, vcc
        ds_write_b128 v{CTR+k}, {vr(L+4*k,4)}
        v_or_b32 v{V_DONE}, {1<<k}, v{V_DONE}
        """)
        a.label(f"M_sp{k}")
    a(f"""
    s_mov_b64 exec, -1
    v_mov_b32 v{T+2}, {L_MORE}
    v_max3_i32 v{T}, v{REM}, v{REM+1}, v{REM+2}
    s_mov_b64 exec, {sr(S_PEND)}
    ds_write_b32 v{T+2}, v{ONE}
    s_andn2_b64 {sr(S_ACT)}, {sr(S_ACT)}, {sr(S_PEND)}
    s_mov_b64 exec, {sr(S_ACT)}
    v_add_u32 v{V_JB}, 24, v{V_JB}
    v_mov_b32 v{V_DONE}, 0
    v_cmp_lt_i32 vcc, 24, v{T}
    s_mov_b64 exec, -1
    s_cmp_lg_u64 vcc, 0
    s_cbranch_scc1 M_window
    s_lshl_b32 s{S_T}, s{S_G}, 6
    v_mov_b32 v{T}, s{S_T}
    s_lshl_b32 s{S_T}, s{S_G}, 2
    v_mov_b32 v{T+1}, s{S_T}
    s_waitcnt lgkmcnt(0)
    """)
    stamp(a, 15)
    if OPT.get("dl15"): a(f"s_sleep {OPT['dl15']}")
    a(f"""
    s_barrier
    ds_read_b32 v{V_A[0]}, v{T} offset:{L_BASE+60}
    ds_read_b32 v{V_A[0]+1}, v{T} offset:{L_CC+60}
    ds_read_b32 v{V_A[0]+2}, v{T+1} offset:{L_ACNT}
    ds_read_b32 v{V_A[0]+3}, v{T+2}
    v_and_b32 v{T}, 63, v0
    v_mov_b32 v{V_B[0]}, {OOBOFF}
    v_mov_b32 v{V_B[0]+1}, 0
    s_mov_b32 s{S_S1}, 0
    s_mov_b32 s{S_S2}, 0
    s_mov_b32 s{S_B1}, 0
    s_mov_b32 s{S_PLO}, 0x05040100
    s_mov_b32 s{S_PHI}, 0x07060302
    s_waitcnt lgkmcnt(0)
    v_add3_u32 v{T+1}, v{V_A[0]}, v{V_A[0]+1}, v{V_A[0]+2}
    v_readfirstlane_b32 s{S_MORE}, v{V_A[0]+3}
    v_readfirstlane_b32 s{S_T}, v{T+1}
    s_min_u32 s{S_T}, s{S_T}, {CAP}
    s_add_u32 s{S_S}, s{S_T}, 31
    s_lshr_b32 s{S_S}, s{S_S}, 5
    s_max_u32 s{S_S}, s{S_S}, 1
    s_lshl_b32 s{S_T+1}, s{S_S}, 5
    v_add_u32 v{T}, s{S_T}, v{T}
    v_cmp_gt_u32 vcc, s{S_T+1}, v{T}
    s_mul_i32 s{S_T+2}, s{S_G}, {CAP*16}
    s_add_u32 s{S_T+2}, s{S_T+2}, {L_LIST+8}
    v_lshl_add_u32 v{T}, v{T}, 4, s{S_T+2}
    s_mov_b64 exec, vcc
    ds_write_b64 v{T}, {vr(V_B[0],2)}
    s_mov_b64 exec, -1
    s_sub_u32 s{S_NLAST}, s{S_T}, s{S_T+1}
    s_add_u32 s{S_NLAST}, s{S_NLAST}, 35
    s_lshr_b32 s{S_NLAST}, s{S_NLAST}, 2
    """)
    meta_reads(a)
    a(f"""
    s_cmp_gt_u32 s{S_S}, 2
    s_cbranch_scc1 M_nozl
    """)
    for k in range(32):
        a(f"v_mov_b32 v{V_L[0]+k}, 0")
    a(f"""
    s_cmp_ge_u32 s{S_G}, {16 if OPT.get("db") else 4}
    s_cbranch_scc1 M_nozl
    """)
    for k in range(32):
        a(f"v_mov_b32 v{V_L[1]+k}, 0")
    a.label("M_nozl")
    stamp(a, 2)
    setprio(a, 0)
    a(f"""
    s_waitcnt lgkmcnt(0)
    s_cmp_ge_u32 s{S_G}, {16 if OPT.get("db") else 4}
    s_cbranch_scc1 M_sglb
    """)
    stage_x(a, 0, "i", wait=False)
    a.label("M_goi")
    advance(a)
    a(f"s_mov_b32 s{S_FIRST}, 1")
    for p in range(2):
        a.label(f"M_it{p}")
        a(f"""
        s_waitcnt lgkmcnt(0)
        s_cmp_eq_u32 s{S_B1}, 1024
        s_cbranch_scc1 M_w{p}_0
        """)
        if OPT.get("hx"):
            a(f"""
            s_cmp_ge_u32 s{S_B1}, {OPT['hx']}
            s_cbranch_scc1 M_hx{p}
            s_waitcnt vmcnt({OPT.get('hw', 0)})
            """)
            a.label(f"M_hx{p}")
        stage_x(a, p ^ 1, str(p))
        a.label(f"M_go{p}")
        a(f"""
        s_cmp_eq_u32 s{S_FIRST}, 0
        s_cbranch_scc1 M_cn{p}
        """)
        compute(a, p, True)
        a(f"s_branch M_cd{p}")
        a.label(f"M_cn{p}")
        compute(a, p, False)
        a.label(f"M_cd{p}")
        a(f"""
        s_mov_b32 s{S_FIRST}, 0
        s_cmp_lg_u32 s{S_S1}, 0
        s_cbranch_scc1 M_nofl{p}
        s_mov_b32 s{S_FIRST}, 1
        s_call_b64 {sr(S_RET)}, M_flush
        s_cmp_eq_u32 s{S_B1}, 1024
        s_cbranch_scc1 M_end
        """)
        a.label(f"M_nofl{p}")
        advance(a)
        if p == 1:
            a("s_branch M_it0")
    def prep():
        for i in range(0, 8, 2):
            a(f"v_pk_add_f32 {vr(V_IX+i,2)}, {vr(V_IX+i,2)}, {vr(V_N16,2)}")
        a(f"""
        v_bfe_i32 v{V_OH}, v{V_OH}, v{V_C}, 1
        v_bfe_i32 v{V_OH+1}, v{V_OH+1}, v{V_C}, 1
        v_and_b32 v{V_OH}, v{V_OH}, v{V_CA}
        v_and_b32 v{V_OH+1}, v{V_OH+1}, v{V_CA}
        """)
    def load(i):
        a(f"buffer_load_dwordx4 {vr(V_L[0]+4*i,4)}, v{V_IX+i}, {sr(S_X,4)}, s{S_B1} offen")
    a.label("M_sglb")
    a(f"s_mov_b32 s{S_FLP}, 0")
    prep()
    tick(a, None)
    a.label("M_its")
    a(f"""
    s_add_u32 s{S_S2}, s{S_S1}, 1
    s_cmp_eq_u32 s{S_S2}, s{S_S}
    s_cbranch_scc1 M_parts
    """)
    a.label("M_fulls")
    for i in range(8): load(i)
    a("s_branch M_pms")
    a.label("M_parts")
    a(f"""
    s_mov_b32 s{S_S2}, 0
    s_cmp_eq_u32 s{S_NLAST}, 8
    s_cbranch_scc1 M_fulls
    """)
    for i in range(7):
        a(f"s_cmp_eq_u32 s{S_NLAST}, {i}")
        a(f"s_cbranch_scc1 M_pms")
        load(i)
    a.label("M_pms")
    tick(a, 1)
    a(f"""
    ds_read_b64_tr_b16 {vr(V_A[0],2)}, v{V_OH}
    ds_read_b64_tr_b16 {vr(V_A[0]+2,2)}, v{V_OH+1} offset:256
    """)
    meta_reads(a)
    a(f"""
    s_cmp_eq_u32 s{S_FLP}, 0
    s_cbranch_scc1 M_nofls
    """)
    a.label("M_dofl")
    a(f"""
    s_call_b64 {sr(S_RET)}, M_flush
    s_cmp_eq_u32 s{S_B1}, 1024
    s_cbranch_scc1 M_end
    s_cmp_lg_u32 s{S_B1}, {OPT.get("midb", 512)}
    s_cbranch_scc1 M_nofls
    s_cmp_lg_u32 s{S_MORE}, 0
    s_cbranch_scc1 M_nofls
    """)
    mid_stage(a)
    a.label("M_nofls")
    a("s_waitcnt lgkmcnt(0)")
    prep()
    tick(a, 13)
    if OPT.get("prof"):
        a("s_waitcnt vmcnt(0)")
        tick(a, 15)
        a(f"s_add_u32 s{S_ST+8}, s{S_ST+8}, 1")
    a(f"""
    s_cmp_eq_u32 s{S_S1}, 0
    s_mov_b32 s{S_S1}, s{S_S2}
    s_waitcnt vmcnt(0)
    s_cbranch_scc0 M_cns
    """)
    compute(a, 0, True)
    a("s_branch M_cds")
    a.label("M_cns")
    compute(a, 0, False)
    a.label("M_cds")
    tick(a, 3)
    a(f"""
    s_cmp_eq_u32 s{S_S2}, 0
    s_cselect_b32 s{S_FLP}, 256, 0
    s_add_u32 s{S_B1}, s{S_B1}, s{S_FLP}
    s_cmp_eq_u32 s{S_B1}, 1024
    s_cbranch_scc0 M_its
    s_cmp_lg_u32 s{S_MORE}, 0
    s_cbranch_scc1 M_dofl
    """)
    wload(a, V_T+2, [12, 13, 14, 15, 16, 17, 18, 19])
    a("s_branch M_dofl")
    flush_sub(a)
    a.label("M_end")
    a(f"""
    s_cmp_eq_u32 s{S_MORE}, 0
    s_cbranch_scc1 M_gemm
    s_mov_b32 s{S_RND}, 1
    s_waitcnt lgkmcnt(0)
    s_barrier
    s_branch M_init
    """)
    a.label("M_gemm")
    if OPT.get("nogemm"): a("s_endpgm")
    gemm(a)
    a.label("M_done")
    a("s_endpgm")

OACC = {(0, 0): 8, (1, 0): 20, (2, 0): 36}
O1 = [(0, 1), (0, 2), (0, 3), (1, 1), (1, 2), (1, 3), (2, 1), (2, 3)]
for n_, k_ in enumerate(O1): OACC[k_] = 136 + 4*n_

def wflag_spin(a, tag, va, vd):
    a(f"""
    s_sub_u32 s{S_T}, s{S_G}, 4
    s_mul_i32 s{S_T}, s{S_T}, {20*1024}
    s_lshl_b32 s{S_T+1}, s2, 2
    s_add_u32 s{S_T}, s{S_T}, s{S_T+1}
    s_add_u32 s{S_T}, s{S_T}, {WS_WFLAG}
    v_and_b32 v{va}, 63, v0
    v_min_u32 v{va}, 19, v{va}
    v_lshl_add_u32 v{va}, v{va}, 10, s{S_T}
    """)
    a.label(f"M_wfchk{tag}")
    a(f"""
    global_load_dword v{vd}, v{va}, {sr(S_WSB)} sc1
    s_waitcnt vmcnt(0)
    v_cmp_eq_u32 vcc, s{S_NON}, v{vd}
    s_cmp_eq_u64 vcc, -1
    s_cbranch_scc1 M_wfld{tag}
    s_sub_u32 s{S_SPIN}, s{S_SPIN}, 1
    s_cmp_gt_i32 s{S_SPIN}, 0
    s_cbranch_scc1 M_wfchk{tag}
    """)
    a.label(f"M_wfld{tag}")

def mid_stage(a):
    B0 = 7; DL = 19; X0 = 12; X2 = 13; XP = 14; TT = 15
    bufs = [40, 44, 64, 68, 72, 76]
    TR = {k: 48 + 4*n for n, k in enumerate(O1[4:])}
    a(f"""
    s_cmp_lg_u32 s{S_WOK}, 0
    s_cbranch_scc1 M_midw
    """)
    wflag_spin(a, "m", X0, X2)
    wload(a, X0, [0, 1, 2, 3, 8, 9, 10, 11])
    a(f"""
    s_waitcnt vmcnt(0)
    s_mov_b32 s{S_WOK}, 1
    """)
    a.label("M_midw")
    a(f"""
    v_mov_b32 v{XP}, {L_FC0}
    ds_read_b32 v{TT}, v{XP}
    v_and_b32 v{X0}, 15, v0
    v_bfe_u32 v{X2}, v0, 4, 2
    v_mul_u32_u24 v{DL}, {PSTR}, v{X0}
    v_xor_b32 v{B0}, v{X2}, v{X0}
    v_lshl_add_u32 v{B0}, v{B0}, 4, v{DL}
    v_add_u32 v{B0}, {L_P}, v{B0}
    v_lshrrev_b32 v{DL}, 3, v{X0}
    v_mul_i32_i24 v{DL}, {768 - 8*PSTR}, v{DL}
    """)
    a.label("M_midf")
    a(f"""
    s_waitcnt lgkmcnt(0)
    v_readfirstlane_b32 s{S_T}, v{TT}
    s_cmp_ge_u32 s{S_T}, {NG}
    s_cbranch_scc1 M_midg
    s_sleep 1
    ds_read_b32 v{TT}, v{XP}
    s_branch M_midf
    """)
    a.label("M_midg")
    steps = []
    for k4 in range(4):
        for t in range(3): steps.append((t, 0, 0, k4, k4))
    for k4 in range(4):
        for (t, o) in O1[4:] + O1[:4]: steps.append((t, o, comp011(o-1), k4, 8 + k4))
    NBF = len(bufs)
    cur = [None]
    def rd(n):
        t, o, c, k4, ws = steps[n]
        key = (k4, ws >= 8)
        if cur[0] != key:
            cur[0] = key
            a(f"v_xor_b32 v{X0}, {64*k4}, v{B0}")
            a(f"v_add_u32 v{X2}, {32*PSTR}, v{X0}")
            if ws >= 8: a(f"v_add_u32 v{XP}, v{X2}, v{DL}")
        base = X0 if t < 2 else (XP if o == 1 else X2)
        off = c*256 + (16*PSTR if t == 1 else 0)
        a(f"ds_read_b128 {vr(bufs[n % NBF],4)}, v{base} offset:{off}")
    for n in range(NBF - 1): rd(n)
    for n in range(len(steps)):
        t, o, c, k4, ws = steps[n]
        if n + NBF - 1 < len(steps): rd(n + NBF - 1)
        a(f"s_waitcnt lgkmcnt({min(NBF - 1, len(steps) - 1 - n)})")
        acc = vr(TR.get((t, o), OACC[(t, o)]), 4)
        a(f"v_mfma_f32_16x16x32_bf16 {acc}, {vr(WREG[ws],4)}, {vr(bufs[n % NBF],4)}, {'0' if k4 == 0 else acc}")
    for k in O1[4:]:
        for r in range(4): a(f"v_mov_b32 v{OACC[k]+r}, v{TR[k]+r}")

def gemm(a):
    BB = 40; NBB = 6
    PKB = 80; PKO = 0; T2B = 76; LN = 16; OA = 17; WA = 18
    def store_row(rho_s, vb, light):
        a(f"""
        s_mul_i32 s{S_T}, s{rho_s}, {OSTR}
        s_add_u32 s{S_T}, s{S_T}, {L_LIST}
        v_add_u32 v{WA}, s{S_T}, v{LN}
        ds_read_b128 {vr(vb,4)}, v{WA}
        """)
    def row_off(rho_s, dst, light):
        if light:
            a(f"""
            s_sub_u32 s{S_T}, s{rho_s}, 16
            s_lshr_b32 s{S_T+1}, s{S_T}, 3
            s_and_b32 s{S_T}, s{S_T}, 7
            s_add_u32 s{S_T}, s{S_T}, 4
            """)
        else:
            a(f"""
            s_lshr_b32 s{S_T+1}, s{rho_s}, 2
            s_and_b32 s{S_T}, s{rho_s}, 3
            """)
        a(f"""
        s_mul_i32 s{S_T+1}, s{S_T+1}, 12
        s_add_u32 s{S_T}, s{S_T}, s{S_T+1}
        s_lshl_b32 s{S_T}, s{S_T}, 18
        s_lshl_b32 s{S_T+1}, s3, 10
        s_add_u32 s{S_T}, s{S_T}, s{S_T+1}
        v_add_u32 v{dst}, s{S_T}, v{LN}
        """)
    a(f"""
    s_setprio {OPT.get("pg", 0)}
    s_waitcnt lgkmcnt(0)
    v_and_b32 v{LN}, 63, v0
    s_cmp_ge_u32 s{S_G}, 4
    s_cbranch_scc1 M_gw
    v_lshlrev_b32 v{LN}, 4, v{LN}
    """)
    for k in range(6):
        a(f"s_add_u32 s{S_T+3}, s{S_G}, {16 + 4*k}")
        row_off(S_T+3, 40 + k, True)
    a(f"""
    s_mul_i32 s{S_T}, s{S_G}, {OSTR}
    s_add_u32 s{S_T}, s{S_T}, {L_LIST + 16*OSTR}
    v_add_u32 v{WA}, s{S_T}, v{LN}
    s_waitcnt lgkmcnt(0)
    s_barrier
    """)
    for k in range(6):
        a(f"ds_read_b128 {vr(48+4*k,4)}, v{WA} offset:{4*OSTR*k}")
    for k in range(6):
        a(f"s_waitcnt lgkmcnt({5-k})")
        a(f"buffer_store_dwordx4 {vr(48+4*k,4)}, v{40+k}, {sr(S_OUT,4)}, 0 offen {fl('of')}")
    a("s_branch M_st")
    a.label("M_gw")
    a(f"""
    s_waitcnt lgkmcnt(0)
    """)
    late = [12, 13, 14, 15, 16, 17, 18, 19, 4, 5, 6, 7]
    wload(a, WA, [4, 5, 6, 7])
    a(f"""
    v_mov_b32 v14, {L_FC}
    ds_read_b32 v15, v14
    v_and_b32 v12, 15, v{LN}
    v_lshrrev_b32 v13, 4, v{LN}
    v_mul_u32_u24 v{OA}, {PSTR}, v12
    v_xor_b32 v1, v13, v12
    v_lshl_add_u32 v1, v1, 4, v{OA}
    v_add_u32 v1, {L_P}, v1
    v_xor_b32 v2, 64, v1
    v_xor_b32 v3, 128, v1
    v_xor_b32 v4, 192, v1
    """)
    setup = [f"v_add_u32 v{T2B+k4}, {32*PSTR}, v{1+k4}" for k4 in range(4)]
    setup += [f"v_lshrrev_b32 v{PKO}, 3, v12", f"v_mul_i32_i24 v{PKB+3}, {768 - 8*PSTR}, v{PKO}"]
    setup += [f"v_add_u32 v{PKB+k4}, v{T2B+k4}, v{PKB+3}" for k4 in range(4)]
    setup += [f"s_lshl_b32 s{S_T+1}, s{S_G}, 5", f"s_add_u32 s{S_T+1}, s{S_T+1}, {L_LIST - 128}",
              f"v_mul_u32_u24 v{OA}, {OSTR}, v12", f"v_lshl_add_u32 v{OA}, v13, 3, v{OA}", f"v_add_u32 v{OA}, s{S_T+1}, v{OA}",
              f"v_mul_i32_i24 v{PKO}, {256 - 8*OSTR}, v{PKO}", f"v_add_u32 v{PKO}, v{PKO}, v{OA}",
              f"s_mov_b32 s{S_T+2}, 0xbfb8aa3b", f"v_lshlrev_b32 v{LN}, 4, v{LN}"]
    for x in setup: a(x)
    def spin(tag, off, n):
        a.label(f"M_fcw{tag}")
        a(f"""
        s_waitcnt lgkmcnt(0)
        v_readfirstlane_b32 s{S_T}, v15
        s_cmp_ge_u32 s{S_T}, {n}
        s_cbranch_scc1 M_fcok{tag}
        s_sleep 1
        ds_read_b32 v15, v14 offset:{off}
        s_branch M_fcw{tag}
        """)
        a.label(f"M_fcok{tag}")
    spin("a", 0, NG)
    if not OPT.get("pst"): stamp(a, 12)
    st1 = []
    for k4 in range(4):
        for t in range(3):
            st1.append((t, 1, comp101(0), k4, 12 + k4))
            st1.append((t, 2, comp101(1), k4, 12 + k4))
    for k4 in range(4):
        for t in range(3):
            st1.append((t, 3, comp111(2), k4, 16 + k4))
    st1 = [x for x in st1 if not (x[0] == 2 and x[1] == 2)]
    def late_steps(tiles):
        st = []
        for k4 in range(4):
            for t in tiles: st.append((t, 0, 1, k4, 4 + k4))
        for t in tiles:
            for k4 in range(4):
                st.append((t, 3, comp101(2), k4, 12 + k4))
                st.append((t, 1, comp111(0), k4, 16 + k4))
                st.append((t, 2, comp111(1), k4, 16 + k4))
        return [x for x in st if not (x[0] == 2 and x[1] == 2)]
    started = set()
    wmax = [-1]
    def run(steps, fill):
        q = []
        def rd(n):
            t, o, c, k4, ws = steps[n]
            base = (1 + k4) if t < 2 else ((PKB + k4) if o == 1 else (T2B + k4))
            off = c*256 + (16*PSTR if t == 1 else 0)
            a(f"ds_read_b128 {vr(BB+4*(n%NBB),4)}, v{base} offset:{off}")
            q.append(n)
        n_steps = len(steps)
        for n in range(NBB - 1): rd(n)
        for n in range(n_steps):
            t, o, c, k4, ws = steps[n]
            if n + NBB - 1 < n_steps: rd(n + NBB - 1)
            pend = len(q) - 1 - q.index(n)
            assert pend <= 15
            idx = late.index(ws) if ws in late else -1
            w = f"lgkmcnt({pend})"
            if idx > wmax[0]:
                w = f"vmcnt({len(late) - 1 - idx}) " + w
                wmax[0] = idx
            a("s_waitcnt " + w)
            acc = vr(OACC[(t, o)], 4)
            first = False
            a(f"v_mfma_f32_16x16x32_bf16 {acc}, {vr(WREG[ws],4)}, {vr(BB+4*(n%NBB),4)}, {'0' if first else acc}")
            for x in fill.get(n, []):
                a(x)
                if x.startswith("ds_"): q.append(-1)
    GT = 64
    def gate_ops(t):
        A0 = OACC[(t, 0)]; g = GT + 4*t
        o = [f"v_mul_f32 v{g+r}, s{S_T+2}, v{A0+r}" for r in range(4)]
        o += [f"v_exp_f32 v{g+r}, v{g+r}" for r in range(4)]
        o += [f"v_cvt_pk_bf16_f32 v{A0}, v{A0}, v{A0+1}", f"v_cvt_pk_bf16_f32 v{A0+1}, v{A0+2}, v{A0+3}"]
        o += [f"ds_write_b64 v{OA}, {vr(A0,2)} offset:{16*OSTR*t}"]
        o += [f"v_add_f32 v{g+r}, 1.0, v{g+r}" for r in range(4)]
        o += [f"v_rcp_f32 v{g+r}, v{g+r}" for r in range(4)]
        if t == 2:
            o += ["s_nop 1"]
            o += [f"v_mov_b32_dpp v{g+r}, v{g+r} row_shr:8 row_mask:0xf bank_mask:0xc" for r in range(4)]
        return o
    def fin_ops(t):
        o = []
        for i in ([2, 0, 1] if t < 2 else [2, 0]):
            B0 = OACC[(t, 1 + i)]
            o += [f"v_pk_mul_f32 {vr(B0+r,2)}, {vr(B0+r,2)}, {vr(GT+4*t+r,2)}" for r in (0, 2)]
            o += [f"v_cvt_pk_bf16_f32 v{B0}, v{B0}, v{B0+1}", f"v_cvt_pk_bf16_f32 v{B0+1}, v{B0+2}, v{B0+3}"]
            if t == 2 and i == 0: o += [f"ds_write_b64 v{PKO}, {vr(B0,2)} offset:{32*OSTR + 256}"]
            else: o += [f"ds_write_b64 v{OA}, {vr(B0,2)} offset:{16*OSTR*t + 256*(i+1)}"]
        return o
    def spread(fill, ops, n0, n1):
        cnt = n1 - n0
        for j, op in enumerate(ops):
            fill.setdefault(n0 + j * cnt // len(ops), []).append(op)
    f1 = {}
    f1.setdefault(len(st1) - 4, []).append(f"ds_read_b32 v15, v14 offset:4")
    run(st1, f1)
    a("s_setprio 0")
    spin("b", 4, 8)
    f2 = {}
    spread(f2, gate_ops(1) + gate_ops(2), 11, 23)
    spread(f2, fin_ops(1), 23, 27)
    run(late_steps([1, 2]), f2)
    a("s_nop 5")
    for x in fin_ops(2): a(x)
    a("s_waitcnt lgkmcnt(0)")
    if not OPT.get("pst"): stamp(a, 14)
    a("s_barrier")
    stamp(a, 7)
    f3 = {}
    spread(f3, gate_ops(0), 7, 15)
    run(late_steps([0]), f3)
    a("s_nop 5")
    for x in fin_ops(0): a(x)
    a.label("M_st")
    row_off(S_G, 12, False)
    a(f"""
    s_add_u32 s{S_T+3}, s{S_G}, 8
    """)
    row_off(S_T+3, 13, False)
    a(f"""
    s_mul_i32 s{S_T}, s{S_G}, {OSTR}
    s_add_u32 s{S_T}, s{S_T}, {L_LIST}
    v_add_u32 v{WA}, s{S_T}, v{LN}
    s_waitcnt lgkmcnt(0)
    s_barrier
    """)
    stamp(a, 8)
    a(f"""
    ds_read_b128 v[72:75], v{WA}
    s_and_b32 s{S_T}, s{S_G}, 12
    s_cmp_lg_u32 s{S_T}, 4
    s_cbranch_scc1 M_st3
    ds_read_b128 v[76:79], v{WA} offset:{8*OSTR}
    s_waitcnt lgkmcnt(0)
    buffer_store_dwordx4 v[76:79], v13, {sr(S_OUT,4)}, 0 offen {fl('of')}
    """)
    a.label("M_st3")
    a(f"""
    s_waitcnt lgkmcnt(0)
    buffer_store_dwordx4 v[72:75], v12, {sr(S_OUT,4)}, 0 offen {fl('of')}
    """)
    stamp_dump(a)

def kd(a, name, vg, sg):
    acc = (vg + 3) // 4 * 4
    a.raw(f""".p2align 6
.amdhsa_kernel {name}
  .amdhsa_next_free_vgpr {vg}
  .amdhsa_next_free_sgpr {sg}
  .amdhsa_accum_offset {acc}
  .amdhsa_group_segment_fixed_size 0
  .amdhsa_kernarg_size 96
  .amdhsa_user_sgpr_count 2
  .amdhsa_user_sgpr_kernarg_segment_ptr 1
  .amdhsa_system_sgpr_workgroup_id_x 1
  .amdhsa_float_denorm_mode_32 3
.end_amdhsa_kernel""")

def main():
    global DBG
    OPT.update(dict(x.split("=") for x in sys.argv[2:]))
    DBG = bool(int(OPT.get("dbg", 0)))
    a = Asm()
    ref = open(f"cdna_kernels/{NAME}.s.ref").read().split("\n")
    for ln in ref:
        if ln.startswith(";") and "@launch" not in ln and "Override" not in ln and "grid=ceil" not in ln:
            a.raw(ln)
    a.raw(f"; @launch kernel={NAME}_kernel grid=({NB},1,1) block=({NT},1,1) lds={L_TOT}")
    a.raw('.amdgcn_target "amdgcn-amd-amdhsa--gfx950"')
    a.raw(".text")
    gen_main(a)
    a.raw('.section .rodata,"a"')
    kd(a, NAME + "_kernel", NVG, 102 if DBG else (72 if OPT.get('spinat') else 70))
    open(sys.argv[1], "w").write(a.text())

main()
```

```python
import sys

NAME = "gather_scatter__tensor_product_equiv_equiformer__graph"
N = 10000
E = 320000
NB = 256
CH = 1250
CHS = 1280
WS_OFF = 0x500000
WS_WF = 0x600000
WS_WFLAG = 0x640000
WS_PF32 = 0x1000000
SPIN_MAX = 1 << 18
TAGM = 0xffc00000

NG = 12
NT = NG * 64
CAP = 224
PSTR = 2816
L_CC = 512
L_BASE = L_CC + NG * 64
L_ACNT = L_BASE + NG * 64
L_MORE = L_ACNT + 60
L_NONCE = L_ACNT + 64
L_FC3 = L_ACNT + 84
L_FC0 = L_ACNT + 88
L_FC = L_ACNT + 80
OSTR = 1040
L_P = L_ACNT + 256
L_LIST = L_P + 40 * PSTR
L_TOT = L_LIST + NG * CAP * 16
assert L_TOT <= 163840 and L_P % 256 == 0
OOBOFF = 0x00FFFC00

OPT = {}
DBG = False

class Asm:
    def __init__(self):
        self.l = []
    def __call__(self, s):
        for x in s.split("\n"):
            x = x.strip()
            if x:
                self.l.append("    " + x)
    def label(self, s):
        self.l.append(s + ":")
    def raw(self, s):
        self.l.append(s)
    def text(self):
        return "\n".join(self.l) + "\n"

def vr(a, n):
    return f"v[{a}:{a+n-1}]"
def sr(a, n=2):
    return f"s[{a}:{a+n-1}]"
def fl(k):
    return OPT.get(k, {'of': 'sc1'}.get(k, '')).replace('+', ' ')

V_C = 1; V_N16 = 2; V_VS = 4; V_VC = 5; V_PB = 6; V_JB = 7; V_DONE = 8
V_OFF = 9
V_T = 12
V_OH = 16; V_CA = 18; V_TCH = 19
V_SC = 20; V_IX = 24
V_A = [32, 36]
V_B = [40, 44]
V_ACC = 48
V_SV = 80
V_L = [104, 136]
NVG = 168
S_X = 4; S_OUT = 8; S_REC = 12; S_OFFS = 16; S_WF = 20
S_G = 22; S_S = 23; S_S1 = 24; S_B1 = 25; S_S2 = 26; S_PLO = 27; S_PHI = 28; S_NLAST = 29
S_RND = 30; S_MORE = 31; S_T = 32
S_M = 40
S_IN = 40
S_ACT = 52; S_PEND = 54; S_TM = 56; S_FEX = 58; S_RET = 60; S_HI = 62; S_FIRST = 63
S_NON = 64; S_DBG = 66; S_WSB = 68; S_SPIN = 0; S_WOK = 1; S_FLP = 63; S_ANY2 = 23; S_SPIN2 = 50
S_ST = 70

def pa(a, k):
    if OPT.get("pa"): a(f"s_memtime {sr(S_ST+2*k)}")
spn = [0]
def stamp(a, k, real=False):
    if OPT.get("spinat") and int(OPT["spinat"]) == k:
        spn[0] += 1
        a.label(f"D_spin{spn[0]}")
        a(f"""
        s_memrealtime s[70:71]
        s_waitcnt lgkmcnt(0)
        s_sub_u32 s70, s70, s{S_NON}
        s_cmp_lt_u32 s70, {OPT["spint"]}
        s_cbranch_scc1 D_spin{spn[0]}
        """)
    if OPT.get("pa") and k in (4, 5, 6, 7, 8, 14): return
    if OPT.get("prof") and k in (1, 13, 15, 3, 4, 5): return
    if DBG:
        a(f"s_mem{'realtime' if real else 'time'} {sr(S_ST+2*k)}")
def stamp_dump(a):
    if OPT.get("spinat") == "9":
        a("s_waitcnt vmcnt(0)")
        stamp(a, 9)
    if DBG:
        a("s_waitcnt lgkmcnt(0) vmcnt(0)")
        stamp(a, 9)
        stamp(a, 11, True)
        a("s_waitcnt lgkmcnt(0)")
        if OPT.get("hwid"):
            a(f"s_getreg_b32 s{S_ST+26}, hwreg(HW_REG_HW_ID)")
            a(f"s_mov_b32 s{S_ST+27}, 0")
        a(f"s_mul_i32 s{S_T}, s2, {NG}")
        a(f"s_add_u32 s{S_T}, s{S_T}, s{S_G}")
        a(f"s_lshl_b32 s{S_T}, s{S_T}, 7")
        a(f"s_add_u32 s{S_T}, s{S_T}, 0x800000")
        a(f"v_mov_b32 v1, s{S_T}")
        for k in range(0, 32, 2):
            a(f"v_mov_b32 v2, s{S_ST+k}")
            a(f"v_mov_b32 v3, s{S_ST+k+1}")
            a(f"global_store_dwordx2 v1, v[2:3], {sr(S_WSB)} offset:{4*k}")
            a("s_nop 1")

def comp011(i): return 2 + 3*i
def comp101(i): return 3 + 3*i
def comp111(i): return 4 + 3*i

def touch(a, beta, part, va, vd):
    a(f"""
    s_mul_i32 s{S_T+6}, s3, 79
    s_add_u32 s{S_T+6}, s{S_T+6}, {64*part}
    v_and_b32 v{va}, 63, v0
    v_add_u32 v{va}, s{S_T+6}, v{va}
    v_and_b32 v{vd}, 1, v{va}
    v_lshrrev_b32 v{va}, 1, v{va}
    v_lshlrev_b32 v{va}, 10, v{va}
    v_lshl_add_u32 v{va}, v{vd}, 7, v{va}
    """)
    if part: a("s_mov_b64 exec, 0x7fff")
    a(f"buffer_load_dword v{vd}, v{va}, {sr(S_X,4)}, 0 offen offset:{256*beta}")
    if part: a("s_mov_b64 exec, -1")

WREG = {}
for n_, ks_ in enumerate([0, 1, 2, 3, 8, 9, 10, 11]): WREG[ks_] = 136 + 4*n_
for n_, ks_ in enumerate([4, 5, 6, 7, 12, 13, 14, 15, 16, 17, 18, 19]): WREG[ks_] = 88 + 4*n_
def wload(a, va, kss):
    a(f"""
    s_sub_u32 s{S_T+6}, s{S_G}, 4
    s_mul_i32 s{S_T+6}, s{S_T+6}, {20*1024}
    v_and_b32 v{va}, 63, v0
    v_lshl_add_u32 v{va}, v{va}, 4, s{S_T+6}
    """)
    cur = 0
    for ks in kss:
        blk = ks // 4 * 4096
        if blk != cur:
            if blk > cur: a(f"v_add_u32 v{va}, {blk - cur}, v{va}")
            else: a(f"v_subrev_u32 v{va}, {cur - blk}, v{va}")
            cur = blk
        a(f"global_load_dwordx4 {vr(WREG[ks],4)}, v{va}, {sr(S_WF)} offset:{1024*(ks%4)} sc1")

def meta_reads(a):
    a(f"""
    s_lshl_b32 s{S_T}, s{S_S2}, 9
    v_add_u32 v{V_T}, s{S_T}, v{V_VS}
    v_add_u32 v{V_CA}, s{S_T}, v{V_VC}
    """)
    for i in range(0, 8, 2):
        a(f"ds_read2_b32 {vr(V_IX+i,2)}, v{V_T} offset0:{16*i+2} offset1:{16*(i+1)+2}")
    a(f"ds_read2_b32 {vr(V_OH,2)}, v{V_CA} offset0:3 offset1:67")

def stage_x(a, p, tag, wait=True):
    L = V_L[p]; A = V_A[p]
    for i in range(0, 8, 2):
        a(f"v_pk_add_f32 {vr(V_IX+i,2)}, {vr(V_IX+i,2)}, {vr(V_N16,2)}")
    a(f"""
    v_bfe_i32 v{V_OH}, v{V_OH}, v{V_C}, 1
    v_bfe_i32 v{V_OH+1}, v{V_OH+1}, v{V_C}, 1
    s_add_u32 s{S_S2}, s{S_S1}, 1
    v_and_b32 v{V_OH}, v{V_OH}, v{V_CA}
    v_and_b32 v{V_OH+1}, v{V_OH+1}, v{V_CA}
    s_cmp_eq_u32 s{S_S2}, s{S_S}
    ds_read_b64_tr_b16 {vr(A,2)}, v{V_OH}
    ds_read_b64_tr_b16 {vr(A+2,2)}, v{V_OH+1} offset:256
    s_cbranch_scc1 M_part{tag}
    """)
    def load(i):
        a(f"buffer_load_dwordx4 {vr(L+4*i,4)}, v{V_IX+i}, {sr(S_X,4)}, s{S_B1} offen")
    a.label(f"M_full{tag}")
    for i in range(8):
        load(i)
    meta_reads(a)
    if wait: a("s_waitcnt vmcnt(8)")
    a(f"s_branch M_go{tag}")
    a.label(f"M_part{tag}")
    a(f"""
    s_mov_b32 s{S_S2}, 0
    s_cmp_eq_u32 s{S_NLAST}, 8
    s_cbranch_scc1 M_full{tag}
    """)
    for i in range(7):
        a(f"s_cmp_eq_u32 s{S_NLAST}, {i}")
        a(f"s_cbranch_scc1 M_w{tag}_{i}")
        load(i)
    for i in range(7, -1, -1):
        a.label(f"M_w{tag}_{i}")
        if wait:
            a(f"s_waitcnt vmcnt({i})")
            if i > 0: a(f"s_branch M_pm{tag}")
    a.label(f"M_pm{tag}")
    meta_reads(a)

def advance(a):
    a(f"""
    s_mov_b32 s{S_S1}, s{S_S2}
    s_cmp_eq_u32 s{S_S2}, 0
    s_cselect_b32 s{S_T}, 256, 0
    s_add_u32 s{S_B1}, s{S_B1}, s{S_T}
    """)

def compute(a, p, first):
    L = V_L[p]; A = V_A[p]
    def perms(j):
        B = V_B[j % 2]
        sel = S_PHI if j % 2 else S_PLO
        for q in range(4):
            if OPT.get("noperm"): continue
            a(f"v_perm_b32 v{B+q}, v{L+4*(2*q+1)+j//2}, v{L+4*(2*q)+j//2}, s{sel}")
    perms(0)
    for j in range(8):
        if j + 1 < 8:
            perms(j + 1)
        else:
            a("s_nop 1")
        acc = vr(V_ACC+4*j,4)
        if OPT.get("nomfma"): continue
        Bop = vr(L+4*j,4) if OPT.get("noperm") else vr(V_B[j%2],4)
        if OPT.get("swap"): a(f"v_mfma_f32_16x16x32_bf16 {acc}, {Bop}, {vr(A,4)}, {'0' if first else acc}")
        elif OPT.get("m4"):
            a(f"v_mfma_f32_4x4x4_16b_bf16 {acc}, {vr(A,2)}, {vr(V_B[j%2],2)}, {'0' if first else acc}")
            a(f"v_mfma_f32_4x4x4_16b_bf16 {acc}, {vr(A+2,2)}, {vr(V_B[j%2]+2,2)}, {acc}")
        else: a(f"v_mfma_f32_16x16x32_bf16 {acc}, {vr(A,4)}, {Bop}, {'0' if first else acc}")

wc_n = [0]
def write_comp(a, comp, regs):
    n = wc_n[0]; wc_n[0] += 1
    TM = V_B[0]
    a(f"""
    s_or_b32 s{S_T}, s{S_RND}, s{S_MORE}
    s_cmp_eq_u32 s{S_T}, 0
    s_cbranch_scc1 M_wc{n}
    s_mul_i32 s{S_T}, s3, {NG}
    s_add_u32 s{S_T}, s{S_T}, s{S_G}
    s_mul_i32 s{S_T}, s{S_T}, {11*2048}
    s_add_u32 s{S_T}, s{S_T}, {WS_PF32 + comp*2048}
    v_and_b32 v{V_T}, 63, v0
    v_lshl_add_u32 v{V_T}, v{V_T}, 2, s{S_T}
    s_waitcnt lgkmcnt(0)
    s_cmp_eq_u32 s{S_RND}, 0
    s_cbranch_scc1 M_wd{n}
    """)
    for j in range(8):
        a(f"global_load_dword v{TM+j}, v{V_T}, {sr(S_WSB)} offset:{256*j} sc1")
    a("s_waitcnt vmcnt(0)")
    for j in range(8):
        a(f"v_add_f32 v{regs[j]}, v{regs[j]}, v{TM+j}")
    a.label(f"M_wd{n}")
    for j in range(8):
        a(f"global_store_dword v{V_T}, v{regs[j]}, {sr(S_WSB)} offset:{256*j} sc1")
    a("s_waitcnt vmcnt(0)")
    a.label(f"M_wc{n}")
    sc = [V_B[0], V_B[1]][n % 2]
    for d in range(4):
        a(f"v_cvt_pk_bf16_f32 v{sc+d}, v{regs[2*d]}, v{regs[2*d+1]}")
    if comp in (5, 6, 7):
        a(f"""
        s_cmp_ge_u32 s{S_G}, 4
        s_cselect_b32 s{S_TM+1}, 0xffff, 0
        s_mov_b32 s{S_TM}, 0
        v_xor_b32 v{V_T+1}, 128, v{V_PB}
        v_cndmask_b32 v{V_T+1}, v{V_PB}, v{V_T+1}, {sr(S_TM)}
        ds_write_b128 v{V_T+1}, {vr(sc,4)} offset:{comp*256}
        """)
    else:
        a(f"ds_write_b128 v{V_PB}, {vr(sc,4)} offset:{comp*256}")

def setprio(a, ph):
    pl = OPT.get("pl", "3210"); phv = OPT.get("ph", "3210")
    if pl[ph] == phv[ph]:
        a(f"s_setprio {pl[ph]}")
    else:
        a(f"""
        s_setprio {pl[ph]}
        s_cmp_ge_u32 s{S_G}, 4
        s_cbranch_scc1 M_pr{ph}
        s_setprio {phv[ph]}
        """)
        a.label(f"M_pr{ph}")

def tick(a, slot):
    if OPT.get("prof"):
        a(f"""
        s_memtime {sr(S_M)}
        s_waitcnt lgkmcnt(0)
        s_sub_u32 s{S_M+3}, s{S_M}, s{S_M+2}
        s_mov_b32 s{S_M+2}, s{S_M}
        """)
        if slot is not None: a(f"s_add_u32 s{S_ST+2*slot}, s{S_ST+2*slot}, s{S_M+3}")

def flush_sub(a):
    acc = lambda r: [V_ACC + 4*j + r for j in range(8)]
    sv = lambda k: [V_SV + 8*k + j for j in range(8)]
    a.label("M_flush")
    a(f"""
    s_mov_b64 exec, {sr(S_FEX)}
    s_cmp_eq_u32 s{S_B1}, 512
    s_cbranch_scc1 M_fl1
    s_cmp_eq_u32 s{S_B1}, 768
    s_cbranch_scc1 M_fl2
    s_cmp_eq_u32 s{S_B1}, 1024
    s_cbranch_scc1 M_fl3
    s_nop 1
    """)
    def ret(ph, k):
        if not (OPT.get("pst") and k == 3): stamp(a, k)
        if ph is not None: setprio(a, ph)
        a(f"s_mov_b64 exec, -1")
        a(f"s_setpc_b64 {sr(S_RET)}")
    write_comp(a, 0, acc(0))
    for i in range(3): write_comp(a, comp011(i), acc(1+i))
    a(f"""
    s_mov_b64 exec, 1
    v_mov_b32 v{V_T+2}, {L_FC0}
    v_mov_b32 v{V_T+3}, 1
    ds_add_u32 v{V_T+2}, v{V_T+3}
    """)
    a("s_mov_b64 exec, -1")
    for n, b in enumerate(OPT.get("t3", "x").replace("x", "")):
        for k in range(2):
            a(f"s_cmp_lg_u32 s{S_G}, {4+2*n+k}")
            a(f"s_cbranch_scc1 M_t3_{n}_{k}")
            touch(a, int(b), k, V_T+2, V_TCH)
            a.label(f"M_t3_{n}_{k}")
    ret(1, 3)
    a.label("M_fl1")
    a("s_nop 4")
    write_comp(a, comp101(0), acc(0))
    for k in range(3):
        for j in range(8): a(f"v_mov_b32 v{sv(k)[j]}, v{acc(1+k)[j]}")
    ret(2, 4)
    a.label("M_fl2")
    a("s_nop 2")
    write_comp(a, comp101(1), acc(0))
    for j in range(8): a(f"v_sub_f32 v{acc(1)[j]}, v{acc(1)[j]}, v{sv(1)[j]}")
    write_comp(a, comp111(2), acc(1))
    for j in range(8): a(f"v_add_f32 v{sv(0)[j]}, v{sv(0)[j]}, v{acc(2)[j]}")
    for j in range(8): a(f"v_mov_b32 v{sv(1)[j]}, v{acc(3)[j]}")
    a(f"""
    s_mov_b64 exec, 1
    v_mov_b32 v{V_T+2}, {L_FC}
    v_mov_b32 v{V_T+3}, 1
    ds_add_u32 v{V_T+2}, v{V_T+3}
    """)
    ret(3, 5)
    a.label("M_fl3")
    write_comp(a, comp101(2), acc(0))
    for j in range(8): a(f"v_sub_f32 v{sv(2)[j]}, v{sv(2)[j]}, v{acc(1)[j]}")
    write_comp(a, comp111(1), sv(2))
    for j in range(8): a(f"v_sub_f32 v{acc(2)[j]}, v{acc(2)[j]}, v{sv(1)[j]}")
    write_comp(a, comp111(0), acc(2))
    for j in range(8): a(f"v_add_f32 v{sv(0)[j]}, v{sv(0)[j]}, v{acc(3)[j]}")
    write_comp(a, 1, sv(0))
    a(f"""
    s_cmp_lt_u32 s{S_G}, 4
    s_cbranch_scc1 M_fl3b
    s_mov_b64 exec, 1
    v_mov_b32 v{V_T+2}, {L_FC3}
    v_mov_b32 v{V_T+3}, 1
    ds_add_u32 v{V_T+2}, v{V_T+3}
    """)
    a.label("M_fl3b")
    ret(None, 6)

A_H = L_P; A_BS = L_P + 4096; A_STG = L_P + 8192; A_OFS = L_P + 32768

def cpf(a):
    K = NAME + "_kernel"
    a(f"""
    s_lshr_b32 s{S_T+4}, s3, 3
    s_cmp_lg_u32 s{S_T+4}, {OPT.get('cpw', 0)}
    s_cbranch_scc1 A_nocpf
    s_getpc_b64 {sr(S_T+2)}
    """)
    a.label("A_pc")
    a(f"""
    s_sub_u32 s{S_T+2}, s{S_T+2}, A_pc-{K}
    s_subb_u32 s{S_T+3}, s{S_T+3}, 0
    v_lshlrev_b32 v50, 3, v1
    s_mov_b32 s{S_T+4}, M_done-{K}
    v_add_u32 v51, 8192, v50
    v_min_u32 v51, s{S_T+4}, v51
    v_add_u32 v54, 16384, v50
    v_min_u32 v54, s{S_T+4}, v54
    global_load_dword v52, v50, {sr(S_T+2)}
    global_load_dword v53, v51, {sr(S_T+2)}
    global_load_dword v55, v54, {sr(S_T+2)}
    """)
    a.label("A_nocpf")

def phase_a(a):
    RH = 38; EA = 40; SRC = 42; DST = 44; WR = 46; W0 = 48; W1 = 50
    WSB = sr(S_WSB)
    def read_nonce(wait=True):
        a(f"""
        v_mov_b32 v2, {L_NONCE}
        ds_read_b64 v[2:3], v2
        s_waitcnt lgkmcnt(0)
        v_readfirstlane_b32 s{S_NON}, v2
        v_readfirstlane_b32 s{S_NON+1}, v3
        """)
    a(f"""
    s_cmp_eq_u32 s{S_G}, 10
    s_cbranch_scc1 A_scan
    s_cmp_eq_u32 s{S_G}, 11
    s_cbranch_scc1 A_aux
    v_lshrrev_b32 v20, 1, v6
    v_add_u32 v3, v6, v20
    s_mov_b64 exec, vcc
    """)
    LB = int(OPT.get("lb", 0))
    if LB: a("s_waitcnt lgkmcnt(0)\ns_barrier")
    a(f"""
    global_load_dwordx2 v[8:9], v6, {sr(SRC)} nt
    global_load_dwordx3 v[12:14], v3, {sr(RH)} nt
    global_load_dword v18, v20, {sr(EA)} nt
    v_mov_b32 v23, 1
    """)
    pa(a, 4)
    if not LB: a("s_waitcnt lgkmcnt(0)\ns_barrier")
    a("s_waitcnt vmcnt(3)")
    pa(a, 5)
    for i in range(2):
        a(f"""
        v_and_b32 v{24+i}, 7, v{4+i}
        v_bfe_u32 v1, v{4+i}, 3, 5
        v_lshlrev_b32 v{24+i}, 7, v{24+i}
        v_lshl_or_b32 v{24+i}, v1, 2, v{24+i}
        ds_add_rtn_u32 v{28+i}, v{24+i}, v23 offset:{A_H}
        """)
    a("""
    s_waitcnt lgkmcnt(0)
    s_barrier
    """)
    pa(a, 6)
    for i in range(2):
        a(f"""
        v_lshrrev_b32 v{4+i}, 8, v{4+i}
        v_mul_u32_u24 v1, 43, v{4+i}
        v_lshrrev_b32 v1, 9, v1
        v_mul_u32_u24 v2, 12, v1
        v_sub_u32 v{4+i}, v{4+i}, v2
        v_lshlrev_b32 v1, 14, v1
        v_lshl_or_b32 v{32+4*i+2}, v{4+i}, 16, v1
        """)
    a(f"""
    s_barrier
    ds_read_b32 v30, v24 offset:{A_BS}
    ds_read_b32 v31, v25 offset:{A_BS}
    """)
    pa(a, 8)
    a(f"s_waitcnt vmcnt(0)")
    def half(dst, base, idx):
        r = base + idx // 2
        if idx % 2 == 0:
            a(f"v_lshlrev_b32 v{dst}, 16, v{r}")
        else:
            a(f"v_and_b32 v{dst}, s{S_HI}, v{r}")
    for i in range(2):
        half(4, 18, i)
        half(5, 12, 3*i+0)
        half(6, 12, 3*i+1)
        half(7, 12, 3*i+2)
        a(f"""
        v_mul_f32 v5, v4, v5
        v_mul_f32 v6, v4, v6
        v_mul_f32 v7, v4, v7
        v_cvt_pk_bf16_f32 v{32+4*i}, v4, v5
        v_cvt_pk_bf16_f32 v{32+4*i+1}, v6, v7
        """)
    pa(a, 7)
    a("s_waitcnt lgkmcnt(0)")
    for i in range(2):
        a(f"""
        v_add_lshl_u32 v{4+i}, v{30+i}, v{28+i}, 4
        v_or_b32 v{32+4*i+2}, v{32+4*i+2}, v{8+i}
        ds_write_b96 v{4+i}, {vr(32+4*i,3)} offset:{A_STG}
        """)
    a(f"""
    s_mov_b64 exec, -1
    s_mul_i32 s{S_T}, s3, {CHS * 16}
    v_lshlrev_b32 v20, 4, v0
    v_add_u32 v21, s{S_T}, v20
    v_mov_b32 v2, {L_NONCE}
    v_add_u32 v22, 10240, v21
    v_cmp_gt_u32 vcc, 616, v0
    s_waitcnt lgkmcnt(0)
    s_barrier
    """)
    pa(a, 14)
    a(f"""
    ds_read_b64 v[2:3], v2
    ds_read_b128 v[32:35], v20 offset:{A_STG}
    ds_read_b128 v[36:39], v20 offset:{A_STG+10240}
    s_waitcnt lgkmcnt(1)
    v_or_b32 v34, v34, v3
    v_mov_b32 v35, v2
    global_store_dwordx4 v21, v[32:35], {WSB} sc1
    s_waitcnt lgkmcnt(0)
    v_or_b32 v38, v38, v3
    v_mov_b32 v39, v2
    s_mov_b64 exec, vcc
    global_store_dwordx4 v22, v[36:39], {WSB} sc1
    v_readfirstlane_b32 s{S_NON}, v2
    v_readfirstlane_b32 s{S_NON+1}, v3
    """)
    PW = int(OPT.get("pw", 0))
    if PW:
        a(f"""
        s_lshr_b32 s{S_T}, s3, 3
        s_mul_i32 s{S_T}, s{S_T}, 625
        v_add_u32 v40, s{S_T}, v0
        """)
        if PW == 1:
            a("""
            v_and_b32 v41, 3, v40
            v_lshrrev_b32 v40, 2, v40
            v_lshlrev_b32 v40, 11, v40
            """)
        else:
            a("""
            v_and_b32 v41, 1, v40
            v_lshrrev_b32 v40, 1, v40
            v_lshlrev_b32 v40, 10, v40
            """)
        a(f"""
        v_lshl_add_u32 v40, v41, 7, v40
        buffer_load_dword v41, v40, {sr(S_X,4)}, 0 offen
        """)
    a(f"""
    s_mov_b64 exec, -1
    s_branch A_end
    """)
    a.label("A_scan")
    a(f"""
    s_setprio 3
    s_waitcnt lgkmcnt(0)
    v_and_b32 v1, 63, v0
    v_lshlrev_b32 v1, 4, v1
    s_lshl_b32 s{S_T}, s3, 11
    s_add_u32 s{S_T}, s{S_T}, {WS_OFF}
    v_add_u32 v20, s{S_T}, v1
    """)
    a(f"""
    s_barrier
    """)
    if int(OPT.get("cpf", 2)) == 2: cpf(a)
    for n, b in enumerate(OPT.get("t0", "x").replace("x", "")):
        touch(a, int(b), 0, 60+4*n, 61+4*n)
        touch(a, int(b), 1, 62+4*n, 63+4*n)
    a(f"""
    v_mov_b32 v16, 0
    s_barrier
    ds_read_b128 v[4:7], v1 offset:{A_H}
    global_load_dwordx2 v[2:3], v16, {sr(S_DBG)} sc1
    """)
    if int(OPT.get("cpf", 2)) == 1: cpf(a)
    a(f"""
    s_waitcnt lgkmcnt(0)
    v_add_u32 v9, v4, v5
    v_add_u32 v10, v9, v6
    v_add_u32 v11, v10, v7
    v_mov_b32 v12, v11
    s_nop 1
    v_add_u32_dpp v12, v12, v12 row_shr:1 row_mask:0xf bank_mask:0xf bound_ctrl:0
    s_nop 1
    v_add_u32_dpp v12, v12, v12 row_shr:2 row_mask:0xf bank_mask:0xf bound_ctrl:0
    s_nop 1
    v_add_u32_dpp v12, v12, v12 row_shr:4 row_mask:0xf bank_mask:0xf bound_ctrl:0
    s_nop 1
    v_add_u32_dpp v12, v12, v12 row_shr:8 row_mask:0xf bank_mask:0xf bound_ctrl:0
    s_nop 1
    v_add_u32_dpp v12, v12, v12 row_bcast:15 row_mask:0xa bank_mask:0xf
    s_nop 1
    v_add_u32_dpp v12, v12, v12 row_bcast:31 row_mask:0xc bank_mask:0xf
    v_sub_u32 v12, v12, v11
    v_add_u32 v13, v12, v4
    v_add_u32 v14, v12, v9
    v_add_u32 v15, v12, v10
    ds_write_b128 v1, v[12:15] offset:{A_BS}
    s_waitcnt lgkmcnt(0)
    s_barrier
    """)
    for i in range(4):
        a(f"v_lshl_or_b32 v{24+2*i}, v{4+i}, 11, v{12+i}")
    a(f"v_mov_b32 v17, {L_NONCE}")
    a.label("A_pn")
    a(f"""
    s_waitcnt vmcnt(0)
    v_readfirstlane_b32 s{S_NON}, v2
    s_cmp_lg_u32 s{S_NON}, 0
    s_cbranch_scc1 A_pd
    global_load_dwordx2 v[2:3], v16, {sr(S_DBG)} sc1
    s_sub_u32 s{S_SPIN}, s{S_SPIN}, 1
    s_cmp_gt_i32 s{S_SPIN}, 0
    s_cbranch_scc1 A_pn
    s_waitcnt vmcnt(0)
    """)
    a.label("A_pd")
    a("ds_write_b64 v17, v[2:3]")
    for i in range(4):
        a(f"""
        v_or_b32 v{24+2*i}, v3, v{24+2*i}
        v_mov_b32 v{25+2*i}, v2
        """)
    a(f"""
    global_store_dwordx4 v20, v[24:27], {WSB} sc1
    global_store_dwordx4 v20, v[28:31], {WSB} offset:1024 sc1
    v_readfirstlane_b32 s{S_NON}, v2
    v_readfirstlane_b32 s{S_NON+1}, v3
    v_lshlrev_b32 v40, 7, v1
    s_lshr_b32 s{S_T}, s2, 2
    s_lshl_b32 s{S_T}, s{S_T}, 4
    s_and_b32 s{S_T+1}, s2, 2
    s_lshl_b32 s{S_T+1}, s{S_T+1}, 9
    s_add_u32 s{S_T}, s{S_T}, s{S_T+1}
    s_and_b32 s{S_T+1}, s2, 1
    s_lshl_b32 s{S_T+1}, s{S_T+1}, 3
    s_add_u32 s{S_T}, s{S_T}, s{S_T+1}
    v_add_u32 v40, s{S_T}, v40
    v_add_u32 v41, {64*2048}, v40
    v_add_u32 v42, {128*2048}, v40
    v_add_u32 v43, {192*2048}, v40
    s_mov_b32 s{S_T+7}, {TAGM}
    s_mov_b64 s[40:41], -1
    s_mov_b64 s[42:43], -1
    s_mov_b64 s[44:45], -1
    s_mov_b64 s[46:47], -1
    s_waitcnt lgkmcnt(0)
    s_barrier
    {"s_waitcnt vmcnt(0)" if int(OPT.get("pw0", 1)) else ""}
    """)
    a.label("A_poll")
    for r in range(4):
        a(f"""
        s_mov_b64 exec, {sr(40+2*r)}
        s_cbranch_execz A_ps{r}
        buffer_load_dwordx2 {vr(32+2*r,2)}, v{40+r}, {sr(S_OFFS,4)}, 0 offen sc1
        """)
        a.label(f"A_ps{r}")
    a(f"""
    s_mov_b64 exec, -1
    s_mov_b64 {sr(S_TM)}, 0
    s_waitcnt vmcnt(0)
    """)
    for r in range(4):
        a(f"""
        v_and_b32 v4, s{S_T+7}, v{32+2*r}
        v_cmp_ne_u32 {sr(40+2*r)}, s{S_NON+1}, v4
        v_cmp_ne_u32 vcc, s{S_NON}, v{33+2*r}
        s_or_b64 {sr(40+2*r)}, {sr(40+2*r)}, vcc
        s_or_b64 {sr(S_TM)}, {sr(S_TM)}, {sr(40+2*r)}
        """)
    a(f"""
    s_cmp_eq_u64 {sr(S_TM)}, 0
    s_cbranch_scc1 A_polled
    {"s_sleep " + OPT["slp"] if OPT.get("slp") else ""}
    s_sub_u32 s{S_SPIN}, s{S_SPIN}, 1
    s_cmp_gt_i32 s{S_SPIN}, 0
    s_cbranch_scc1 A_poll
    """)
    a.label("A_polled")
    a(f"""
    v_lshrrev_b32 v1, 2, v1
    v_mov_b32 v5, 0
    """)
    for r in range(4):
        a(f"""
        v_and_b32 v{32+2*r}, 0x3fffff, v{32+2*r}
        ds_write_b32 v1, v{32+2*r} offset:{A_OFS+256*r}
        """)
    a(f"""
    ds_write_b32 v1, v5 offset:{A_OFS+1024}
    s_branch A_end
    """)
    a.label("A_aux")
    a(f"""
    s_setprio 3
    s_waitcnt lgkmcnt(0)
    v_and_b32 v1, 63, v0
    s_cmp_ge_u32 s3, 160
    s_cbranch_scc1 A_wp1
    s_lshr_b32 s{S_T+3}, s3, 3
    s_and_b32 s{S_T+4}, s3, 3
    s_and_b32 s{S_T+5}, s3, 4
    s_lshl_b32 s{S_T+5}, s{S_T+5}, 1
    s_or_b32 s{S_T+4}, s{S_T+4}, s{S_T+5}
    s_cmp_lt_u32 s3, 64
    s_cbranch_scc1 A_wa
    s_sub_u32 s{S_T+5}, s3, 64
    s_and_b32 s{S_T+3}, s{S_T+5}, 7
    s_lshr_b32 s{S_T+4}, s{S_T+5}, 3
    s_cmp_lt_u32 s{S_T+4}, 4
    s_cselect_b32 s{S_T+5}, 4, 8
    s_add_u32 s{S_T+4}, s{S_T+4}, s{S_T+5}
    """)
    a.label("A_wa")
    a(f"""
    s_mul_i32 s{S_T+2}, s{S_T+3}, 20
    s_add_u32 s{S_T+2}, s{S_T+2}, s{S_T+4}
    v_and_b32 v2, 15, v1
    v_lshrrev_b32 v3, 4, v1
    s_lshl_b32 s{S_T+5}, s{S_T+4}, 5
    v_lshl_add_u32 v4, v3, 3, s{S_T+5}
    v_lshlrev_b32 v5, 1, v4
    s_lshl_b32 s{S_T+5}, s{S_T+3}, 4
    v_add_u32 v2, s{S_T+5}, v2
    v_lshlrev_b32 v2, 1, v2
    v_lshl_add_u32 v6, v4, 8, v2
    s_sub_u32 s{S_T+6}, s{W1}, {256*256}
    s_subb_u32 s{S_T+7}, s{W1+1}, 0
    s_cmp_lt_u32 s{S_T+4}, 8
    s_cselect_b32 s{S_T+6}, s{W0}, s{S_T+6}
    s_cselect_b32 s{S_T+7}, s{W0+1}, s{S_T+7}
    global_load_dwordx4 v[8:11], v5, {sr(WR)} {OPT.get('wnt', '')}
    """)
    for i in range(8):
        a(f"global_load_ushort v{12+i}, v6, {sr(S_T+6)} offset:{256*i} {OPT.get('wnt', '')}")
    a.label("A_wp1")
    T1 = OPT.get("t1", "0").replace("x", "")
    a(f"""
    s_barrier
    s_barrier
    s_barrier
    s_cmp_ge_u32 s3, 160
    s_cbranch_scc1 A_nw1
    s_lshl_b32 s{S_T+3}, s{S_T+2}, 10
    s_add_u32 s{S_T+3}, s{S_T+3}, {WS_WF}
    v_lshl_add_u32 v7, v1, 4, s{S_T+3}
    s_waitcnt vmcnt(0)
    """)
    for i in range(8):
        if i % 2 == 0:
            a(f"v_lshlrev_b32 v20, 16, v{8+i//2}")
        else:
            a(f"v_and_b32 v20, s{S_HI}, v{8+i//2}")
        a(f"v_lshlrev_b32 v{12+i}, 16, v{12+i}")
        a(f"v_mul_f32 v{12+i}, v20, v{12+i}")
    for i in range(4):
        a(f"v_cvt_pk_bf16_f32 v{24+i}, v{12+2*i}, v{13+2*i}")
    a(f"global_store_dwordx4 v7, v[24:27], {WSB} sc1")
    a.label("A_nw1")
    if not OPT.get("t1late"):
        for n, b in enumerate(T1):
            touch(a, int(b), 0, 32+4*n, 33+4*n)
            touch(a, int(b), 1, 34+4*n, 35+4*n)
    a(f"""
    v_mov_b32 v2, {L_NONCE}
    s_barrier
    ds_read_b64 v[4:5], v2
    """)
    if OPT.get("t1late"):
        for n, b in enumerate(T1):
            touch(a, int(b), 0, 32+4*n, 33+4*n)
            touch(a, int(b), 1, 34+4*n, 35+4*n)
    a(f"""
    s_waitcnt lgkmcnt(0)
    v_readfirstlane_b32 s{S_NON}, v4
    v_readfirstlane_b32 s{S_NON+1}, v5
    s_cmp_ge_u32 s3, 160
    s_cbranch_scc1 A_end
    s_lshl_b32 s{S_T+3}, s{S_T+2}, 10
    s_add_u32 s{S_T+3}, s{S_T+3}, {WS_WFLAG}
    v_lshl_add_u32 v11, v1, 4, s{S_T+3}
    v_mov_b32 v5, v4
    v_mov_b32 v6, v4
    v_mov_b32 v7, v4
    s_waitcnt vmcnt({2*len(T1)})
    global_store_dwordx4 v11, v[4:7], {WSB} sc1
    s_nop 1
    """)
    a.label("A_end")

def gen_main(a):
    K = NAME + "_kernel"
    a.raw(".p2align 8")
    a.raw(f".globl {K}")
    a.raw(f".type {K},@function")
    a.label(K)
    a(f"""
    s_cmp_ge_u32 s2, {NB}
    s_cbranch_scc1 M_done
    """)
    if OPT.get("empty"): a("s_endpgm")
    if DBG:
        for k in range(S_ST, S_ST+32): a(f"s_mov_b32 s{k}, 0")
    stamp(a, 0)
    stamp(a, 10, True)
    T = V_T
    a(f"""
    s_load_dwordx16 s[36:51], s[0:1], 0
    s_load_dwordx8 s[52:59], s[0:1], 64
    s_memrealtime {sr(S_NON)}
    s_mul_i32 s{S_T}, s2, {CH*4}
    v_lshl_add_u32 v6, v0, 3, s{S_T}
    v_cmp_gt_u32 vcc, 625, v0
    s_waitcnt lgkmcnt(0)
    s_mov_b64 exec, vcc
    s_cbranch_execz E_nod
    global_load_dwordx2 v[4:5], v6, s[44:45] nt
    """)
    a.label("E_nod")
    a(f"""
    s_mov_b64 exec, -1
    v_lshrrev_b32 v1, 6, v0
    v_mov_b32 v3, 0
    v_readfirstlane_b32 s{S_G}, v1
    v_lshlrev_b32 v2, 2, v0
    ds_write_b32 v2, v3
    ds_write_b32 v2, v3 offset:{A_H}
    s_mov_b64 {sr(S_X)}, s[36:37]
    s_mov_b64 {sr(S_OUT)}, s[54:55]
    s_mov_b64 {sr(S_DBG)}, s[56:57]
    s_mov_b64 {sr(S_WSB)}, s[58:59]
    s_or_b32 s{S_T}, s2, s{S_G}
    s_cmp_lg_u32 s{S_T}, 0
    s_cbranch_scc1 M_nonon
    s_lshl_b32 s{S_NON+1}, s{S_NON+1}, 22
    s_or_b32 s{S_NON}, s{S_NON}, 1
    v_mov_b32 v10, s{S_NON}
    v_mov_b32 v11, s{S_NON+1}
    s_mov_b64 exec, 1
    global_store_dwordx2 v3, v[10:11], {sr(S_DBG)} sc1
    s_mov_b64 exec, -1
    """)
    a.label("M_nonon")
    assert L_P // 4 <= NT
    a(f"""
    s_mov_b32 s3, s2
    s_and_b32 s{S_T}, s2, 7
    s_lshr_b32 s2, s2, 3
    s_lshl_b32 s{S_T}, s{S_T}, 5
    s_or_b32 s2, s2, s{S_T}
    s_mov_b32 s{S_X+2}, {N*1024}
    s_mov_b32 s{S_X+3}, 0x20000
    s_mov_b32 s{S_OUT+2}, {N*1024}
    s_mov_b32 s{S_OUT+3}, 0x20000
    s_mov_b32 s{S_REC+2}, {NB*CHS*16}
    s_mov_b32 s{S_REC+3}, 0x20000
    s_mov_b32 s{S_OFFS+2}, {NB*2048}
    s_mov_b32 s{S_OFFS+3}, 0x20000
    s_mov_b32 s{S_HI}, 0xffff0000
    s_mov_b32 s{S_SPIN}, {SPIN_MAX}
    s_mov_b32 s{S_REC}, s{S_WSB}
    s_and_b32 s{S_REC+1}, s{S_WSB+1}, 0xffff
    s_add_u32 s{S_OFFS}, s{S_WSB}, {WS_OFF}
    s_addc_u32 s{S_OFFS+1}, s{S_WSB+1}, 0
    s_add_u32 s{S_WF}, s{S_WSB}, {WS_WF}
    s_addc_u32 s{S_WF+1}, s{S_WSB+1}, 0
    s_and_b32 s{S_OFFS+1}, s{S_OFFS+1}, 0xffff
    s_and_b32 s{S_X+1}, s{S_X+1}, 0xffff
    s_and_b32 s{S_OUT+1}, s{S_OUT+1}, 0xffff
    """)
    phase_a(a)
    a("s_setprio 0")
    if int(OPT.get("rm", 1)):
        a(f"""
        s_add_u32 s{S_G}, s{S_G}, 4
        s_cmp_ge_u32 s{S_G}, 12
        s_cselect_b32 s{S_T}, 12, 0
        s_sub_u32 s{S_G}, s{S_G}, s{S_T}
        """)
    a(f"""
    v_mov_b32 v{V_JB}, 0
    v_mov_b32 v{V_DONE}, 0
    s_mov_b32 s{S_RND}, 0
    v_and_b32 v{T}, 63, v0
    v_and_b32 v{T+1}, 15, v{T}
    v_lshrrev_b32 v{T+2}, 4, v{T}
    v_lshlrev_b32 v{V_N16}, 4, v{T+1}
    v_lshlrev_b32 v{V_N16+1}, 4, v{T+1}
    v_and_b32 v{V_C}, 3, v{T}
    v_bfe_u32 v{T+3}, v{T}, 2, 2
    s_mul_i32 s{S_T}, s{S_G}, {CAP*16}
    s_add_u32 s{S_T}, s{S_T}, {L_LIST}
    v_lshl_add_u32 v{V_VS}, v{T+2}, 4, s{S_T}
    v_lshl_add_u32 v{V_VC}, v{T+3}, 6, v{V_VS}
    s_cmp_lt_u32 s{S_G}, 4
    s_cselect_b32 s{S_T}, 2, 3
    s_cselect_b32 s{S_T+1}, 0, 12
    s_add_u32 s{S_T+1}, s{S_T+1}, s{S_G}
    v_lshlrev_b32 v{T+2}, s{S_T}, v{T+2}
    v_add_u32 v{T+2}, s{S_T+1}, v{T+2}
    v_cmp_gt_u32 {sr(S_FEX)}, 40, v{T+2}
    v_mul_u32_u24 v{V_PB}, {PSTR}, v{T+2}
    v_and_b32 v{T+2}, 15, v{T+2}
    v_xor_b32 v{T+2}, v{T+2}, v{T+1}
    v_lshl_add_u32 v{V_PB}, v{T+2}, 4, v{V_PB}
    v_add_u32 v{V_PB}, {L_P}, v{V_PB}
    s_mov_b32 s{S_T+7}, {TAGM}
    """)
    L = V_L[0]; L2 = V_L[1]
    if OPT.get("pst"): stamp(a, 12)
    a(f"""
    v_lshrrev_b32 v{T}, 3, v0
    v_lshlrev_b32 v{T}, 2, v{T}
    s_max_u32 s{S_T}, s{S_G}, 4
    s_sub_u32 s{S_T}, s{S_T}, 4
    s_mul_i32 s{S_T}, s{S_T}, {20*1024}
    s_lshl_b32 s{S_T+1}, s2, 2
    s_add_u32 s{S_T}, s{S_T}, s{S_T+1}
    s_add_u32 s{S_T}, s{S_T}, {WS_WFLAG}
    v_and_b32 v{V_ACC+51}, 63, v0
    v_min_u32 v{V_ACC+51}, 19, v{V_ACC+51}
    v_lshl_add_u32 v{V_ACC+51}, v{V_ACC+51}, 10, s{S_T}
    s_waitcnt {"vmcnt(0) " if OPT.get("ack") else ""}lgkmcnt(0)
    """)
    if OPT.get("pst"): stamp(a, 3)
    a("s_barrier")
    for r in range(3):
        a(f"ds_read_b32 v{V_OFF+r}, v{T} offset:{A_OFS+384*r}")
    a(f"""
    s_mov_b64 {sr(S_ACT)}, -1
    s_mov_b32 s{S_FIRST}, 0
    s_waitcnt lgkmcnt(0)
    s_branch M_w0
    """)
    a.label("M_init")
    a(f"""
    v_mov_b32 v{T+1}, 0
    v_lshlrev_b32 v{T}, 2, v0
    s_movk_i32 s{S_T}, {L_P//4}
    v_cmp_gt_u32 vcc, s{S_T}, v0
    s_and_saveexec_b64 {sr(S_TM)}, vcc
    ds_write_b32 v{T}, v{T+1}
    s_mov_b64 exec, {sr(S_TM)}
    s_mov_b64 {sr(S_ACT)}, -1
    s_waitcnt lgkmcnt(0)
    s_barrier
    s_mov_b32 s{S_FIRST}, 1
    """)
    a.label("M_w0")
    stamp(a, 1)
    a.label("M_window")
    L2 = V_ACC + 16
    REM = L2; ADR = L2 + 3; CTR = L2 + 6; RNK = L2 + 15; BAS = L2 + 24; ONE = L2 + 33
    WFV = L2 + 34; WFA = L2 + 35; TCA = 60; L = 100
    MK = [40, 42, 44, 46, 48, 50, 24, 26, 28]
    a(f"""
    v_and_b32 v{T}, 7, v0
    v_add_u32 v{T}, v{T}, v{V_JB}
    v_lshrrev_b32 v{T+1}, 3, v0
    v_mul_u32_u24 v{T+1}, {CHS}, v{T+1}
    v_add_u32 v{T+1}, v{T+1}, v{T}
    v_mov_b32 v{ONE}, 1
    """)
    for r in range(3):
        a(f"""
        v_lshrrev_b32 v{REM+r}, 11, v{V_OFF+r}
        v_sub_u32 v{REM+r}, v{REM+r}, v{T}
        v_and_b32 v{ADR+r}, 0x7ff, v{V_OFF+r}
        v_add_lshl_u32 v{ADR+r}, v{ADR+r}, v{T+1}, 4
        """)
        if r: a(f"v_add_u32 v{ADR+r}, {96*CHS*16*r}, v{ADR+r}")
    for k in range(9):
        r = k % 3; h = k // 3
        a(f"v_cmp_lt_i32 {sr(MK[k])}, {8*h}, v{REM+r}")
    a(f"""
    s_cmp_eq_u32 s{S_FIRST}, 0
    s_cbranch_scc1 M_rload
    """)
    for k in range(9):
        m = sr(MK[k])
        a(f"""
        v_and_b32 v{T+2}, {1<<k}, v{V_DONE}
        v_cmp_eq_u32 vcc, 0, v{T+2}
        s_and_b64 {m}, {m}, vcc
        s_and_b64 {m}, {m}, {sr(S_ACT)}
        """)
    a.label("M_rload")
    a(f"""
    s_or_b64 {sr(S_TM)}, {sr(MK[6])}, {sr(MK[7])}
    s_or_b64 {sr(S_TM)}, {sr(S_TM)}, {sr(MK[8])}
    s_cselect_b32 s{S_ANY2}, 1, 0
    """)
    for k in range(9):
        if k == 6:
            a(f"s_cmp_eq_u32 s{S_ANY2}, 0")
            a("s_cbranch_scc1 M_sl8")
        r = k % 3; h = k // 3
        a(f"""
        s_mov_b64 exec, {sr(MK[k])}
        {"s_cbranch_execz M_sl" + str(k) if k >= 2 else ""}
        buffer_load_dwordx4 {vr(L+4*k,4)}, v{ADR+r}, {sr(S_REC,4)}, 0 offen offset:{128*h} sc1
        """)
        a.label(f"M_sl{k}")
    a(f"""
    s_mov_b64 exec, -1
    s_cmp_lg_u32 s{S_FIRST}, 0
    s_cbranch_scc1 M_nofld
    global_load_dword v{WFV}, v{WFA}, {sr(S_WSB)} sc1
    """)
    a.label("M_nofld")
    a(f"""
    s_mov_b64 {sr(S_PEND)}, 0
    s_mov_b32 s{S_T}, {TAGM}
    s_waitcnt vmcnt(0)
    """)
    for k in range(9):
        if k == 6:
            a(f"s_cmp_eq_u32 s{S_ANY2}, 0")
            a("s_cbranch_scc1 M_sc8")
        a(f"""
        s_mov_b64 exec, {sr(MK[k])}
        {"s_cbranch_execz M_sc" + str(k) if k >= 3 else ""}
        v_and_b32 v{T}, s{S_T}, v{L+4*k+2}
        v_cmp_ne_u32 {sr(S_TM)}, s{S_NON+1}, v{T}
        v_cmp_ne_u32 vcc, s{S_NON}, v{L+4*k+3}
        v_bfe_u32 v{CTR+k}, v{L+4*k+2}, 16, 4
        v_and_b32 v{T}, 15, v{L+4*k+2}
        s_or_b64 {sr(S_PEND)}, {sr(S_PEND)}, {sr(S_TM)}
        s_or_b64 {sr(S_PEND)}, {sr(S_PEND)}, vcc
        v_lshl_or_b32 v{T}, v{CTR+k}, 4, v{T}
        v_lshlrev_b32 v{BAS+k}, 2, v{T}
        """)
        a.label(f"M_sc{k}")
    a(f"""
    s_mov_b64 exec, -1
    s_cmp_eq_u64 {sr(S_PEND)}, 0
    {"s_branch M_rok" if OPT.get("halfst") or OPT.get("noretry") else ""}
    s_cbranch_scc1 M_rok
    s_sleep {OPT.get('slp', 4)}
    s_sub_u32 s{S_SPIN}, s{S_SPIN}, 1
    s_cmp_gt_i32 s{S_SPIN}, 0
    s_cbranch_scc1 M_rload
    """)
    a.label("M_rok")
    if OPT.get("dl13"): a(f"s_sleep {OPT['dl13']}")
    stamp(a, 13)
    a(f"""
    s_cmp_lg_u32 s{S_FIRST}, 0
    s_cbranch_scc1 M_append
    """)
    for k in range(9):
        if k == 6:
            a(f"s_cmp_eq_u32 s{S_ANY2}, 0")
            a("s_cbranch_scc1 M_sa8")
        a(f"""
        s_mov_b64 exec, {sr(MK[k])}
        {"s_cbranch_execz M_sa" + str(k) if k >= 9 else ""}
        ds_add_rtn_u32 v{RNK+k}, v{BAS+k}, v{ONE} offset:{L_CC}
        """)
        a.label(f"M_sa{k}")
    SCN = V_ACC
    a(f"""
    s_mov_b64 exec, -1
    v_cmp_eq_u32 vcc, s{S_NON}, v{WFV}
    s_cmp_eq_u64 vcc, -1
    s_cselect_b32 s{S_WOK}, 1, 0
    s_cbranch_scc0 M_nowpre
    s_cmp_lt_u32 s{S_G}, {16 if OPT.get("db") else 4}
    s_cbranch_scc1 M_nowpre
    """)
    wload(a, WFA, [0, 1, 2, 3, 8, 9, 10, 11])
    a.label("M_nowpre")
    a(f"""
    v_and_b32 v{T}, 63, v0
    v_lshlrev_b32 v{T}, 4, v{T}
    v_cmp_lt_u32 vcc, 0, v{V_C}
    v_cmp_lt_u32 {sr(S_TM)}, 1, v{V_C}
    s_waitcnt lgkmcnt(0)
    s_barrier
    ds_read_b128 {vr(SCN,4)}, v{T} offset:{L_CC}
    """)
    if int(OPT.get("t2m", 0)):
        a(f"""
        s_cmp_ge_u32 s{S_G}, 4
        s_cbranch_scc1 M_t2m
        s_mul_i32 s{S_T+6}, s3, 236
        s_mul_i32 s{S_T+5}, s{S_G}, 59
        s_add_u32 s{S_T+6}, s{S_T+6}, s{S_T+5}
        v_and_b32 v{TCA}, 63, v0
        v_add_u32 v{TCA}, s{S_T+6}, v{TCA}
        v_and_b32 v{TCA+1}, 3, v{TCA}
        v_lshrrev_b32 v{TCA}, 2, v{TCA}
        s_movk_i32 s{S_T+5}, 5000
        v_cmp_gt_u32 {sr(S_PEND)}, s{S_T+5}, v{TCA}
        v_lshlrev_b32 v{TCA+2}, 11, v{TCA}
        v_add_u32 v{TCA+2}, 1024, v{TCA+2}
        v_subrev_u32 v{TCA}, s{S_T+5}, v{TCA}
        v_lshlrev_b32 v{TCA}, 10, v{TCA}
        v_add_u32 v{TCA}, 512, v{TCA}
        v_cndmask_b32 v{TCA}, v{TCA}, v{TCA+2}, {sr(S_PEND)}
        v_lshl_add_u32 v{TCA}, v{TCA+1}, 7, v{TCA}
        s_mov_b32 exec_hi, 0x7ffffff
        buffer_load_dword v{V_TCH}, v{TCA}, {sr(S_X,4)}, 0 offen
        s_mov_b64 exec, -1
        """)
        a.label("M_t2m")
    for n, b in enumerate(OPT.get("t2", "12").replace("x", "")):
        a(f"s_cmp_lg_u32 s{S_G}, {n}")
        a(f"s_cbranch_scc1 M_t2_{n}")
        touch(a, int(b), 0, TCA, V_TCH)
        touch(a, int(b), 1, TCA, TCA+1)
        a.label(f"M_t2_{n}")
    a(f"""
    s_waitcnt lgkmcnt(0)
    v_add_u32 v{SCN+4}, v{SCN}, v{SCN+1}
    v_add_u32 v{SCN+5}, v{SCN+4}, v{SCN+2}
    v_add_u32 v{SCN+6}, v{SCN+5}, v{SCN+3}
    s_nop 1
    v_mov_b32_dpp v{SCN+7}, v{SCN+6} quad_perm:[0,0,1,2] row_mask:0xf bank_mask:0xf
    v_cndmask_b32 v{SCN+7}, 0, v{SCN+7}, vcc
    v_add_u32 v{SCN+7}, v{SCN+7}, v{SCN+6}
    s_nop 1
    v_mov_b32_dpp v{SCN+8}, v{SCN+7} quad_perm:[0,0,0,1] row_mask:0xf bank_mask:0xf
    v_cndmask_b32 v{SCN+8}, 0, v{SCN+8}, {sr(S_TM)}
    v_add_u32 v{SCN+8}, v{SCN+8}, v{SCN+7}
    v_sub_u32 v{SCN+8}, v{SCN+8}, v{SCN+6}
    v_add_u32 v{SCN+9}, v{SCN+8}, v{SCN}
    v_add_u32 v{SCN+10}, v{SCN+8}, v{SCN+4}
    v_add_u32 v{SCN+11}, v{SCN+8}, v{SCN+5}
    s_mov_b32 exec_hi, 0xffff
    ds_write_b128 v{T}, {vr(SCN+8,4)} offset:{L_BASE}
    """)
    for k in range(9):
        if k == 6:
            a(f"s_cmp_eq_u32 s{S_ANY2}, 0")
            a("s_cbranch_scc1 M_sb8")
        a(f"""
        s_mov_b64 exec, {sr(MK[k])}
        {"s_cbranch_execz M_sb" + str(k) if k >= 9 else ""}
        ds_read_b32 v{BAS+k}, v{BAS+k} offset:{L_BASE}
        """)
        a.label(f"M_sb{k}")
    a("s_branch M_place")
    a.label("M_append")
    for k in range(9):
        a(f"""
        s_mov_b64 exec, {sr(MK[k])}
        v_lshlrev_b32 v{T+1}, 2, v{CTR+k}
        v_lshlrev_b32 v{T}, 6, v{CTR+k}
        ds_add_rtn_u32 v{RNK+k}, v{T+1}, v{ONE} offset:{L_ACNT}
        ds_read_b32 v{BAS+k}, v{T} offset:{L_BASE+60}
        ds_read_b32 v{T+2}, v{T} offset:{L_CC+60}
        s_waitcnt lgkmcnt(0)
        v_add_u32 v{BAS+k}, v{BAS+k}, v{T+2}
        """)
    a.label("M_place")
    a(f"""
    s_mov_b64 exec, -1
    s_mov_b64 {sr(S_PEND)}, 0
    s_mov_b32 s{S_T}, {L_LIST}
    s_movk_i32 s{S_T+2}, {CAP}
    s_mov_b32 s{S_FIRST}, 1
    """)
    for k in range(9):
        if k == 6:
            a(f"s_cmp_eq_u32 s{S_ANY2}, 0")
            a("s_cbranch_scc1 M_se8")
        a(f"""
        {"s_cmp_eq_u64 " + sr(MK[k]) + ", 0" if k >= 3 else ""}
        {"s_cbranch_scc1 M_se" + str(k) if k >= 3 else ""}
        v_bfe_u32 v{T+1}, v{L+4*k+2}, 14, 2
        v_and_b32 v{L+4*k+2}, 0x3fff, v{L+4*k+2}
        v_lshlrev_b32 v{L+4*k+3}, v{T+1}, v{ONE}
        v_lshlrev_b32 v{L+4*k+2}, 10, v{L+4*k+2}
        v_mul_u32_u24 v{CTR+k}, s{S_T+2}, v{CTR+k}
        """)
        a.label(f"M_se{k}")
    a("s_waitcnt lgkmcnt(0)")
    for k in range(9):
        if k == 6:
            a(f"s_cmp_eq_u32 s{S_ANY2}, 0")
            a("s_cbranch_scc1 M_sp8")
        m = sr(MK[k])
        a(f"""
        s_mov_b64 exec, {m}
        {"s_cbranch_execz M_sp" + str(k) if k >= 3 else ""}
        v_add_u32 v{RNK+k}, v{RNK+k}, v{BAS+k}
        v_cmp_gt_u32 vcc, s{S_T+2}, v{RNK+k}
        v_add_u32 v{T}, v{CTR+k}, v{RNK+k}
        v_lshl_add_u32 v{CTR+k}, v{T}, 4, s{S_T}
        s_andn2_b64 {sr(S_TM)}, {m}, vcc
        s_or_b64 {sr(S_PEND)}, {sr(S_PEND)}, {sr(S_TM)}
        s_mov_b64 exec, vcc
        ds_write_b128 v{CTR+k}, {vr(L+4*k,4)}
        v_or_b32 v{V_DONE}, {1<<k}, v{V_DONE}
        """)
        a.label(f"M_sp{k}")
    a(f"""
    s_mov_b64 exec, -1
    v_mov_b32 v{T+2}, {L_MORE}
    v_max3_i32 v{T}, v{REM}, v{REM+1}, v{REM+2}
    s_mov_b64 exec, {sr(S_PEND)}
    ds_write_b32 v{T+2}, v{ONE}
    s_andn2_b64 {sr(S_ACT)}, {sr(S_ACT)}, {sr(S_PEND)}
    s_mov_b64 exec, {sr(S_ACT)}
    v_add_u32 v{V_JB}, 24, v{V_JB}
    v_mov_b32 v{V_DONE}, 0
    v_cmp_lt_i32 vcc, 24, v{T}
    s_mov_b64 exec, -1
    s_cmp_lg_u64 vcc, 0
    s_cbranch_scc1 M_window
    s_lshl_b32 s{S_T}, s{S_G}, 6
    v_mov_b32 v{T}, s{S_T}
    s_lshl_b32 s{S_T}, s{S_G}, 2
    v_mov_b32 v{T+1}, s{S_T}
    s_waitcnt lgkmcnt(0)
    """)
    stamp(a, 15)
    if OPT.get("dl15"): a(f"s_sleep {OPT['dl15']}")
    a(f"""
    s_barrier
    ds_read_b32 v{V_A[0]}, v{T} offset:{L_BASE+60}
    ds_read_b32 v{V_A[0]+1}, v{T} offset:{L_CC+60}
    ds_read_b32 v{V_A[0]+2}, v{T+1} offset:{L_ACNT}
    ds_read_b32 v{V_A[0]+3}, v{T+2}
    v_and_b32 v{T}, 63, v0
    v_mov_b32 v{V_B[0]}, {OOBOFF}
    v_mov_b32 v{V_B[0]+1}, 0
    s_mov_b32 s{S_S1}, 0
    s_mov_b32 s{S_S2}, 0
    s_mov_b32 s{S_B1}, 0
    s_mov_b32 s{S_SPIN2}, {1 << 22}
    s_mov_b32 s{S_PLO}, 0x05040100
    s_mov_b32 s{S_PHI}, 0x07060302
    s_waitcnt lgkmcnt(0)
    v_add3_u32 v{T+1}, v{V_A[0]}, v{V_A[0]+1}, v{V_A[0]+2}
    v_readfirstlane_b32 s{S_MORE}, v{V_A[0]+3}
    v_readfirstlane_b32 s{S_T}, v{T+1}
    s_min_u32 s{S_T}, s{S_T}, {CAP}
    s_add_u32 s{S_S}, s{S_T}, 31
    s_lshr_b32 s{S_S}, s{S_S}, 5
    s_max_u32 s{S_S}, s{S_S}, 1
    s_lshl_b32 s{S_T+1}, s{S_S}, 5
    v_add_u32 v{T}, s{S_T}, v{T}
    v_cmp_gt_u32 vcc, s{S_T+1}, v{T}
    s_mul_i32 s{S_T+2}, s{S_G}, {CAP*16}
    s_add_u32 s{S_T+2}, s{S_T+2}, {L_LIST+8}
    v_lshl_add_u32 v{T}, v{T}, 4, s{S_T+2}
    s_mov_b64 exec, vcc
    ds_write_b64 v{T}, {vr(V_B[0],2)}
    s_mov_b64 exec, -1
    s_sub_u32 s{S_NLAST}, s{S_T}, s{S_T+1}
    s_add_u32 s{S_NLAST}, s{S_NLAST}, 35
    s_lshr_b32 s{S_NLAST}, s{S_NLAST}, 2
    """)
    meta_reads(a)
    a(f"""
    s_cmp_gt_u32 s{S_S}, 2
    s_cbranch_scc1 M_nozl
    """)
    for k in range(32):
        a(f"v_mov_b32 v{V_L[0]+k}, 0")
    a(f"""
    s_cmp_ge_u32 s{S_G}, {16 if OPT.get("db") else 4}
    s_cbranch_scc1 M_nozl
    """)
    for k in range(32):
        a(f"v_mov_b32 v{V_L[1]+k}, 0")
    a.label("M_nozl")
    stamp(a, 2)
    setprio(a, 0)
    a(f"""
    s_waitcnt lgkmcnt(0)
    s_cmp_ge_u32 s{S_G}, {16 if OPT.get("db") else 4}
    s_cbranch_scc1 M_sglb
    """)
    stage_x(a, 0, "i", wait=False)
    a.label("M_goi")
    advance(a)
    a(f"s_mov_b32 s{S_FIRST}, 1")
    for p in range(2):
        a.label(f"M_it{p}")
        a(f"""
        s_waitcnt lgkmcnt(0)
        s_cmp_eq_u32 s{S_B1}, 1024
        s_cbranch_scc1 M_w{p}_0
        """)
        if OPT.get("hx"):
            a(f"""
            s_cmp_ge_u32 s{S_B1}, {OPT['hx']}
            s_cbranch_scc1 M_hx{p}
            s_waitcnt vmcnt({OPT.get('hw', 0)})
            """)
            a.label(f"M_hx{p}")
        stage_x(a, p ^ 1, str(p))
        a.label(f"M_go{p}")
        a(f"""
        s_cmp_eq_u32 s{S_FIRST}, 0
        s_cbranch_scc1 M_cn{p}
        """)
        compute(a, p, True)
        a(f"s_branch M_cd{p}")
        a.label(f"M_cn{p}")
        compute(a, p, False)
        a.label(f"M_cd{p}")
        a(f"""
        s_mov_b32 s{S_FIRST}, 0
        s_cmp_lg_u32 s{S_S1}, 0
        s_cbranch_scc1 M_nofl{p}
        s_mov_b32 s{S_FIRST}, 1
        s_call_b64 {sr(S_RET)}, M_flush
        s_cmp_eq_u32 s{S_B1}, 1024
        s_cbranch_scc1 M_end
        """)
        a.label(f"M_nofl{p}")
        advance(a)
        if p == 1:
            a("s_branch M_it0")
    def prep():
        for i in range(0, 8, 2):
            a(f"v_pk_add_f32 {vr(V_IX+i,2)}, {vr(V_IX+i,2)}, {vr(V_N16,2)}")
        a(f"""
        v_bfe_i32 v{V_OH}, v{V_OH}, v{V_C}, 1
        v_bfe_i32 v{V_OH+1}, v{V_OH+1}, v{V_C}, 1
        v_and_b32 v{V_OH}, v{V_OH}, v{V_CA}
        v_and_b32 v{V_OH+1}, v{V_OH+1}, v{V_CA}
        """)
    def load(i):
        a(f"buffer_load_dwordx4 {vr(V_L[0]+4*i,4)}, v{V_IX+i}, {sr(S_X,4)}, s{S_B1} offen")
    a.label("M_sglb")
    a(f"s_mov_b32 s{S_FLP}, 0")
    prep()
    tick(a, None)
    a.label("M_its")
    a(f"""
    s_add_u32 s{S_S2}, s{S_S1}, 1
    s_cmp_eq_u32 s{S_S2}, s{S_S}
    s_cbranch_scc1 M_parts
    """)
    a.label("M_fulls")
    for i in range(8): load(i)
    a("s_branch M_pms")
    a.label("M_parts")
    a(f"""
    s_mov_b32 s{S_S2}, 0
    s_cmp_eq_u32 s{S_NLAST}, 8
    s_cbranch_scc1 M_fulls
    """)
    for i in range(7):
        a(f"s_cmp_eq_u32 s{S_NLAST}, {i}")
        a(f"s_cbranch_scc1 M_pms")
        load(i)
    a.label("M_pms")
    tick(a, 1)
    a(f"""
    ds_read_b64_tr_b16 {vr(V_A[0],2)}, v{V_OH}
    ds_read_b64_tr_b16 {vr(V_A[0]+2,2)}, v{V_OH+1} offset:256
    """)
    meta_reads(a)
    a(f"""
    s_cmp_eq_u32 s{S_FLP}, 0
    s_cbranch_scc1 M_nofls
    """)
    a.label("M_dofl")
    a(f"""
    s_call_b64 {sr(S_RET)}, M_flush
    s_cmp_eq_u32 s{S_B1}, 1024
    s_cbranch_scc1 M_end
    s_cmp_lg_u32 s{S_B1}, {OPT.get("midb", 512)}
    s_cbranch_scc1 M_nofls
    s_cmp_lg_u32 s{S_MORE}, 0
    s_cbranch_scc1 M_nofls
    """)
    mid_stage(a)
    a.label("M_nofls")
    a("s_waitcnt lgkmcnt(0)")
    prep()
    tick(a, 13)
    if OPT.get("prof"):
        a("s_waitcnt vmcnt(0)")
        tick(a, 15)
        a(f"s_add_u32 s{S_ST+8}, s{S_ST+8}, 1")
    a(f"""
    s_cmp_eq_u32 s{S_S1}, 0
    s_mov_b32 s{S_S1}, s{S_S2}
    s_waitcnt vmcnt(0)
    s_cbranch_scc0 M_cns
    """)
    compute(a, 0, True)
    a("s_branch M_cds")
    a.label("M_cns")
    compute(a, 0, False)
    a.label("M_cds")
    tick(a, 3)
    a(f"""
    s_cmp_eq_u32 s{S_S2}, 0
    s_cselect_b32 s{S_FLP}, 256, 0
    s_add_u32 s{S_B1}, s{S_B1}, s{S_FLP}
    s_cmp_eq_u32 s{S_B1}, 1024
    s_cbranch_scc0 M_its
    s_cmp_lg_u32 s{S_MORE}, 0
    s_cbranch_scc1 M_dofl
    """)
    wload(a, V_T+2, [12, 13, 14, 15, 16, 17, 18, 19])
    a("s_branch M_dofl")
    flush_sub(a)
    a.label("M_end")
    a(f"""
    s_cmp_eq_u32 s{S_MORE}, 0
    s_cbranch_scc1 M_gemm
    s_mov_b32 s{S_RND}, 1
    s_waitcnt lgkmcnt(0)
    s_barrier
    s_branch M_init
    """)
    a.label("M_gemm")
    if OPT.get("nogemm"): a("s_endpgm")
    gemm(a)
    a.label("M_done")
    a("s_endpgm")

OACC = {(0, 0): 8, (1, 0): 20, (2, 0): 36}
O1 = [(0, 1), (0, 2), (0, 3), (1, 1), (1, 2), (1, 3), (2, 1), (2, 3)]
for n_, k_ in enumerate(O1): OACC[k_] = 136 + 4*n_

def wflag_spin(a, tag, va, vd):
    a(f"""
    s_sub_u32 s{S_T}, s{S_G}, 4
    s_mul_i32 s{S_T}, s{S_T}, {20*1024}
    s_lshl_b32 s{S_T+1}, s2, 2
    s_add_u32 s{S_T}, s{S_T}, s{S_T+1}
    s_add_u32 s{S_T}, s{S_T}, {WS_WFLAG}
    v_and_b32 v{va}, 63, v0
    v_min_u32 v{va}, 19, v{va}
    v_lshl_add_u32 v{va}, v{va}, 10, s{S_T}
    """)
    a.label(f"M_wfchk{tag}")
    a(f"""
    global_load_dword v{vd}, v{va}, {sr(S_WSB)} sc1
    s_waitcnt vmcnt(0)
    v_cmp_eq_u32 vcc, s{S_NON}, v{vd}
    s_cmp_eq_u64 vcc, -1
    s_cbranch_scc1 M_wfld{tag}
    s_sub_u32 s{S_SPIN}, s{S_SPIN}, 1
    s_cmp_gt_i32 s{S_SPIN}, 0
    s_cbranch_scc1 M_wfchk{tag}
    """)
    a.label(f"M_wfld{tag}")

def mid_stage(a):
    B0 = 7; DL = 19; X0 = 12; X2 = 13; XP = 14; TT = 15
    bufs = [40, 44, 64, 68, 72, 76]
    TR = {k: 48 + 4*n for n, k in enumerate(O1[4:])}
    a(f"""
    s_cmp_lg_u32 s{S_WOK}, 0
    s_cbranch_scc1 M_midw
    """)
    wflag_spin(a, "m", X0, X2)
    wload(a, X0, [0, 1, 2, 3, 8, 9, 10, 11])
    a(f"""
    s_waitcnt vmcnt(0)
    s_mov_b32 s{S_WOK}, 1
    """)
    a.label("M_midw")
    a(f"""
    v_mov_b32 v{XP}, {L_FC0}
    ds_read_b32 v{TT}, v{XP}
    v_and_b32 v{X0}, 15, v0
    v_bfe_u32 v{X2}, v0, 4, 2
    v_mul_u32_u24 v{DL}, {PSTR}, v{X0}
    v_xor_b32 v{B0}, v{X2}, v{X0}
    v_lshl_add_u32 v{B0}, v{B0}, 4, v{DL}
    v_add_u32 v{B0}, {L_P}, v{B0}
    v_lshrrev_b32 v{DL}, 3, v{X0}
    v_mul_i32_i24 v{DL}, {768 - 8*PSTR}, v{DL}
    """)
    a.label("M_midf")
    a(f"""
    s_waitcnt lgkmcnt(0)
    v_readfirstlane_b32 s{S_T}, v{TT}
    s_cmp_ge_u32 s{S_T}, {NG}
    s_cbranch_scc1 M_midg
    s_sleep 1
    ds_read_b32 v{TT}, v{XP}
    s_sub_u32 s{S_SPIN2}, s{S_SPIN2}, 1
    s_cmp_gt_i32 s{S_SPIN2}, 0
    s_cbranch_scc1 M_midf
    s_waitcnt lgkmcnt(0)
    """)
    a.label("M_midg")
    steps = []
    for k4 in range(4):
        for t in range(3): steps.append((t, 0, 0, k4, k4))
    for k4 in range(4):
        for (t, o) in O1[4:] + O1[:4]: steps.append((t, o, comp011(o-1), k4, 8 + k4))
    NBF = len(bufs)
    cur = [None]
    def rd(n):
        t, o, c, k4, ws = steps[n]
        key = (k4, ws >= 8)
        if cur[0] != key:
            cur[0] = key
            a(f"v_xor_b32 v{X0}, {64*k4}, v{B0}")
            a(f"v_add_u32 v{X2}, {32*PSTR}, v{X0}")
            if ws >= 8: a(f"v_add_u32 v{XP}, v{X2}, v{DL}")
        base = X0 if t < 2 else (XP if o == 1 else X2)
        off = c*256 + (16*PSTR if t == 1 else 0)
        a(f"ds_read_b128 {vr(bufs[n % NBF],4)}, v{base} offset:{off}")
    for n in range(NBF - 1): rd(n)
    for n in range(len(steps)):
        t, o, c, k4, ws = steps[n]
        if n + NBF - 1 < len(steps): rd(n + NBF - 1)
        a(f"s_waitcnt lgkmcnt({min(NBF - 1, len(steps) - 1 - n)})")
        acc = vr(TR.get((t, o), OACC[(t, o)]), 4)
        a(f"v_mfma_f32_16x16x32_bf16 {acc}, {vr(WREG[ws],4)}, {vr(bufs[n % NBF],4)}, {'0' if k4 == 0 else acc}")
    for k in O1[4:]:
        for r in range(4): a(f"v_mov_b32 v{OACC[k]+r}, v{TR[k]+r}")

def gemm(a):
    BB = 40; NBB = 6
    PKB = 80; PKO = 0; T2B = 76; LN = 16; OA = 17; WA = 18
    def store_row(rho_s, vb, light):
        a(f"""
        s_mul_i32 s{S_T}, s{rho_s}, {OSTR}
        s_add_u32 s{S_T}, s{S_T}, {L_LIST}
        v_add_u32 v{WA}, s{S_T}, v{LN}
        ds_read_b128 {vr(vb,4)}, v{WA}
        """)
    def row_off(rho_s, dst, light):
        if light:
            a(f"""
            s_sub_u32 s{S_T}, s{rho_s}, 16
            s_lshr_b32 s{S_T+1}, s{S_T}, 3
            s_and_b32 s{S_T}, s{S_T}, 7
            s_add_u32 s{S_T}, s{S_T}, 4
            """)
        else:
            a(f"""
            s_lshr_b32 s{S_T+1}, s{rho_s}, 2
            s_and_b32 s{S_T}, s{rho_s}, 3
            """)
        a(f"""
        s_mul_i32 s{S_T+1}, s{S_T+1}, 12
        s_add_u32 s{S_T}, s{S_T}, s{S_T+1}
        s_lshl_b32 s{S_T}, s{S_T}, 18
        s_lshl_b32 s{S_T+1}, s3, 10
        s_add_u32 s{S_T}, s{S_T}, s{S_T+1}
        v_add_u32 v{dst}, s{S_T}, v{LN}
        """)
    a(f"""
    s_setprio {OPT.get("pg", 0)}
    s_waitcnt lgkmcnt(0)
    v_and_b32 v{LN}, 63, v0
    s_cmp_ge_u32 s{S_G}, 4
    s_cbranch_scc1 M_gw
    v_lshlrev_b32 v{LN}, 4, v{LN}
    """)
    for k in range(6):
        a(f"s_add_u32 s{S_T+3}, s{S_G}, {16 + 4*k}")
        row_off(S_T+3, 40 + k, True)
    a(f"""
    s_mul_i32 s{S_T}, s{S_G}, {OSTR}
    s_add_u32 s{S_T}, s{S_T}, {L_LIST + 16*OSTR}
    v_add_u32 v{WA}, s{S_T}, v{LN}
    s_waitcnt lgkmcnt(0)
    s_barrier
    """)
    for k in range(6):
        a(f"ds_read_b128 {vr(48+4*k,4)}, v{WA} offset:{4*OSTR*k}")
    for k in range(6):
        a(f"s_waitcnt lgkmcnt({5-k})")
        a(f"buffer_store_dwordx4 {vr(48+4*k,4)}, v{40+k}, {sr(S_OUT,4)}, 0 offen {fl('of')}")
    a("s_branch M_st")
    a.label("M_gw")
    a(f"""
    s_waitcnt lgkmcnt(0)
    """)
    late = [12, 13, 14, 15, 16, 17, 18, 19, 4, 5, 6, 7]
    wload(a, WA, [4, 5, 6, 7])
    a(f"""
    v_mov_b32 v14, {L_FC}
    ds_read_b32 v15, v14
    v_and_b32 v12, 15, v{LN}
    v_lshrrev_b32 v13, 4, v{LN}
    v_mul_u32_u24 v{OA}, {PSTR}, v12
    v_xor_b32 v1, v13, v12
    v_lshl_add_u32 v1, v1, 4, v{OA}
    v_add_u32 v1, {L_P}, v1
    v_xor_b32 v2, 64, v1
    v_xor_b32 v3, 128, v1
    v_xor_b32 v4, 192, v1
    """)
    setup = [f"v_add_u32 v{T2B+k4}, {32*PSTR}, v{1+k4}" for k4 in range(4)]
    setup += [f"v_lshrrev_b32 v{PKO}, 3, v12", f"v_mul_i32_i24 v{PKB+3}, {768 - 8*PSTR}, v{PKO}"]
    setup += [f"v_add_u32 v{PKB+k4}, v{T2B+k4}, v{PKB+3}" for k4 in range(4)]
    setup += [f"s_lshl_b32 s{S_T+1}, s{S_G}, 5", f"s_add_u32 s{S_T+1}, s{S_T+1}, {L_LIST - 128}",
              f"v_mul_u32_u24 v{OA}, {OSTR}, v12", f"v_lshl_add_u32 v{OA}, v13, 3, v{OA}", f"v_add_u32 v{OA}, s{S_T+1}, v{OA}",
              f"v_mul_i32_i24 v{PKO}, {256 - 8*OSTR}, v{PKO}", f"v_add_u32 v{PKO}, v{PKO}, v{OA}",
              f"s_mov_b32 s{S_T+2}, 0xbfb8aa3b", f"v_lshlrev_b32 v{LN}, 4, v{LN}"]
    for x in setup: a(x)
    def spin(tag, off, n):
        a.label(f"M_fcw{tag}")
        a(f"""
        s_waitcnt lgkmcnt(0)
        v_readfirstlane_b32 s{S_T}, v15
        s_cmp_ge_u32 s{S_T}, {n}
        s_cbranch_scc1 M_fcok{tag}
        s_sleep 1
        ds_read_b32 v15, v14 offset:{off}
        s_sub_u32 s{S_SPIN2}, s{S_SPIN2}, 1
        s_cmp_gt_i32 s{S_SPIN2}, 0
        s_cbranch_scc1 M_fcw{tag}
        s_waitcnt lgkmcnt(0)
        """)
        a.label(f"M_fcok{tag}")
    spin("a", 0, NG)
    if not OPT.get("pst"): stamp(a, 12)
    st1 = []
    for k4 in range(4):
        for t in range(3):
            st1.append((t, 1, comp101(0), k4, 12 + k4))
            st1.append((t, 2, comp101(1), k4, 12 + k4))
    for k4 in range(4):
        for t in range(3):
            st1.append((t, 3, comp111(2), k4, 16 + k4))
    st1 = [x for x in st1 if not (x[0] == 2 and x[1] == 2)]
    def late_steps(tiles):
        st = []
        for k4 in range(4):
            for t in tiles: st.append((t, 0, 1, k4, 4 + k4))
        for t in tiles:
            for k4 in range(4):
                st.append((t, 3, comp101(2), k4, 12 + k4))
                st.append((t, 1, comp111(0), k4, 16 + k4))
                st.append((t, 2, comp111(1), k4, 16 + k4))
        return [x for x in st if not (x[0] == 2 and x[1] == 2)]
    started = set()
    wmax = [-1]
    def run(steps, fill):
        q = []
        def rd(n):
            t, o, c, k4, ws = steps[n]
            base = (1 + k4) if t < 2 else ((PKB + k4) if o == 1 else (T2B + k4))
            off = c*256 + (16*PSTR if t == 1 else 0)
            a(f"ds_read_b128 {vr(BB+4*(n%NBB),4)}, v{base} offset:{off}")
            q.append(n)
        n_steps = len(steps)
        for n in range(NBB - 1): rd(n)
        for n in range(n_steps):
            t, o, c, k4, ws = steps[n]
            if n + NBB - 1 < n_steps: rd(n + NBB - 1)
            pend = len(q) - 1 - q.index(n)
            assert pend <= 15
            idx = late.index(ws) if ws in late else -1
            w = f"lgkmcnt({pend})"
            if idx > wmax[0]:
                w = f"vmcnt({len(late) - 1 - idx}) " + w
                wmax[0] = idx
            a("s_waitcnt " + w)
            acc = vr(OACC[(t, o)], 4)
            first = False
            a(f"v_mfma_f32_16x16x32_bf16 {acc}, {vr(WREG[ws],4)}, {vr(BB+4*(n%NBB),4)}, {'0' if first else acc}")
            for x in fill.get(n, []):
                a(x)
                if x.startswith("ds_"): q.append(-1)
    GT = 64
    def gate_ops(t):
        A0 = OACC[(t, 0)]; g = GT + 4*t
        o = [f"v_mul_f32 v{g+r}, s{S_T+2}, v{A0+r}" for r in range(4)]
        o += [f"v_exp_f32 v{g+r}, v{g+r}" for r in range(4)]
        o += [f"v_cvt_pk_bf16_f32 v{A0}, v{A0}, v{A0+1}", f"v_cvt_pk_bf16_f32 v{A0+1}, v{A0+2}, v{A0+3}"]
        o += [f"ds_write_b64 v{OA}, {vr(A0,2)} offset:{16*OSTR*t}"]
        o += [f"v_add_f32 v{g+r}, 1.0, v{g+r}" for r in range(4)]
        o += [f"v_rcp_f32 v{g+r}, v{g+r}" for r in range(4)]
        if t == 2:
            o += ["s_nop 1"]
            o += [f"v_mov_b32_dpp v{g+r}, v{g+r} row_shr:8 row_mask:0xf bank_mask:0xc" for r in range(4)]
        return o
    def fin_ops(t):
        o = []
        for i in ([2, 0, 1] if t < 2 else [2, 0]):
            B0 = OACC[(t, 1 + i)]
            o += [f"v_pk_mul_f32 {vr(B0+r,2)}, {vr(B0+r,2)}, {vr(GT+4*t+r,2)}" for r in (0, 2)]
            o += [f"v_cvt_pk_bf16_f32 v{B0}, v{B0}, v{B0+1}", f"v_cvt_pk_bf16_f32 v{B0+1}, v{B0+2}, v{B0+3}"]
            if t == 2 and i == 0: o += [f"ds_write_b64 v{PKO}, {vr(B0,2)} offset:{32*OSTR + 256}"]
            else: o += [f"ds_write_b64 v{OA}, {vr(B0,2)} offset:{16*OSTR*t + 256*(i+1)}"]
        return o
    def spread(fill, ops, n0, n1):
        cnt = n1 - n0
        for j, op in enumerate(ops):
            fill.setdefault(n0 + j * cnt // len(ops), []).append(op)
    f1 = {}
    f1.setdefault(len(st1) - 4, []).append(f"ds_read_b32 v15, v14 offset:4")
    run(st1, f1)
    a("s_setprio 0")
    spin("b", 4, 8)
    f2 = {}
    spread(f2, gate_ops(1) + gate_ops(2), 11, 23)
    spread(f2, fin_ops(1), 23, 27)
    run(late_steps([1, 2]), f2)
    a("s_nop 5")
    for x in fin_ops(2): a(x)
    a("s_waitcnt lgkmcnt(0)")
    if not OPT.get("pst"): stamp(a, 14)
    a("s_barrier")
    stamp(a, 7)
    f3 = {}
    spread(f3, gate_ops(0), 7, 15)
    run(late_steps([0]), f3)
    a("s_nop 5")
    for x in fin_ops(0): a(x)
    a.label("M_st")
    row_off(S_G, 12, False)
    a(f"""
    s_add_u32 s{S_T+3}, s{S_G}, 8
    """)
    row_off(S_T+3, 13, False)
    a(f"""
    s_mul_i32 s{S_T}, s{S_G}, {OSTR}
    s_add_u32 s{S_T}, s{S_T}, {L_LIST}
    v_add_u32 v{WA}, s{S_T}, v{LN}
    s_waitcnt lgkmcnt(0)
    s_barrier
    """)
    stamp(a, 8)
    a(f"""
    ds_read_b128 v[72:75], v{WA}
    s_and_b32 s{S_T}, s{S_G}, 12
    s_cmp_lg_u32 s{S_T}, 4
    s_cbranch_scc1 M_st3
    ds_read_b128 v[76:79], v{WA} offset:{8*OSTR}
    s_waitcnt lgkmcnt(0)
    buffer_store_dwordx4 v[76:79], v13, {sr(S_OUT,4)}, 0 offen {fl('of')}
    """)
    a.label("M_st3")
    a(f"""
    s_waitcnt lgkmcnt(0)
    buffer_store_dwordx4 v[72:75], v12, {sr(S_OUT,4)}, 0 offen {fl('of')}
    """)
    stamp_dump(a)

def kd(a, name, vg, sg):
    acc = (vg + 3) // 4 * 4
    a.raw(f""".p2align 6
.amdhsa_kernel {name}
  .amdhsa_next_free_vgpr {vg}
  .amdhsa_next_free_sgpr {sg}
  .amdhsa_accum_offset {acc}
  .amdhsa_group_segment_fixed_size 0
  .amdhsa_kernarg_size 96
  .amdhsa_user_sgpr_count 2
  .amdhsa_user_sgpr_kernarg_segment_ptr 1
  .amdhsa_system_sgpr_workgroup_id_x 1
  .amdhsa_float_denorm_mode_32 3
.end_amdhsa_kernel""")

def main():
    global DBG
    OPT.update(dict(x.split("=") for x in sys.argv[2:]))
    DBG = bool(int(OPT.get("dbg", 0)))
    a = Asm()
    ref = open(f"cdna_kernels/{NAME}.s.ref").read().split("\n")
    for ln in ref:
        if ln.startswith(";") and "@launch" not in ln and "Override" not in ln and "grid=ceil" not in ln:
            a.raw(ln)
    a.raw(f"; @launch kernel={NAME}_kernel grid=({NB},1,1) block=({NT},1,1) lds={L_TOT}")
    a.raw('.amdgcn_target "amdgcn-amd-amdhsa--gfx950"')
    a.raw(".text")
    gen_main(a)
    a.raw('.section .rodata,"a"')
    kd(a, NAME + "_kernel", NVG, 102 if DBG else (72 if OPT.get('spinat') else 70))
    open(sys.argv[1], "w").write(a.text())

main()
```

```python
import sys

NAME = "gather_scatter__tensor_product_equiv_equiformer__graph"
N = 10000
E = 320000
NB = 256
CH = 1250
CHS = 1280
WS_OFF = 0x500000
WS_WF = 0x600000
WS_WFLAG = 0x640000
WS_PF32 = 0x1000000
SPIN_MAX = 1 << 18
TAGM = 0xffc00000

NG = 12
NT = NG * 64
CAP = 224
PSTR = 2816
L_CC = 512
L_BASE = L_CC + NG * 64
L_ACNT = L_BASE + NG * 64
L_MORE = L_ACNT + 60
L_NONCE = L_ACNT + 64
L_FC3 = L_ACNT + 84
L_FC0 = L_ACNT + 88
L_FC = L_ACNT + 80
OSTR = 1040
L_P = L_ACNT + 256
L_LIST = L_P + 40 * PSTR
L_TOT = L_LIST + NG * CAP * 16
assert L_TOT <= 163840 and L_P % 256 == 0
OOBOFF = 0x00FFFC00

OPT = {}
DBG = False

class Asm:
    def __init__(self):
        self.l = []
    def __call__(self, s):
        for x in s.split("\n"):
            x = x.strip()
            if x:
                self.l.append("    " + x)
    def label(self, s):
        self.l.append(s + ":")
    def raw(self, s):
        self.l.append(s)
    def text(self):
        return "\n".join(self.l) + "\n"

def vr(a, n):
    return f"v[{a}:{a+n-1}]"
def sr(a, n=2):
    return f"s[{a}:{a+n-1}]"
def fl(k):
    return OPT.get(k, {'of': 'sc1'}.get(k, '')).replace('+', ' ')

V_C = 1; V_N16 = 2; V_VS = 4; V_VC = 5; V_PB = 6; V_JB = 7; V_DONE = 8
V_OFF = 9
V_T = 12
V_OH = 16; V_CA = 18; V_TCH = 19
V_SC = 20; V_IX = 24
V_A = [32, 36]
V_B = [40, 44]
V_ACC = 48
V_SV = 80
V_L = [104, 136]
NVG = 168
S_X = 4; S_OUT = 8; S_REC = 12; S_OFFS = 16; S_WF = 20
S_G = 22; S_S = 23; S_S1 = 24; S_B1 = 25; S_S2 = 26; S_PLO = 27; S_PHI = 28; S_NLAST = 29
S_RND = 30; S_MORE = 31; S_T = 32
S_M = 40
S_IN = 40
S_ACT = 52; S_PEND = 54; S_TM = 56; S_FEX = 58; S_RET = 60; S_HI = 62; S_FIRST = 63
S_NON = 64; S_DBG = 66; S_WSB = 68; S_SPIN = 0; S_WOK = 1; S_FLP = 63; S_ANY2 = 23; S_SPIN2 = 50
S_ST = 70

def pa(a, k):
    if OPT.get("pa"): a(f"s_memtime {sr(S_ST+2*k)}")
spn = [0]
def stamp(a, k, real=False):
    if OPT.get("spinat") and int(OPT["spinat"]) == k:
        spn[0] += 1
        a.label(f"D_spin{spn[0]}")
        a(f"""
        s_memrealtime s[70:71]
        s_waitcnt lgkmcnt(0)
        s_sub_u32 s70, s70, s{72 if OPT.get('own') else S_NON}
        s_cmp_lt_u32 s70, {OPT["spint"]}
        s_cbranch_scc1 D_spin{spn[0]}
        """)
    if OPT.get("pa") and k in (4, 5, 6, 7, 8, 14): return
    if OPT.get("prof") and k in (1, 13, 15, 3, 4, 5): return
    if DBG:
        a(f"s_mem{'realtime' if real else 'time'} {sr(S_ST+2*k)}")
def stamp_dump(a):
    if OPT.get("spinat") == "9":
        a("s_waitcnt vmcnt(0)")
        stamp(a, 9)
    if DBG:
        a("s_waitcnt lgkmcnt(0) vmcnt(0)")
        stamp(a, 9)
        stamp(a, 11, True)
        a("s_waitcnt lgkmcnt(0)")
        if OPT.get("hwid"):
            a(f"s_getreg_b32 s{S_ST+26}, hwreg(HW_REG_HW_ID)")
            a(f"s_mov_b32 s{S_ST+27}, 0")
        a(f"s_mul_i32 s{S_T}, s2, {NG}")
        a(f"s_add_u32 s{S_T}, s{S_T}, s{S_G}")
        a(f"s_lshl_b32 s{S_T}, s{S_T}, 7")
        a(f"s_add_u32 s{S_T}, s{S_T}, 0x800000")
        a(f"v_mov_b32 v1, s{S_T}")
        for k in range(0, 32, 2):
            a(f"v_mov_b32 v2, s{S_ST+k}")
            a(f"v_mov_b32 v3, s{S_ST+k+1}")
            a(f"global_store_dwordx2 v1, v[2:3], {sr(S_WSB)} offset:{4*k}")
            a("s_nop 1")

def comp011(i): return 2 + 3*i
def comp101(i): return 3 + 3*i
def comp111(i): return 4 + 3*i

def touch(a, beta, part, va, vd):
    a(f"""
    s_mul_i32 s{S_T+6}, s3, 79
    s_add_u32 s{S_T+6}, s{S_T+6}, {64*part}
    v_and_b32 v{va}, 63, v0
    v_add_u32 v{va}, s{S_T+6}, v{va}
    v_and_b32 v{vd}, 1, v{va}
    v_lshrrev_b32 v{va}, 1, v{va}
    v_lshlrev_b32 v{va}, 10, v{va}
    v_lshl_add_u32 v{va}, v{vd}, 7, v{va}
    """)
    if part: a("s_mov_b64 exec, 0x7fff")
    a(f"buffer_load_dword v{vd}, v{va}, {sr(S_X,4)}, 0 offen offset:{256*beta}")
    if part: a("s_mov_b64 exec, -1")

WREG = {}
for n_, ks_ in enumerate([0, 1, 2, 3, 8, 9, 10, 11]): WREG[ks_] = 136 + 4*n_
for n_, ks_ in enumerate([4, 5, 6, 7, 12, 13, 14, 15, 16, 17, 18, 19]): WREG[ks_] = 88 + 4*n_
def wload(a, va, kss):
    a(f"""
    s_sub_u32 s{S_T+6}, s{S_G}, 4
    s_mul_i32 s{S_T+6}, s{S_T+6}, {20*1024}
    v_and_b32 v{va}, 63, v0
    v_lshl_add_u32 v{va}, v{va}, 4, s{S_T+6}
    """)
    cur = 0
    for ks in kss:
        blk = ks // 4 * 4096
        if blk != cur:
            if blk > cur: a(f"v_add_u32 v{va}, {blk - cur}, v{va}")
            else: a(f"v_subrev_u32 v{va}, {cur - blk}, v{va}")
            cur = blk
        a(f"global_load_dwordx4 {vr(WREG[ks],4)}, v{va}, {sr(S_WF)} offset:{1024*(ks%4)} sc1")

def meta_reads(a):
    a(f"""
    s_lshl_b32 s{S_T}, s{S_S2}, 9
    v_add_u32 v{V_T}, s{S_T}, v{V_VS}
    v_add_u32 v{V_CA}, s{S_T}, v{V_VC}
    """)
    for i in range(0, 8, 2):
        a(f"ds_read2_b32 {vr(V_IX+i,2)}, v{V_T} offset0:{16*i+2} offset1:{16*(i+1)+2}")
    a(f"ds_read2_b32 {vr(V_OH,2)}, v{V_CA} offset0:3 offset1:67")

def stage_x(a, p, tag, wait=True):
    L = V_L[p]; A = V_A[p]
    for i in range(0, 8, 2):
        a(f"v_pk_add_f32 {vr(V_IX+i,2)}, {vr(V_IX+i,2)}, {vr(V_N16,2)}")
    a(f"""
    v_bfe_i32 v{V_OH}, v{V_OH}, v{V_C}, 1
    v_bfe_i32 v{V_OH+1}, v{V_OH+1}, v{V_C}, 1
    s_add_u32 s{S_S2}, s{S_S1}, 1
    v_and_b32 v{V_OH}, v{V_OH}, v{V_CA}
    v_and_b32 v{V_OH+1}, v{V_OH+1}, v{V_CA}
    s_cmp_eq_u32 s{S_S2}, s{S_S}
    ds_read_b64_tr_b16 {vr(A,2)}, v{V_OH}
    ds_read_b64_tr_b16 {vr(A+2,2)}, v{V_OH+1} offset:256
    s_cbranch_scc1 M_part{tag}
    """)
    def load(i):
        a(f"buffer_load_dwordx4 {vr(L+4*i,4)}, v{V_IX+i}, {sr(S_X,4)}, s{S_B1} offen")
    a.label(f"M_full{tag}")
    for i in range(8):
        load(i)
    meta_reads(a)
    if wait: a("s_waitcnt vmcnt(8)")
    a(f"s_branch M_go{tag}")
    a.label(f"M_part{tag}")
    a(f"""
    s_mov_b32 s{S_S2}, 0
    s_cmp_eq_u32 s{S_NLAST}, 8
    s_cbranch_scc1 M_full{tag}
    """)
    for i in range(7):
        a(f"s_cmp_eq_u32 s{S_NLAST}, {i}")
        a(f"s_cbranch_scc1 M_w{tag}_{i}")
        load(i)
    for i in range(7, -1, -1):
        a.label(f"M_w{tag}_{i}")
        if wait:
            a(f"s_waitcnt vmcnt({i})")
            if i > 0: a(f"s_branch M_pm{tag}")
    a.label(f"M_pm{tag}")
    meta_reads(a)

def advance(a):
    a(f"""
    s_mov_b32 s{S_S1}, s{S_S2}
    s_cmp_eq_u32 s{S_S2}, 0
    s_cselect_b32 s{S_T}, 256, 0
    s_add_u32 s{S_B1}, s{S_B1}, s{S_T}
    """)

def compute(a, p, first):
    L = V_L[p]; A = V_A[p]
    def perms(j):
        B = V_B[j % 2]
        sel = S_PHI if j % 2 else S_PLO
        for q in range(4):
            if OPT.get("noperm"): continue
            a(f"v_perm_b32 v{B+q}, v{L+4*(2*q+1)+j//2}, v{L+4*(2*q)+j//2}, s{sel}")
    perms(0)
    for j in range(8):
        if j + 1 < 8:
            perms(j + 1)
        else:
            a("s_nop 1")
        acc = vr(V_ACC+4*j,4)
        if OPT.get("nomfma"): continue
        Bop = vr(L+4*j,4) if OPT.get("noperm") else vr(V_B[j%2],4)
        if OPT.get("swap"): a(f"v_mfma_f32_16x16x32_bf16 {acc}, {Bop}, {vr(A,4)}, {'0' if first else acc}")
        elif OPT.get("m4"):
            a(f"v_mfma_f32_4x4x4_16b_bf16 {acc}, {vr(A,2)}, {vr(V_B[j%2],2)}, {'0' if first else acc}")
            a(f"v_mfma_f32_4x4x4_16b_bf16 {acc}, {vr(A+2,2)}, {vr(V_B[j%2]+2,2)}, {acc}")
        else: a(f"v_mfma_f32_16x16x32_bf16 {acc}, {vr(A,4)}, {Bop}, {'0' if first else acc}")

wc_n = [0]
def write_comp(a, comp, regs):
    n = wc_n[0]; wc_n[0] += 1
    TM = V_B[0]
    a(f"""
    s_or_b32 s{S_T}, s{S_RND}, s{S_MORE}
    s_cmp_eq_u32 s{S_T}, 0
    s_cbranch_scc1 M_wc{n}
    s_mul_i32 s{S_T}, s3, {NG}
    s_add_u32 s{S_T}, s{S_T}, s{S_G}
    s_mul_i32 s{S_T}, s{S_T}, {11*2048}
    s_add_u32 s{S_T}, s{S_T}, {WS_PF32 + comp*2048}
    v_and_b32 v{V_T}, 63, v0
    v_lshl_add_u32 v{V_T}, v{V_T}, 2, s{S_T}
    s_waitcnt lgkmcnt(0)
    s_cmp_eq_u32 s{S_RND}, 0
    s_cbranch_scc1 M_wd{n}
    """)
    for j in range(8):
        a(f"global_load_dword v{TM+j}, v{V_T}, {sr(S_WSB)} offset:{256*j} sc1")
    a("s_waitcnt vmcnt(0)")
    for j in range(8):
        a(f"v_add_f32 v{regs[j]}, v{regs[j]}, v{TM+j}")
    a.label(f"M_wd{n}")
    for j in range(8):
        a(f"global_store_dword v{V_T}, v{regs[j]}, {sr(S_WSB)} offset:{256*j} sc1")
    a("s_waitcnt vmcnt(0)")
    a.label(f"M_wc{n}")
    sc = [V_B[0], V_B[1]][n % 2]
    for d in range(4):
        a(f"v_cvt_pk_bf16_f32 v{sc+d}, v{regs[2*d]}, v{regs[2*d+1]}")
    if comp in (5, 6, 7):
        a(f"""
        s_cmp_ge_u32 s{S_G}, 4
        s_cselect_b32 s{S_TM+1}, 0xffff, 0
        s_mov_b32 s{S_TM}, 0
        v_xor_b32 v{V_T+1}, 128, v{V_PB}
        v_cndmask_b32 v{V_T+1}, v{V_PB}, v{V_T+1}, {sr(S_TM)}
        ds_write_b128 v{V_T+1}, {vr(sc,4)} offset:{comp*256}
        """)
    else:
        a(f"ds_write_b128 v{V_PB}, {vr(sc,4)} offset:{comp*256}")

def setprio(a, ph):
    pl = OPT.get("pl", "3210"); phv = OPT.get("ph", "3210")
    if pl[ph] == phv[ph]:
        a(f"s_setprio {pl[ph]}")
    else:
        a(f"""
        s_setprio {pl[ph]}
        s_cmp_ge_u32 s{S_G}, 4
        s_cbranch_scc1 M_pr{ph}
        s_setprio {phv[ph]}
        """)
        a.label(f"M_pr{ph}")

def tick(a, slot):
    if OPT.get("prof"):
        a(f"""
        s_memtime {sr(S_M)}
        s_waitcnt lgkmcnt(0)
        s_sub_u32 s{S_M+3}, s{S_M}, s{S_M+2}
        s_mov_b32 s{S_M+2}, s{S_M}
        """)
        if slot is not None: a(f"s_add_u32 s{S_ST+2*slot}, s{S_ST+2*slot}, s{S_M+3}")

def flush_sub(a):
    acc = lambda r: [V_ACC + 4*j + r for j in range(8)]
    sv = lambda k: [V_SV + 8*k + j for j in range(8)]
    a.label("M_flush")
    a(f"""
    s_mov_b64 exec, {sr(S_FEX)}
    s_cmp_eq_u32 s{S_B1}, 512
    s_cbranch_scc1 M_fl1
    s_cmp_eq_u32 s{S_B1}, 768
    s_cbranch_scc1 M_fl2
    s_cmp_eq_u32 s{S_B1}, 1024
    s_cbranch_scc1 M_fl3
    s_nop 1
    """)
    def ret(ph, k):
        if not (OPT.get("pst") and k == 3): stamp(a, k)
        if ph is not None: setprio(a, ph)
        a(f"s_mov_b64 exec, -1")
        a(f"s_setpc_b64 {sr(S_RET)}")
    write_comp(a, 0, acc(0))
    for i in range(3): write_comp(a, comp011(i), acc(1+i))
    a(f"""
    s_mov_b64 exec, 1
    v_mov_b32 v{V_T+2}, {L_FC0}
    v_mov_b32 v{V_T+3}, 1
    ds_add_u32 v{V_T+2}, v{V_T+3}
    """)
    a("s_mov_b64 exec, -1")
    for n, b in enumerate(OPT.get("t3", "x").replace("x", "")):
        for k in range(2):
            a(f"s_cmp_lg_u32 s{S_G}, {4+2*n+k}")
            a(f"s_cbranch_scc1 M_t3_{n}_{k}")
            touch(a, int(b), k, V_T+2, V_TCH)
            a.label(f"M_t3_{n}_{k}")
    ret(1, 3)
    a.label("M_fl1")
    a("s_nop 4")
    write_comp(a, comp101(0), acc(0))
    for k in range(3):
        for j in range(8): a(f"v_mov_b32 v{sv(k)[j]}, v{acc(1+k)[j]}")
    ret(2, 4)
    a.label("M_fl2")
    a("s_nop 2")
    write_comp(a, comp101(1), acc(0))
    for j in range(8): a(f"v_sub_f32 v{acc(1)[j]}, v{acc(1)[j]}, v{sv(1)[j]}")
    write_comp(a, comp111(2), acc(1))
    for j in range(8): a(f"v_add_f32 v{sv(0)[j]}, v{sv(0)[j]}, v{acc(2)[j]}")
    for j in range(8): a(f"v_mov_b32 v{sv(1)[j]}, v{acc(3)[j]}")
    a(f"""
    s_mov_b64 exec, 1
    v_mov_b32 v{V_T+2}, {L_FC}
    v_mov_b32 v{V_T+3}, 1
    ds_add_u32 v{V_T+2}, v{V_T+3}
    """)
    ret(3, 5)
    a.label("M_fl3")
    write_comp(a, comp101(2), acc(0))
    for j in range(8): a(f"v_sub_f32 v{sv(2)[j]}, v{sv(2)[j]}, v{acc(1)[j]}")
    write_comp(a, comp111(1), sv(2))
    for j in range(8): a(f"v_sub_f32 v{acc(2)[j]}, v{acc(2)[j]}, v{sv(1)[j]}")
    write_comp(a, comp111(0), acc(2))
    for j in range(8): a(f"v_add_f32 v{sv(0)[j]}, v{sv(0)[j]}, v{acc(3)[j]}")
    write_comp(a, 1, sv(0))
    a(f"""
    s_cmp_lt_u32 s{S_G}, 4
    s_cbranch_scc1 M_fl3b
    s_mov_b64 exec, 1
    v_mov_b32 v{V_T+2}, {L_FC3}
    v_mov_b32 v{V_T+3}, 1
    ds_add_u32 v{V_T+2}, v{V_T+3}
    """)
    a.label("M_fl3b")
    ret(None, 6)

A_H = L_P; A_BS = L_P + 4096; A_STG = L_P + 8192; A_OFS = L_P + 32768

def setup(a):
    a(f"""
    s_mov_b64 {sr(S_X)}, s[36:37]
    s_mov_b64 {sr(S_OUT)}, s[54:55]
    s_mov_b64 {sr(S_WSB)}, s[58:59]
    s_and_b32 s{S_T}, s2, 7
    s_lshr_b32 s2, s2, 3
    s_lshl_b32 s{S_T}, s{S_T}, 5
    s_or_b32 s2, s2, s{S_T}
    s_mov_b32 s{S_X+2}, {N*1024}
    s_mov_b32 s{S_X+3}, 0x20000
    s_mov_b32 s{S_OUT+2}, {N*1024}
    s_mov_b32 s{S_OUT+3}, 0x20000
    s_mov_b32 s{S_REC+2}, {NB*CHS*16}
    s_mov_b32 s{S_REC+3}, 0x20000
    s_mov_b32 s{S_OFFS+2}, {NB*2048}
    s_mov_b32 s{S_OFFS+3}, 0x20000
    s_mov_b32 s{S_HI}, 0xffff0000
    s_mov_b32 s{S_SPIN}, {SPIN_MAX}
    s_mov_b32 s{S_REC}, s{S_WSB}
    s_and_b32 s{S_REC+1}, s{S_WSB+1}, 0xffff
    s_add_u32 s{S_OFFS}, s{S_WSB}, {WS_OFF}
    s_addc_u32 s{S_OFFS+1}, s{S_WSB+1}, 0
    s_add_u32 s{S_WF}, s{S_WSB}, {WS_WF}
    s_addc_u32 s{S_WF+1}, s{S_WSB+1}, 0
    s_and_b32 s{S_OFFS+1}, s{S_OFFS+1}, 0xffff
    s_and_b32 s{S_X+1}, s{S_X+1}, 0xffff
    s_and_b32 s{S_OUT+1}, s{S_OUT+1}, 0xffff
    """)

def cpf(a):
    K = NAME + "_kernel"
    a(f"""
    s_lshr_b32 s{S_T}, s3, 3
    s_cmp_lg_u32 s{S_T}, {OPT.get('cpw', 0)}
    s_cbranch_scc1 A_nocpf
    s_getpc_b64 {sr(60)}
    """)
    a.label("A_pc")
    a(f"""
    s_sub_u32 s{60}, s{60}, A_pc-{K}
    s_subb_u32 s{61}, s{61}, 0
    v_lshlrev_b32 v50, 3, v1
    s_mov_b32 s{S_T}, M_done-{K}
    v_add_u32 v51, 8192, v50
    v_min_u32 v51, s{S_T}, v51
    v_add_u32 v54, 16384, v50
    v_min_u32 v54, s{S_T}, v54
    global_load_dword v52, v50, {sr(60)}
    global_load_dword v53, v51, {sr(60)}
    global_load_dword v55, v54, {sr(60)}
    """)
    a.label("A_nocpf")

def phase_a(a):
    RH = 38; EA = 40; SRC = 42; DST = 44; WR = 46; W0 = 48; W1 = 50
    WSB = sr(S_WSB)
    def read_nonce(wait=True):
        a(f"""
        v_mov_b32 v2, {L_NONCE}
        ds_read_b64 v[2:3], v2
        s_waitcnt lgkmcnt(0)
        v_readfirstlane_b32 s{S_NON}, v2
        v_readfirstlane_b32 s{S_NON+1}, v3
        """)
    a(f"""
    s_cmp_eq_u32 s{S_G}, 10
    s_cbranch_scc1 A_scan
    s_cmp_eq_u32 s{S_G}, 11
    s_cbranch_scc1 A_aux
    s_mov_b64 exec, vcc
    """)
    LB = 0
    if not int(OPT.get("el", 0)):
        a(f"""
        global_load_dwordx3 v[12:14], v7, {sr(RH)} nt
        global_load_dword v18, v20, {sr(EA)} nt
        global_load_dwordx2 v[8:9], v6, {sr(SRC)} nt
        """)
    a(f"""
    v_mov_b32 v23, 1
    """)
    pa(a, 4)
    setup(a)
    a("s_waitcnt vmcnt(3)")
    pa(a, 5)
    for i in range(2):
        a(f"""
        v_and_b32 v{24+i}, 7, v{4+i}
        v_bfe_u32 v1, v{4+i}, 3, 5
        v_lshlrev_b32 v{24+i}, 7, v{24+i}
        v_lshl_or_b32 v{24+i}, v1, 2, v{24+i}
        ds_add_rtn_u32 v{28+i}, v{24+i}, v23 offset:{A_H}
        """)
    a("""
    s_waitcnt lgkmcnt(0)
    s_barrier
    """)
    pa(a, 6)
    for i in range(2):
        a(f"""
        v_lshrrev_b32 v{4+i}, 8, v{4+i}
        v_mul_u32_u24 v1, 43, v{4+i}
        v_lshrrev_b32 v1, 9, v1
        v_mul_u32_u24 v2, 12, v1
        v_sub_u32 v{4+i}, v{4+i}, v2
        v_lshlrev_b32 v1, 14, v1
        v_lshl_or_b32 v{32+4*i+2}, v{4+i}, 16, v1
        """)
    a(f"""
    s_barrier
    ds_read_b32 v30, v24 offset:{A_BS}
    ds_read_b32 v31, v25 offset:{A_BS}
    """)
    pa(a, 8)
    a(f"s_waitcnt vmcnt(0)")
    def half(dst, base, idx):
        r = base + idx // 2
        if idx % 2 == 0:
            a(f"v_lshlrev_b32 v{dst}, 16, v{r}")
        else:
            a(f"v_and_b32 v{dst}, s{S_HI}, v{r}")
    for i in range(2):
        half(4, 18, i)
        half(5, 12, 3*i+0)
        half(6, 12, 3*i+1)
        half(7, 12, 3*i+2)
        a(f"""
        v_mul_f32 v5, v4, v5
        v_mul_f32 v6, v4, v6
        v_mul_f32 v7, v4, v7
        v_cvt_pk_bf16_f32 v{32+4*i}, v4, v5
        v_cvt_pk_bf16_f32 v{32+4*i+1}, v6, v7
        """)
    pa(a, 7)
    a("s_waitcnt lgkmcnt(0)")
    for i in range(2):
        a(f"""
        v_add_lshl_u32 v{4+i}, v{30+i}, v{28+i}, 4
        v_or_b32 v{32+4*i+2}, v{32+4*i+2}, v{8+i}
        ds_write_b96 v{4+i}, {vr(32+4*i,3)} offset:{A_STG}
        """)
    a(f"""
    s_mov_b64 exec, -1
    s_mul_i32 s{S_T}, s3, {CHS * 16}
    v_lshlrev_b32 v20, 4, v0
    v_add_u32 v21, s{S_T}, v20
    v_mov_b32 v2, {L_NONCE}
    v_add_u32 v22, 10240, v21
    v_cmp_gt_u32 vcc, 616, v0
    s_waitcnt lgkmcnt(0)
    s_barrier
    """)
    pa(a, 14)
    a(f"""
    ds_read_b64 v[2:3], v2
    ds_read_b128 v[32:35], v20 offset:{A_STG}
    ds_read_b128 v[36:39], v20 offset:{A_STG+10240}
    s_waitcnt lgkmcnt(1)
    v_or_b32 v34, v34, v3
    v_mov_b32 v35, v2
    global_store_dwordx4 v21, v[32:35], {WSB} sc1
    s_waitcnt lgkmcnt(0)
    v_or_b32 v38, v38, v3
    v_mov_b32 v39, v2
    s_mov_b64 exec, vcc
    global_store_dwordx4 v22, v[36:39], {WSB} sc1
    v_readfirstlane_b32 s{S_NON}, v2
    v_readfirstlane_b32 s{S_NON+1}, v3
    """)
    PW = int(OPT.get("pw", 0))
    if PW:
        a(f"""
        s_lshr_b32 s{S_T}, s3, 3
        s_mul_i32 s{S_T}, s{S_T}, 625
        v_add_u32 v40, s{S_T}, v0
        """)
        if PW == 1:
            a("""
            v_and_b32 v41, 3, v40
            v_lshrrev_b32 v40, 2, v40
            v_lshlrev_b32 v40, 11, v40
            """)
        else:
            a("""
            v_and_b32 v41, 1, v40
            v_lshrrev_b32 v40, 1, v40
            v_lshlrev_b32 v40, 10, v40
            """)
        a(f"""
        v_lshl_add_u32 v40, v41, 7, v40
        buffer_load_dword v41, v40, {sr(S_X,4)}, 0 offen
        """)
    a(f"""
    s_mov_b64 exec, -1
    s_branch A_end
    """)
    a.label("A_scan")
    a(f"""
    v_and_b32 v1, 63, v0
    v_lshlrev_b32 v1, 4, v1
    """)
    if int(OPT.get("cpf", 2)) == 2: cpf(a)
    for n, b in enumerate(OPT.get("t0", "x").replace("x", "")):
        touch(a, int(b), 0, 60+4*n, 61+4*n)
        touch(a, int(b), 1, 62+4*n, 63+4*n)
    a(f"""
    v_mov_b32 v16, 0
    s_setprio 3
    s_barrier
    ds_read_b128 v[4:7], v1 offset:{A_H}
    global_load_dwordx2 v[2:3], v16, {sr(S_DBG)} sc1
    """)
    if int(OPT.get("cpf", 2)) == 1: cpf(a)
    a(f"""
    s_waitcnt lgkmcnt(0)
    v_add_u32 v9, v4, v5
    v_add_u32 v10, v9, v6
    v_add_u32 v11, v10, v7
    v_mov_b32 v12, v11
    s_nop 1
    v_add_u32_dpp v12, v12, v12 row_shr:1 row_mask:0xf bank_mask:0xf bound_ctrl:0
    s_nop 1
    v_add_u32_dpp v12, v12, v12 row_shr:2 row_mask:0xf bank_mask:0xf bound_ctrl:0
    s_nop 1
    v_add_u32_dpp v12, v12, v12 row_shr:4 row_mask:0xf bank_mask:0xf bound_ctrl:0
    s_nop 1
    v_add_u32_dpp v12, v12, v12 row_shr:8 row_mask:0xf bank_mask:0xf bound_ctrl:0
    s_nop 1
    v_add_u32_dpp v12, v12, v12 row_bcast:15 row_mask:0xa bank_mask:0xf
    s_nop 1
    v_add_u32_dpp v12, v12, v12 row_bcast:31 row_mask:0xc bank_mask:0xf
    v_sub_u32 v12, v12, v11
    v_add_u32 v13, v12, v4
    v_add_u32 v14, v12, v9
    v_add_u32 v15, v12, v10
    ds_write_b128 v1, v[12:15] offset:{A_BS}
    s_waitcnt lgkmcnt(0)
    s_barrier
    """)
    setup(a)
    a(f"""
    s_lshl_b32 s{S_T}, s3, 11
    s_add_u32 s{S_T}, s{S_T}, {WS_OFF}
    v_add_u32 v20, s{S_T}, v1
    """)
    for i in range(4):
        a(f"v_lshl_or_b32 v{24+2*i}, v{4+i}, 11, v{12+i}")
    a(f"v_mov_b32 v17, {L_NONCE}")
    a.label("A_pn")
    a(f"""
    s_waitcnt vmcnt(0)
    v_readfirstlane_b32 s{S_NON}, v2
    s_cmp_lg_u32 s{S_NON}, 0
    s_cbranch_scc1 A_pd
    global_load_dwordx2 v[2:3], v16, {sr(S_DBG)} sc1
    s_sub_u32 s{S_SPIN}, s{S_SPIN}, 1
    s_cmp_gt_i32 s{S_SPIN}, 0
    s_cbranch_scc1 A_pn
    s_waitcnt vmcnt(0)
    """)
    a.label("A_pd")
    a("ds_write_b64 v17, v[2:3]")
    for i in range(4):
        a(f"""
        v_or_b32 v{24+2*i}, v3, v{24+2*i}
        v_mov_b32 v{25+2*i}, v2
        """)
    a(f"""
    global_store_dwordx4 v20, v[24:27], {WSB} sc1
    global_store_dwordx4 v20, v[28:31], {WSB} offset:1024 sc1
    v_readfirstlane_b32 s{S_NON}, v2
    v_readfirstlane_b32 s{S_NON+1}, v3
    v_lshlrev_b32 v40, 7, v1
    s_lshr_b32 s{S_T}, s2, 2
    s_lshl_b32 s{S_T}, s{S_T}, 4
    s_and_b32 s{S_T+1}, s2, 2
    s_lshl_b32 s{S_T+1}, s{S_T+1}, 9
    s_add_u32 s{S_T}, s{S_T}, s{S_T+1}
    s_and_b32 s{S_T+1}, s2, 1
    s_lshl_b32 s{S_T+1}, s{S_T+1}, 3
    s_add_u32 s{S_T}, s{S_T}, s{S_T+1}
    v_add_u32 v40, s{S_T}, v40
    v_add_u32 v41, {64*2048}, v40
    v_add_u32 v42, {128*2048}, v40
    v_add_u32 v43, {192*2048}, v40
    s_mov_b32 s{S_T+7}, {TAGM}
    s_mov_b64 s[40:41], -1
    s_mov_b64 s[42:43], -1
    s_mov_b64 s[44:45], -1
    s_mov_b64 s[46:47], -1
    s_waitcnt lgkmcnt(0)
    s_barrier
    {"s_waitcnt vmcnt(0)" if int(OPT.get("pw0", 1)) else ""}
    """)
    a.label("A_poll")
    for r in range(4):
        a(f"""
        s_mov_b64 exec, {sr(40+2*r)}
        s_cbranch_execz A_ps{r}
        buffer_load_dwordx2 {vr(32+2*r,2)}, v{40+r}, {sr(S_OFFS,4)}, 0 offen sc1
        """)
        a.label(f"A_ps{r}")
    a(f"""
    s_mov_b64 exec, -1
    s_mov_b64 {sr(S_TM)}, 0
    s_waitcnt vmcnt(0)
    """)
    for r in range(4):
        a(f"""
        v_and_b32 v4, s{S_T+7}, v{32+2*r}
        v_cmp_ne_u32 {sr(40+2*r)}, s{S_NON+1}, v4
        v_cmp_ne_u32 vcc, s{S_NON}, v{33+2*r}
        s_or_b64 {sr(40+2*r)}, {sr(40+2*r)}, vcc
        s_or_b64 {sr(S_TM)}, {sr(S_TM)}, {sr(40+2*r)}
        """)
    a(f"""
    s_cmp_eq_u64 {sr(S_TM)}, 0
    s_cbranch_scc1 A_polled
    {"s_sleep " + OPT["slp"] if OPT.get("slp") else ""}
    s_sub_u32 s{S_SPIN}, s{S_SPIN}, 1
    s_cmp_gt_i32 s{S_SPIN}, 0
    s_cbranch_scc1 A_poll
    """)
    a.label("A_polled")
    a(f"""
    v_lshrrev_b32 v1, 2, v1
    v_mov_b32 v5, 0
    """)
    for r in range(4):
        a(f"""
        v_and_b32 v{32+2*r}, 0x3fffff, v{32+2*r}
        ds_write_b32 v1, v{32+2*r} offset:{A_OFS+256*r}
        """)
    a(f"""
    ds_write_b32 v1, v5 offset:{A_OFS+1024}
    s_branch A_end
    """)
    a.label("A_aux")
    a(f"""
    v_and_b32 v1, 63, v0
    s_cmp_ge_u32 s3, 160
    s_cbranch_scc1 A_wp1
    s_and_b32 s{S_T+3}, s3, 7
    s_and_b32 s{S_T+1}, s3, 0xf8
    v_lshrrev_b32 v3, 4, v1
    s_lshl_b32 s{S_T}, s{S_T+1}, 2
    v_lshl_add_u32 v4, v3, 3, s{S_T}
    v_lshlrev_b32 v5, 1, v4
    global_load_dwordx4 v[8:11], v5, {sr(WR)}
    v_and_b32 v2, 15, v1
    s_lshl_b32 s{S_T}, s{S_T+3}, 4
    v_add_lshl_u32 v2, v2, s{S_T}, 1
    v_lshl_add_u32 v6, v4, 8, v2
    s_sub_u32 s60, s{W1}, {256*256}
    s_subb_u32 s61, s{W1+1}, 0
    s_cmp_lt_u32 s3, 64
    s_cselect_b64 s[60:61], {sr(W0)}, s[60:61]
    """)
    for i in range(8):
        a(f"global_load_ushort v{12+i}, v6, s[60:61] offset:{256*i} {OPT.get('wnt', '')}")
    a.label("A_wp1")
    T1 = OPT.get("t1", "0").replace("x", "")
    a(f"""
    s_setprio 3
    s_barrier
    s_barrier
    """)
    setup(a)
    a(f"""
    s_and_b32 s{S_T+3}, s3, 7
    s_mul_i32 s{S_T+2}, s{S_T+3}, 20
    s_lshr_b32 s{S_T+3}, s3, 3
    s_add_u32 s{S_T+2}, s{S_T+2}, s{S_T+3}
    s_cmp_ge_u32 s3, 160
    s_cbranch_scc1 A_nw1
    s_lshl_b32 s{S_T+3}, s{S_T+2}, 10
    s_add_u32 s{S_T+3}, s{S_T+3}, {WS_WF}
    v_lshl_add_u32 v7, v1, 4, s{S_T+3}
    s_waitcnt vmcnt(0)
    """)
    for i in range(8):
        if i % 2 == 0:
            a(f"v_lshlrev_b32 v20, 16, v{8+i//2}")
        else:
            a(f"v_and_b32 v20, s{S_HI}, v{8+i//2}")
        a(f"v_lshlrev_b32 v{12+i}, 16, v{12+i}")
        a(f"v_mul_f32 v{12+i}, v20, v{12+i}")
    for i in range(4):
        a(f"v_cvt_pk_bf16_f32 v{24+i}, v{12+2*i}, v{13+2*i}")
    a(f"global_store_dwordx4 v7, v[24:27], {WSB} sc1")
    a.label("A_nw1")
    if not OPT.get("t1late"):
        for n, b in enumerate(T1):
            touch(a, int(b), 0, 32+4*n, 33+4*n)
            touch(a, int(b), 1, 34+4*n, 35+4*n)
    a(f"""
    v_mov_b32 v2, {L_NONCE}
    s_barrier
    ds_read_b64 v[4:5], v2
    """)
    if OPT.get("t1late"):
        for n, b in enumerate(T1):
            touch(a, int(b), 0, 32+4*n, 33+4*n)
            touch(a, int(b), 1, 34+4*n, 35+4*n)
    a(f"""
    s_waitcnt lgkmcnt(0)
    v_readfirstlane_b32 s{S_NON}, v4
    v_readfirstlane_b32 s{S_NON+1}, v5
    s_cmp_ge_u32 s3, 160
    s_cbranch_scc1 A_end
    s_lshl_b32 s{S_T+3}, s{S_T+2}, 10
    s_add_u32 s{S_T+3}, s{S_T+3}, {WS_WFLAG}
    v_lshl_add_u32 v11, v1, 4, s{S_T+3}
    v_mov_b32 v5, v4
    v_mov_b32 v6, v4
    v_mov_b32 v7, v4
    s_waitcnt vmcnt({2*len(T1)})
    global_store_dwordx4 v11, v[4:7], {WSB} sc1
    s_nop 1
    """)
    a.label("A_end")

def gen_main(a):
    K = NAME + "_kernel"
    a.raw(".p2align 8")
    a.raw(f".globl {K}")
    a.raw(f".type {K},@function")
    a.label(K)
    a(f"""
    s_cmp_ge_u32 s2, {NB}
    s_cbranch_scc1 M_done
    """)
    if OPT.get("empty"): a("s_endpgm")
    if DBG:
        for k in range(S_ST, S_ST+32): a(f"s_mov_b32 s{k}, 0")
    stamp(a, 0)
    stamp(a, 10, True)
    T = V_T
    a(f"""
    s_load_dwordx16 s[36:51], s[0:1], 0
    s_load_dwordx8 s[52:59], s[0:1], 64
    s_memrealtime {sr(S_NON)}
    s_mul_i32 s{S_T}, s2, {CH*4}
    v_lshl_add_u32 v6, v0, 3, s{S_T}
    v_cmp_gt_u32 vcc, 625, v0
    s_waitcnt lgkmcnt(0)
    s_mov_b64 exec, vcc
    s_cbranch_execz E_nod
    global_load_dwordx2 v[4:5], v6, s[44:45] nt
    """)
    a.label("E_nod")
    a(f"""
    s_mov_b64 exec, -1
    v_lshrrev_b32 v1, 6, v0
    v_mov_b32 v3, 0
    v_readfirstlane_b32 s{S_G}, v1
    v_lshlrev_b32 v2, 2, v0
    ds_write_b32 v2, v3
    ds_write_b32 v2, v3 offset:{A_H}
    """)
    if int(OPT.get("el", 0)):
        a(f"""
        v_lshrrev_b32 v20, 1, v6
        v_add_u32 v7, v6, v20
        s_mov_b64 exec, vcc
        s_cbranch_execz E_nol
        global_load_dwordx3 v[12:14], v7, s[38:39] nt
        global_load_dword v18, v20, s[40:41] nt
        global_load_dwordx2 v[8:9], v6, s[42:43] nt
        """)
        a.label("E_nol")
        a("s_mov_b64 exec, -1")
    a(f"""
    s_mov_b64 {sr(S_DBG)}, s[56:57]
    {"s_mov_b32 s72, s" + str(S_NON) if OPT.get('own') else ""}
    s_or_b32 s{S_T}, s2, s{S_G}
    s_cmp_lg_u32 s{S_T}, 0
    s_cbranch_scc1 M_nonon
    s_lshl_b32 s{S_NON+1}, s{S_NON+1}, 22
    s_or_b32 s{S_NON}, s{S_NON}, 1
    v_mov_b32 v10, s{S_NON}
    v_mov_b32 v11, s{S_NON+1}
    s_mov_b64 exec, 1
    global_store_dwordx2 v3, v[10:11], {sr(S_DBG)} sc1
    s_mov_b64 exec, -1
    """)
    a.label("M_nonon")
    a(f"""
    s_mov_b32 s3, s2
    v_lshrrev_b32 v20, 1, v6
    v_add_u32 v7, v6, v20
    s_waitcnt lgkmcnt(0)
    s_barrier
    """)
    phase_a(a)
    a("s_setprio 0")
    if int(OPT.get("rm", 1)):
        a(f"""
        s_add_u32 s{S_G}, s{S_G}, 4
        s_cmp_ge_u32 s{S_G}, 12
        s_cselect_b32 s{S_T}, 12, 0
        s_sub_u32 s{S_G}, s{S_G}, s{S_T}
        """)
    a(f"""
    v_mov_b32 v{V_JB}, 0
    v_mov_b32 v{V_DONE}, 0
    s_mov_b32 s{S_RND}, 0
    v_and_b32 v{T}, 63, v0
    v_and_b32 v{T+1}, 15, v{T}
    v_lshrrev_b32 v{T+2}, 4, v{T}
    v_lshlrev_b32 v{V_N16}, 4, v{T+1}
    v_lshlrev_b32 v{V_N16+1}, 4, v{T+1}
    v_and_b32 v{V_C}, 3, v{T}
    v_bfe_u32 v{T+3}, v{T}, 2, 2
    s_mul_i32 s{S_T}, s{S_G}, {CAP*16}
    s_add_u32 s{S_T}, s{S_T}, {L_LIST}
    v_lshl_add_u32 v{V_VS}, v{T+2}, 4, s{S_T}
    v_lshl_add_u32 v{V_VC}, v{T+3}, 6, v{V_VS}
    s_cmp_lt_u32 s{S_G}, 4
    s_cselect_b32 s{S_T}, 2, 3
    s_cselect_b32 s{S_T+1}, 0, 12
    s_add_u32 s{S_T+1}, s{S_T+1}, s{S_G}
    v_lshlrev_b32 v{T+2}, s{S_T}, v{T+2}
    v_add_u32 v{T+2}, s{S_T+1}, v{T+2}
    v_cmp_gt_u32 {sr(S_FEX)}, 40, v{T+2}
    v_mul_u32_u24 v{V_PB}, {PSTR}, v{T+2}
    v_and_b32 v{T+2}, 15, v{T+2}
    v_xor_b32 v{T+2}, v{T+2}, v{T+1}
    v_lshl_add_u32 v{V_PB}, v{T+2}, 4, v{V_PB}
    v_add_u32 v{V_PB}, {L_P}, v{V_PB}
    s_mov_b32 s{S_T+7}, {TAGM}
    """)
    L = V_L[0]; L2 = V_L[1]
    if OPT.get("pst"): stamp(a, 12)
    a(f"""
    v_lshrrev_b32 v{T}, 3, v0
    v_lshlrev_b32 v{T}, 2, v{T}
    s_max_u32 s{S_T}, s{S_G}, 4
    s_sub_u32 s{S_T}, s{S_T}, 4
    s_mul_i32 s{S_T}, s{S_T}, {20*1024}
    s_lshl_b32 s{S_T+1}, s2, 2
    s_add_u32 s{S_T}, s{S_T}, s{S_T+1}
    s_add_u32 s{S_T}, s{S_T}, {WS_WFLAG}
    v_and_b32 v{V_ACC+51}, 63, v0
    v_min_u32 v{V_ACC+51}, 19, v{V_ACC+51}
    v_lshl_add_u32 v{V_ACC+51}, v{V_ACC+51}, 10, s{S_T}
    s_waitcnt {"vmcnt(0) " if OPT.get("ack") else ""}lgkmcnt(0)
    """)
    if OPT.get("pst"): stamp(a, 3)
    a("s_barrier")
    for r in range(3):
        a(f"ds_read_b32 v{V_OFF+r}, v{T} offset:{A_OFS+384*r}")
    a(f"""
    s_mov_b64 {sr(S_ACT)}, -1
    s_mov_b32 s{S_FIRST}, 0
    s_waitcnt lgkmcnt(0)
    s_branch M_w0
    """)
    a.label("M_init")
    a(f"""
    v_mov_b32 v{T+1}, 0
    v_lshlrev_b32 v{T}, 2, v0
    s_movk_i32 s{S_T}, {L_P//4}
    v_cmp_gt_u32 vcc, s{S_T}, v0
    s_and_saveexec_b64 {sr(S_TM)}, vcc
    ds_write_b32 v{T}, v{T+1}
    s_mov_b64 exec, {sr(S_TM)}
    s_mov_b64 {sr(S_ACT)}, -1
    s_waitcnt lgkmcnt(0)
    s_barrier
    s_mov_b32 s{S_FIRST}, 1
    """)
    a.label("M_w0")
    stamp(a, 1)
    a.label("M_window")
    L2 = V_ACC + 16
    REM = L2; ADR = L2 + 3; CTR = L2 + 6; RNK = L2 + 15; BAS = L2 + 24; ONE = L2 + 33
    WFV = L2 + 34; WFA = L2 + 35; TCA = 60; L = 100
    MK = [40, 42, 44, 46, 48, 50, 24, 26, 28]
    a(f"""
    v_and_b32 v{T}, 7, v0
    v_add_u32 v{T}, v{T}, v{V_JB}
    v_lshrrev_b32 v{T+1}, 3, v0
    v_mul_u32_u24 v{T+1}, {CHS}, v{T+1}
    v_add_u32 v{T+1}, v{T+1}, v{T}
    v_mov_b32 v{ONE}, 1
    """)
    for r in range(3):
        a(f"""
        v_lshrrev_b32 v{REM+r}, 11, v{V_OFF+r}
        v_sub_u32 v{REM+r}, v{REM+r}, v{T}
        v_and_b32 v{ADR+r}, 0x7ff, v{V_OFF+r}
        v_add_lshl_u32 v{ADR+r}, v{ADR+r}, v{T+1}, 4
        """)
        if r: a(f"v_add_u32 v{ADR+r}, {96*CHS*16*r}, v{ADR+r}")
    for k in range(9):
        r = k % 3; h = k // 3
        a(f"v_cmp_lt_i32 {sr(MK[k])}, {8*h}, v{REM+r}")
    a(f"""
    s_cmp_eq_u32 s{S_FIRST}, 0
    s_cbranch_scc1 M_rload
    """)
    for k in range(9):
        m = sr(MK[k])
        a(f"""
        v_and_b32 v{T+2}, {1<<k}, v{V_DONE}
        v_cmp_eq_u32 vcc, 0, v{T+2}
        s_and_b64 {m}, {m}, vcc
        s_and_b64 {m}, {m}, {sr(S_ACT)}
        """)
    a.label("M_rload")
    a(f"""
    s_or_b64 {sr(S_TM)}, {sr(MK[6])}, {sr(MK[7])}
    s_or_b64 {sr(S_TM)}, {sr(S_TM)}, {sr(MK[8])}
    s_cselect_b32 s{S_ANY2}, 1, 0
    """)
    for k in range(9):
        if k == 6:
            a(f"s_cmp_eq_u32 s{S_ANY2}, 0")
            a("s_cbranch_scc1 M_sl8")
        r = k % 3; h = k // 3
        a(f"""
        s_mov_b64 exec, {sr(MK[k])}
        {"s_cbranch_execz M_sl" + str(k) if k >= 2 else ""}
        buffer_load_dwordx4 {vr(L+4*k,4)}, v{ADR+r}, {sr(S_REC,4)}, 0 offen offset:{128*h} sc1
        """)
        a.label(f"M_sl{k}")
    a(f"""
    s_mov_b64 exec, -1
    s_cmp_lg_u32 s{S_FIRST}, 0
    s_cbranch_scc1 M_nofld
    global_load_dword v{WFV}, v{WFA}, {sr(S_WSB)} sc1
    """)
    a.label("M_nofld")
    a(f"""
    s_mov_b64 {sr(S_PEND)}, 0
    s_mov_b32 s{S_T}, {TAGM}
    s_waitcnt vmcnt(0)
    """)
    for k in range(9):
        if k == 6:
            a(f"s_cmp_eq_u32 s{S_ANY2}, 0")
            a("s_cbranch_scc1 M_sc8")
        a(f"""
        s_mov_b64 exec, {sr(MK[k])}
        {"s_cbranch_execz M_sc" + str(k) if k >= 3 else ""}
        v_and_b32 v{T}, s{S_T}, v{L+4*k+2}
        v_cmp_ne_u32 {sr(S_TM)}, s{S_NON+1}, v{T}
        v_cmp_ne_u32 vcc, s{S_NON}, v{L+4*k+3}
        v_bfe_u32 v{CTR+k}, v{L+4*k+2}, 16, 4
        v_and_b32 v{T}, 15, v{L+4*k+2}
        s_or_b64 {sr(S_PEND)}, {sr(S_PEND)}, {sr(S_TM)}
        s_or_b64 {sr(S_PEND)}, {sr(S_PEND)}, vcc
        v_lshl_or_b32 v{T}, v{CTR+k}, 4, v{T}
        v_lshlrev_b32 v{BAS+k}, 2, v{T}
        """)
        a.label(f"M_sc{k}")
    a(f"""
    s_mov_b64 exec, -1
    s_cmp_eq_u64 {sr(S_PEND)}, 0
    {"s_branch M_rok" if OPT.get("halfst") or OPT.get("noretry") else ""}
    s_cbranch_scc1 M_rok
    s_sleep {OPT.get('slp', 4)}
    s_sub_u32 s{S_SPIN}, s{S_SPIN}, 1
    s_cmp_gt_i32 s{S_SPIN}, 0
    s_cbranch_scc1 M_rload
    """)
    a.label("M_rok")
    if OPT.get("dl13"): a(f"s_sleep {OPT['dl13']}")
    stamp(a, 13)
    a(f"""
    s_cmp_lg_u32 s{S_FIRST}, 0
    s_cbranch_scc1 M_append
    """)
    for k in range(9):
        if k == 6:
            a(f"s_cmp_eq_u32 s{S_ANY2}, 0")
            a("s_cbranch_scc1 M_sa8")
        a(f"""
        s_mov_b64 exec, {sr(MK[k])}
        {"s_cbranch_execz M_sa" + str(k) if k >= 9 else ""}
        ds_add_rtn_u32 v{RNK+k}, v{BAS+k}, v{ONE} offset:{L_CC}
        """)
        a.label(f"M_sa{k}")
    SCN = V_ACC
    a(f"""
    s_mov_b64 exec, -1
    v_cmp_eq_u32 vcc, s{S_NON}, v{WFV}
    s_cmp_eq_u64 vcc, -1
    s_cselect_b32 s{S_WOK}, 1, 0
    s_cbranch_scc0 M_nowpre
    s_cmp_lt_u32 s{S_G}, {16 if OPT.get("db") else 4}
    s_cbranch_scc1 M_nowpre
    """)
    wload(a, WFA, [0, 1, 2, 3, 8, 9, 10, 11])
    a.label("M_nowpre")
    a(f"""
    v_and_b32 v{T}, 63, v0
    v_lshlrev_b32 v{T}, 4, v{T}
    v_cmp_lt_u32 vcc, 0, v{V_C}
    v_cmp_lt_u32 {sr(S_TM)}, 1, v{V_C}
    s_waitcnt lgkmcnt(0)
    s_barrier
    ds_read_b128 {vr(SCN,4)}, v{T} offset:{L_CC}
    """)
    if int(OPT.get("t2m", 0)):
        a(f"""
        s_cmp_ge_u32 s{S_G}, 4
        s_cbranch_scc1 M_t2m
        s_mul_i32 s{S_T+6}, s3, 236
        s_mul_i32 s{S_T+5}, s{S_G}, 59
        s_add_u32 s{S_T+6}, s{S_T+6}, s{S_T+5}
        v_and_b32 v{TCA}, 63, v0
        v_add_u32 v{TCA}, s{S_T+6}, v{TCA}
        v_and_b32 v{TCA+1}, 3, v{TCA}
        v_lshrrev_b32 v{TCA}, 2, v{TCA}
        s_movk_i32 s{S_T+5}, 5000
        v_cmp_gt_u32 {sr(S_PEND)}, s{S_T+5}, v{TCA}
        v_lshlrev_b32 v{TCA+2}, 11, v{TCA}
        v_add_u32 v{TCA+2}, 1024, v{TCA+2}
        v_subrev_u32 v{TCA}, s{S_T+5}, v{TCA}
        v_lshlrev_b32 v{TCA}, 10, v{TCA}
        v_add_u32 v{TCA}, 512, v{TCA}
        v_cndmask_b32 v{TCA}, v{TCA}, v{TCA+2}, {sr(S_PEND)}
        v_lshl_add_u32 v{TCA}, v{TCA+1}, 7, v{TCA}
        s_mov_b32 exec_hi, 0x7ffffff
        buffer_load_dword v{V_TCH}, v{TCA}, {sr(S_X,4)}, 0 offen
        s_mov_b64 exec, -1
        """)
        a.label("M_t2m")
    for n, b in enumerate(OPT.get("t2", "12").replace("x", "")):
        a(f"s_cmp_lg_u32 s{S_G}, {n}")
        a(f"s_cbranch_scc1 M_t2_{n}")
        touch(a, int(b), 0, TCA, V_TCH)
        touch(a, int(b), 1, TCA, TCA+1)
        a.label(f"M_t2_{n}")
    a(f"""
    s_waitcnt lgkmcnt(0)
    v_add_u32 v{SCN+4}, v{SCN}, v{SCN+1}
    v_add_u32 v{SCN+5}, v{SCN+4}, v{SCN+2}
    v_add_u32 v{SCN+6}, v{SCN+5}, v{SCN+3}
    s_nop 1
    v_mov_b32_dpp v{SCN+7}, v{SCN+6} quad_perm:[0,0,1,2] row_mask:0xf bank_mask:0xf
    v_cndmask_b32 v{SCN+7}, 0, v{SCN+7}, vcc
    v_add_u32 v{SCN+7}, v{SCN+7}, v{SCN+6}
    s_nop 1
    v_mov_b32_dpp v{SCN+8}, v{SCN+7} quad_perm:[0,0,0,1] row_mask:0xf bank_mask:0xf
    v_cndmask_b32 v{SCN+8}, 0, v{SCN+8}, {sr(S_TM)}
    v_add_u32 v{SCN+8}, v{SCN+8}, v{SCN+7}
    v_sub_u32 v{SCN+8}, v{SCN+8}, v{SCN+6}
    v_add_u32 v{SCN+9}, v{SCN+8}, v{SCN}
    v_add_u32 v{SCN+10}, v{SCN+8}, v{SCN+4}
    v_add_u32 v{SCN+11}, v{SCN+8}, v{SCN+5}
    s_mov_b32 exec_hi, 0xffff
    ds_write_b128 v{T}, {vr(SCN+8,4)} offset:{L_BASE}
    """)
    for k in range(9):
        if k == 6:
            a(f"s_cmp_eq_u32 s{S_ANY2}, 0")
            a("s_cbranch_scc1 M_sb8")
        a(f"""
        s_mov_b64 exec, {sr(MK[k])}
        {"s_cbranch_execz M_sb" + str(k) if k >= 9 else ""}
        ds_read_b32 v{BAS+k}, v{BAS+k} offset:{L_BASE}
        """)
        a.label(f"M_sb{k}")
    a("s_branch M_place")
    a.label("M_append")
    for k in range(9):
        a(f"""
        s_mov_b64 exec, {sr(MK[k])}
        v_lshlrev_b32 v{T+1}, 2, v{CTR+k}
        v_lshlrev_b32 v{T}, 6, v{CTR+k}
        ds_add_rtn_u32 v{RNK+k}, v{T+1}, v{ONE} offset:{L_ACNT}
        ds_read_b32 v{BAS+k}, v{T} offset:{L_BASE+60}
        ds_read_b32 v{T+2}, v{T} offset:{L_CC+60}
        s_waitcnt lgkmcnt(0)
        v_add_u32 v{BAS+k}, v{BAS+k}, v{T+2}
        """)
    a.label("M_place")
    a(f"""
    s_mov_b64 exec, -1
    s_mov_b64 {sr(S_PEND)}, 0
    s_mov_b32 s{S_T}, {L_LIST}
    s_movk_i32 s{S_T+2}, {CAP}
    s_mov_b32 s{S_FIRST}, 1
    """)
    for k in range(9):
        if k == 6:
            a(f"s_cmp_eq_u32 s{S_ANY2}, 0")
            a("s_cbranch_scc1 M_se8")
        a(f"""
        {"s_cmp_eq_u64 " + sr(MK[k]) + ", 0" if k >= 3 else ""}
        {"s_cbranch_scc1 M_se" + str(k) if k >= 3 else ""}
        v_bfe_u32 v{T+1}, v{L+4*k+2}, 14, 2
        v_and_b32 v{L+4*k+2}, 0x3fff, v{L+4*k+2}
        v_lshlrev_b32 v{L+4*k+3}, v{T+1}, v{ONE}
        v_lshlrev_b32 v{L+4*k+2}, 10, v{L+4*k+2}
        v_mul_u32_u24 v{CTR+k}, s{S_T+2}, v{CTR+k}
        """)
        a.label(f"M_se{k}")
    a("s_waitcnt lgkmcnt(0)")
    for k in range(9):
        if k == 6:
            a(f"s_cmp_eq_u32 s{S_ANY2}, 0")
            a("s_cbranch_scc1 M_sp8")
        m = sr(MK[k])
        a(f"""
        s_mov_b64 exec, {m}
        {"s_cbranch_execz M_sp" + str(k) if k >= 3 else ""}
        v_add_u32 v{RNK+k}, v{RNK+k}, v{BAS+k}
        v_cmp_gt_u32 vcc, s{S_T+2}, v{RNK+k}
        v_add_u32 v{T}, v{CTR+k}, v{RNK+k}
        v_lshl_add_u32 v{CTR+k}, v{T}, 4, s{S_T}
        s_andn2_b64 {sr(S_TM)}, {m}, vcc
        s_or_b64 {sr(S_PEND)}, {sr(S_PEND)}, {sr(S_TM)}
        s_mov_b64 exec, vcc
        ds_write_b128 v{CTR+k}, {vr(L+4*k,4)}
        v_or_b32 v{V_DONE}, {1<<k}, v{V_DONE}
        """)
        a.label(f"M_sp{k}")
    a(f"""
    s_mov_b64 exec, -1
    v_mov_b32 v{T+2}, {L_MORE}
    v_max3_i32 v{T}, v{REM}, v{REM+1}, v{REM+2}
    s_mov_b64 exec, {sr(S_PEND)}
    ds_write_b32 v{T+2}, v{ONE}
    s_andn2_b64 {sr(S_ACT)}, {sr(S_ACT)}, {sr(S_PEND)}
    s_mov_b64 exec, {sr(S_ACT)}
    v_add_u32 v{V_JB}, 24, v{V_JB}
    v_mov_b32 v{V_DONE}, 0
    v_cmp_lt_i32 vcc, 24, v{T}
    s_mov_b64 exec, -1
    s_cmp_lg_u64 vcc, 0
    s_cbranch_scc1 M_window
    s_lshl_b32 s{S_T}, s{S_G}, 6
    v_mov_b32 v{T}, s{S_T}
    s_lshl_b32 s{S_T}, s{S_G}, 2
    v_mov_b32 v{T+1}, s{S_T}
    s_waitcnt lgkmcnt(0)
    """)
    stamp(a, 15)
    if OPT.get("dl15"): a(f"s_sleep {OPT['dl15']}")
    a(f"""
    s_barrier
    ds_read_b32 v{V_A[0]}, v{T} offset:{L_BASE+60}
    ds_read_b32 v{V_A[0]+1}, v{T} offset:{L_CC+60}
    ds_read_b32 v{V_A[0]+2}, v{T+1} offset:{L_ACNT}
    ds_read_b32 v{V_A[0]+3}, v{T+2}
    v_and_b32 v{T}, 63, v0
    v_mov_b32 v{V_B[0]}, {OOBOFF}
    v_mov_b32 v{V_B[0]+1}, 0
    s_mov_b32 s{S_S1}, 0
    s_mov_b32 s{S_S2}, 0
    s_mov_b32 s{S_B1}, 0
    s_mov_b32 s{S_SPIN2}, {1 << 22}
    s_mov_b32 s{S_PLO}, 0x05040100
    s_mov_b32 s{S_PHI}, 0x07060302
    s_waitcnt lgkmcnt(0)
    v_add3_u32 v{T+1}, v{V_A[0]}, v{V_A[0]+1}, v{V_A[0]+2}
    v_readfirstlane_b32 s{S_MORE}, v{V_A[0]+3}
    v_readfirstlane_b32 s{S_T}, v{T+1}
    s_min_u32 s{S_T}, s{S_T}, {CAP}
    s_add_u32 s{S_S}, s{S_T}, 31
    s_lshr_b32 s{S_S}, s{S_S}, 5
    s_max_u32 s{S_S}, s{S_S}, 1
    s_lshl_b32 s{S_T+1}, s{S_S}, 5
    v_add_u32 v{T}, s{S_T}, v{T}
    v_cmp_gt_u32 vcc, s{S_T+1}, v{T}
    s_mul_i32 s{S_T+2}, s{S_G}, {CAP*16}
    s_add_u32 s{S_T+2}, s{S_T+2}, {L_LIST+8}
    v_lshl_add_u32 v{T}, v{T}, 4, s{S_T+2}
    s_mov_b64 exec, vcc
    ds_write_b64 v{T}, {vr(V_B[0],2)}
    s_mov_b64 exec, -1
    s_sub_u32 s{S_NLAST}, s{S_T}, s{S_T+1}
    s_add_u32 s{S_NLAST}, s{S_NLAST}, 35
    s_lshr_b32 s{S_NLAST}, s{S_NLAST}, 2
    """)
    meta_reads(a)
    a(f"""
    s_cmp_gt_u32 s{S_S}, 2
    s_cbranch_scc1 M_nozl
    """)
    for k in range(32):
        a(f"v_mov_b32 v{V_L[0]+k}, 0")
    a(f"""
    s_cmp_ge_u32 s{S_G}, {16 if OPT.get("db") else 4}
    s_cbranch_scc1 M_nozl
    """)
    for k in range(32):
        a(f"v_mov_b32 v{V_L[1]+k}, 0")
    a.label("M_nozl")
    stamp(a, 2)
    setprio(a, 0)
    a(f"""
    s_waitcnt lgkmcnt(0)
    s_cmp_ge_u32 s{S_G}, {16 if OPT.get("db") else 4}
    s_cbranch_scc1 M_sglb
    """)
    stage_x(a, 0, "i", wait=False)
    a.label("M_goi")
    advance(a)
    a(f"s_mov_b32 s{S_FIRST}, 1")
    for p in range(2):
        a.label(f"M_it{p}")
        a(f"""
        s_waitcnt lgkmcnt(0)
        s_cmp_eq_u32 s{S_B1}, 1024
        s_cbranch_scc1 M_w{p}_0
        """)
        if OPT.get("hx"):
            a(f"""
            s_cmp_ge_u32 s{S_B1}, {OPT['hx']}
            s_cbranch_scc1 M_hx{p}
            s_waitcnt vmcnt({OPT.get('hw', 0)})
            """)
            a.label(f"M_hx{p}")
        stage_x(a, p ^ 1, str(p))
        a.label(f"M_go{p}")
        a(f"""
        s_cmp_eq_u32 s{S_FIRST}, 0
        s_cbranch_scc1 M_cn{p}
        """)
        compute(a, p, True)
        a(f"s_branch M_cd{p}")
        a.label(f"M_cn{p}")
        compute(a, p, False)
        a.label(f"M_cd{p}")
        a(f"""
        s_mov_b32 s{S_FIRST}, 0
        s_cmp_lg_u32 s{S_S1}, 0
        s_cbranch_scc1 M_nofl{p}
        s_mov_b32 s{S_FIRST}, 1
        s_call_b64 {sr(S_RET)}, M_flush
        s_cmp_eq_u32 s{S_B1}, 1024
        s_cbranch_scc1 M_end
        """)
        a.label(f"M_nofl{p}")
        advance(a)
        if p == 1:
            a("s_branch M_it0")
    def prep():
        for i in range(0, 8, 2):
            a(f"v_pk_add_f32 {vr(V_IX+i,2)}, {vr(V_IX+i,2)}, {vr(V_N16,2)}")
        a(f"""
        v_bfe_i32 v{V_OH}, v{V_OH}, v{V_C}, 1
        v_bfe_i32 v{V_OH+1}, v{V_OH+1}, v{V_C}, 1
        v_and_b32 v{V_OH}, v{V_OH}, v{V_CA}
        v_and_b32 v{V_OH+1}, v{V_OH+1}, v{V_CA}
        """)
    def load(i):
        a(f"buffer_load_dwordx4 {vr(V_L[0]+4*i,4)}, v{V_IX+i}, {sr(S_X,4)}, s{S_B1} offen")
    a.label("M_sglb")
    a(f"s_mov_b32 s{S_FLP}, 0")
    prep()
    tick(a, None)
    a.label("M_its")
    a(f"""
    s_add_u32 s{S_S2}, s{S_S1}, 1
    s_cmp_eq_u32 s{S_S2}, s{S_S}
    s_cbranch_scc1 M_parts
    """)
    a.label("M_fulls")
    for i in range(8): load(i)
    a("s_branch M_pms")
    a.label("M_parts")
    a(f"""
    s_mov_b32 s{S_S2}, 0
    s_cmp_eq_u32 s{S_NLAST}, 8
    s_cbranch_scc1 M_fulls
    """)
    for i in range(7):
        a(f"s_cmp_eq_u32 s{S_NLAST}, {i}")
        a(f"s_cbranch_scc1 M_pms")
        load(i)
    a.label("M_pms")
    tick(a, 1)
    a(f"""
    ds_read_b64_tr_b16 {vr(V_A[0],2)}, v{V_OH}
    ds_read_b64_tr_b16 {vr(V_A[0]+2,2)}, v{V_OH+1} offset:256
    """)
    meta_reads(a)
    a(f"""
    s_cmp_eq_u32 s{S_FLP}, 0
    s_cbranch_scc1 M_nofls
    """)
    a.label("M_dofl")
    a(f"""
    s_call_b64 {sr(S_RET)}, M_flush
    s_cmp_eq_u32 s{S_B1}, 1024
    s_cbranch_scc1 M_end
    s_cmp_lg_u32 s{S_B1}, {OPT.get("midb", 512)}
    s_cbranch_scc1 M_nofls
    s_cmp_lg_u32 s{S_MORE}, 0
    s_cbranch_scc1 M_nofls
    """)
    mid_stage(a)
    a.label("M_nofls")
    a("s_waitcnt lgkmcnt(0)")
    prep()
    tick(a, 13)
    if OPT.get("prof"):
        a("s_waitcnt vmcnt(0)")
        tick(a, 15)
        a(f"s_add_u32 s{S_ST+8}, s{S_ST+8}, 1")
    a(f"""
    s_cmp_eq_u32 s{S_S1}, 0
    s_mov_b32 s{S_S1}, s{S_S2}
    s_waitcnt vmcnt(0)
    s_cbranch_scc0 M_cns
    """)
    compute(a, 0, True)
    a("s_branch M_cds")
    a.label("M_cns")
    compute(a, 0, False)
    a.label("M_cds")
    tick(a, 3)
    a(f"""
    s_cmp_eq_u32 s{S_S2}, 0
    s_cselect_b32 s{S_FLP}, 256, 0
    s_add_u32 s{S_B1}, s{S_B1}, s{S_FLP}
    s_cmp_eq_u32 s{S_B1}, 1024
    s_cbranch_scc0 M_its
    s_cmp_lg_u32 s{S_MORE}, 0
    s_cbranch_scc1 M_dofl
    """)
    wload(a, V_T+2, [12, 13, 14, 15, 16, 17, 18, 19])
    a("s_branch M_dofl")
    flush_sub(a)
    a.label("M_end")
    a(f"""
    s_cmp_eq_u32 s{S_MORE}, 0
    s_cbranch_scc1 M_gemm
    s_mov_b32 s{S_RND}, 1
    s_waitcnt lgkmcnt(0)
    s_barrier
    s_branch M_init
    """)
    a.label("M_gemm")
    if OPT.get("nogemm"): a("s_endpgm")
    gemm(a)
    a.label("M_done")
    a("s_endpgm")

OACC = {(0, 0): 8, (1, 0): 20, (2, 0): 36}
O1 = [(0, 1), (0, 2), (0, 3), (1, 1), (1, 2), (1, 3), (2, 1), (2, 3)]
for n_, k_ in enumerate(O1): OACC[k_] = 136 + 4*n_

def wflag_spin(a, tag, va, vd):
    a(f"""
    s_sub_u32 s{S_T}, s{S_G}, 4
    s_mul_i32 s{S_T}, s{S_T}, {20*1024}
    s_lshl_b32 s{S_T+1}, s2, 2
    s_add_u32 s{S_T}, s{S_T}, s{S_T+1}
    s_add_u32 s{S_T}, s{S_T}, {WS_WFLAG}
    v_and_b32 v{va}, 63, v0
    v_min_u32 v{va}, 19, v{va}
    v_lshl_add_u32 v{va}, v{va}, 10, s{S_T}
    """)
    a.label(f"M_wfchk{tag}")
    a(f"""
    global_load_dword v{vd}, v{va}, {sr(S_WSB)} sc1
    s_waitcnt vmcnt(0)
    v_cmp_eq_u32 vcc, s{S_NON}, v{vd}
    s_cmp_eq_u64 vcc, -1
    s_cbranch_scc1 M_wfld{tag}
    s_sub_u32 s{S_SPIN}, s{S_SPIN}, 1
    s_cmp_gt_i32 s{S_SPIN}, 0
    s_cbranch_scc1 M_wfchk{tag}
    """)
    a.label(f"M_wfld{tag}")

def mid_stage(a):
    B0 = 7; DL = 19; X0 = 12; X2 = 13; XP = 14; TT = 15
    bufs = [40, 44, 64, 68, 72, 76]
    TR = {k: 48 + 4*n for n, k in enumerate(O1[4:])}
    a(f"""
    s_cmp_lg_u32 s{S_WOK}, 0
    s_cbranch_scc1 M_midw
    """)
    wflag_spin(a, "m", X0, X2)
    wload(a, X0, [0, 1, 2, 3, 8, 9, 10, 11])
    a(f"""
    s_waitcnt vmcnt(0)
    s_mov_b32 s{S_WOK}, 1
    """)
    a.label("M_midw")
    a(f"""
    v_mov_b32 v{XP}, {L_FC0}
    ds_read_b32 v{TT}, v{XP}
    v_and_b32 v{X0}, 15, v0
    v_bfe_u32 v{X2}, v0, 4, 2
    v_mul_u32_u24 v{DL}, {PSTR}, v{X0}
    v_xor_b32 v{B0}, v{X2}, v{X0}
    v_lshl_add_u32 v{B0}, v{B0}, 4, v{DL}
    v_add_u32 v{B0}, {L_P}, v{B0}
    v_lshrrev_b32 v{DL}, 3, v{X0}
    v_mul_i32_i24 v{DL}, {768 - 8*PSTR}, v{DL}
    """)
    a.label("M_midf")
    a(f"""
    s_waitcnt lgkmcnt(0)
    v_readfirstlane_b32 s{S_T}, v{TT}
    s_cmp_ge_u32 s{S_T}, {NG}
    s_cbranch_scc1 M_midg
    s_sleep 1
    ds_read_b32 v{TT}, v{XP}
    s_sub_u32 s{S_SPIN2}, s{S_SPIN2}, 1
    s_cmp_gt_i32 s{S_SPIN2}, 0
    s_cbranch_scc1 M_midf
    s_waitcnt lgkmcnt(0)
    """)
    a.label("M_midg")
    steps = []
    for k4 in range(4):
        for t in range(3): steps.append((t, 0, 0, k4, k4))
    for k4 in range(4):
        for (t, o) in O1[4:] + O1[:4]: steps.append((t, o, comp011(o-1), k4, 8 + k4))
    NBF = len(bufs)
    cur = [None]
    def rd(n):
        t, o, c, k4, ws = steps[n]
        key = (k4, ws >= 8)
        if cur[0] != key:
            cur[0] = key
            a(f"v_xor_b32 v{X0}, {64*k4}, v{B0}")
            a(f"v_add_u32 v{X2}, {32*PSTR}, v{X0}")
            if ws >= 8: a(f"v_add_u32 v{XP}, v{X2}, v{DL}")
        base = X0 if t < 2 else (XP if o == 1 else X2)
        off = c*256 + (16*PSTR if t == 1 else 0)
        a(f"ds_read_b128 {vr(bufs[n % NBF],4)}, v{base} offset:{off}")
    for n in range(NBF - 1): rd(n)
    for n in range(len(steps)):
        t, o, c, k4, ws = steps[n]
        if n + NBF - 1 < len(steps): rd(n + NBF - 1)
        a(f"s_waitcnt lgkmcnt({min(NBF - 1, len(steps) - 1 - n)})")
        acc = vr(TR.get((t, o), OACC[(t, o)]), 4)
        a(f"v_mfma_f32_16x16x32_bf16 {acc}, {vr(WREG[ws],4)}, {vr(bufs[n % NBF],4)}, {'0' if k4 == 0 else acc}")
    for k in O1[4:]:
        for r in range(4): a(f"v_mov_b32 v{OACC[k]+r}, v{TR[k]+r}")

def gemm(a):
    BB = 40; NBB = 6
    PKB = 80; PKO = 0; T2B = 76; LN = 16; OA = 17; WA = 18
    def store_row(rho_s, vb, light):
        a(f"""
        s_mul_i32 s{S_T}, s{rho_s}, {OSTR}
        s_add_u32 s{S_T}, s{S_T}, {L_LIST}
        v_add_u32 v{WA}, s{S_T}, v{LN}
        ds_read_b128 {vr(vb,4)}, v{WA}
        """)
    def row_off(rho_s, dst, light):
        if light:
            a(f"""
            s_sub_u32 s{S_T}, s{rho_s}, 16
            s_lshr_b32 s{S_T+1}, s{S_T}, 3
            s_and_b32 s{S_T}, s{S_T}, 7
            s_add_u32 s{S_T}, s{S_T}, 4
            """)
        else:
            a(f"""
            s_lshr_b32 s{S_T+1}, s{rho_s}, 2
            s_and_b32 s{S_T}, s{rho_s}, 3
            """)
        a(f"""
        s_mul_i32 s{S_T+1}, s{S_T+1}, 12
        s_add_u32 s{S_T}, s{S_T}, s{S_T+1}
        s_lshl_b32 s{S_T}, s{S_T}, 18
        s_lshl_b32 s{S_T+1}, s3, 10
        s_add_u32 s{S_T}, s{S_T}, s{S_T+1}
        v_add_u32 v{dst}, s{S_T}, v{LN}
        """)
    a(f"""
    s_setprio {OPT.get("pg", 0)}
    s_waitcnt lgkmcnt(0)
    v_and_b32 v{LN}, 63, v0
    s_cmp_ge_u32 s{S_G}, 4
    s_cbranch_scc1 M_gw
    v_lshlrev_b32 v{LN}, 4, v{LN}
    """)
    for k in range(6):
        a(f"s_add_u32 s{S_T+3}, s{S_G}, {16 + 4*k}")
        row_off(S_T+3, 40 + k, True)
    a(f"""
    s_mul_i32 s{S_T}, s{S_G}, {OSTR}
    s_add_u32 s{S_T}, s{S_T}, {L_LIST + 16*OSTR}
    v_add_u32 v{WA}, s{S_T}, v{LN}
    s_waitcnt lgkmcnt(0)
    s_barrier
    """)
    for k in range(6):
        a(f"ds_read_b128 {vr(48+4*k,4)}, v{WA} offset:{4*OSTR*k}")
    for k in range(6):
        a(f"s_waitcnt lgkmcnt({5-k})")
        a(f"buffer_store_dwordx4 {vr(48+4*k,4)}, v{40+k}, {sr(S_OUT,4)}, 0 offen {fl('of')}")
    a("s_branch M_st")
    a.label("M_gw")
    a(f"""
    s_waitcnt lgkmcnt(0)
    """)
    late = [12, 13, 14, 15, 16, 17, 18, 19, 4, 5, 6, 7]
    wload(a, WA, [4, 5, 6, 7])
    a(f"""
    v_mov_b32 v14, {L_FC}
    ds_read_b32 v15, v14
    v_and_b32 v12, 15, v{LN}
    v_lshrrev_b32 v13, 4, v{LN}
    v_mul_u32_u24 v{OA}, {PSTR}, v12
    v_xor_b32 v1, v13, v12
    v_lshl_add_u32 v1, v1, 4, v{OA}
    v_add_u32 v1, {L_P}, v1
    v_xor_b32 v2, 64, v1
    v_xor_b32 v3, 128, v1
    v_xor_b32 v4, 192, v1
    """)
    setup = [f"v_add_u32 v{T2B+k4}, {32*PSTR}, v{1+k4}" for k4 in range(4)]
    setup += [f"v_lshrrev_b32 v{PKO}, 3, v12", f"v_mul_i32_i24 v{PKB+3}, {768 - 8*PSTR}, v{PKO}"]
    setup += [f"v_add_u32 v{PKB+k4}, v{T2B+k4}, v{PKB+3}" for k4 in range(4)]
    setup += [f"s_lshl_b32 s{S_T+1}, s{S_G}, 5", f"s_add_u32 s{S_T+1}, s{S_T+1}, {L_LIST - 128}",
              f"v_mul_u32_u24 v{OA}, {OSTR}, v12", f"v_lshl_add_u32 v{OA}, v13, 3, v{OA}", f"v_add_u32 v{OA}, s{S_T+1}, v{OA}",
              f"v_mul_i32_i24 v{PKO}, {256 - 8*OSTR}, v{PKO}", f"v_add_u32 v{PKO}, v{PKO}, v{OA}",
              f"s_mov_b32 s{S_T+2}, 0xbfb8aa3b", f"v_lshlrev_b32 v{LN}, 4, v{LN}"]
    for x in setup: a(x)
    def spin(tag, off, n):
        a.label(f"M_fcw{tag}")
        a(f"""
        s_waitcnt lgkmcnt(0)
        v_readfirstlane_b32 s{S_T}, v15
        s_cmp_ge_u32 s{S_T}, {n}
        s_cbranch_scc1 M_fcok{tag}
        s_sleep 1
        ds_read_b32 v15, v14 offset:{off}
        s_sub_u32 s{S_SPIN2}, s{S_SPIN2}, 1
        s_cmp_gt_i32 s{S_SPIN2}, 0
        s_cbranch_scc1 M_fcw{tag}
        s_waitcnt lgkmcnt(0)
        """)
        a.label(f"M_fcok{tag}")
    spin("a", 0, NG)
    if not OPT.get("pst"): stamp(a, 12)
    st1 = []
    for k4 in range(4):
        for t in range(3):
            st1.append((t, 1, comp101(0), k4, 12 + k4))
            st1.append((t, 2, comp101(1), k4, 12 + k4))
    for k4 in range(4):
        for t in range(3):
            st1.append((t, 3, comp111(2), k4, 16 + k4))
    st1 = [x for x in st1 if not (x[0] == 2 and x[1] == 2)]
    def late_steps(tiles):
        st = []
        for k4 in range(4):
            for t in tiles: st.append((t, 0, 1, k4, 4 + k4))
        for t in tiles:
            for k4 in range(4):
                st.append((t, 3, comp101(2), k4, 12 + k4))
                st.append((t, 1, comp111(0), k4, 16 + k4))
                st.append((t, 2, comp111(1), k4, 16 + k4))
        return [x for x in st if not (x[0] == 2 and x[1] == 2)]
    started = set()
    wmax = [-1]
    def run(steps, fill):
        q = []
        def rd(n):
            t, o, c, k4, ws = steps[n]
            base = (1 + k4) if t < 2 else ((PKB + k4) if o == 1 else (T2B + k4))
            off = c*256 + (16*PSTR if t == 1 else 0)
            a(f"ds_read_b128 {vr(BB+4*(n%NBB),4)}, v{base} offset:{off}")
            q.append(n)
        n_steps = len(steps)
        for n in range(NBB - 1): rd(n)
        for n in range(n_steps):
            t, o, c, k4, ws = steps[n]
            if n + NBB - 1 < n_steps: rd(n + NBB - 1)
            pend = len(q) - 1 - q.index(n)
            assert pend <= 15
            idx = late.index(ws) if ws in late else -1
            w = f"lgkmcnt({pend})"
            if idx > wmax[0]:
                w = f"vmcnt({len(late) - 1 - idx}) " + w
                wmax[0] = idx
            a("s_waitcnt " + w)
            acc = vr(OACC[(t, o)], 4)
            first = False
            a(f"v_mfma_f32_16x16x32_bf16 {acc}, {vr(WREG[ws],4)}, {vr(BB+4*(n%NBB),4)}, {'0' if first else acc}")
            for x in fill.get(n, []):
                a(x)
                if x.startswith("ds_"): q.append(-1)
    GT = 64
    def gate_ops(t):
        A0 = OACC[(t, 0)]; g = GT + 4*t
        o = [f"v_mul_f32 v{g+r}, s{S_T+2}, v{A0+r}" for r in range(4)]
        o += [f"v_exp_f32 v{g+r}, v{g+r}" for r in range(4)]
        o += [f"v_cvt_pk_bf16_f32 v{A0}, v{A0}, v{A0+1}", f"v_cvt_pk_bf16_f32 v{A0+1}, v{A0+2}, v{A0+3}"]
        o += [f"ds_write_b64 v{OA}, {vr(A0,2)} offset:{16*OSTR*t}"]
        o += [f"v_add_f32 v{g+r}, 1.0, v{g+r}" for r in range(4)]
        o += [f"v_rcp_f32 v{g+r}, v{g+r}" for r in range(4)]
        if t == 2:
            o += ["s_nop 1"]
            o += [f"v_mov_b32_dpp v{g+r}, v{g+r} row_shr:8 row_mask:0xf bank_mask:0xc" for r in range(4)]
        return o
    def fin_ops(t):
        o = []
        for i in ([2, 0, 1] if t < 2 else [2, 0]):
            B0 = OACC[(t, 1 + i)]
            o += [f"v_pk_mul_f32 {vr(B0+r,2)}, {vr(B0+r,2)}, {vr(GT+4*t+r,2)}" for r in (0, 2)]
            o += [f"v_cvt_pk_bf16_f32 v{B0}, v{B0}, v{B0+1}", f"v_cvt_pk_bf16_f32 v{B0+1}, v{B0+2}, v{B0+3}"]
            if t == 2 and i == 0: o += [f"ds_write_b64 v{PKO}, {vr(B0,2)} offset:{32*OSTR + 256}"]
            else: o += [f"ds_write_b64 v{OA}, {vr(B0,2)} offset:{16*OSTR*t + 256*(i+1)}"]
        return o
    def spread(fill, ops, n0, n1):
        cnt = n1 - n0
        for j, op in enumerate(ops):
            fill.setdefault(n0 + j * cnt // len(ops), []).append(op)
    f1 = {}
    f1.setdefault(len(st1) - 4, []).append(f"ds_read_b32 v15, v14 offset:4")
    run(st1, f1)
    a("s_setprio 0")
    spin("b", 4, 8)
    f2 = {}
    spread(f2, gate_ops(1) + gate_ops(2), 11, 23)
    spread(f2, fin_ops(1), 23, 27)
    run(late_steps([1, 2]), f2)
    a("s_nop 5")
    for x in fin_ops(2): a(x)
    a("s_waitcnt lgkmcnt(0)")
    if not OPT.get("pst"): stamp(a, 14)
    a("s_barrier")
    stamp(a, 7)
    f3 = {}
    spread(f3, gate_ops(0), 7, 15)
    run(late_steps([0]), f3)
    a("s_nop 5")
    for x in fin_ops(0): a(x)
    a.label("M_st")
    row_off(S_G, 12, False)
    a(f"""
    s_add_u32 s{S_T+3}, s{S_G}, 8
    """)
    row_off(S_T+3, 13, False)
    a(f"""
    s_mul_i32 s{S_T}, s{S_G}, {OSTR}
    s_add_u32 s{S_T}, s{S_T}, {L_LIST}
    v_add_u32 v{WA}, s{S_T}, v{LN}
    s_waitcnt lgkmcnt(0)
    s_barrier
    """)
    stamp(a, 8)
    a(f"""
    ds_read_b128 v[72:75], v{WA}
    s_and_b32 s{S_T}, s{S_G}, 12
    s_cmp_lg_u32 s{S_T}, 4
    s_cbranch_scc1 M_st3
    ds_read_b128 v[76:79], v{WA} offset:{8*OSTR}
    s_waitcnt lgkmcnt(0)
    buffer_store_dwordx4 v[76:79], v13, {sr(S_OUT,4)}, 0 offen {fl('of')}
    """)
    a.label("M_st3")
    a(f"""
    s_waitcnt lgkmcnt(0)
    buffer_store_dwordx4 v[72:75], v12, {sr(S_OUT,4)}, 0 offen {fl('of')}
    """)
    stamp_dump(a)

def kd(a, name, vg, sg):
    acc = (vg + 3) // 4 * 4
    a.raw(f""".p2align 6
.amdhsa_kernel {name}
  .amdhsa_next_free_vgpr {vg}
  .amdhsa_next_free_sgpr {sg}
  .amdhsa_accum_offset {acc}
  .amdhsa_group_segment_fixed_size 0
  .amdhsa_kernarg_size 96
  .amdhsa_user_sgpr_count 2
  .amdhsa_user_sgpr_kernarg_segment_ptr 1
  .amdhsa_system_sgpr_workgroup_id_x 1
  .amdhsa_float_denorm_mode_32 3
.end_amdhsa_kernel""")

def main():
    global DBG
    OPT.update(dict(x.split("=") for x in sys.argv[2:]))
    DBG = bool(int(OPT.get("dbg", 0)))
    a = Asm()
    ref = open(f"cdna_kernels/{NAME}.s.ref").read().split("\n")
    for ln in ref:
        if ln.startswith(";") and "@launch" not in ln and "Override" not in ln and "grid=ceil" not in ln:
            a.raw(ln)
    a.raw(f"; @launch kernel={NAME}_kernel grid=({NB},1,1) block=({NT},1,1) lds={L_TOT}")
    a.raw('.amdgcn_target "amdgcn-amd-amdhsa--gfx950"')
    a.raw(".text")
    gen_main(a)
    a.raw('.section .rodata,"a"')
    kd(a, NAME + "_kernel", NVG, 102 if DBG else (74 if OPT.get('spinat') else 70))
    open(sys.argv[1], "w").write(a.text())

main()
```

```python
import sys

NAME = "gather_scatter__tensor_product_equiv_equiformer__graph"
N = 10000
E = 320000
NB = 256
CH = 1250
CHS = 1280
WS_OFF = 0x500000
WS_WF = 0x600000
WS_WFLAG = 0x640000
WS_PF32 = 0x1000000
SPIN_MAX = 1 << 18
TAGM = 0xffc00000

NG = 12
NT = NG * 64
CAP = 224
PSTR = 2816
L_CC = 512
L_BASE = L_CC + NG * 64
L_ACNT = L_BASE + NG * 64
L_MORE = L_ACNT + 60
L_NONCE = L_ACNT + 64
L_FC3 = L_ACNT + 84
L_FC0 = L_ACNT + 88
L_FC = L_ACNT + 80
OSTR = 1040
L_P = L_ACNT + 256
L_LIST = L_P + 40 * PSTR
L_TOT = L_LIST + NG * CAP * 16
assert L_TOT <= 163840 and L_P % 256 == 0
OOBOFF = 0x00FFFC00

OPT = {}
DBG = False

class Asm:
    def __init__(self):
        self.l = []
    def __call__(self, s):
        for x in s.split("\n"):
            x = x.strip()
            if x:
                self.l.append("    " + x)
    def label(self, s):
        self.l.append(s + ":")
    def raw(self, s):
        self.l.append(s)
    def text(self):
        return "\n".join(self.l) + "\n"

def vr(a, n):
    return f"v[{a}:{a+n-1}]"
def sr(a, n=2):
    return f"s[{a}:{a+n-1}]"
def fl(k):
    return OPT.get(k, {'of': 'sc1'}.get(k, '')).replace('+', ' ')

V_C = 1; V_N16 = 2; V_VS = 4; V_VC = 5; V_PB = 6; V_JB = 7; V_DONE = 8
V_OFF = 9
V_T = 12
V_OH = 16; V_CA = 18; V_TCH = 19
V_SC = 20; V_IX = 24
V_A = [32, 36]
V_B = [40, 44]
V_ACC = 48
V_SV = 80
V_L = [104, 136]
NVG = 168
S_X = 4; S_OUT = 8; S_REC = 12; S_OFFS = 16; S_WF = 20
S_G = 22; S_S = 23; S_S1 = 24; S_B1 = 25; S_S2 = 26; S_PLO = 27; S_PHI = 28; S_NLAST = 29
S_RND = 30; S_MORE = 31; S_T = 32
S_M = 40
S_IN = 40
S_ACT = 52; S_PEND = 54; S_TM = 56; S_FEX = 58; S_RET = 60; S_HI = 62; S_FIRST = 63
S_NON = 64; S_DBG = 66; S_WSB = 68; S_SPIN = 0; S_WOK = 1; S_FLP = 63; S_ANY2 = 23; S_SPIN2 = 50
S_ST = 70

def pa(a, k):
    if OPT.get("pa"): a(f"s_memtime {sr(S_ST+2*k)}")
spn = [0]
def stamp(a, k, real=False):
    if OPT.get("spinat") and int(OPT["spinat"]) == k:
        spn[0] += 1
        a.label(f"D_spin{spn[0]}")
        a(f"""
        s_memrealtime s[70:71]
        s_waitcnt lgkmcnt(0)
        s_sub_u32 s70, s70, s{72 if OPT.get('own') else S_NON}
        s_cmp_lt_u32 s70, {OPT["spint"]}
        s_cbranch_scc1 D_spin{spn[0]}
        """)
    if OPT.get("pa") and k in (4, 5, 6, 7, 8, 14): return
    if OPT.get("prof") and k in (1, 13, 15, 3, 4, 5): return
    if DBG:
        a(f"s_mem{'realtime' if real else 'time'} {sr(S_ST+2*k)}")
def stamp_dump(a):
    if OPT.get("spinat") == "9":
        a("s_waitcnt vmcnt(0)")
        stamp(a, 9)
    if DBG:
        a("s_waitcnt lgkmcnt(0) vmcnt(0)")
        stamp(a, 9)
        stamp(a, 11, True)
        a("s_waitcnt lgkmcnt(0)")
        if OPT.get("hwid"):
            a(f"s_getreg_b32 s{S_ST+26}, hwreg(HW_REG_HW_ID)")
            a(f"s_mov_b32 s{S_ST+27}, 0")
        a(f"s_mul_i32 s{S_T}, s2, {NG}")
        a(f"s_add_u32 s{S_T}, s{S_T}, s{S_G}")
        a(f"s_lshl_b32 s{S_T}, s{S_T}, 7")
        a(f"s_add_u32 s{S_T}, s{S_T}, 0x800000")
        a(f"v_mov_b32 v1, s{S_T}")
        for k in range(0, 32, 2):
            a(f"v_mov_b32 v2, s{S_ST+k}")
            a(f"v_mov_b32 v3, s{S_ST+k+1}")
            a(f"global_store_dwordx2 v1, v[2:3], {sr(S_WSB)} offset:{4*k}")
            a("s_nop 1")

def comp011(i): return 2 + 3*i
def comp101(i): return 3 + 3*i
def comp111(i): return 4 + 3*i

def touch(a, beta, part, va, vd):
    a(f"""
    s_mul_i32 s{S_T+6}, s3, 79
    s_add_u32 s{S_T+6}, s{S_T+6}, {64*part}
    v_and_b32 v{va}, 63, v0
    v_add_u32 v{va}, s{S_T+6}, v{va}
    v_and_b32 v{vd}, 1, v{va}
    v_lshrrev_b32 v{va}, 1, v{va}
    v_lshlrev_b32 v{va}, 10, v{va}
    v_lshl_add_u32 v{va}, v{vd}, 7, v{va}
    """)
    if part: a("s_mov_b64 exec, 0x7fff")
    a(f"buffer_load_dword v{vd}, v{va}, {sr(S_X,4)}, 0 offen offset:{256*beta}")
    if part: a("s_mov_b64 exec, -1")

WREG = {}
for n_, ks_ in enumerate([0, 1, 2, 3, 8, 9, 10, 11]): WREG[ks_] = 136 + 4*n_
for n_, ks_ in enumerate([4, 5, 6, 7, 12, 13, 14, 15, 16, 17, 18, 19]): WREG[ks_] = 88 + 4*n_
def wload(a, va, kss):
    a(f"""
    s_sub_u32 s{S_T+6}, s{S_G}, 4
    s_mul_i32 s{S_T+6}, s{S_T+6}, {20*1024}
    v_and_b32 v{va}, 63, v0
    v_lshl_add_u32 v{va}, v{va}, 4, s{S_T+6}
    """)
    cur = 0
    for ks in kss:
        blk = ks // 4 * 4096
        if blk != cur:
            if blk > cur: a(f"v_add_u32 v{va}, {blk - cur}, v{va}")
            else: a(f"v_subrev_u32 v{va}, {cur - blk}, v{va}")
            cur = blk
        a(f"global_load_dwordx4 {vr(WREG[ks],4)}, v{va}, {sr(S_WF)} offset:{1024*(ks%4)} sc1")

def meta_reads(a):
    a(f"""
    s_lshl_b32 s{S_T}, s{S_S2}, 9
    v_add_u32 v{V_T}, s{S_T}, v{V_VS}
    v_add_u32 v{V_CA}, s{S_T}, v{V_VC}
    """)
    for i in range(0, 8, 2):
        a(f"ds_read2_b32 {vr(V_IX+i,2)}, v{V_T} offset0:{16*i+2} offset1:{16*(i+1)+2}")
    a(f"ds_read2_b32 {vr(V_OH,2)}, v{V_CA} offset0:3 offset1:67")

def stage_x(a, p, tag, wait=True):
    L = V_L[p]; A = V_A[p]
    for i in range(0, 8, 2):
        a(f"v_pk_add_f32 {vr(V_IX+i,2)}, {vr(V_IX+i,2)}, {vr(V_N16,2)}")
    a(f"""
    v_bfe_i32 v{V_OH}, v{V_OH}, v{V_C}, 1
    v_bfe_i32 v{V_OH+1}, v{V_OH+1}, v{V_C}, 1
    s_add_u32 s{S_S2}, s{S_S1}, 1
    v_and_b32 v{V_OH}, v{V_OH}, v{V_CA}
    v_and_b32 v{V_OH+1}, v{V_OH+1}, v{V_CA}
    s_cmp_eq_u32 s{S_S2}, s{S_S}
    ds_read_b64_tr_b16 {vr(A,2)}, v{V_OH}
    ds_read_b64_tr_b16 {vr(A+2,2)}, v{V_OH+1} offset:256
    s_cbranch_scc1 M_part{tag}
    """)
    def load(i):
        a(f"buffer_load_dwordx4 {vr(L+4*i,4)}, v{V_IX+i}, {sr(S_X,4)}, s{S_B1} offen")
    a.label(f"M_full{tag}")
    for i in range(8):
        load(i)
    meta_reads(a)
    if wait: a("s_waitcnt vmcnt(8)")
    a(f"s_branch M_go{tag}")
    a.label(f"M_part{tag}")
    a(f"""
    s_mov_b32 s{S_S2}, 0
    s_cmp_eq_u32 s{S_NLAST}, 8
    s_cbranch_scc1 M_full{tag}
    """)
    for i in range(7):
        a(f"s_cmp_eq_u32 s{S_NLAST}, {i}")
        a(f"s_cbranch_scc1 M_w{tag}_{i}")
        load(i)
    for i in range(7, -1, -1):
        a.label(f"M_w{tag}_{i}")
        if wait:
            a(f"s_waitcnt vmcnt({i})")
            if i > 0: a(f"s_branch M_pm{tag}")
    a.label(f"M_pm{tag}")
    meta_reads(a)

def advance(a):
    a(f"""
    s_mov_b32 s{S_S1}, s{S_S2}
    s_cmp_eq_u32 s{S_S2}, 0
    s_cselect_b32 s{S_T}, 256, 0
    s_add_u32 s{S_B1}, s{S_B1}, s{S_T}
    """)

def compute(a, p, first):
    L = V_L[p]; A = V_A[p]
    def perms(j):
        B = V_B[j % 2]
        sel = S_PHI if j % 2 else S_PLO
        for q in range(4):
            if OPT.get("noperm"): continue
            a(f"v_perm_b32 v{B+q}, v{L+4*(2*q+1)+j//2}, v{L+4*(2*q)+j//2}, s{sel}")
    perms(0)
    for j in range(8):
        if j + 1 < 8:
            perms(j + 1)
        else:
            a("s_nop 1")
        acc = vr(V_ACC+4*j,4)
        if OPT.get("nomfma"): continue
        Bop = vr(L+4*j,4) if OPT.get("noperm") else vr(V_B[j%2],4)
        if OPT.get("swap"): a(f"v_mfma_f32_16x16x32_bf16 {acc}, {Bop}, {vr(A,4)}, {'0' if first else acc}")
        elif OPT.get("m4"):
            a(f"v_mfma_f32_4x4x4_16b_bf16 {acc}, {vr(A,2)}, {vr(V_B[j%2],2)}, {'0' if first else acc}")
            a(f"v_mfma_f32_4x4x4_16b_bf16 {acc}, {vr(A+2,2)}, {vr(V_B[j%2]+2,2)}, {acc}")
        else: a(f"v_mfma_f32_16x16x32_bf16 {acc}, {vr(A,4)}, {Bop}, {'0' if first else acc}")

wc_n = [0]
def write_comp(a, comp, regs):
    n = wc_n[0]; wc_n[0] += 1
    TM = V_B[0]
    a(f"""
    s_or_b32 s{S_T}, s{S_RND}, s{S_MORE}
    s_cmp_eq_u32 s{S_T}, 0
    s_cbranch_scc1 M_wc{n}
    s_mul_i32 s{S_T}, s3, {NG}
    s_add_u32 s{S_T}, s{S_T}, s{S_G}
    s_mul_i32 s{S_T}, s{S_T}, {11*2048}
    s_add_u32 s{S_T}, s{S_T}, {WS_PF32 + comp*2048}
    v_and_b32 v{V_T}, 63, v0
    v_lshl_add_u32 v{V_T}, v{V_T}, 2, s{S_T}
    s_waitcnt lgkmcnt(0)
    s_cmp_eq_u32 s{S_RND}, 0
    s_cbranch_scc1 M_wd{n}
    """)
    for j in range(8):
        a(f"global_load_dword v{TM+j}, v{V_T}, {sr(S_WSB)} offset:{256*j} sc1")
    a("s_waitcnt vmcnt(0)")
    for j in range(8):
        a(f"v_add_f32 v{regs[j]}, v{regs[j]}, v{TM+j}")
    a.label(f"M_wd{n}")
    for j in range(8):
        a(f"global_store_dword v{V_T}, v{regs[j]}, {sr(S_WSB)} offset:{256*j} sc1")
    a("s_waitcnt vmcnt(0)")
    a.label(f"M_wc{n}")
    sc = [V_B[0], V_B[1]][n % 2]
    for d in range(4):
        a(f"v_cvt_pk_bf16_f32 v{sc+d}, v{regs[2*d]}, v{regs[2*d+1]}")
    if comp in (5, 6, 7):
        a(f"""
        s_cmp_ge_u32 s{S_G}, 4
        s_cselect_b32 s{S_TM+1}, 0xffff, 0
        s_mov_b32 s{S_TM}, 0
        v_xor_b32 v{V_T+1}, 128, v{V_PB}
        v_cndmask_b32 v{V_T+1}, v{V_PB}, v{V_T+1}, {sr(S_TM)}
        ds_write_b128 v{V_T+1}, {vr(sc,4)} offset:{comp*256}
        """)
    else:
        a(f"ds_write_b128 v{V_PB}, {vr(sc,4)} offset:{comp*256}")

def setprio(a, ph):
    pl = OPT.get("pl", "3210"); phv = OPT.get("ph", "3210")
    if pl[ph] == phv[ph]:
        a(f"s_setprio {pl[ph]}")
    else:
        a(f"""
        s_setprio {pl[ph]}
        s_cmp_ge_u32 s{S_G}, 4
        s_cbranch_scc1 M_pr{ph}
        s_setprio {phv[ph]}
        """)
        a.label(f"M_pr{ph}")

def tick(a, slot):
    if OPT.get("prof"):
        a(f"""
        s_memtime {sr(S_M)}
        s_waitcnt lgkmcnt(0)
        s_sub_u32 s{S_M+3}, s{S_M}, s{S_M+2}
        s_mov_b32 s{S_M+2}, s{S_M}
        """)
        if slot is not None: a(f"s_add_u32 s{S_ST+2*slot}, s{S_ST+2*slot}, s{S_M+3}")

def flush_sub(a):
    acc = lambda r: [V_ACC + 4*j + r for j in range(8)]
    sv = lambda k: [V_SV + 8*k + j for j in range(8)]
    a.label("M_flush")
    a(f"""
    s_mov_b64 exec, {sr(S_FEX)}
    s_cmp_eq_u32 s{S_B1}, 512
    s_cbranch_scc1 M_fl1
    s_cmp_eq_u32 s{S_B1}, 768
    s_cbranch_scc1 M_fl2
    s_cmp_eq_u32 s{S_B1}, 1024
    s_cbranch_scc1 M_fl3
    s_nop 1
    """)
    def ret(ph, k):
        if not (OPT.get("pst") and k == 3): stamp(a, k)
        if ph is not None: setprio(a, ph)
        a(f"s_mov_b64 exec, -1")
        a(f"s_setpc_b64 {sr(S_RET)}")
    write_comp(a, 0, acc(0))
    for i in range(3): write_comp(a, comp011(i), acc(1+i))
    a(f"""
    s_mov_b64 exec, 1
    v_mov_b32 v{V_T+2}, {L_FC0}
    v_mov_b32 v{V_T+3}, 1
    ds_add_u32 v{V_T+2}, v{V_T+3}
    """)
    a("s_mov_b64 exec, -1")
    for n, b in enumerate(OPT.get("t3", "x").replace("x", "")):
        for k in range(2):
            a(f"s_cmp_lg_u32 s{S_G}, {4+2*n+k}")
            a(f"s_cbranch_scc1 M_t3_{n}_{k}")
            touch(a, int(b), k, V_T+2, V_TCH)
            a.label(f"M_t3_{n}_{k}")
    ret(1, 3)
    a.label("M_fl1")
    a("s_nop 4")
    write_comp(a, comp101(0), acc(0))
    for k in range(3):
        for j in range(8): a(f"v_mov_b32 v{sv(k)[j]}, v{acc(1+k)[j]}")
    ret(2, 4)
    a.label("M_fl2")
    a("s_nop 2")
    write_comp(a, comp101(1), acc(0))
    for j in range(8): a(f"v_sub_f32 v{acc(1)[j]}, v{acc(1)[j]}, v{sv(1)[j]}")
    write_comp(a, comp111(2), acc(1))
    for j in range(8): a(f"v_add_f32 v{sv(0)[j]}, v{sv(0)[j]}, v{acc(2)[j]}")
    for j in range(8): a(f"v_mov_b32 v{sv(1)[j]}, v{acc(3)[j]}")
    a(f"""
    s_mov_b64 exec, 1
    v_mov_b32 v{V_T+2}, {L_FC}
    v_mov_b32 v{V_T+3}, 1
    ds_add_u32 v{V_T+2}, v{V_T+3}
    """)
    ret(3, 5)
    a.label("M_fl3")
    write_comp(a, comp101(2), acc(0))
    for j in range(8): a(f"v_sub_f32 v{sv(2)[j]}, v{sv(2)[j]}, v{acc(1)[j]}")
    write_comp(a, comp111(1), sv(2))
    for j in range(8): a(f"v_sub_f32 v{acc(2)[j]}, v{acc(2)[j]}, v{sv(1)[j]}")
    write_comp(a, comp111(0), acc(2))
    for j in range(8): a(f"v_add_f32 v{sv(0)[j]}, v{sv(0)[j]}, v{acc(3)[j]}")
    write_comp(a, 1, sv(0))
    a(f"""
    s_cmp_lt_u32 s{S_G}, 4
    s_cbranch_scc1 M_fl3b
    s_mov_b64 exec, 1
    v_mov_b32 v{V_T+2}, {L_FC3}
    v_mov_b32 v{V_T+3}, 1
    ds_add_u32 v{V_T+2}, v{V_T+3}
    """)
    a.label("M_fl3b")
    ret(None, 6)

A_H = L_P; A_BS = L_P + 4096; A_STG = L_P + 8192; A_OFS = L_P + 32768

def setup(a):
    a(f"""
    s_mov_b64 {sr(S_X)}, s[36:37]
    s_mov_b64 {sr(S_OUT)}, s[54:55]
    s_mov_b64 {sr(S_WSB)}, s[58:59]
    s_and_b32 s{S_T}, s2, 7
    s_lshr_b32 s2, s2, 3
    s_lshl_b32 s{S_T}, s{S_T}, 5
    s_or_b32 s2, s2, s{S_T}
    s_mov_b32 s{S_X+2}, {N*1024}
    s_mov_b32 s{S_X+3}, 0x20000
    s_mov_b32 s{S_OUT+2}, {N*1024}
    s_mov_b32 s{S_OUT+3}, 0x20000
    s_mov_b32 s{S_REC+2}, {NB*CHS*16}
    s_mov_b32 s{S_REC+3}, 0x20000
    s_mov_b32 s{S_OFFS+2}, {NB*2048}
    s_mov_b32 s{S_OFFS+3}, 0x20000
    s_mov_b32 s{S_HI}, 0xffff0000
    s_mov_b32 s{S_SPIN}, {SPIN_MAX}
    s_mov_b32 s{S_REC}, s{S_WSB}
    s_and_b32 s{S_REC+1}, s{S_WSB+1}, 0xffff
    s_add_u32 s{S_OFFS}, s{S_WSB}, {WS_OFF}
    s_addc_u32 s{S_OFFS+1}, s{S_WSB+1}, 0
    s_add_u32 s{S_WF}, s{S_WSB}, {WS_WF}
    s_addc_u32 s{S_WF+1}, s{S_WSB+1}, 0
    s_and_b32 s{S_OFFS+1}, s{S_OFFS+1}, 0xffff
    s_and_b32 s{S_X+1}, s{S_X+1}, 0xffff
    s_and_b32 s{S_OUT+1}, s{S_OUT+1}, 0xffff
    """)

def cpf(a):
    K = NAME + "_kernel"
    a(f"""
    s_lshr_b32 s{S_T}, s3, 3
    s_cmp_lg_u32 s{S_T}, {OPT.get('cpw', 0)}
    s_cbranch_scc1 A_nocpf
    s_getpc_b64 {sr(60)}
    """)
    a.label("A_pc")
    a(f"""
    s_sub_u32 s{60}, s{60}, A_pc-{K}
    s_subb_u32 s{61}, s{61}, 0
    v_lshlrev_b32 v50, 3, v1
    s_mov_b32 s{S_T}, M_done-{K}
    v_add_u32 v51, 8192, v50
    v_min_u32 v51, s{S_T}, v51
    v_add_u32 v54, 16384, v50
    v_min_u32 v54, s{S_T}, v54
    global_load_dword v52, v50, {sr(60)}
    global_load_dword v53, v51, {sr(60)}
    global_load_dword v55, v54, {sr(60)}
    """)
    a.label("A_nocpf")

def phase_a(a):
    RH = 38; EA = 40; SRC = 42; DST = 44; WR = 46; W0 = 48; W1 = 50
    WSB = sr(S_WSB)
    def read_nonce(wait=True):
        a(f"""
        v_mov_b32 v2, {L_NONCE}
        ds_read_b64 v[2:3], v2
        s_waitcnt lgkmcnt(0)
        v_readfirstlane_b32 s{S_NON}, v2
        v_readfirstlane_b32 s{S_NON+1}, v3
        """)
    a(f"""
    s_cmp_eq_u32 s{S_G}, 10
    s_cbranch_scc1 A_scan
    s_cmp_eq_u32 s{S_G}, 11
    s_cbranch_scc1 A_aux
    s_mov_b64 exec, vcc
    """)
    LB = 0
    if not int(OPT.get("el", 0)):
        a(f"""
        global_load_dwordx3 v[12:14], v7, {sr(RH)} nt
        global_load_dword v18, v20, {sr(EA)} nt
        global_load_dwordx2 v[8:9], v6, {sr(SRC)} nt
        """)
    a(f"""
    v_mov_b32 v23, 1
    """)
    pa(a, 4)
    setup(a)
    a("s_waitcnt vmcnt(3)")
    pa(a, 5)
    for i in range(2):
        a(f"""
        v_and_b32 v{24+i}, 7, v{4+i}
        v_bfe_u32 v1, v{4+i}, 3, 5
        v_lshlrev_b32 v{24+i}, 7, v{24+i}
        v_lshl_or_b32 v{24+i}, v1, 2, v{24+i}
        ds_add_rtn_u32 v{28+i}, v{24+i}, v23 offset:{A_H}
        """)
    a("""
    s_waitcnt lgkmcnt(0)
    s_barrier
    """)
    pa(a, 6)
    for i in range(2):
        a(f"""
        v_lshrrev_b32 v{4+i}, 8, v{4+i}
        v_mul_u32_u24 v1, 43, v{4+i}
        v_lshrrev_b32 v1, 9, v1
        v_mul_u32_u24 v2, 12, v1
        v_sub_u32 v{4+i}, v{4+i}, v2
        v_lshlrev_b32 v1, 14, v1
        v_lshl_or_b32 v{32+4*i+2}, v{4+i}, 16, v1
        """)
    a(f"""
    s_barrier
    ds_read_b32 v30, v24 offset:{A_BS}
    ds_read_b32 v31, v25 offset:{A_BS}
    """)
    pa(a, 8)
    a(f"s_waitcnt vmcnt(0)")
    def half(dst, base, idx):
        r = base + idx // 2
        if idx % 2 == 0:
            a(f"v_lshlrev_b32 v{dst}, 16, v{r}")
        else:
            a(f"v_and_b32 v{dst}, s{S_HI}, v{r}")
    for i in range(2):
        half(4, 18, i)
        half(5, 12, 3*i+0)
        half(6, 12, 3*i+1)
        half(7, 12, 3*i+2)
        a(f"""
        v_mul_f32 v5, v4, v5
        v_mul_f32 v6, v4, v6
        v_mul_f32 v7, v4, v7
        v_cvt_pk_bf16_f32 v{32+4*i}, v4, v5
        v_cvt_pk_bf16_f32 v{32+4*i+1}, v6, v7
        """)
    pa(a, 7)
    a("s_waitcnt lgkmcnt(0)")
    for i in range(2):
        a(f"""
        v_add_lshl_u32 v{4+i}, v{30+i}, v{28+i}, 4
        v_or_b32 v{32+4*i+2}, v{32+4*i+2}, v{8+i}
        ds_write_b96 v{4+i}, {vr(32+4*i,3)} offset:{A_STG}
        """)
    a(f"""
    s_mov_b64 exec, -1
    s_mul_i32 s{S_T}, s3, {CHS * 16}
    v_lshlrev_b32 v20, 4, v0
    v_add_u32 v21, s{S_T}, v20
    v_mov_b32 v2, {L_NONCE}
    v_add_u32 v22, 10240, v21
    v_cmp_gt_u32 vcc, 616, v0
    s_waitcnt lgkmcnt(0)
    s_barrier
    """)
    pa(a, 14)
    a(f"""
    ds_read_b64 v[2:3], v2
    ds_read_b128 v[32:35], v20 offset:{A_STG}
    ds_read_b128 v[36:39], v20 offset:{A_STG+10240}
    s_waitcnt lgkmcnt(1)
    v_or_b32 v34, v34, v3
    v_mov_b32 v35, v2
    global_store_dwordx4 v21, v[32:35], {WSB} sc1
    s_waitcnt lgkmcnt(0)
    v_or_b32 v38, v38, v3
    v_mov_b32 v39, v2
    s_mov_b64 exec, vcc
    global_store_dwordx4 v22, v[36:39], {WSB} sc1
    v_readfirstlane_b32 s{S_NON}, v2
    v_readfirstlane_b32 s{S_NON+1}, v3
    """)
    PW = int(OPT.get("pw", 0))
    if PW:
        a(f"""
        s_lshr_b32 s{S_T}, s3, 3
        s_mul_i32 s{S_T}, s{S_T}, 625
        v_add_u32 v40, s{S_T}, v0
        """)
        if PW == 1:
            a("""
            v_and_b32 v41, 3, v40
            v_lshrrev_b32 v40, 2, v40
            v_lshlrev_b32 v40, 11, v40
            """)
        else:
            a("""
            v_and_b32 v41, 1, v40
            v_lshrrev_b32 v40, 1, v40
            v_lshlrev_b32 v40, 10, v40
            """)
        a(f"""
        v_lshl_add_u32 v40, v41, 7, v40
        buffer_load_dword v41, v40, {sr(S_X,4)}, 0 offen
        """)
    a(f"""
    s_mov_b64 exec, -1
    s_branch A_end
    """)
    a.label("A_scan")
    a(f"""
    v_and_b32 v1, 63, v0
    v_lshlrev_b32 v1, 4, v1
    """)
    if int(OPT.get("cpf", 2)) == 2: cpf(a)
    for n, b in enumerate(OPT.get("t0", "x").replace("x", "")):
        touch(a, int(b), 0, 60+4*n, 61+4*n)
        touch(a, int(b), 1, 62+4*n, 63+4*n)
    a(f"""
    v_mov_b32 v16, 0
    s_setprio 3
    s_barrier
    ds_read_b128 v[4:7], v1 offset:{A_H}
    global_load_dwordx2 v[2:3], v16, {sr(S_DBG)} sc1
    """)
    if int(OPT.get("cpf", 2)) == 1: cpf(a)
    a(f"""
    s_waitcnt lgkmcnt(0)
    v_add_u32 v9, v4, v5
    v_add_u32 v10, v9, v6
    v_add_u32 v11, v10, v7
    v_mov_b32 v12, v11
    s_nop 1
    v_add_u32_dpp v12, v12, v12 row_shr:1 row_mask:0xf bank_mask:0xf bound_ctrl:0
    s_nop 1
    v_add_u32_dpp v12, v12, v12 row_shr:2 row_mask:0xf bank_mask:0xf bound_ctrl:0
    s_nop 1
    v_add_u32_dpp v12, v12, v12 row_shr:4 row_mask:0xf bank_mask:0xf bound_ctrl:0
    s_nop 1
    v_add_u32_dpp v12, v12, v12 row_shr:8 row_mask:0xf bank_mask:0xf bound_ctrl:0
    s_nop 1
    v_add_u32_dpp v12, v12, v12 row_bcast:15 row_mask:0xa bank_mask:0xf
    s_nop 1
    v_add_u32_dpp v12, v12, v12 row_bcast:31 row_mask:0xc bank_mask:0xf
    v_sub_u32 v12, v12, v11
    v_add_u32 v13, v12, v4
    v_add_u32 v14, v12, v9
    v_add_u32 v15, v12, v10
    ds_write_b128 v1, v[12:15] offset:{A_BS}
    s_waitcnt lgkmcnt(0)
    s_barrier
    """)
    setup(a)
    a(f"""
    s_lshl_b32 s{S_T}, s3, 11
    s_add_u32 s{S_T}, s{S_T}, {WS_OFF}
    v_add_u32 v20, s{S_T}, v1
    """)
    for i in range(4):
        a(f"v_lshl_or_b32 v{24+2*i}, v{4+i}, 11, v{12+i}")
    a(f"v_mov_b32 v17, {L_NONCE}")
    a.label("A_pn")
    a(f"""
    s_waitcnt vmcnt(0)
    v_readfirstlane_b32 s{S_NON}, v2
    s_cmp_lg_u32 s{S_NON}, 0
    s_cbranch_scc1 A_pd
    global_load_dwordx2 v[2:3], v16, {sr(S_DBG)} sc1
    s_sub_u32 s{S_SPIN}, s{S_SPIN}, 1
    s_cmp_gt_i32 s{S_SPIN}, 0
    s_cbranch_scc1 A_pn
    s_waitcnt vmcnt(0)
    """)
    a.label("A_pd")
    a("ds_write_b64 v17, v[2:3]")
    for i in range(4):
        a(f"""
        v_or_b32 v{24+2*i}, v3, v{24+2*i}
        v_mov_b32 v{25+2*i}, v2
        """)
    a(f"""
    global_store_dwordx4 v20, v[24:27], {WSB} sc1
    global_store_dwordx4 v20, v[28:31], {WSB} offset:1024 sc1
    v_readfirstlane_b32 s{S_NON}, v2
    v_readfirstlane_b32 s{S_NON+1}, v3
    v_lshlrev_b32 v40, 7, v1
    s_lshr_b32 s{S_T}, s2, 2
    s_lshl_b32 s{S_T}, s{S_T}, 4
    s_and_b32 s{S_T+1}, s2, 2
    s_lshl_b32 s{S_T+1}, s{S_T+1}, 9
    s_add_u32 s{S_T}, s{S_T}, s{S_T+1}
    s_and_b32 s{S_T+1}, s2, 1
    s_lshl_b32 s{S_T+1}, s{S_T+1}, 3
    s_add_u32 s{S_T}, s{S_T}, s{S_T+1}
    v_add_u32 v40, s{S_T}, v40
    v_add_u32 v41, {64*2048}, v40
    v_add_u32 v42, {128*2048}, v40
    v_add_u32 v43, {192*2048}, v40
    s_mov_b32 s{S_T+7}, {TAGM}
    s_mov_b64 s[40:41], -1
    s_mov_b64 s[42:43], -1
    s_mov_b64 s[44:45], -1
    s_mov_b64 s[46:47], -1
    s_waitcnt lgkmcnt(0)
    s_barrier
    {"s_waitcnt vmcnt(0)" if int(OPT.get("pw0", 1)) else ""}
    """)
    a.label("A_poll")
    for r in range(4):
        a(f"""
        s_mov_b64 exec, {sr(40+2*r)}
        s_cbranch_execz A_ps{r}
        buffer_load_dwordx2 {vr(32+2*r,2)}, v{40+r}, {sr(S_OFFS,4)}, 0 offen sc1
        """)
        a.label(f"A_ps{r}")
    a(f"""
    s_mov_b64 exec, -1
    s_mov_b64 {sr(S_TM)}, 0
    s_waitcnt vmcnt(0)
    """)
    for r in range(4):
        a(f"""
        v_and_b32 v4, s{S_T+7}, v{32+2*r}
        v_cmp_ne_u32 {sr(40+2*r)}, s{S_NON+1}, v4
        v_cmp_ne_u32 vcc, s{S_NON}, v{33+2*r}
        s_or_b64 {sr(40+2*r)}, {sr(40+2*r)}, vcc
        s_or_b64 {sr(S_TM)}, {sr(S_TM)}, {sr(40+2*r)}
        """)
    a(f"""
    s_cmp_eq_u64 {sr(S_TM)}, 0
    s_cbranch_scc1 A_polled
    {"s_sleep " + OPT["slp"] if OPT.get("slp") else ""}
    s_sub_u32 s{S_SPIN}, s{S_SPIN}, 1
    s_cmp_gt_i32 s{S_SPIN}, 0
    s_cbranch_scc1 A_poll
    """)
    a.label("A_polled")
    a(f"""
    v_lshrrev_b32 v1, 2, v1
    v_mov_b32 v5, 0
    """)
    for r in range(4):
        a(f"""
        v_and_b32 v{32+2*r}, 0x3fffff, v{32+2*r}
        ds_write_b32 v1, v{32+2*r} offset:{A_OFS+256*r}
        """)
    a(f"""
    ds_write_b32 v1, v5 offset:{A_OFS+1024}
    s_branch A_end
    """)
    a.label("A_aux")
    a(f"""
    v_and_b32 v1, 63, v0
    s_cmp_ge_u32 s3, 160
    s_cbranch_scc1 A_wp1
    s_and_b32 s{S_T+3}, s3, 7
    s_and_b32 s{S_T+1}, s3, 0xf8
    v_lshrrev_b32 v3, 4, v1
    s_lshl_b32 s{S_T}, s{S_T+1}, 2
    v_lshl_add_u32 v4, v3, 3, s{S_T}
    v_lshlrev_b32 v5, 1, v4
    global_load_dwordx4 v[8:11], v5, {sr(WR)}
    v_and_b32 v2, 15, v1
    s_lshl_b32 s{S_T}, s{S_T+3}, 4
    v_add_lshl_u32 v2, v2, s{S_T}, 1
    v_lshl_add_u32 v6, v4, 8, v2
    s_sub_u32 s60, s{W1}, {256*256}
    s_subb_u32 s61, s{W1+1}, 0
    s_cmp_lt_u32 s3, 64
    s_cselect_b64 s[60:61], {sr(W0)}, s[60:61]
    """)
    for i in range(8):
        a(f"global_load_ushort v{12+i}, v6, s[60:61] offset:{256*i} {OPT.get('wnt', '')}")
    a.label("A_wp1")
    T1 = OPT.get("t1", "0").replace("x", "")
    a(f"""
    s_setprio 3
    s_barrier
    s_barrier
    """)
    setup(a)
    a(f"""
    s_and_b32 s{S_T+3}, s3, 7
    s_mul_i32 s{S_T+2}, s{S_T+3}, 20
    s_lshr_b32 s{S_T+3}, s3, 3
    s_add_u32 s{S_T+2}, s{S_T+2}, s{S_T+3}
    s_cmp_ge_u32 s3, 160
    s_cbranch_scc1 A_nw1
    s_lshl_b32 s{S_T+3}, s{S_T+2}, 10
    s_add_u32 s{S_T+3}, s{S_T+3}, {WS_WF}
    v_lshl_add_u32 v7, v1, 4, s{S_T+3}
    s_waitcnt vmcnt(0)
    """)
    for i in range(8):
        if i % 2 == 0:
            a(f"v_lshlrev_b32 v20, 16, v{8+i//2}")
        else:
            a(f"v_and_b32 v20, s{S_HI}, v{8+i//2}")
        a(f"v_lshlrev_b32 v{12+i}, 16, v{12+i}")
        a(f"v_mul_f32 v{12+i}, v20, v{12+i}")
    for i in range(4):
        a(f"v_cvt_pk_bf16_f32 v{24+i}, v{12+2*i}, v{13+2*i}")
    a(f"global_store_dwordx4 v7, v[24:27], {WSB} sc1")
    a.label("A_nw1")
    if not OPT.get("t1late"):
        for n, b in enumerate(T1):
            touch(a, int(b), 0, 32+4*n, 33+4*n)
            touch(a, int(b), 1, 34+4*n, 35+4*n)
    a(f"""
    v_mov_b32 v2, {L_NONCE}
    s_barrier
    ds_read_b64 v[4:5], v2
    """)
    if OPT.get("t1late"):
        for n, b in enumerate(T1):
            touch(a, int(b), 0, 32+4*n, 33+4*n)
            touch(a, int(b), 1, 34+4*n, 35+4*n)
    a(f"""
    s_waitcnt lgkmcnt(0)
    v_readfirstlane_b32 s{S_NON}, v4
    v_readfirstlane_b32 s{S_NON+1}, v5
    s_cmp_ge_u32 s3, 160
    s_cbranch_scc1 A_end
    s_lshl_b32 s{S_T+3}, s{S_T+2}, 10
    s_add_u32 s{S_T+3}, s{S_T+3}, {WS_WFLAG}
    v_lshl_add_u32 v11, v1, 4, s{S_T+3}
    v_mov_b32 v5, v4
    v_mov_b32 v6, v4
    v_mov_b32 v7, v4
    s_waitcnt vmcnt({2*len(T1)})
    global_store_dwordx4 v11, v[4:7], {WSB} sc1
    s_nop 1
    """)
    a.label("A_end")

def gen_main(a):
    K = NAME + "_kernel"
    a.raw(".p2align 8")
    a.raw(f".globl {K}")
    a.raw(f".type {K},@function")
    a.label(K)
    a(f"""
    s_cmp_ge_u32 s2, {NB}
    s_cbranch_scc1 M_done
    """)
    if OPT.get("empty"): a("s_endpgm")
    if DBG:
        for k in range(S_ST, S_ST+32): a(f"s_mov_b32 s{k}, 0")
    stamp(a, 0)
    stamp(a, 10, True)
    T = V_T
    a(f"""
    s_load_dwordx16 s[36:51], s[0:1], 0
    s_load_dwordx8 s[52:59], s[0:1], 64
    s_memrealtime {sr(S_NON)}
    s_mul_i32 s{S_T}, s2, {CH*4}
    v_lshl_add_u32 v6, v0, 3, s{S_T}
    v_cmp_gt_u32 vcc, 625, v0
    s_waitcnt lgkmcnt(0)
    s_mov_b64 exec, vcc
    s_cbranch_execz E_nod
    global_load_dwordx2 v[4:5], v6, s[44:45] nt
    """)
    a.label("E_nod")
    a(f"""
    s_mov_b64 exec, -1
    v_lshrrev_b32 v1, 6, v0
    v_mov_b32 v3, 0
    v_readfirstlane_b32 s{S_G}, v1
    v_lshlrev_b32 v2, 2, v0
    ds_write_b32 v2, v3
    ds_write_b32 v2, v3 offset:{A_H}
    """)
    if int(OPT.get("el", 0)):
        a(f"""
        v_lshrrev_b32 v20, 1, v6
        v_add_u32 v7, v6, v20
        s_mov_b64 exec, vcc
        s_cbranch_execz E_nol
        global_load_dwordx3 v[12:14], v7, s[38:39] nt
        global_load_dword v18, v20, s[40:41] nt
        global_load_dwordx2 v[8:9], v6, s[42:43] nt
        """)
        a.label("E_nol")
        a("s_mov_b64 exec, -1")
    a(f"""
    s_mov_b64 {sr(S_DBG)}, s[56:57]
    {"s_mov_b32 s72, s" + str(S_NON) if OPT.get('own') else ""}
    """)
    if OPT.get("cas"):
        a(f"""
        s_lshr_b32 s{S_T}, s2, 3
        s_or_b32 s{S_T}, s{S_T}, s{S_G}
        s_cmp_lg_u32 s{S_T}, 0
        s_cbranch_scc1 M_nonon
        s_lshl_b32 s{S_NON+1}, s{S_NON+1}, 22
        s_or_b32 s{S_NON}, s{S_NON}, 1
        v_mov_b32 v40, s{S_NON}
        v_mov_b32 v41, s{S_NON+1}
        v_mov_b32 v42, 0
        v_mov_b32 v43, 0
        s_mov_b64 exec, 1
        global_atomic_cmpswap_x2 v3, v[40:43], {sr(S_DBG)} sc1
        s_mov_b64 exec, -1
        """)
    else:
        a(f"""
        s_xor_b32 s{S_T}, s2, {OPT.get('nwg', 0)}
        s_or_b32 s{S_T}, s{S_T}, s{S_G}
        s_cmp_lg_u32 s{S_T}, 0
        s_cbranch_scc1 M_nonon
        s_lshl_b32 s{S_NON+1}, s{S_NON+1}, 22
        s_or_b32 s{S_NON}, s{S_NON}, 1
        v_mov_b32 v10, s{S_NON}
        v_mov_b32 v11, s{S_NON+1}
        s_mov_b64 exec, 1
        global_store_dwordx2 v3, v[10:11], {sr(S_DBG)} sc1
        s_mov_b64 exec, -1
        """)
    a(f"""
    """)
    a.label("M_nonon")
    a(f"""
    s_mov_b32 s3, s2
    v_lshrrev_b32 v20, 1, v6
    v_add_u32 v7, v6, v20
    s_waitcnt lgkmcnt(0)
    s_barrier
    """)
    phase_a(a)
    a("s_setprio 0")
    if int(OPT.get("rm", 1)):
        a(f"""
        s_add_u32 s{S_G}, s{S_G}, 4
        s_cmp_ge_u32 s{S_G}, 12
        s_cselect_b32 s{S_T}, 12, 0
        s_sub_u32 s{S_G}, s{S_G}, s{S_T}
        """)
    a(f"""
    v_mov_b32 v{V_JB}, 0
    v_mov_b32 v{V_DONE}, 0
    s_mov_b32 s{S_RND}, 0
    v_and_b32 v{T}, 63, v0
    v_and_b32 v{T+1}, 15, v{T}
    v_lshrrev_b32 v{T+2}, 4, v{T}
    v_lshlrev_b32 v{V_N16}, 4, v{T+1}
    v_lshlrev_b32 v{V_N16+1}, 4, v{T+1}
    v_and_b32 v{V_C}, 3, v{T}
    v_bfe_u32 v{T+3}, v{T}, 2, 2
    s_mul_i32 s{S_T}, s{S_G}, {CAP*16}
    s_add_u32 s{S_T}, s{S_T}, {L_LIST}
    v_lshl_add_u32 v{V_VS}, v{T+2}, 4, s{S_T}
    v_lshl_add_u32 v{V_VC}, v{T+3}, 6, v{V_VS}
    s_cmp_lt_u32 s{S_G}, 4
    s_cselect_b32 s{S_T}, 2, 3
    s_cselect_b32 s{S_T+1}, 0, 12
    s_add_u32 s{S_T+1}, s{S_T+1}, s{S_G}
    v_lshlrev_b32 v{T+2}, s{S_T}, v{T+2}
    v_add_u32 v{T+2}, s{S_T+1}, v{T+2}
    v_cmp_gt_u32 {sr(S_FEX)}, 40, v{T+2}
    v_mul_u32_u24 v{V_PB}, {PSTR}, v{T+2}
    v_and_b32 v{T+2}, 15, v{T+2}
    v_xor_b32 v{T+2}, v{T+2}, v{T+1}
    v_lshl_add_u32 v{V_PB}, v{T+2}, 4, v{V_PB}
    v_add_u32 v{V_PB}, {L_P}, v{V_PB}
    s_mov_b32 s{S_T+7}, {TAGM}
    """)
    L = V_L[0]; L2 = V_L[1]
    if OPT.get("pst"): stamp(a, 12)
    a(f"""
    v_lshrrev_b32 v{T}, 3, v0
    v_lshlrev_b32 v{T}, 2, v{T}
    s_max_u32 s{S_T}, s{S_G}, 4
    s_sub_u32 s{S_T}, s{S_T}, 4
    s_mul_i32 s{S_T}, s{S_T}, {20*1024}
    s_lshl_b32 s{S_T+1}, s2, 2
    s_add_u32 s{S_T}, s{S_T}, s{S_T+1}
    s_add_u32 s{S_T}, s{S_T}, {WS_WFLAG}
    v_and_b32 v{V_ACC+51}, 63, v0
    v_min_u32 v{V_ACC+51}, 19, v{V_ACC+51}
    v_lshl_add_u32 v{V_ACC+51}, v{V_ACC+51}, 10, s{S_T}
    s_waitcnt {"vmcnt(0) " if OPT.get("ack") else ""}lgkmcnt(0)
    """)
    if OPT.get("pst"): stamp(a, 3)
    a("s_barrier")
    for r in range(3):
        a(f"ds_read_b32 v{V_OFF+r}, v{T} offset:{A_OFS+384*r}")
    a(f"""
    s_mov_b64 {sr(S_ACT)}, -1
    s_mov_b32 s{S_FIRST}, 0
    s_waitcnt lgkmcnt(0)
    s_branch M_w0
    """)
    a.label("M_init")
    a(f"""
    v_mov_b32 v{T+1}, 0
    v_lshlrev_b32 v{T}, 2, v0
    s_movk_i32 s{S_T}, {L_P//4}
    v_cmp_gt_u32 vcc, s{S_T}, v0
    s_and_saveexec_b64 {sr(S_TM)}, vcc
    ds_write_b32 v{T}, v{T+1}
    s_mov_b64 exec, {sr(S_TM)}
    s_mov_b64 {sr(S_ACT)}, -1
    s_waitcnt lgkmcnt(0)
    s_barrier
    s_mov_b32 s{S_FIRST}, 1
    """)
    a.label("M_w0")
    stamp(a, 1)
    a.label("M_window")
    L2 = V_ACC + 16
    REM = L2; ADR = L2 + 3; CTR = L2 + 6; RNK = L2 + 15; BAS = L2 + 24; ONE = L2 + 33
    WFV = L2 + 34; WFA = L2 + 35; TCA = 60; L = 100
    MK = [40, 42, 44, 46, 48, 50, 24, 26, 28]
    a(f"""
    v_and_b32 v{T}, 7, v0
    v_add_u32 v{T}, v{T}, v{V_JB}
    v_lshrrev_b32 v{T+1}, 3, v0
    v_mul_u32_u24 v{T+1}, {CHS}, v{T+1}
    v_add_u32 v{T+1}, v{T+1}, v{T}
    v_mov_b32 v{ONE}, 1
    """)
    for r in range(3):
        a(f"""
        v_lshrrev_b32 v{REM+r}, 11, v{V_OFF+r}
        v_sub_u32 v{REM+r}, v{REM+r}, v{T}
        v_and_b32 v{ADR+r}, 0x7ff, v{V_OFF+r}
        v_add_lshl_u32 v{ADR+r}, v{ADR+r}, v{T+1}, 4
        """)
        if r: a(f"v_add_u32 v{ADR+r}, {96*CHS*16*r}, v{ADR+r}")
    for k in range(9):
        r = k % 3; h = k // 3
        a(f"v_cmp_lt_i32 {sr(MK[k])}, {8*h}, v{REM+r}")
    a(f"""
    s_cmp_eq_u32 s{S_FIRST}, 0
    s_cbranch_scc1 M_rload
    """)
    for k in range(9):
        m = sr(MK[k])
        a(f"""
        v_and_b32 v{T+2}, {1<<k}, v{V_DONE}
        v_cmp_eq_u32 vcc, 0, v{T+2}
        s_and_b64 {m}, {m}, vcc
        s_and_b64 {m}, {m}, {sr(S_ACT)}
        """)
    a.label("M_rload")
    a(f"""
    s_or_b64 {sr(S_TM)}, {sr(MK[6])}, {sr(MK[7])}
    s_or_b64 {sr(S_TM)}, {sr(S_TM)}, {sr(MK[8])}
    s_cselect_b32 s{S_ANY2}, 1, 0
    """)
    for k in range(9):
        if k == 6:
            a(f"s_cmp_eq_u32 s{S_ANY2}, 0")
            a("s_cbranch_scc1 M_sl8")
        r = k % 3; h = k // 3
        a(f"""
        s_mov_b64 exec, {sr(MK[k])}
        {"s_cbranch_execz M_sl" + str(k) if k >= 2 else ""}
        buffer_load_dwordx4 {vr(L+4*k,4)}, v{ADR+r}, {sr(S_REC,4)}, 0 offen offset:{128*h} sc1
        """)
        a.label(f"M_sl{k}")
    a(f"""
    s_mov_b64 exec, -1
    s_cmp_lg_u32 s{S_FIRST}, 0
    s_cbranch_scc1 M_nofld
    global_load_dword v{WFV}, v{WFA}, {sr(S_WSB)} sc1
    """)
    a.label("M_nofld")
    a(f"""
    s_mov_b64 {sr(S_PEND)}, 0
    s_mov_b32 s{S_T}, {TAGM}
    s_waitcnt vmcnt(0)
    """)
    for k in range(9):
        if k == 6:
            a(f"s_cmp_eq_u32 s{S_ANY2}, 0")
            a("s_cbranch_scc1 M_sc8")
        a(f"""
        s_mov_b64 exec, {sr(MK[k])}
        {"s_cbranch_execz M_sc" + str(k) if k >= 3 else ""}
        v_and_b32 v{T}, s{S_T}, v{L+4*k+2}
        v_cmp_ne_u32 {sr(S_TM)}, s{S_NON+1}, v{T}
        v_cmp_ne_u32 vcc, s{S_NON}, v{L+4*k+3}
        v_bfe_u32 v{CTR+k}, v{L+4*k+2}, 16, 4
        v_and_b32 v{T}, 15, v{L+4*k+2}
        s_or_b64 {sr(S_PEND)}, {sr(S_PEND)}, {sr(S_TM)}
        s_or_b64 {sr(S_PEND)}, {sr(S_PEND)}, vcc
        v_lshl_or_b32 v{T}, v{CTR+k}, 4, v{T}
        v_lshlrev_b32 v{BAS+k}, 2, v{T}
        """)
        a.label(f"M_sc{k}")
    a(f"""
    s_mov_b64 exec, -1
    s_cmp_eq_u64 {sr(S_PEND)}, 0
    {"s_branch M_rok" if OPT.get("halfst") or OPT.get("noretry") else ""}
    s_cbranch_scc1 M_rok
    s_sleep {OPT.get('slp', 4)}
    s_sub_u32 s{S_SPIN}, s{S_SPIN}, 1
    s_cmp_gt_i32 s{S_SPIN}, 0
    s_cbranch_scc1 M_rload
    """)
    a.label("M_rok")
    if OPT.get("dl13"): a(f"s_sleep {OPT['dl13']}")
    stamp(a, 13)
    a(f"""
    s_cmp_lg_u32 s{S_FIRST}, 0
    s_cbranch_scc1 M_append
    """)
    for k in range(9):
        if k == 6:
            a(f"s_cmp_eq_u32 s{S_ANY2}, 0")
            a("s_cbranch_scc1 M_sa8")
        a(f"""
        s_mov_b64 exec, {sr(MK[k])}
        {"s_cbranch_execz M_sa" + str(k) if k >= 9 else ""}
        ds_add_rtn_u32 v{RNK+k}, v{BAS+k}, v{ONE} offset:{L_CC}
        """)
        a.label(f"M_sa{k}")
    SCN = V_ACC
    a(f"""
    s_mov_b64 exec, -1
    v_cmp_eq_u32 vcc, s{S_NON}, v{WFV}
    s_cmp_eq_u64 vcc, -1
    s_cselect_b32 s{S_WOK}, 1, 0
    s_cbranch_scc0 M_nowpre
    s_cmp_lt_u32 s{S_G}, {16 if OPT.get("db") else 4}
    s_cbranch_scc1 M_nowpre
    """)
    wload(a, WFA, [0, 1, 2, 3, 8, 9, 10, 11])
    a.label("M_nowpre")
    a(f"""
    v_and_b32 v{T}, 63, v0
    v_lshlrev_b32 v{T}, 4, v{T}
    v_cmp_lt_u32 vcc, 0, v{V_C}
    v_cmp_lt_u32 {sr(S_TM)}, 1, v{V_C}
    s_waitcnt lgkmcnt(0)
    s_barrier
    ds_read_b128 {vr(SCN,4)}, v{T} offset:{L_CC}
    """)
    if int(OPT.get("t2m", 0)):
        a(f"""
        s_cmp_ge_u32 s{S_G}, 4
        s_cbranch_scc1 M_t2m
        s_mul_i32 s{S_T+6}, s3, 236
        s_mul_i32 s{S_T+5}, s{S_G}, 59
        s_add_u32 s{S_T+6}, s{S_T+6}, s{S_T+5}
        v_and_b32 v{TCA}, 63, v0
        v_add_u32 v{TCA}, s{S_T+6}, v{TCA}
        v_and_b32 v{TCA+1}, 3, v{TCA}
        v_lshrrev_b32 v{TCA}, 2, v{TCA}
        s_movk_i32 s{S_T+5}, 5000
        v_cmp_gt_u32 {sr(S_PEND)}, s{S_T+5}, v{TCA}
        v_lshlrev_b32 v{TCA+2}, 11, v{TCA}
        v_add_u32 v{TCA+2}, 1024, v{TCA+2}
        v_subrev_u32 v{TCA}, s{S_T+5}, v{TCA}
        v_lshlrev_b32 v{TCA}, 10, v{TCA}
        v_add_u32 v{TCA}, 512, v{TCA}
        v_cndmask_b32 v{TCA}, v{TCA}, v{TCA+2}, {sr(S_PEND)}
        v_lshl_add_u32 v{TCA}, v{TCA+1}, 7, v{TCA}
        s_mov_b32 exec_hi, 0x7ffffff
        buffer_load_dword v{V_TCH}, v{TCA}, {sr(S_X,4)}, 0 offen
        s_mov_b64 exec, -1
        """)
        a.label("M_t2m")
    for n, b in enumerate(OPT.get("t2", "12").replace("x", "")):
        a(f"s_cmp_lg_u32 s{S_G}, {n}")
        a(f"s_cbranch_scc1 M_t2_{n}")
        touch(a, int(b), 0, TCA, V_TCH)
        touch(a, int(b), 1, TCA, TCA+1)
        a.label(f"M_t2_{n}")
    a(f"""
    s_waitcnt lgkmcnt(0)
    v_add_u32 v{SCN+4}, v{SCN}, v{SCN+1}
    v_add_u32 v{SCN+5}, v{SCN+4}, v{SCN+2}
    v_add_u32 v{SCN+6}, v{SCN+5}, v{SCN+3}
    s_nop 1
    v_mov_b32_dpp v{SCN+7}, v{SCN+6} quad_perm:[0,0,1,2] row_mask:0xf bank_mask:0xf
    v_cndmask_b32 v{SCN+7}, 0, v{SCN+7}, vcc
    v_add_u32 v{SCN+7}, v{SCN+7}, v{SCN+6}
    s_nop 1
    v_mov_b32_dpp v{SCN+8}, v{SCN+7} quad_perm:[0,0,0,1] row_mask:0xf bank_mask:0xf
    v_cndmask_b32 v{SCN+8}, 0, v{SCN+8}, {sr(S_TM)}
    v_add_u32 v{SCN+8}, v{SCN+8}, v{SCN+7}
    v_sub_u32 v{SCN+8}, v{SCN+8}, v{SCN+6}
    v_add_u32 v{SCN+9}, v{SCN+8}, v{SCN}
    v_add_u32 v{SCN+10}, v{SCN+8}, v{SCN+4}
    v_add_u32 v{SCN+11}, v{SCN+8}, v{SCN+5}
    s_mov_b32 exec_hi, 0xffff
    ds_write_b128 v{T}, {vr(SCN+8,4)} offset:{L_BASE}
    """)
    for k in range(9):
        if k == 6:
            a(f"s_cmp_eq_u32 s{S_ANY2}, 0")
            a("s_cbranch_scc1 M_sb8")
        a(f"""
        s_mov_b64 exec, {sr(MK[k])}
        {"s_cbranch_execz M_sb" + str(k) if k >= 9 else ""}
        ds_read_b32 v{BAS+k}, v{BAS+k} offset:{L_BASE}
        """)
        a.label(f"M_sb{k}")
    a("s_branch M_place")
    a.label("M_append")
    for k in range(9):
        a(f"""
        s_mov_b64 exec, {sr(MK[k])}
        v_lshlrev_b32 v{T+1}, 2, v{CTR+k}
        v_lshlrev_b32 v{T}, 6, v{CTR+k}
        ds_add_rtn_u32 v{RNK+k}, v{T+1}, v{ONE} offset:{L_ACNT}
        ds_read_b32 v{BAS+k}, v{T} offset:{L_BASE+60}
        ds_read_b32 v{T+2}, v{T} offset:{L_CC+60}
        s_waitcnt lgkmcnt(0)
        v_add_u32 v{BAS+k}, v{BAS+k}, v{T+2}
        """)
    a.label("M_place")
    a(f"""
    s_mov_b64 exec, -1
    s_mov_b64 {sr(S_PEND)}, 0
    s_mov_b32 s{S_T}, {L_LIST}
    s_movk_i32 s{S_T+2}, {CAP}
    s_mov_b32 s{S_FIRST}, 1
    """)
    for k in range(9):
        if k == 6:
            a(f"s_cmp_eq_u32 s{S_ANY2}, 0")
            a("s_cbranch_scc1 M_se8")
        a(f"""
        {"s_cmp_eq_u64 " + sr(MK[k]) + ", 0" if k >= 3 else ""}
        {"s_cbranch_scc1 M_se" + str(k) if k >= 3 else ""}
        v_bfe_u32 v{T+1}, v{L+4*k+2}, 14, 2
        v_and_b32 v{L+4*k+2}, 0x3fff, v{L+4*k+2}
        v_lshlrev_b32 v{L+4*k+3}, v{T+1}, v{ONE}
        v_lshlrev_b32 v{L+4*k+2}, 10, v{L+4*k+2}
        v_mul_u32_u24 v{CTR+k}, s{S_T+2}, v{CTR+k}
        """)
        a.label(f"M_se{k}")
    a("s_waitcnt lgkmcnt(0)")
    for k in range(9):
        if k == 6:
            a(f"s_cmp_eq_u32 s{S_ANY2}, 0")
            a("s_cbranch_scc1 M_sp8")
        m = sr(MK[k])
        a(f"""
        s_mov_b64 exec, {m}
        {"s_cbranch_execz M_sp" + str(k) if k >= 3 else ""}
        v_add_u32 v{RNK+k}, v{RNK+k}, v{BAS+k}
        v_cmp_gt_u32 vcc, s{S_T+2}, v{RNK+k}
        v_add_u32 v{T}, v{CTR+k}, v{RNK+k}
        v_lshl_add_u32 v{CTR+k}, v{T}, 4, s{S_T}
        s_andn2_b64 {sr(S_TM)}, {m}, vcc
        s_or_b64 {sr(S_PEND)}, {sr(S_PEND)}, {sr(S_TM)}
        s_mov_b64 exec, vcc
        ds_write_b128 v{CTR+k}, {vr(L+4*k,4)}
        v_or_b32 v{V_DONE}, {1<<k}, v{V_DONE}
        """)
        a.label(f"M_sp{k}")
    a(f"""
    s_mov_b64 exec, -1
    v_mov_b32 v{T+2}, {L_MORE}
    v_max3_i32 v{T}, v{REM}, v{REM+1}, v{REM+2}
    s_mov_b64 exec, {sr(S_PEND)}
    ds_write_b32 v{T+2}, v{ONE}
    s_andn2_b64 {sr(S_ACT)}, {sr(S_ACT)}, {sr(S_PEND)}
    s_mov_b64 exec, {sr(S_ACT)}
    v_add_u32 v{V_JB}, 24, v{V_JB}
    v_mov_b32 v{V_DONE}, 0
    v_cmp_lt_i32 vcc, 24, v{T}
    s_mov_b64 exec, -1
    s_cmp_lg_u64 vcc, 0
    s_cbranch_scc1 M_window
    s_lshl_b32 s{S_T}, s{S_G}, 6
    v_mov_b32 v{T}, s{S_T}
    s_lshl_b32 s{S_T}, s{S_G}, 2
    v_mov_b32 v{T+1}, s{S_T}
    s_waitcnt lgkmcnt(0)
    """)
    stamp(a, 15)
    if OPT.get("dl15"): a(f"s_sleep {OPT['dl15']}")
    a(f"""
    s_barrier
    ds_read_b32 v{V_A[0]}, v{T} offset:{L_BASE+60}
    ds_read_b32 v{V_A[0]+1}, v{T} offset:{L_CC+60}
    ds_read_b32 v{V_A[0]+2}, v{T+1} offset:{L_ACNT}
    ds_read_b32 v{V_A[0]+3}, v{T+2}
    v_and_b32 v{T}, 63, v0
    v_mov_b32 v{V_B[0]}, {OOBOFF}
    v_mov_b32 v{V_B[0]+1}, 0
    s_mov_b32 s{S_S1}, 0
    s_mov_b32 s{S_S2}, 0
    s_mov_b32 s{S_B1}, 0
    s_mov_b32 s{S_SPIN2}, {1 << 22}
    s_mov_b32 s{S_PLO}, 0x05040100
    s_mov_b32 s{S_PHI}, 0x07060302
    s_waitcnt lgkmcnt(0)
    v_add3_u32 v{T+1}, v{V_A[0]}, v{V_A[0]+1}, v{V_A[0]+2}
    v_readfirstlane_b32 s{S_MORE}, v{V_A[0]+3}
    v_readfirstlane_b32 s{S_T}, v{T+1}
    s_min_u32 s{S_T}, s{S_T}, {CAP}
    s_add_u32 s{S_S}, s{S_T}, 31
    s_lshr_b32 s{S_S}, s{S_S}, 5
    s_max_u32 s{S_S}, s{S_S}, 1
    s_lshl_b32 s{S_T+1}, s{S_S}, 5
    v_add_u32 v{T}, s{S_T}, v{T}
    v_cmp_gt_u32 vcc, s{S_T+1}, v{T}
    s_mul_i32 s{S_T+2}, s{S_G}, {CAP*16}
    s_add_u32 s{S_T+2}, s{S_T+2}, {L_LIST+8}
    v_lshl_add_u32 v{T}, v{T}, 4, s{S_T+2}
    s_mov_b64 exec, vcc
    ds_write_b64 v{T}, {vr(V_B[0],2)}
    s_mov_b64 exec, -1
    s_sub_u32 s{S_NLAST}, s{S_T}, s{S_T+1}
    s_add_u32 s{S_NLAST}, s{S_NLAST}, 35
    s_lshr_b32 s{S_NLAST}, s{S_NLAST}, 2
    """)
    meta_reads(a)
    a(f"""
    s_cmp_gt_u32 s{S_S}, 2
    s_cbranch_scc1 M_nozl
    """)
    for k in range(32):
        a(f"v_mov_b32 v{V_L[0]+k}, 0")
    a(f"""
    s_cmp_ge_u32 s{S_G}, {16 if OPT.get("db") else 4}
    s_cbranch_scc1 M_nozl
    """)
    for k in range(32):
        a(f"v_mov_b32 v{V_L[1]+k}, 0")
    a.label("M_nozl")
    stamp(a, 2)
    setprio(a, 0)
    a(f"""
    s_waitcnt lgkmcnt(0)
    s_cmp_ge_u32 s{S_G}, {16 if OPT.get("db") else 4}
    s_cbranch_scc1 M_sglb
    """)
    stage_x(a, 0, "i", wait=False)
    a.label("M_goi")
    advance(a)
    a(f"s_mov_b32 s{S_FIRST}, 1")
    for p in range(2):
        a.label(f"M_it{p}")
        a(f"""
        s_waitcnt lgkmcnt(0)
        s_cmp_eq_u32 s{S_B1}, 1024
        s_cbranch_scc1 M_w{p}_0
        """)
        if OPT.get("hx"):
            a(f"""
            s_cmp_ge_u32 s{S_B1}, {OPT['hx']}
            s_cbranch_scc1 M_hx{p}
            s_waitcnt vmcnt({OPT.get('hw', 0)})
            """)
            a.label(f"M_hx{p}")
        stage_x(a, p ^ 1, str(p))
        a.label(f"M_go{p}")
        a(f"""
        s_cmp_eq_u32 s{S_FIRST}, 0
        s_cbranch_scc1 M_cn{p}
        """)
        compute(a, p, True)
        a(f"s_branch M_cd{p}")
        a.label(f"M_cn{p}")
        compute(a, p, False)
        a.label(f"M_cd{p}")
        a(f"""
        s_mov_b32 s{S_FIRST}, 0
        s_cmp_lg_u32 s{S_S1}, 0
        s_cbranch_scc1 M_nofl{p}
        s_mov_b32 s{S_FIRST}, 1
        s_call_b64 {sr(S_RET)}, M_flush
        s_cmp_eq_u32 s{S_B1}, 1024
        s_cbranch_scc1 M_end
        """)
        a.label(f"M_nofl{p}")
        advance(a)
        if p == 1:
            a("s_branch M_it0")
    def prep():
        for i in range(0, 8, 2):
            a(f"v_pk_add_f32 {vr(V_IX+i,2)}, {vr(V_IX+i,2)}, {vr(V_N16,2)}")
        a(f"""
        v_bfe_i32 v{V_OH}, v{V_OH}, v{V_C}, 1
        v_bfe_i32 v{V_OH+1}, v{V_OH+1}, v{V_C}, 1
        v_and_b32 v{V_OH}, v{V_OH}, v{V_CA}
        v_and_b32 v{V_OH+1}, v{V_OH+1}, v{V_CA}
        """)
    def load(i):
        a(f"buffer_load_dwordx4 {vr(V_L[0]+4*i,4)}, v{V_IX+i}, {sr(S_X,4)}, s{S_B1} offen")
    a.label("M_sglb")
    a(f"s_mov_b32 s{S_FLP}, 0")
    prep()
    tick(a, None)
    a.label("M_its")
    a(f"""
    s_add_u32 s{S_S2}, s{S_S1}, 1
    s_cmp_eq_u32 s{S_S2}, s{S_S}
    s_cbranch_scc1 M_parts
    """)
    a.label("M_fulls")
    for i in range(8): load(i)
    a("s_branch M_pms")
    a.label("M_parts")
    a(f"""
    s_mov_b32 s{S_S2}, 0
    s_cmp_eq_u32 s{S_NLAST}, 8
    s_cbranch_scc1 M_fulls
    """)
    for i in range(7):
        a(f"s_cmp_eq_u32 s{S_NLAST}, {i}")
        a(f"s_cbranch_scc1 M_pms")
        load(i)
    a.label("M_pms")
    tick(a, 1)
    a(f"""
    ds_read_b64_tr_b16 {vr(V_A[0],2)}, v{V_OH}
    ds_read_b64_tr_b16 {vr(V_A[0]+2,2)}, v{V_OH+1} offset:256
    """)
    meta_reads(a)
    a(f"""
    s_cmp_eq_u32 s{S_FLP}, 0
    s_cbranch_scc1 M_nofls
    """)
    a.label("M_dofl")
    a(f"""
    s_call_b64 {sr(S_RET)}, M_flush
    s_cmp_eq_u32 s{S_B1}, 1024
    s_cbranch_scc1 M_end
    s_cmp_lg_u32 s{S_B1}, {OPT.get("midb", 512)}
    s_cbranch_scc1 M_nofls
    s_cmp_lg_u32 s{S_MORE}, 0
    s_cbranch_scc1 M_nofls
    """)
    mid_stage(a)
    a.label("M_nofls")
    a("s_waitcnt lgkmcnt(0)")
    prep()
    tick(a, 13)
    if OPT.get("prof"):
        a("s_waitcnt vmcnt(0)")
        tick(a, 15)
        a(f"s_add_u32 s{S_ST+8}, s{S_ST+8}, 1")
    a(f"""
    s_cmp_eq_u32 s{S_S1}, 0
    s_mov_b32 s{S_S1}, s{S_S2}
    s_waitcnt vmcnt(0)
    s_cbranch_scc0 M_cns
    """)
    compute(a, 0, True)
    a("s_branch M_cds")
    a.label("M_cns")
    compute(a, 0, False)
    a.label("M_cds")
    tick(a, 3)
    a(f"""
    s_cmp_eq_u32 s{S_S2}, 0
    s_cselect_b32 s{S_FLP}, 256, 0
    s_add_u32 s{S_B1}, s{S_B1}, s{S_FLP}
    s_cmp_eq_u32 s{S_B1}, 1024
    s_cbranch_scc0 M_its
    s_cmp_lg_u32 s{S_MORE}, 0
    s_cbranch_scc1 M_dofl
    """)
    wload(a, V_T+2, [12, 13, 14, 15, 16, 17, 18, 19])
    a("s_branch M_dofl")
    flush_sub(a)
    a.label("M_end")
    a(f"""
    s_cmp_eq_u32 s{S_MORE}, 0
    s_cbranch_scc1 M_gemm
    s_mov_b32 s{S_RND}, 1
    s_waitcnt lgkmcnt(0)
    s_barrier
    s_branch M_init
    """)
    a.label("M_gemm")
    if OPT.get("nogemm"): a("s_endpgm")
    gemm(a)
    a.label("M_done")
    a("s_endpgm")

OACC = {(0, 0): 8, (1, 0): 20, (2, 0): 36}
O1 = [(0, 1), (0, 2), (0, 3), (1, 1), (1, 2), (1, 3), (2, 1), (2, 3)]
for n_, k_ in enumerate(O1): OACC[k_] = 136 + 4*n_

def wflag_spin(a, tag, va, vd):
    a(f"""
    s_sub_u32 s{S_T}, s{S_G}, 4
    s_mul_i32 s{S_T}, s{S_T}, {20*1024}
    s_lshl_b32 s{S_T+1}, s2, 2
    s_add_u32 s{S_T}, s{S_T}, s{S_T+1}
    s_add_u32 s{S_T}, s{S_T}, {WS_WFLAG}
    v_and_b32 v{va}, 63, v0
    v_min_u32 v{va}, 19, v{va}
    v_lshl_add_u32 v{va}, v{va}, 10, s{S_T}
    """)
    a.label(f"M_wfchk{tag}")
    a(f"""
    global_load_dword v{vd}, v{va}, {sr(S_WSB)} sc1
    s_waitcnt vmcnt(0)
    v_cmp_eq_u32 vcc, s{S_NON}, v{vd}
    s_cmp_eq_u64 vcc, -1
    s_cbranch_scc1 M_wfld{tag}
    s_sub_u32 s{S_SPIN}, s{S_SPIN}, 1
    s_cmp_gt_i32 s{S_SPIN}, 0
    s_cbranch_scc1 M_wfchk{tag}
    """)
    a.label(f"M_wfld{tag}")

def mid_stage(a):
    B0 = 7; DL = 19; X0 = 12; X2 = 13; XP = 14; TT = 15
    bufs = [40, 44, 64, 68, 72, 76]
    TR = {k: 48 + 4*n for n, k in enumerate(O1[4:])}
    a(f"""
    s_cmp_lg_u32 s{S_WOK}, 0
    s_cbranch_scc1 M_midw
    """)
    wflag_spin(a, "m", X0, X2)
    wload(a, X0, [0, 1, 2, 3, 8, 9, 10, 11])
    a(f"""
    s_waitcnt vmcnt(0)
    s_mov_b32 s{S_WOK}, 1
    """)
    a.label("M_midw")
    a(f"""
    v_mov_b32 v{XP}, {L_FC0}
    ds_read_b32 v{TT}, v{XP}
    v_and_b32 v{X0}, 15, v0
    v_bfe_u32 v{X2}, v0, 4, 2
    v_mul_u32_u24 v{DL}, {PSTR}, v{X0}
    v_xor_b32 v{B0}, v{X2}, v{X0}
    v_lshl_add_u32 v{B0}, v{B0}, 4, v{DL}
    v_add_u32 v{B0}, {L_P}, v{B0}
    v_lshrrev_b32 v{DL}, 3, v{X0}
    v_mul_i32_i24 v{DL}, {768 - 8*PSTR}, v{DL}
    """)
    a.label("M_midf")
    a(f"""
    s_waitcnt lgkmcnt(0)
    v_readfirstlane_b32 s{S_T}, v{TT}
    s_cmp_ge_u32 s{S_T}, {NG}
    s_cbranch_scc1 M_midg
    s_sleep 1
    ds_read_b32 v{TT}, v{XP}
    s_sub_u32 s{S_SPIN2}, s{S_SPIN2}, 1
    s_cmp_gt_i32 s{S_SPIN2}, 0
    s_cbranch_scc1 M_midf
    s_waitcnt lgkmcnt(0)
    """)
    a.label("M_midg")
    steps = []
    for k4 in range(4):
        for t in range(3): steps.append((t, 0, 0, k4, k4))
    for k4 in range(4):
        for (t, o) in O1[4:] + O1[:4]: steps.append((t, o, comp011(o-1), k4, 8 + k4))
    NBF = len(bufs)
    cur = [None]
    def rd(n):
        t, o, c, k4, ws = steps[n]
        key = (k4, ws >= 8)
        if cur[0] != key:
            cur[0] = key
            a(f"v_xor_b32 v{X0}, {64*k4}, v{B0}")
            a(f"v_add_u32 v{X2}, {32*PSTR}, v{X0}")
            if ws >= 8: a(f"v_add_u32 v{XP}, v{X2}, v{DL}")
        base = X0 if t < 2 else (XP if o == 1 else X2)
        off = c*256 + (16*PSTR if t == 1 else 0)
        a(f"ds_read_b128 {vr(bufs[n % NBF],4)}, v{base} offset:{off}")
    for n in range(NBF - 1): rd(n)
    for n in range(len(steps)):
        t, o, c, k4, ws = steps[n]
        if n + NBF - 1 < len(steps): rd(n + NBF - 1)
        a(f"s_waitcnt lgkmcnt({min(NBF - 1, len(steps) - 1 - n)})")
        acc = vr(TR.get((t, o), OACC[(t, o)]), 4)
        a(f"v_mfma_f32_16x16x32_bf16 {acc}, {vr(WREG[ws],4)}, {vr(bufs[n % NBF],4)}, {'0' if k4 == 0 else acc}")
    for k in O1[4:]:
        for r in range(4): a(f"v_mov_b32 v{OACC[k]+r}, v{TR[k]+r}")

def gemm(a):
    BB = 40; NBB = 6
    PKB = 80; PKO = 0; T2B = 76; LN = 16; OA = 17; WA = 18
    def store_row(rho_s, vb, light):
        a(f"""
        s_mul_i32 s{S_T}, s{rho_s}, {OSTR}
        s_add_u32 s{S_T}, s{S_T}, {L_LIST}
        v_add_u32 v{WA}, s{S_T}, v{LN}
        ds_read_b128 {vr(vb,4)}, v{WA}
        """)
    def row_off(rho_s, dst, light):
        if light:
            a(f"""
            s_sub_u32 s{S_T}, s{rho_s}, 16
            s_lshr_b32 s{S_T+1}, s{S_T}, 3
            s_and_b32 s{S_T}, s{S_T}, 7
            s_add_u32 s{S_T}, s{S_T}, 4
            """)
        else:
            a(f"""
            s_lshr_b32 s{S_T+1}, s{rho_s}, 2
            s_and_b32 s{S_T}, s{rho_s}, 3
            """)
        a(f"""
        s_mul_i32 s{S_T+1}, s{S_T+1}, 12
        s_add_u32 s{S_T}, s{S_T}, s{S_T+1}
        s_lshl_b32 s{S_T}, s{S_T}, 18
        s_lshl_b32 s{S_T+1}, s3, 10
        s_add_u32 s{S_T}, s{S_T}, s{S_T+1}
        v_add_u32 v{dst}, s{S_T}, v{LN}
        """)
    a(f"""
    s_setprio {OPT.get("pg", 0)}
    s_waitcnt lgkmcnt(0)
    v_and_b32 v{LN}, 63, v0
    s_cmp_ge_u32 s{S_G}, 4
    s_cbranch_scc1 M_gw
    v_lshlrev_b32 v{LN}, 4, v{LN}
    """)
    for k in range(6):
        a(f"s_add_u32 s{S_T+3}, s{S_G}, {16 + 4*k}")
        row_off(S_T+3, 40 + k, True)
    a(f"""
    s_mul_i32 s{S_T}, s{S_G}, {OSTR}
    s_add_u32 s{S_T}, s{S_T}, {L_LIST + 16*OSTR}
    v_add_u32 v{WA}, s{S_T}, v{LN}
    s_waitcnt lgkmcnt(0)
    s_barrier
    """)
    for k in range(6):
        a(f"ds_read_b128 {vr(48+4*k,4)}, v{WA} offset:{4*OSTR*k}")
    for k in range(6):
        a(f"s_waitcnt lgkmcnt({5-k})")
        a(f"buffer_store_dwordx4 {vr(48+4*k,4)}, v{40+k}, {sr(S_OUT,4)}, 0 offen {fl('of')}")
    a("s_branch M_st")
    a.label("M_gw")
    a(f"""
    s_waitcnt lgkmcnt(0)
    """)
    late = [12, 13, 14, 15, 16, 17, 18, 19, 4, 5, 6, 7]
    wload(a, WA, [4, 5, 6, 7])
    a(f"""
    v_mov_b32 v14, {L_FC}
    ds_read_b32 v15, v14
    v_and_b32 v12, 15, v{LN}
    v_lshrrev_b32 v13, 4, v{LN}
    v_mul_u32_u24 v{OA}, {PSTR}, v12
    v_xor_b32 v1, v13, v12
    v_lshl_add_u32 v1, v1, 4, v{OA}
    v_add_u32 v1, {L_P}, v1
    v_xor_b32 v2, 64, v1
    v_xor_b32 v3, 128, v1
    v_xor_b32 v4, 192, v1
    """)
    setup = [f"v_add_u32 v{T2B+k4}, {32*PSTR}, v{1+k4}" for k4 in range(4)]
    setup += [f"v_lshrrev_b32 v{PKO}, 3, v12", f"v_mul_i32_i24 v{PKB+3}, {768 - 8*PSTR}, v{PKO}"]
    setup += [f"v_add_u32 v{PKB+k4}, v{T2B+k4}, v{PKB+3}" for k4 in range(4)]
    setup += [f"s_lshl_b32 s{S_T+1}, s{S_G}, 5", f"s_add_u32 s{S_T+1}, s{S_T+1}, {L_LIST - 128}",
              f"v_mul_u32_u24 v{OA}, {OSTR}, v12", f"v_lshl_add_u32 v{OA}, v13, 3, v{OA}", f"v_add_u32 v{OA}, s{S_T+1}, v{OA}",
              f"v_mul_i32_i24 v{PKO}, {256 - 8*OSTR}, v{PKO}", f"v_add_u32 v{PKO}, v{PKO}, v{OA}",
              f"s_mov_b32 s{S_T+2}, 0xbfb8aa3b", f"v_lshlrev_b32 v{LN}, 4, v{LN}"]
    for x in setup: a(x)
    def spin(tag, off, n):
        a.label(f"M_fcw{tag}")
        a(f"""
        s_waitcnt lgkmcnt(0)
        v_readfirstlane_b32 s{S_T}, v15
        s_cmp_ge_u32 s{S_T}, {n}
        s_cbranch_scc1 M_fcok{tag}
        s_sleep 1
        ds_read_b32 v15, v14 offset:{off}
        s_sub_u32 s{S_SPIN2}, s{S_SPIN2}, 1
        s_cmp_gt_i32 s{S_SPIN2}, 0
        s_cbranch_scc1 M_fcw{tag}
        s_waitcnt lgkmcnt(0)
        """)
        a.label(f"M_fcok{tag}")
    spin("a", 0, NG)
    if not OPT.get("pst"): stamp(a, 12)
    st1 = []
    for k4 in range(4):
        for t in range(3):
            st1.append((t, 1, comp101(0), k4, 12 + k4))
            st1.append((t, 2, comp101(1), k4, 12 + k4))
    for k4 in range(4):
        for t in range(3):
            st1.append((t, 3, comp111(2), k4, 16 + k4))
    st1 = [x for x in st1 if not (x[0] == 2 and x[1] == 2)]
    def late_steps(tiles):
        st = []
        for k4 in range(4):
            for t in tiles: st.append((t, 0, 1, k4, 4 + k4))
        for t in tiles:
            for k4 in range(4):
                st.append((t, 3, comp101(2), k4, 12 + k4))
                st.append((t, 1, comp111(0), k4, 16 + k4))
                st.append((t, 2, comp111(1), k4, 16 + k4))
        return [x for x in st if not (x[0] == 2 and x[1] == 2)]
    started = set()
    wmax = [-1]
    def run(steps, fill):
        q = []
        def rd(n):
            t, o, c, k4, ws = steps[n]
            base = (1 + k4) if t < 2 else ((PKB + k4) if o == 1 else (T2B + k4))
            off = c*256 + (16*PSTR if t == 1 else 0)
            a(f"ds_read_b128 {vr(BB+4*(n%NBB),4)}, v{base} offset:{off}")
            q.append(n)
        n_steps = len(steps)
        for n in range(NBB - 1): rd(n)
        for n in range(n_steps):
            t, o, c, k4, ws = steps[n]
            if n + NBB - 1 < n_steps: rd(n + NBB - 1)
            pend = len(q) - 1 - q.index(n)
            assert pend <= 15
            idx = late.index(ws) if ws in late else -1
            w = f"lgkmcnt({pend})"
            if idx > wmax[0]:
                w = f"vmcnt({len(late) - 1 - idx}) " + w
                wmax[0] = idx
            a("s_waitcnt " + w)
            acc = vr(OACC[(t, o)], 4)
            first = False
            a(f"v_mfma_f32_16x16x32_bf16 {acc}, {vr(WREG[ws],4)}, {vr(BB+4*(n%NBB),4)}, {'0' if first else acc}")
            for x in fill.get(n, []):
                a(x)
                if x.startswith("ds_"): q.append(-1)
    GT = 64
    def gate_ops(t):
        A0 = OACC[(t, 0)]; g = GT + 4*t
        o = [f"v_mul_f32 v{g+r}, s{S_T+2}, v{A0+r}" for r in range(4)]
        o += [f"v_exp_f32 v{g+r}, v{g+r}" for r in range(4)]
        o += [f"v_cvt_pk_bf16_f32 v{A0}, v{A0}, v{A0+1}", f"v_cvt_pk_bf16_f32 v{A0+1}, v{A0+2}, v{A0+3}"]
        o += [f"ds_write_b64 v{OA}, {vr(A0,2)} offset:{16*OSTR*t}"]
        o += [f"v_add_f32 v{g+r}, 1.0, v{g+r}" for r in range(4)]
        o += [f"v_rcp_f32 v{g+r}, v{g+r}" for r in range(4)]
        if t == 2:
            o += ["s_nop 1"]
            o += [f"v_mov_b32_dpp v{g+r}, v{g+r} row_shr:8 row_mask:0xf bank_mask:0xc" for r in range(4)]
        return o
    def fin_ops(t):
        o = []
        for i in ([2, 0, 1] if t < 2 else [2, 0]):
            B0 = OACC[(t, 1 + i)]
            o += [f"v_pk_mul_f32 {vr(B0+r,2)}, {vr(B0+r,2)}, {vr(GT+4*t+r,2)}" for r in (0, 2)]
            o += [f"v_cvt_pk_bf16_f32 v{B0}, v{B0}, v{B0+1}", f"v_cvt_pk_bf16_f32 v{B0+1}, v{B0+2}, v{B0+3}"]
            if t == 2 and i == 0: o += [f"ds_write_b64 v{PKO}, {vr(B0,2)} offset:{32*OSTR + 256}"]
            else: o += [f"ds_write_b64 v{OA}, {vr(B0,2)} offset:{16*OSTR*t + 256*(i+1)}"]
        return o
    def spread(fill, ops, n0, n1):
        cnt = n1 - n0
        for j, op in enumerate(ops):
            fill.setdefault(n0 + j * cnt // len(ops), []).append(op)
    f1 = {}
    f1.setdefault(len(st1) - 4, []).append(f"ds_read_b32 v15, v14 offset:4")
    run(st1, f1)
    a("s_setprio 0")
    spin("b", 4, 8)
    f2 = {}
    spread(f2, gate_ops(1) + gate_ops(2), 11, 23)
    spread(f2, fin_ops(1), 23, 27)
    run(late_steps([1, 2]), f2)
    a("s_nop 5")
    for x in fin_ops(2): a(x)
    a("s_waitcnt lgkmcnt(0)")
    if not OPT.get("pst"): stamp(a, 14)
    a("s_barrier")
    stamp(a, 7)
    f3 = {}
    spread(f3, gate_ops(0), 7, 15)
    run(late_steps([0]), f3)
    a("s_nop 5")
    for x in fin_ops(0): a(x)
    a.label("M_st")
    row_off(S_G, 12, False)
    a(f"""
    s_add_u32 s{S_T+3}, s{S_G}, 8
    """)
    row_off(S_T+3, 13, False)
    a(f"""
    s_mul_i32 s{S_T}, s{S_G}, {OSTR}
    s_add_u32 s{S_T}, s{S_T}, {L_LIST}
    v_add_u32 v{WA}, s{S_T}, v{LN}
    s_waitcnt lgkmcnt(0)
    s_barrier
    """)
    stamp(a, 8)
    a(f"""
    ds_read_b128 v[72:75], v{WA}
    s_and_b32 s{S_T}, s{S_G}, 12
    s_cmp_lg_u32 s{S_T}, 4
    s_cbranch_scc1 M_st3
    ds_read_b128 v[76:79], v{WA} offset:{8*OSTR}
    s_waitcnt lgkmcnt(0)
    buffer_store_dwordx4 v[76:79], v13, {sr(S_OUT,4)}, 0 offen {fl('of')}
    """)
    a.label("M_st3")
    a(f"""
    s_waitcnt lgkmcnt(0)
    buffer_store_dwordx4 v[72:75], v12, {sr(S_OUT,4)}, 0 offen {fl('of')}
    """)
    stamp_dump(a)

def kd(a, name, vg, sg):
    acc = (vg + 3) // 4 * 4
    a.raw(f""".p2align 6
.amdhsa_kernel {name}
  .amdhsa_next_free_vgpr {vg}
  .amdhsa_next_free_sgpr {sg}
  .amdhsa_accum_offset {acc}
  .amdhsa_group_segment_fixed_size 0
  .amdhsa_kernarg_size 96
  .amdhsa_user_sgpr_count 2
  .amdhsa_user_sgpr_kernarg_segment_ptr 1
  .amdhsa_system_sgpr_workgroup_id_x 1
  .amdhsa_float_denorm_mode_32 3
.end_amdhsa_kernel""")

def main():
    global DBG
    OPT.update(dict(x.split("=") for x in sys.argv[2:]))
    DBG = bool(int(OPT.get("dbg", 0)))
    a = Asm()
    ref = open(f"cdna_kernels/{NAME}.s.ref").read().split("\n")
    for ln in ref:
        if ln.startswith(";") and "@launch" not in ln and "Override" not in ln and "grid=ceil" not in ln:
            a.raw(ln)
    a.raw(f"; @launch kernel={NAME}_kernel grid=({NB},1,1) block=({NT},1,1) lds={L_TOT}")
    a.raw('.amdgcn_target "amdgcn-amd-amdhsa--gfx950"')
    a.raw(".text")
    gen_main(a)
    a.raw('.section .rodata,"a"')
    kd(a, NAME + "_kernel", NVG, 102 if DBG else (74 if OPT.get('spinat') else 70))
    open(sys.argv[1], "w").write(a.text())

main()
```

```python
import sys

NAME = "gather_scatter__tensor_product_equiv_equiformer__graph"
N = 10000
E = 320000
NB = 256
CH = 1250
CHS = 1280
WS_OFF = 0x500000
WS_WF = 0x600000
WS_WFLAG = 0x640000
WS_PF32 = 0x1000000
SPIN_MAX = 1 << 18
TAGM = 0xffc00000

NG = 12
NT = NG * 64
CAP = 224
PSTR = 2816
L_CC = 512
L_BASE = L_CC + NG * 64
L_ACNT = L_BASE + NG * 64
L_MORE = L_ACNT + 60
L_NONCE = L_ACNT + 64
L_FC3 = L_ACNT + 84
L_FC0 = L_ACNT + 88
L_FC = L_ACNT + 80
OSTR = 1040
L_P = L_ACNT + 256
L_LIST = L_P + 40 * PSTR
L_TOT = L_LIST + NG * CAP * 16
assert L_TOT <= 163840 and L_P % 256 == 0
OOBOFF = 0x00FFFC00

OPT = {}
DBG = False

class Asm:
    def __init__(self):
        self.l = []
    def __call__(self, s):
        for x in s.split("\n"):
            x = x.strip()
            if x:
                self.l.append("    " + x)
    def label(self, s):
        self.l.append(s + ":")
    def raw(self, s):
        self.l.append(s)
    def text(self):
        return "\n".join(self.l) + "\n"

def vr(a, n):
    return f"v[{a}:{a+n-1}]"
def sr(a, n=2):
    return f"s[{a}:{a+n-1}]"
def fl(k):
    return OPT.get(k, {'of': 'sc1'}.get(k, '')).replace('+', ' ')

V_C = 1; V_N16 = 2; V_VS = 4; V_VC = 5; V_PB = 6; V_JB = 7; V_DONE = 8
V_OFF = 9
V_T = 12
V_OH = 16; V_CA = 18; V_TCH = 19
V_SC = 20; V_IX = 24
V_A = [32, 36]
V_B = [40, 44]
V_ACC = 48
V_SV = 80
V_L = [104, 136]
NVG = 168
S_X = 4; S_OUT = 8; S_REC = 12; S_OFFS = 16; S_WF = 20
S_G = 22; S_S = 23; S_S1 = 24; S_B1 = 25; S_S2 = 26; S_PLO = 27; S_PHI = 28; S_NLAST = 29
S_RND = 30; S_MORE = 31; S_T = 32
S_M = 40
S_IN = 40
S_ACT = 52; S_PEND = 54; S_TM = 56; S_FEX = 58; S_RET = 60; S_HI = 62; S_FIRST = 63
S_NON = 64; S_DBG = 66; S_WSB = 68; S_SPIN = 0; S_WOK = 1; S_FLP = 63; S_ANY2 = 23; S_SPIN2 = 50
S_ST = 70

def pa(a, k):
    if OPT.get("pa"): a(f"s_memtime {sr(S_ST+2*k)}")
spn = [0]
def stamp(a, k, real=False):
    if OPT.get("spinat") and int(OPT["spinat"]) == k:
        spn[0] += 1
        a.label(f"D_spin{spn[0]}")
        a(f"""
        s_memrealtime s[70:71]
        s_waitcnt lgkmcnt(0)
        s_sub_u32 s70, s70, s{72 if OPT.get('own') else S_NON}
        s_cmp_lt_u32 s70, {OPT["spint"]}
        s_cbranch_scc1 D_spin{spn[0]}
        """)
    if OPT.get("pa") and k in (4, 5, 6, 7, 8, 14): return
    if OPT.get("prof") and k in (1, 13, 15, 3, 4, 5): return
    if DBG:
        a(f"s_mem{'realtime' if real else 'time'} {sr(S_ST+2*k)}")
def stamp_dump(a):
    if OPT.get("spinat") == "9":
        a("s_waitcnt vmcnt(0)")
        stamp(a, 9)
    if DBG:
        a("s_waitcnt lgkmcnt(0) vmcnt(0)")
        stamp(a, 9)
        stamp(a, 11, True)
        a("s_waitcnt lgkmcnt(0)")
        if OPT.get("hwid"):
            a(f"s_getreg_b32 s{S_ST+26}, hwreg(HW_REG_HW_ID)")
            a(f"s_mov_b32 s{S_ST+27}, 0")
        a(f"s_mul_i32 s{S_T}, s2, {NG}")
        a(f"s_add_u32 s{S_T}, s{S_T}, s{S_G}")
        a(f"s_lshl_b32 s{S_T}, s{S_T}, 7")
        a(f"s_add_u32 s{S_T}, s{S_T}, 0x800000")
        a(f"v_mov_b32 v1, s{S_T}")
        for k in range(0, 32, 2):
            a(f"v_mov_b32 v2, s{S_ST+k}")
            a(f"v_mov_b32 v3, s{S_ST+k+1}")
            a(f"global_store_dwordx2 v1, v[2:3], {sr(S_WSB)} offset:{4*k}")
            a("s_nop 1")

def comp011(i): return 2 + 3*i
def comp101(i): return 3 + 3*i
def comp111(i): return 4 + 3*i

def touch(a, beta, part, va, vd):
    a(f"""
    s_mul_i32 s{S_T+6}, s3, 79
    s_add_u32 s{S_T+6}, s{S_T+6}, {64*part}
    v_and_b32 v{va}, 63, v0
    v_add_u32 v{va}, s{S_T+6}, v{va}
    v_and_b32 v{vd}, 1, v{va}
    v_lshrrev_b32 v{va}, 1, v{va}
    v_lshlrev_b32 v{va}, 10, v{va}
    v_lshl_add_u32 v{va}, v{vd}, 7, v{va}
    """)
    if part: a("s_mov_b64 exec, 0x7fff")
    a(f"buffer_load_dword v{vd}, v{va}, {sr(S_X,4)}, 0 offen offset:{256*beta}")
    if part: a("s_mov_b64 exec, -1")

WREG = {}
for n_, ks_ in enumerate([0, 1, 2, 3, 8, 9, 10, 11]): WREG[ks_] = 136 + 4*n_
for n_, ks_ in enumerate([4, 5, 6, 7, 12, 13, 14, 15, 16, 17, 18, 19]): WREG[ks_] = 88 + 4*n_
def wload(a, va, kss):
    a(f"""
    s_sub_u32 s{S_T+6}, s{S_G}, 4
    s_mul_i32 s{S_T+6}, s{S_T+6}, {20*1024}
    v_and_b32 v{va}, 63, v0
    v_lshl_add_u32 v{va}, v{va}, 4, s{S_T+6}
    """)
    cur = 0
    for ks in kss:
        blk = ks // 4 * 4096
        if blk != cur:
            if blk > cur: a(f"v_add_u32 v{va}, {blk - cur}, v{va}")
            else: a(f"v_subrev_u32 v{va}, {cur - blk}, v{va}")
            cur = blk
        a(f"global_load_dwordx4 {vr(WREG[ks],4)}, v{va}, {sr(S_WF)} offset:{1024*(ks%4)} sc1")

def meta_reads(a):
    a(f"""
    s_lshl_b32 s{S_T}, s{S_S2}, 9
    v_add_u32 v{V_T}, s{S_T}, v{V_VS}
    v_add_u32 v{V_CA}, s{S_T}, v{V_VC}
    """)
    for i in range(0, 8, 2):
        a(f"ds_read2_b32 {vr(V_IX+i,2)}, v{V_T} offset0:{16*i+2} offset1:{16*(i+1)+2}")
    a(f"ds_read2_b32 {vr(V_OH,2)}, v{V_CA} offset0:3 offset1:67")

def stage_x(a, p, tag, wait=True):
    L = V_L[p]; A = V_A[p]
    for i in range(0, 8, 2):
        a(f"v_pk_add_f32 {vr(V_IX+i,2)}, {vr(V_IX+i,2)}, {vr(V_N16,2)}")
    a(f"""
    v_bfe_i32 v{V_OH}, v{V_OH}, v{V_C}, 1
    v_bfe_i32 v{V_OH+1}, v{V_OH+1}, v{V_C}, 1
    s_add_u32 s{S_S2}, s{S_S1}, 1
    v_and_b32 v{V_OH}, v{V_OH}, v{V_CA}
    v_and_b32 v{V_OH+1}, v{V_OH+1}, v{V_CA}
    s_cmp_eq_u32 s{S_S2}, s{S_S}
    ds_read_b64_tr_b16 {vr(A,2)}, v{V_OH}
    ds_read_b64_tr_b16 {vr(A+2,2)}, v{V_OH+1} offset:256
    s_cbranch_scc1 M_part{tag}
    """)
    def load(i):
        a(f"buffer_load_dwordx4 {vr(L+4*i,4)}, v{V_IX+i}, {sr(S_X,4)}, s{S_B1} offen")
    a.label(f"M_full{tag}")
    for i in range(8):
        load(i)
    meta_reads(a)
    if wait: a("s_waitcnt vmcnt(8)")
    a(f"s_branch M_go{tag}")
    a.label(f"M_part{tag}")
    a(f"""
    s_mov_b32 s{S_S2}, 0
    s_cmp_eq_u32 s{S_NLAST}, 8
    s_cbranch_scc1 M_full{tag}
    """)
    for i in range(7):
        a(f"s_cmp_eq_u32 s{S_NLAST}, {i}")
        a(f"s_cbranch_scc1 M_w{tag}_{i}")
        load(i)
    for i in range(7, -1, -1):
        a.label(f"M_w{tag}_{i}")
        if wait:
            a(f"s_waitcnt vmcnt({i})")
            if i > 0: a(f"s_branch M_pm{tag}")
    a.label(f"M_pm{tag}")
    meta_reads(a)

def advance(a):
    a(f"""
    s_mov_b32 s{S_S1}, s{S_S2}
    s_cmp_eq_u32 s{S_S2}, 0
    s_cselect_b32 s{S_T}, 256, 0
    s_add_u32 s{S_B1}, s{S_B1}, s{S_T}
    """)

def compute(a, p, first):
    L = V_L[p]; A = V_A[p]
    def perms(j):
        B = V_B[j % 2]
        sel = S_PHI if j % 2 else S_PLO
        for q in range(4):
            if OPT.get("noperm"): continue
            a(f"v_perm_b32 v{B+q}, v{L+4*(2*q+1)+j//2}, v{L+4*(2*q)+j//2}, s{sel}")
    perms(0)
    for j in range(8):
        if j + 1 < 8:
            perms(j + 1)
        else:
            a("s_nop 1")
        acc = vr(V_ACC+4*j,4)
        if OPT.get("nomfma"): continue
        Bop = vr(L+4*j,4) if OPT.get("noperm") else vr(V_B[j%2],4)
        if OPT.get("swap"): a(f"v_mfma_f32_16x16x32_bf16 {acc}, {Bop}, {vr(A,4)}, {'0' if first else acc}")
        elif OPT.get("m4"):
            a(f"v_mfma_f32_4x4x4_16b_bf16 {acc}, {vr(A,2)}, {vr(V_B[j%2],2)}, {'0' if first else acc}")
            a(f"v_mfma_f32_4x4x4_16b_bf16 {acc}, {vr(A+2,2)}, {vr(V_B[j%2]+2,2)}, {acc}")
        else: a(f"v_mfma_f32_16x16x32_bf16 {acc}, {vr(A,4)}, {Bop}, {'0' if first else acc}")

wc_n = [0]
def write_comp(a, comp, regs):
    n = wc_n[0]; wc_n[0] += 1
    TM = V_B[0]
    a(f"""
    s_or_b32 s{S_T}, s{S_RND}, s{S_MORE}
    s_cmp_eq_u32 s{S_T}, 0
    s_cbranch_scc1 M_wc{n}
    s_mul_i32 s{S_T}, s3, {NG}
    s_add_u32 s{S_T}, s{S_T}, s{S_G}
    s_mul_i32 s{S_T}, s{S_T}, {11*2048}
    s_add_u32 s{S_T}, s{S_T}, {WS_PF32 + comp*2048}
    v_and_b32 v{V_T}, 63, v0
    v_lshl_add_u32 v{V_T}, v{V_T}, 2, s{S_T}
    s_waitcnt lgkmcnt(0)
    s_cmp_eq_u32 s{S_RND}, 0
    s_cbranch_scc1 M_wd{n}
    """)
    for j in range(8):
        a(f"global_load_dword v{TM+j}, v{V_T}, {sr(S_WSB)} offset:{256*j} sc1")
    a("s_waitcnt vmcnt(0)")
    for j in range(8):
        a(f"v_add_f32 v{regs[j]}, v{regs[j]}, v{TM+j}")
    a.label(f"M_wd{n}")
    for j in range(8):
        a(f"global_store_dword v{V_T}, v{regs[j]}, {sr(S_WSB)} offset:{256*j} sc1")
    a("s_waitcnt vmcnt(0)")
    a.label(f"M_wc{n}")
    sc = [V_B[0], V_B[1]][n % 2]
    for d in range(4):
        a(f"v_cvt_pk_bf16_f32 v{sc+d}, v{regs[2*d]}, v{regs[2*d+1]}")
    if comp in (5, 6, 7):
        a(f"""
        s_cmp_ge_u32 s{S_G}, 4
        s_cselect_b32 s{S_TM+1}, 0xffff, 0
        s_mov_b32 s{S_TM}, 0
        v_xor_b32 v{V_T+1}, 128, v{V_PB}
        v_cndmask_b32 v{V_T+1}, v{V_PB}, v{V_T+1}, {sr(S_TM)}
        ds_write_b128 v{V_T+1}, {vr(sc,4)} offset:{comp*256}
        """)
    else:
        a(f"ds_write_b128 v{V_PB}, {vr(sc,4)} offset:{comp*256}")

def setprio(a, ph):
    pl = OPT.get("pl", "3210"); phv = OPT.get("ph", "3210")
    if pl[ph] == phv[ph]:
        a(f"s_setprio {pl[ph]}")
    else:
        a(f"""
        s_setprio {pl[ph]}
        s_cmp_ge_u32 s{S_G}, 4
        s_cbranch_scc1 M_pr{ph}
        s_setprio {phv[ph]}
        """)
        a.label(f"M_pr{ph}")

def tick(a, slot):
    if OPT.get("prof"):
        a(f"""
        s_memtime {sr(S_M)}
        s_waitcnt lgkmcnt(0)
        s_sub_u32 s{S_M+3}, s{S_M}, s{S_M+2}
        s_mov_b32 s{S_M+2}, s{S_M}
        """)
        if slot is not None: a(f"s_add_u32 s{S_ST+2*slot}, s{S_ST+2*slot}, s{S_M+3}")

def flush_sub(a):
    acc = lambda r: [V_ACC + 4*j + r for j in range(8)]
    sv = lambda k: [V_SV + 8*k + j for j in range(8)]
    a.label("M_flush")
    a(f"""
    s_mov_b64 exec, {sr(S_FEX)}
    s_cmp_eq_u32 s{S_B1}, 512
    s_cbranch_scc1 M_fl1
    s_cmp_eq_u32 s{S_B1}, 768
    s_cbranch_scc1 M_fl2
    s_cmp_eq_u32 s{S_B1}, 1024
    s_cbranch_scc1 M_fl3
    s_nop 1
    """)
    def ret(ph, k):
        if not (OPT.get("pst") and k == 3): stamp(a, k)
        if ph is not None: setprio(a, ph)
        a(f"s_mov_b64 exec, -1")
        a(f"s_setpc_b64 {sr(S_RET)}")
    write_comp(a, 0, acc(0))
    for i in range(3): write_comp(a, comp011(i), acc(1+i))
    a(f"""
    s_mov_b64 exec, 1
    v_mov_b32 v{V_T+2}, {L_FC0}
    v_mov_b32 v{V_T+3}, 1
    ds_add_u32 v{V_T+2}, v{V_T+3}
    """)
    a("s_mov_b64 exec, -1")
    for n, b in enumerate(OPT.get("t3", "x").replace("x", "")):
        for k in range(2):
            a(f"s_cmp_lg_u32 s{S_G}, {4+2*n+k}")
            a(f"s_cbranch_scc1 M_t3_{n}_{k}")
            touch(a, int(b), k, V_T+2, V_TCH)
            a.label(f"M_t3_{n}_{k}")
    ret(1, 3)
    a.label("M_fl1")
    a("s_nop 4")
    write_comp(a, comp101(0), acc(0))
    for k in range(3):
        for j in range(8): a(f"v_mov_b32 v{sv(k)[j]}, v{acc(1+k)[j]}")
    ret(2, 4)
    a.label("M_fl2")
    a("s_nop 2")
    write_comp(a, comp101(1), acc(0))
    for j in range(8): a(f"v_sub_f32 v{acc(1)[j]}, v{acc(1)[j]}, v{sv(1)[j]}")
    write_comp(a, comp111(2), acc(1))
    for j in range(8): a(f"v_add_f32 v{sv(0)[j]}, v{sv(0)[j]}, v{acc(2)[j]}")
    for j in range(8): a(f"v_mov_b32 v{sv(1)[j]}, v{acc(3)[j]}")
    a(f"""
    s_mov_b64 exec, 1
    v_mov_b32 v{V_T+2}, {L_FC}
    v_mov_b32 v{V_T+3}, 1
    ds_add_u32 v{V_T+2}, v{V_T+3}
    """)
    ret(3, 5)
    a.label("M_fl3")
    write_comp(a, comp101(2), acc(0))
    for j in range(8): a(f"v_sub_f32 v{sv(2)[j]}, v{sv(2)[j]}, v{acc(1)[j]}")
    write_comp(a, comp111(1), sv(2))
    for j in range(8): a(f"v_sub_f32 v{acc(2)[j]}, v{acc(2)[j]}, v{sv(1)[j]}")
    write_comp(a, comp111(0), acc(2))
    for j in range(8): a(f"v_add_f32 v{sv(0)[j]}, v{sv(0)[j]}, v{acc(3)[j]}")
    write_comp(a, 1, sv(0))
    a(f"""
    s_cmp_lt_u32 s{S_G}, 4
    s_cbranch_scc1 M_fl3b
    s_mov_b64 exec, 1
    v_mov_b32 v{V_T+2}, {L_FC3}
    v_mov_b32 v{V_T+3}, 1
    ds_add_u32 v{V_T+2}, v{V_T+3}
    """)
    a.label("M_fl3b")
    ret(None, 6)

A_H = L_P; A_BS = L_P + 4096; A_STG = L_P + 8192; A_OFS = L_P + 32768

def setup(a):
    a(f"""
    s_mov_b64 {sr(S_X)}, s[36:37]
    s_mov_b64 {sr(S_OUT)}, s[54:55]
    s_mov_b64 {sr(S_WSB)}, s[58:59]
    s_and_b32 s{S_T}, s2, 7
    s_lshr_b32 s2, s2, 3
    s_lshl_b32 s{S_T}, s{S_T}, 5
    s_or_b32 s2, s2, s{S_T}
    s_mov_b32 s{S_X+2}, {N*1024}
    s_mov_b32 s{S_X+3}, 0x20000
    s_mov_b32 s{S_OUT+2}, {N*1024}
    s_mov_b32 s{S_OUT+3}, 0x20000
    s_mov_b32 s{S_REC+2}, {NB*CHS*16}
    s_mov_b32 s{S_REC+3}, 0x20000
    s_mov_b32 s{S_OFFS+2}, {NB*2048}
    s_mov_b32 s{S_OFFS+3}, 0x20000
    s_mov_b32 s{S_HI}, 0xffff0000
    s_mov_b32 s{S_SPIN}, {SPIN_MAX}
    s_mov_b32 s{S_REC}, s{S_WSB}
    s_and_b32 s{S_REC+1}, s{S_WSB+1}, 0xffff
    s_add_u32 s{S_OFFS}, s{S_WSB}, {WS_OFF}
    s_addc_u32 s{S_OFFS+1}, s{S_WSB+1}, 0
    s_add_u32 s{S_WF}, s{S_WSB}, {WS_WF}
    s_addc_u32 s{S_WF+1}, s{S_WSB+1}, 0
    s_and_b32 s{S_OFFS+1}, s{S_OFFS+1}, 0xffff
    s_and_b32 s{S_X+1}, s{S_X+1}, 0xffff
    s_and_b32 s{S_OUT+1}, s{S_OUT+1}, 0xffff
    """)

def cpf(a):
    K = NAME + "_kernel"
    a(f"""
    s_lshr_b32 s{S_T}, s3, 3
    s_cmp_lg_u32 s{S_T}, {OPT.get('cpw', 0)}
    s_cbranch_scc1 A_nocpf
    s_getpc_b64 {sr(60)}
    """)
    a.label("A_pc")
    a(f"""
    s_sub_u32 s{60}, s{60}, A_pc-{K}
    s_subb_u32 s{61}, s{61}, 0
    v_lshlrev_b32 v50, 3, v1
    s_mov_b32 s{S_T}, M_done-{K}
    v_add_u32 v51, 8192, v50
    v_min_u32 v51, s{S_T}, v51
    v_add_u32 v54, 16384, v50
    v_min_u32 v54, s{S_T}, v54
    global_load_dword v52, v50, {sr(60)}
    global_load_dword v53, v51, {sr(60)}
    global_load_dword v55, v54, {sr(60)}
    """)
    a.label("A_nocpf")

def phase_a(a):
    RH = 38; EA = 40; SRC = 42; DST = 44; WR = 46; W0 = 48; W1 = 50
    WSB = sr(S_WSB)
    def read_nonce(wait=True):
        a(f"""
        v_mov_b32 v2, {L_NONCE}
        ds_read_b64 v[2:3], v2
        s_waitcnt lgkmcnt(0)
        v_readfirstlane_b32 s{S_NON}, v2
        v_readfirstlane_b32 s{S_NON+1}, v3
        """)
    a(f"""
    s_cmp_eq_u32 s{S_G}, 10
    s_cbranch_scc1 A_scan
    s_cmp_eq_u32 s{S_G}, 11
    s_cbranch_scc1 A_aux
    s_mov_b64 exec, vcc
    """)
    LB = 0
    if not int(OPT.get("el", 0)):
        a(f"""
        global_load_dwordx3 v[12:14], v7, {sr(RH)} nt
        global_load_dword v18, v20, {sr(EA)} nt
        global_load_dwordx2 v[8:9], v6, {sr(SRC)} nt
        """)
    a(f"""
    v_mov_b32 v23, 1
    """)
    pa(a, 4)
    setup(a)
    a("s_waitcnt vmcnt(3)")
    pa(a, 5)
    for i in range(2):
        a(f"""
        v_and_b32 v{24+i}, 7, v{4+i}
        v_bfe_u32 v1, v{4+i}, 3, 5
        v_lshlrev_b32 v{24+i}, 7, v{24+i}
        v_lshl_or_b32 v{24+i}, v1, 2, v{24+i}
        ds_add_rtn_u32 v{28+i}, v{24+i}, v23 offset:{A_H}
        """)
    a("""
    s_waitcnt lgkmcnt(0)
    s_barrier
    """)
    pa(a, 6)
    for i in range(2):
        a(f"""
        v_lshrrev_b32 v{4+i}, 8, v{4+i}
        v_mul_u32_u24 v1, 43, v{4+i}
        v_lshrrev_b32 v1, 9, v1
        v_mul_u32_u24 v2, 12, v1
        v_sub_u32 v{4+i}, v{4+i}, v2
        v_lshlrev_b32 v1, 14, v1
        v_lshl_or_b32 v{32+4*i+2}, v{4+i}, 16, v1
        """)
    a(f"""
    s_barrier
    ds_read_b32 v30, v24 offset:{A_BS}
    ds_read_b32 v31, v25 offset:{A_BS}
    """)
    pa(a, 8)
    a(f"s_waitcnt vmcnt(0)")
    def half(dst, base, idx):
        r = base + idx // 2
        if idx % 2 == 0:
            a(f"v_lshlrev_b32 v{dst}, 16, v{r}")
        else:
            a(f"v_and_b32 v{dst}, s{S_HI}, v{r}")
    for i in range(2):
        half(4, 18, i)
        half(5, 12, 3*i+0)
        half(6, 12, 3*i+1)
        half(7, 12, 3*i+2)
        a(f"""
        v_mul_f32 v5, v4, v5
        v_mul_f32 v6, v4, v6
        v_mul_f32 v7, v4, v7
        v_cvt_pk_bf16_f32 v{32+4*i}, v4, v5
        v_cvt_pk_bf16_f32 v{32+4*i+1}, v6, v7
        """)
    pa(a, 7)
    a("s_waitcnt lgkmcnt(0)")
    for i in range(2):
        a(f"""
        v_add_lshl_u32 v{4+i}, v{30+i}, v{28+i}, 4
        v_or_b32 v{32+4*i+2}, v{32+4*i+2}, v{8+i}
        ds_write_b96 v{4+i}, {vr(32+4*i,3)} offset:{A_STG}
        """)
    a(f"""
    s_mov_b64 exec, -1
    s_mul_i32 s{S_T}, s3, {CHS * 16}
    v_lshlrev_b32 v20, 4, v0
    v_add_u32 v21, s{S_T}, v20
    v_mov_b32 v2, {L_NONCE}
    v_add_u32 v22, 10240, v21
    v_cmp_gt_u32 vcc, 616, v0
    s_waitcnt lgkmcnt(0)
    s_barrier
    """)
    pa(a, 14)
    a(f"""
    ds_read_b64 v[2:3], v2
    ds_read_b128 v[32:35], v20 offset:{A_STG}
    ds_read_b128 v[36:39], v20 offset:{A_STG+10240}
    s_waitcnt lgkmcnt(1)
    v_or_b32 v34, v34, v3
    v_mov_b32 v35, v2
    global_store_dwordx4 v21, v[32:35], {WSB} sc1
    s_waitcnt lgkmcnt(0)
    v_or_b32 v38, v38, v3
    v_mov_b32 v39, v2
    s_mov_b64 exec, vcc
    global_store_dwordx4 v22, v[36:39], {WSB} sc1
    v_readfirstlane_b32 s{S_NON}, v2
    v_readfirstlane_b32 s{S_NON+1}, v3
    """)
    PW = int(OPT.get("pw", 0))
    if PW:
        a(f"""
        s_lshr_b32 s{S_T}, s3, 3
        s_mul_i32 s{S_T}, s{S_T}, 625
        v_add_u32 v40, s{S_T}, v0
        """)
        if PW == 1:
            a("""
            v_and_b32 v41, 3, v40
            v_lshrrev_b32 v40, 2, v40
            v_lshlrev_b32 v40, 11, v40
            """)
        else:
            a("""
            v_and_b32 v41, 1, v40
            v_lshrrev_b32 v40, 1, v40
            v_lshlrev_b32 v40, 10, v40
            """)
        a(f"""
        v_lshl_add_u32 v40, v41, 7, v40
        buffer_load_dword v41, v40, {sr(S_X,4)}, 0 offen
        """)
    a(f"""
    s_mov_b64 exec, -1
    s_branch A_end
    """)
    a.label("A_scan")
    a(f"""
    v_and_b32 v1, 63, v0
    v_lshlrev_b32 v1, 4, v1
    """)
    if int(OPT.get("cpf", 2)) == 2: cpf(a)
    for n, b in enumerate(OPT.get("t0", "x").replace("x", "")):
        touch(a, int(b), 0, 60+4*n, 61+4*n)
        touch(a, int(b), 1, 62+4*n, 63+4*n)
    a(f"""
    v_mov_b32 v16, 0
    s_setprio 3
    s_barrier
    ds_read_b128 v[4:7], v1 offset:{A_H}
    global_load_dwordx2 v[2:3], v16, {sr(S_DBG)} sc1
    """)
    if int(OPT.get("cpf", 2)) == 1: cpf(a)
    a(f"""
    s_waitcnt lgkmcnt(0)
    v_add_u32 v9, v4, v5
    v_add_u32 v10, v9, v6
    v_add_u32 v11, v10, v7
    v_mov_b32 v12, v11
    s_nop 1
    v_add_u32_dpp v12, v12, v12 row_shr:1 row_mask:0xf bank_mask:0xf bound_ctrl:0
    s_nop 1
    v_add_u32_dpp v12, v12, v12 row_shr:2 row_mask:0xf bank_mask:0xf bound_ctrl:0
    s_nop 1
    v_add_u32_dpp v12, v12, v12 row_shr:4 row_mask:0xf bank_mask:0xf bound_ctrl:0
    s_nop 1
    v_add_u32_dpp v12, v12, v12 row_shr:8 row_mask:0xf bank_mask:0xf bound_ctrl:0
    s_nop 1
    v_add_u32_dpp v12, v12, v12 row_bcast:15 row_mask:0xa bank_mask:0xf
    s_nop 1
    v_add_u32_dpp v12, v12, v12 row_bcast:31 row_mask:0xc bank_mask:0xf
    v_sub_u32 v12, v12, v11
    v_add_u32 v13, v12, v4
    v_add_u32 v14, v12, v9
    v_add_u32 v15, v12, v10
    ds_write_b128 v1, v[12:15] offset:{A_BS}
    s_waitcnt lgkmcnt(0)
    s_barrier
    """)
    setup(a)
    a(f"""
    s_lshl_b32 s{S_T}, s3, 11
    s_add_u32 s{S_T}, s{S_T}, {WS_OFF}
    v_add_u32 v20, s{S_T}, v1
    """)
    for i in range(4):
        a(f"v_lshl_or_b32 v{24+2*i}, v{4+i}, 11, v{12+i}")
    a(f"v_mov_b32 v17, {L_NONCE}")
    a.label("A_pn")
    a(f"""
    s_waitcnt vmcnt(0)
    v_readfirstlane_b32 s{S_NON}, v2
    s_cmp_lg_u32 s{S_NON}, 0
    s_cbranch_scc1 A_pd
    global_load_dwordx2 v[2:3], v16, {sr(S_DBG)} sc1
    s_sub_u32 s{S_SPIN}, s{S_SPIN}, 1
    s_cmp_gt_i32 s{S_SPIN}, 0
    s_cbranch_scc1 A_pn
    s_waitcnt vmcnt(0)
    """)
    a.label("A_pd")
    a("ds_write_b64 v17, v[2:3]")
    for i in range(4):
        a(f"""
        v_or_b32 v{24+2*i}, v3, v{24+2*i}
        v_mov_b32 v{25+2*i}, v2
        """)
    a(f"""
    global_store_dwordx4 v20, v[24:27], {WSB} sc1
    global_store_dwordx4 v20, v[28:31], {WSB} offset:1024 sc1
    v_readfirstlane_b32 s{S_NON}, v2
    v_readfirstlane_b32 s{S_NON+1}, v3
    v_lshlrev_b32 v40, 7, v1
    s_lshr_b32 s{S_T}, s2, 2
    s_lshl_b32 s{S_T}, s{S_T}, 4
    s_and_b32 s{S_T+1}, s2, 2
    s_lshl_b32 s{S_T+1}, s{S_T+1}, 9
    s_add_u32 s{S_T}, s{S_T}, s{S_T+1}
    s_and_b32 s{S_T+1}, s2, 1
    s_lshl_b32 s{S_T+1}, s{S_T+1}, 3
    s_add_u32 s{S_T}, s{S_T}, s{S_T+1}
    v_add_u32 v40, s{S_T}, v40
    v_add_u32 v41, {64*2048}, v40
    v_add_u32 v42, {128*2048}, v40
    v_add_u32 v43, {192*2048}, v40
    s_mov_b32 s{S_T+7}, {TAGM}
    s_mov_b64 s[40:41], -1
    s_mov_b64 s[42:43], -1
    s_mov_b64 s[44:45], -1
    s_mov_b64 s[46:47], -1
    s_waitcnt lgkmcnt(0)
    s_barrier
    {"s_waitcnt vmcnt(0)" if int(OPT.get("pw0", 1)) else ""}
    """)
    a.label("A_poll")
    for r in range(4):
        a(f"""
        s_mov_b64 exec, {sr(40+2*r)}
        s_cbranch_execz A_ps{r}
        buffer_load_dwordx2 {vr(32+2*r,2)}, v{40+r}, {sr(S_OFFS,4)}, 0 offen sc1
        """)
        a.label(f"A_ps{r}")
    a(f"""
    s_mov_b64 exec, -1
    s_mov_b64 {sr(S_TM)}, 0
    s_waitcnt vmcnt(0)
    """)
    for r in range(4):
        a(f"""
        v_and_b32 v4, s{S_T+7}, v{32+2*r}
        v_cmp_ne_u32 {sr(40+2*r)}, s{S_NON+1}, v4
        v_cmp_ne_u32 vcc, s{S_NON}, v{33+2*r}
        s_or_b64 {sr(40+2*r)}, {sr(40+2*r)}, vcc
        s_or_b64 {sr(S_TM)}, {sr(S_TM)}, {sr(40+2*r)}
        """)
    a(f"""
    s_cmp_eq_u64 {sr(S_TM)}, 0
    s_cbranch_scc1 A_polled
    {"s_sleep " + OPT["slp"] if OPT.get("slp") else ""}
    s_sub_u32 s{S_SPIN}, s{S_SPIN}, 1
    s_cmp_gt_i32 s{S_SPIN}, 0
    s_cbranch_scc1 A_poll
    """)
    a.label("A_polled")
    a(f"""
    v_lshrrev_b32 v1, 2, v1
    v_mov_b32 v5, 0
    """)
    for r in range(4):
        a(f"""
        v_and_b32 v{32+2*r}, 0x3fffff, v{32+2*r}
        ds_write_b32 v1, v{32+2*r} offset:{A_OFS+256*r}
        """)
    a(f"""
    ds_write_b32 v1, v5 offset:{A_OFS+1024}
    s_branch A_end
    """)
    a.label("A_aux")
    a(f"""
    v_and_b32 v1, 63, v0
    s_cmp_ge_u32 s3, 160
    s_cbranch_scc1 A_wp1
    s_and_b32 s{S_T+3}, s3, 7
    s_and_b32 s{S_T+1}, s3, 0xf8
    v_lshrrev_b32 v3, 4, v1
    s_lshl_b32 s{S_T}, s{S_T+1}, 2
    v_lshl_add_u32 v4, v3, 3, s{S_T}
    v_lshlrev_b32 v5, 1, v4
    global_load_dwordx4 v[8:11], v5, {sr(WR)}
    v_and_b32 v2, 15, v1
    s_lshl_b32 s{S_T}, s{S_T+3}, 4
    v_add_lshl_u32 v2, v2, s{S_T}, 1
    v_lshl_add_u32 v6, v4, 8, v2
    s_sub_u32 s60, s{W1}, {256*256}
    s_subb_u32 s61, s{W1+1}, 0
    s_cmp_lt_u32 s3, 64
    s_cselect_b64 s[60:61], {sr(W0)}, s[60:61]
    """)
    for i in range(8):
        a(f"global_load_ushort v{12+i}, v6, s[60:61] offset:{256*i} {OPT.get('wnt', '')}")
    a.label("A_wp1")
    T1 = OPT.get("t1", "0").replace("x", "")
    a(f"""
    s_setprio 3
    s_barrier
    s_barrier
    """)
    setup(a)
    a(f"""
    s_and_b32 s{S_T+3}, s3, 7
    s_mul_i32 s{S_T+2}, s{S_T+3}, 20
    s_lshr_b32 s{S_T+3}, s3, 3
    s_add_u32 s{S_T+2}, s{S_T+2}, s{S_T+3}
    s_cmp_ge_u32 s3, 160
    s_cbranch_scc1 A_nw1
    s_lshl_b32 s{S_T+3}, s{S_T+2}, 10
    s_add_u32 s{S_T+3}, s{S_T+3}, {WS_WF}
    v_lshl_add_u32 v7, v1, 4, s{S_T+3}
    s_waitcnt vmcnt(0)
    """)
    for i in range(8):
        if i % 2 == 0:
            a(f"v_lshlrev_b32 v20, 16, v{8+i//2}")
        else:
            a(f"v_and_b32 v20, s{S_HI}, v{8+i//2}")
        a(f"v_lshlrev_b32 v{12+i}, 16, v{12+i}")
        a(f"v_mul_f32 v{12+i}, v20, v{12+i}")
    for i in range(4):
        a(f"v_cvt_pk_bf16_f32 v{24+i}, v{12+2*i}, v{13+2*i}")
    a(f"global_store_dwordx4 v7, v[24:27], {WSB} sc1")
    a.label("A_nw1")
    if not OPT.get("t1late"):
        for n, b in enumerate(T1):
            touch(a, int(b), 0, 32+4*n, 33+4*n)
            touch(a, int(b), 1, 34+4*n, 35+4*n)
    a(f"""
    v_mov_b32 v2, {L_NONCE}
    s_barrier
    ds_read_b64 v[4:5], v2
    """)
    if OPT.get("t1late"):
        for n, b in enumerate(T1):
            touch(a, int(b), 0, 32+4*n, 33+4*n)
            touch(a, int(b), 1, 34+4*n, 35+4*n)
    a(f"""
    s_waitcnt lgkmcnt(0)
    v_readfirstlane_b32 s{S_NON}, v4
    v_readfirstlane_b32 s{S_NON+1}, v5
    s_cmp_ge_u32 s3, 160
    s_cbranch_scc1 A_end
    s_lshl_b32 s{S_T+3}, s{S_T+2}, 10
    s_add_u32 s{S_T+3}, s{S_T+3}, {WS_WFLAG}
    v_lshl_add_u32 v11, v1, 4, s{S_T+3}
    v_mov_b32 v5, v4
    v_mov_b32 v6, v4
    v_mov_b32 v7, v4
    s_waitcnt vmcnt({2*len(T1)})
    global_store_dwordx4 v11, v[4:7], {WSB} sc1
    s_nop 1
    """)
    a.label("A_end")

def gen_main(a):
    K = NAME + "_kernel"
    a.raw(".p2align 8")
    a.raw(f".globl {K}")
    a.raw(f".type {K},@function")
    a.label(K)
    a(f"""
    s_cmp_ge_u32 s2, {NB}
    s_cbranch_scc1 M_done
    """)
    if OPT.get("empty"): a("s_endpgm")
    if DBG:
        for k in range(S_ST, S_ST+32): a(f"s_mov_b32 s{k}, 0")
    stamp(a, 0)
    stamp(a, 10, True)
    T = V_T
    a(f"""
    s_load_dwordx16 s[36:51], s[0:1], 0
    s_load_dwordx8 s[52:59], s[0:1], 64
    s_memrealtime {sr(S_NON)}
    s_mul_i32 s{S_T}, s2, {CH*4}
    v_lshl_add_u32 v6, v0, 3, s{S_T}
    v_cmp_gt_u32 vcc, 625, v0
    s_waitcnt lgkmcnt(0)
    s_mov_b64 exec, vcc
    s_cbranch_execz E_nod
    global_load_dwordx2 v[4:5], v6, s[44:45] nt
    """)
    a.label("E_nod")
    a(f"""
    s_mov_b64 exec, -1
    v_lshrrev_b32 v1, 6, v0
    v_mov_b32 v3, 0
    v_readfirstlane_b32 s{S_G}, v1
    v_lshlrev_b32 v2, 2, v0
    ds_write_b32 v2, v3
    ds_write_b32 v2, v3 offset:{A_H}
    """)
    if int(OPT.get("el", 0)):
        a(f"""
        v_lshrrev_b32 v20, 1, v6
        v_add_u32 v7, v6, v20
        s_mov_b64 exec, vcc
        s_cbranch_execz E_nol
        global_load_dwordx3 v[12:14], v7, s[38:39] nt
        global_load_dword v18, v20, s[40:41] nt
        global_load_dwordx2 v[8:9], v6, s[42:43] nt
        """)
        a.label("E_nol")
        a("s_mov_b64 exec, -1")
    a(f"""
    s_mov_b64 {sr(S_DBG)}, s[56:57]
    {"s_mov_b32 s72, s" + str(S_NON) if OPT.get('own') else ""}
    """)
    if OPT.get("cas"):
        a(f"""
        s_lshr_b32 s{S_T}, s2, 3
        s_or_b32 s{S_T}, s{S_T}, s{S_G}
        s_cmp_lg_u32 s{S_T}, 0
        s_cbranch_scc1 M_nonon
        s_lshl_b32 s{S_NON+1}, s{S_NON+1}, 22
        s_or_b32 s{S_NON}, s{S_NON}, 1
        v_mov_b32 v40, s{S_NON}
        v_mov_b32 v41, s{S_NON+1}
        v_mov_b32 v42, 0
        v_mov_b32 v43, 0
        s_mov_b64 exec, 1
        global_atomic_cmpswap_x2 v3, v[40:43], {sr(S_DBG)} sc1
        s_mov_b64 exec, -1
        """)
    else:
        a(f"""
        s_xor_b32 s{S_T}, s2, {OPT.get('nwg', 0)}
        s_or_b32 s{S_T}, s{S_T}, s{S_G}
        s_cmp_lg_u32 s{S_T}, 0
        s_cbranch_scc1 M_nonon
        s_lshl_b32 s{S_NON+1}, s{S_NON+1}, 22
        s_or_b32 s{S_NON}, s{S_NON}, 1
        v_mov_b32 v10, s{S_NON}
        v_mov_b32 v11, s{S_NON+1}
        s_mov_b64 exec, 1
        global_store_dwordx2 v3, v[10:11], {sr(S_DBG)} sc1
        s_mov_b64 exec, -1
        """)
    a(f"""
    """)
    a.label("M_nonon")
    a(f"""
    s_mov_b32 s3, s2
    v_lshrrev_b32 v20, 1, v6
    v_add_u32 v7, v6, v20
    s_waitcnt lgkmcnt(0)
    s_barrier
    """)
    phase_a(a)
    a("s_setprio 0")
    if int(OPT.get("rm", 1)):
        a(f"""
        s_add_u32 s{S_G}, s{S_G}, 4
        s_cmp_ge_u32 s{S_G}, 12
        s_cselect_b32 s{S_T}, 12, 0
        s_sub_u32 s{S_G}, s{S_G}, s{S_T}
        """)
    a(f"""
    v_mov_b32 v{V_JB}, 0
    v_mov_b32 v{V_DONE}, 0
    s_mov_b32 s{S_RND}, 0
    v_and_b32 v{T}, 63, v0
    v_and_b32 v{T+1}, 15, v{T}
    v_lshrrev_b32 v{T+2}, 4, v{T}
    v_lshlrev_b32 v{V_N16}, 4, v{T+1}
    v_lshlrev_b32 v{V_N16+1}, 4, v{T+1}
    v_and_b32 v{V_C}, 3, v{T}
    v_bfe_u32 v{T+3}, v{T}, 2, 2
    s_mul_i32 s{S_T}, s{S_G}, {CAP*16}
    s_add_u32 s{S_T}, s{S_T}, {L_LIST}
    v_lshl_add_u32 v{V_VS}, v{T+2}, 4, s{S_T}
    v_lshl_add_u32 v{V_VC}, v{T+3}, 6, v{V_VS}
    s_cmp_lt_u32 s{S_G}, 4
    s_cselect_b32 s{S_T}, 2, 3
    s_cselect_b32 s{S_T+1}, 0, 12
    s_add_u32 s{S_T+1}, s{S_T+1}, s{S_G}
    v_lshlrev_b32 v{T+2}, s{S_T}, v{T+2}
    v_add_u32 v{T+2}, s{S_T+1}, v{T+2}
    v_cmp_gt_u32 {sr(S_FEX)}, 40, v{T+2}
    v_mul_u32_u24 v{V_PB}, {PSTR}, v{T+2}
    v_and_b32 v{T+2}, 15, v{T+2}
    v_xor_b32 v{T+2}, v{T+2}, v{T+1}
    v_lshl_add_u32 v{V_PB}, v{T+2}, 4, v{V_PB}
    v_add_u32 v{V_PB}, {L_P}, v{V_PB}
    s_mov_b32 s{S_T+7}, {TAGM}
    """)
    L = V_L[0]; L2 = V_L[1]
    if OPT.get("pst"): stamp(a, 12)
    a(f"""
    v_lshrrev_b32 v{T}, 3, v0
    v_lshlrev_b32 v{T}, 2, v{T}
    s_max_u32 s{S_T}, s{S_G}, 4
    s_sub_u32 s{S_T}, s{S_T}, 4
    s_mul_i32 s{S_T}, s{S_T}, {20*1024}
    s_lshl_b32 s{S_T+1}, s2, 2
    s_add_u32 s{S_T}, s{S_T}, s{S_T+1}
    s_add_u32 s{S_T}, s{S_T}, {WS_WFLAG}
    v_and_b32 v{V_ACC+51}, 63, v0
    v_min_u32 v{V_ACC+51}, 19, v{V_ACC+51}
    v_lshl_add_u32 v{V_ACC+51}, v{V_ACC+51}, 10, s{S_T}
    s_waitcnt {"vmcnt(0) " if OPT.get("ack") else ""}lgkmcnt(0)
    """)
    if OPT.get("pst"): stamp(a, 3)
    a("s_barrier")
    for r in range(3):
        a(f"ds_read_b32 v{V_OFF+r}, v{T} offset:{A_OFS+384*r}")
    a(f"""
    s_mov_b64 {sr(S_ACT)}, -1
    s_mov_b32 s{S_FIRST}, 0
    s_waitcnt lgkmcnt(0)
    s_branch M_w0
    """)
    a.label("M_init")
    a(f"""
    v_mov_b32 v{T+1}, 0
    v_lshlrev_b32 v{T}, 2, v0
    s_movk_i32 s{S_T}, {L_P//4}
    v_cmp_gt_u32 vcc, s{S_T}, v0
    s_and_saveexec_b64 {sr(S_TM)}, vcc
    ds_write_b32 v{T}, v{T+1}
    s_mov_b64 exec, {sr(S_TM)}
    s_mov_b64 {sr(S_ACT)}, -1
    s_waitcnt lgkmcnt(0)
    s_barrier
    s_mov_b32 s{S_FIRST}, 1
    """)
    a.label("M_w0")
    stamp(a, 1)
    a.label("M_window")
    L2 = V_ACC + 16
    REM = L2; ADR = L2 + 3; CTR = L2 + 6; RNK = L2 + 15; BAS = L2 + 24; ONE = L2 + 33
    WFV = L2 + 34; WFA = L2 + 35; TCA = 60; L = 100
    MK = [40, 42, 44, 46, 48, 50, 24, 26, 28]
    a(f"""
    v_and_b32 v{T}, 7, v0
    v_add_u32 v{T}, v{T}, v{V_JB}
    v_lshrrev_b32 v{T+1}, 3, v0
    v_mul_u32_u24 v{T+1}, {CHS}, v{T+1}
    v_add_u32 v{T+1}, v{T+1}, v{T}
    v_mov_b32 v{ONE}, 1
    """)
    for r in range(3):
        a(f"""
        v_lshrrev_b32 v{REM+r}, 11, v{V_OFF+r}
        v_sub_u32 v{REM+r}, v{REM+r}, v{T}
        v_and_b32 v{ADR+r}, 0x7ff, v{V_OFF+r}
        v_add_lshl_u32 v{ADR+r}, v{ADR+r}, v{T+1}, 4
        """)
        if r: a(f"v_add_u32 v{ADR+r}, {96*CHS*16*r}, v{ADR+r}")
    for k in range(9):
        r = k % 3; h = k // 3
        a(f"v_cmp_lt_i32 {sr(MK[k])}, {8*h}, v{REM+r}")
    a(f"""
    s_cmp_eq_u32 s{S_FIRST}, 0
    s_cbranch_scc1 M_rload
    """)
    for k in range(9):
        m = sr(MK[k])
        a(f"""
        v_and_b32 v{T+2}, {1<<k}, v{V_DONE}
        v_cmp_eq_u32 vcc, 0, v{T+2}
        s_and_b64 {m}, {m}, vcc
        s_and_b64 {m}, {m}, {sr(S_ACT)}
        """)
    a.label("M_rload")
    a(f"""
    s_or_b64 {sr(S_TM)}, {sr(MK[6])}, {sr(MK[7])}
    s_or_b64 {sr(S_TM)}, {sr(S_TM)}, {sr(MK[8])}
    s_cselect_b32 s{S_ANY2}, 1, 0
    """)
    for k in range(9):
        if k == 6:
            a(f"s_cmp_eq_u32 s{S_ANY2}, 0")
            a("s_cbranch_scc1 M_sl8")
        r = k % 3; h = k // 3
        a(f"""
        s_mov_b64 exec, {sr(MK[k])}
        {"s_cbranch_execz M_sl" + str(k) if k >= 2 else ""}
        buffer_load_dwordx4 {vr(L+4*k,4)}, v{ADR+r}, {sr(S_REC,4)}, 0 offen offset:{128*h} sc1
        """)
        a.label(f"M_sl{k}")
    a(f"""
    s_mov_b64 exec, -1
    s_cmp_lg_u32 s{S_FIRST}, 0
    s_cbranch_scc1 M_nofld
    global_load_dword v{WFV}, v{WFA}, {sr(S_WSB)} sc1
    """)
    a.label("M_nofld")
    a(f"""
    s_mov_b64 {sr(S_PEND)}, 0
    s_mov_b32 s{S_T}, {TAGM}
    s_waitcnt vmcnt(0)
    """)
    for k in range(9):
        if k == 6:
            a(f"s_cmp_eq_u32 s{S_ANY2}, 0")
            a("s_cbranch_scc1 M_sc8")
        a(f"""
        s_mov_b64 exec, {sr(MK[k])}
        {"s_cbranch_execz M_sc" + str(k) if k >= 3 else ""}
        v_and_b32 v{T}, s{S_T}, v{L+4*k+2}
        v_cmp_ne_u32 {sr(S_TM)}, s{S_NON+1}, v{T}
        v_cmp_ne_u32 vcc, s{S_NON}, v{L+4*k+3}
        v_bfe_u32 v{CTR+k}, v{L+4*k+2}, 16, 4
        v_and_b32 v{T}, 15, v{L+4*k+2}
        s_or_b64 {sr(S_PEND)}, {sr(S_PEND)}, {sr(S_TM)}
        s_or_b64 {sr(S_PEND)}, {sr(S_PEND)}, vcc
        v_lshl_or_b32 v{T}, v{CTR+k}, 4, v{T}
        v_lshlrev_b32 v{BAS+k}, 2, v{T}
        """)
        a.label(f"M_sc{k}")
    a(f"""
    s_mov_b64 exec, -1
    s_cmp_eq_u64 {sr(S_PEND)}, 0
    {"s_branch M_rok" if OPT.get("halfst") or OPT.get("noretry") else ""}
    s_cbranch_scc1 M_rok
    s_sleep {OPT.get('slp', 4)}
    s_sub_u32 s{S_SPIN}, s{S_SPIN}, 1
    s_cmp_gt_i32 s{S_SPIN}, 0
    s_cbranch_scc1 M_rload
    """)
    a.label("M_rok")
    if OPT.get("dl13"): a(f"s_sleep {OPT['dl13']}")
    stamp(a, 13)
    a(f"""
    s_cmp_lg_u32 s{S_FIRST}, 0
    s_cbranch_scc1 M_append
    """)
    for k in range(9):
        if k == 6:
            a(f"s_cmp_eq_u32 s{S_ANY2}, 0")
            a("s_cbranch_scc1 M_sa8")
        a(f"""
        s_mov_b64 exec, {sr(MK[k])}
        {"s_cbranch_execz M_sa" + str(k) if k >= 9 else ""}
        ds_add_rtn_u32 v{RNK+k}, v{BAS+k}, v{ONE} offset:{L_CC}
        """)
        a.label(f"M_sa{k}")
    SCN = V_ACC
    a(f"""
    s_mov_b64 exec, -1
    v_cmp_eq_u32 vcc, s{S_NON}, v{WFV}
    s_cmp_eq_u64 vcc, -1
    s_cselect_b32 s{S_WOK}, 1, 0
    s_cbranch_scc0 M_nowpre
    s_cmp_lt_u32 s{S_G}, {16 if OPT.get("db") else 4}
    s_cbranch_scc1 M_nowpre
    """)
    wload(a, WFA, [0, 1, 2, 3, 8, 9, 10, 11])
    a.label("M_nowpre")
    a(f"""
    v_and_b32 v{T}, 63, v0
    v_lshlrev_b32 v{T}, 4, v{T}
    v_cmp_lt_u32 vcc, 0, v{V_C}
    v_cmp_lt_u32 {sr(S_TM)}, 1, v{V_C}
    s_waitcnt lgkmcnt(0)
    s_barrier
    ds_read_b128 {vr(SCN,4)}, v{T} offset:{L_CC}
    """)
    if int(OPT.get("t2m", 0)):
        a(f"""
        s_cmp_ge_u32 s{S_G}, 4
        s_cbranch_scc1 M_t2m
        s_mul_i32 s{S_T+6}, s3, 236
        s_mul_i32 s{S_T+5}, s{S_G}, 59
        s_add_u32 s{S_T+6}, s{S_T+6}, s{S_T+5}
        v_and_b32 v{TCA}, 63, v0
        v_add_u32 v{TCA}, s{S_T+6}, v{TCA}
        v_and_b32 v{TCA+1}, 3, v{TCA}
        v_lshrrev_b32 v{TCA}, 2, v{TCA}
        s_movk_i32 s{S_T+5}, 5000
        v_cmp_gt_u32 {sr(S_PEND)}, s{S_T+5}, v{TCA}
        v_lshlrev_b32 v{TCA+2}, 11, v{TCA}
        v_add_u32 v{TCA+2}, 1024, v{TCA+2}
        v_subrev_u32 v{TCA}, s{S_T+5}, v{TCA}
        v_lshlrev_b32 v{TCA}, 10, v{TCA}
        v_add_u32 v{TCA}, 512, v{TCA}
        v_cndmask_b32 v{TCA}, v{TCA}, v{TCA+2}, {sr(S_PEND)}
        v_lshl_add_u32 v{TCA}, v{TCA+1}, 7, v{TCA}
        s_mov_b32 exec_hi, 0x7ffffff
        buffer_load_dword v{V_TCH}, v{TCA}, {sr(S_X,4)}, 0 offen
        s_mov_b64 exec, -1
        """)
        a.label("M_t2m")
    for n, b in enumerate(OPT.get("t2", "12").replace("x", "")):
        a(f"s_cmp_lg_u32 s{S_G}, {n}")
        a(f"s_cbranch_scc1 M_t2_{n}")
        touch(a, int(b), 0, TCA, V_TCH)
        touch(a, int(b), 1, TCA, TCA+1)
        a.label(f"M_t2_{n}")
    a(f"""
    s_waitcnt lgkmcnt(0)
    v_add_u32 v{SCN+4}, v{SCN}, v{SCN+1}
    v_add_u32 v{SCN+5}, v{SCN+4}, v{SCN+2}
    v_add_u32 v{SCN+6}, v{SCN+5}, v{SCN+3}
    s_nop 1
    v_mov_b32_dpp v{SCN+7}, v{SCN+6} quad_perm:[0,0,1,2] row_mask:0xf bank_mask:0xf
    v_cndmask_b32 v{SCN+7}, 0, v{SCN+7}, vcc
    v_add_u32 v{SCN+7}, v{SCN+7}, v{SCN+6}
    s_nop 1
    v_mov_b32_dpp v{SCN+8}, v{SCN+7} quad_perm:[0,0,0,1] row_mask:0xf bank_mask:0xf
    v_cndmask_b32 v{SCN+8}, 0, v{SCN+8}, {sr(S_TM)}
    v_add_u32 v{SCN+8}, v{SCN+8}, v{SCN+7}
    v_sub_u32 v{SCN+8}, v{SCN+8}, v{SCN+6}
    v_add_u32 v{SCN+9}, v{SCN+8}, v{SCN}
    v_add_u32 v{SCN+10}, v{SCN+8}, v{SCN+4}
    v_add_u32 v{SCN+11}, v{SCN+8}, v{SCN+5}
    s_mov_b32 exec_hi, 0xffff
    ds_write_b128 v{T}, {vr(SCN+8,4)} offset:{L_BASE}
    """)
    for k in range(9):
        if k == 6:
            a(f"s_cmp_eq_u32 s{S_ANY2}, 0")
            a("s_cbranch_scc1 M_sb8")
        a(f"""
        s_mov_b64 exec, {sr(MK[k])}
        {"s_cbranch_execz M_sb" + str(k) if k >= 9 else ""}
        ds_read_b32 v{BAS+k}, v{BAS+k} offset:{L_BASE}
        """)
        a.label(f"M_sb{k}")
    a("s_branch M_place")
    a.label("M_append")
    for k in range(9):
        a(f"""
        s_mov_b64 exec, {sr(MK[k])}
        v_lshlrev_b32 v{T+1}, 2, v{CTR+k}
        v_lshlrev_b32 v{T}, 6, v{CTR+k}
        ds_add_rtn_u32 v{RNK+k}, v{T+1}, v{ONE} offset:{L_ACNT}
        ds_read_b32 v{BAS+k}, v{T} offset:{L_BASE+60}
        ds_read_b32 v{T+2}, v{T} offset:{L_CC+60}
        s_waitcnt lgkmcnt(0)
        v_add_u32 v{BAS+k}, v{BAS+k}, v{T+2}
        """)
    a.label("M_place")
    a(f"""
    s_mov_b64 exec, -1
    s_mov_b64 {sr(S_PEND)}, 0
    s_mov_b32 s{S_T}, {L_LIST}
    s_movk_i32 s{S_T+2}, {CAP}
    s_mov_b32 s{S_FIRST}, 1
    """)
    for k in range(9):
        if k == 6:
            a(f"s_cmp_eq_u32 s{S_ANY2}, 0")
            a("s_cbranch_scc1 M_se8")
        a(f"""
        {"s_cmp_eq_u64 " + sr(MK[k]) + ", 0" if k >= 3 else ""}
        {"s_cbranch_scc1 M_se" + str(k) if k >= 3 else ""}
        v_bfe_u32 v{T+1}, v{L+4*k+2}, 14, 2
        v_and_b32 v{L+4*k+2}, 0x3fff, v{L+4*k+2}
        v_lshlrev_b32 v{L+4*k+3}, v{T+1}, v{ONE}
        v_lshlrev_b32 v{L+4*k+2}, 10, v{L+4*k+2}
        v_mul_u32_u24 v{CTR+k}, s{S_T+2}, v{CTR+k}
        """)
        a.label(f"M_se{k}")
    a("s_waitcnt lgkmcnt(0)")
    for k in range(9):
        if k == 6:
            a(f"s_cmp_eq_u32 s{S_ANY2}, 0")
            a("s_cbranch_scc1 M_sp8")
        m = sr(MK[k])
        a(f"""
        s_mov_b64 exec, {m}
        {"s_cbranch_execz M_sp" + str(k) if k >= 3 else ""}
        v_add_u32 v{RNK+k}, v{RNK+k}, v{BAS+k}
        v_cmp_gt_u32 vcc, s{S_T+2}, v{RNK+k}
        v_add_u32 v{T}, v{CTR+k}, v{RNK+k}
        v_lshl_add_u32 v{CTR+k}, v{T}, 4, s{S_T}
        s_andn2_b64 {sr(S_TM)}, {m}, vcc
        s_or_b64 {sr(S_PEND)}, {sr(S_PEND)}, {sr(S_TM)}
        s_mov_b64 exec, vcc
        ds_write_b128 v{CTR+k}, {vr(L+4*k,4)}
        v_or_b32 v{V_DONE}, {1<<k}, v{V_DONE}
        """)
        a.label(f"M_sp{k}")
    a(f"""
    s_mov_b64 exec, -1
    v_mov_b32 v{T+2}, {L_MORE}
    v_max3_i32 v{T}, v{REM}, v{REM+1}, v{REM+2}
    s_mov_b64 exec, {sr(S_PEND)}
    ds_write_b32 v{T+2}, v{ONE}
    s_andn2_b64 {sr(S_ACT)}, {sr(S_ACT)}, {sr(S_PEND)}
    s_mov_b64 exec, {sr(S_ACT)}
    v_add_u32 v{V_JB}, 24, v{V_JB}
    v_mov_b32 v{V_DONE}, 0
    v_cmp_lt_i32 vcc, 24, v{T}
    s_mov_b64 exec, -1
    s_cmp_lg_u64 vcc, 0
    s_cbranch_scc1 M_window
    s_lshl_b32 s{S_T}, s{S_G}, 6
    v_mov_b32 v{T}, s{S_T}
    s_lshl_b32 s{S_T}, s{S_G}, 2
    v_mov_b32 v{T+1}, s{S_T}
    s_waitcnt lgkmcnt(0)
    """)
    stamp(a, 15)
    if OPT.get("dl15"): a(f"s_sleep {OPT['dl15']}")
    a(f"""
    s_barrier
    ds_read_b32 v{V_A[0]}, v{T} offset:{L_BASE+60}
    ds_read_b32 v{V_A[0]+1}, v{T} offset:{L_CC+60}
    ds_read_b32 v{V_A[0]+2}, v{T+1} offset:{L_ACNT}
    ds_read_b32 v{V_A[0]+3}, v{T+2}
    v_and_b32 v{T}, 63, v0
    v_mov_b32 v{V_B[0]}, {OOBOFF}
    v_mov_b32 v{V_B[0]+1}, 0
    s_mov_b32 s{S_S1}, 0
    s_mov_b32 s{S_S2}, 0
    s_mov_b32 s{S_B1}, 0
    s_mov_b32 s{S_SPIN2}, {1 << 22}
    s_mov_b32 s{S_PLO}, 0x05040100
    s_mov_b32 s{S_PHI}, 0x07060302
    s_waitcnt lgkmcnt(0)
    v_add3_u32 v{T+1}, v{V_A[0]}, v{V_A[0]+1}, v{V_A[0]+2}
    v_readfirstlane_b32 s{S_MORE}, v{V_A[0]+3}
    v_readfirstlane_b32 s{S_T}, v{T+1}
    s_min_u32 s{S_T}, s{S_T}, {CAP}
    s_add_u32 s{S_S}, s{S_T}, 31
    s_lshr_b32 s{S_S}, s{S_S}, 5
    s_max_u32 s{S_S}, s{S_S}, 1
    s_lshl_b32 s{S_T+1}, s{S_S}, 5
    v_add_u32 v{T}, s{S_T}, v{T}
    v_cmp_gt_u32 vcc, s{S_T+1}, v{T}
    s_mul_i32 s{S_T+2}, s{S_G}, {CAP*16}
    s_add_u32 s{S_T+2}, s{S_T+2}, {L_LIST+8}
    v_lshl_add_u32 v{T}, v{T}, 4, s{S_T+2}
    s_mov_b64 exec, vcc
    ds_write_b64 v{T}, {vr(V_B[0],2)}
    s_mov_b64 exec, -1
    s_sub_u32 s{S_NLAST}, s{S_T}, s{S_T+1}
    s_add_u32 s{S_NLAST}, s{S_NLAST}, 35
    s_lshr_b32 s{S_NLAST}, s{S_NLAST}, 2
    """)
    meta_reads(a)
    a(f"""
    s_cmp_gt_u32 s{S_S}, 2
    s_cbranch_scc1 M_nozl
    """)
    for k in range(32):
        a(f"v_mov_b32 v{V_L[0]+k}, 0")
    a(f"""
    s_cmp_ge_u32 s{S_G}, {16 if OPT.get("db") else 4}
    s_cbranch_scc1 M_nozl
    """)
    for k in range(32):
        a(f"v_mov_b32 v{V_L[1]+k}, 0")
    a.label("M_nozl")
    stamp(a, 2)
    setprio(a, 0)
    a(f"""
    s_waitcnt lgkmcnt(0)
    s_cmp_ge_u32 s{S_G}, {16 if OPT.get("db") else 4}
    s_cbranch_scc1 M_sglb
    """)
    stage_x(a, 0, "i", wait=False)
    a.label("M_goi")
    advance(a)
    a(f"s_mov_b32 s{S_FIRST}, 1")
    for p in range(2):
        a.label(f"M_it{p}")
        a(f"""
        s_waitcnt lgkmcnt(0)
        s_cmp_eq_u32 s{S_B1}, 1024
        s_cbranch_scc1 M_w{p}_0
        """)
        if OPT.get("hx"):
            a(f"""
            s_cmp_ge_u32 s{S_B1}, {OPT['hx']}
            s_cbranch_scc1 M_hx{p}
            s_waitcnt vmcnt({OPT.get('hw', 0)})
            """)
            a.label(f"M_hx{p}")
        stage_x(a, p ^ 1, str(p))
        a.label(f"M_go{p}")
        a(f"""
        s_cmp_eq_u32 s{S_FIRST}, 0
        s_cbranch_scc1 M_cn{p}
        """)
        compute(a, p, True)
        a(f"s_branch M_cd{p}")
        a.label(f"M_cn{p}")
        compute(a, p, False)
        a.label(f"M_cd{p}")
        a(f"""
        s_mov_b32 s{S_FIRST}, 0
        s_cmp_lg_u32 s{S_S1}, 0
        s_cbranch_scc1 M_nofl{p}
        s_mov_b32 s{S_FIRST}, 1
        s_call_b64 {sr(S_RET)}, M_flush
        s_cmp_eq_u32 s{S_B1}, 1024
        s_cbranch_scc1 M_end
        """)
        a.label(f"M_nofl{p}")
        advance(a)
        if p == 1:
            a("s_branch M_it0")
    def prep():
        for i in range(0, 8, 2):
            a(f"v_pk_add_f32 {vr(V_IX+i,2)}, {vr(V_IX+i,2)}, {vr(V_N16,2)}")
        a(f"""
        v_bfe_i32 v{V_OH}, v{V_OH}, v{V_C}, 1
        v_bfe_i32 v{V_OH+1}, v{V_OH+1}, v{V_C}, 1
        v_and_b32 v{V_OH}, v{V_OH}, v{V_CA}
        v_and_b32 v{V_OH+1}, v{V_OH+1}, v{V_CA}
        """)
    def load(i):
        a(f"buffer_load_dwordx4 {vr(V_L[0]+4*i,4)}, v{V_IX+i}, {sr(S_X,4)}, s{S_B1} offen")
    a.label("M_sglb")
    a(f"s_mov_b32 s{S_FLP}, 0")
    prep()
    tick(a, None)
    a.label("M_its")
    a(f"""
    s_add_u32 s{S_S2}, s{S_S1}, 1
    s_cmp_eq_u32 s{S_S2}, s{S_S}
    s_cbranch_scc1 M_parts
    """)
    a.label("M_fulls")
    for i in range(8): load(i)
    a("s_branch M_pms")
    a.label("M_parts")
    a(f"""
    s_mov_b32 s{S_S2}, 0
    s_cmp_eq_u32 s{S_NLAST}, 8
    s_cbranch_scc1 M_fulls
    """)
    for i in range(7):
        a(f"s_cmp_eq_u32 s{S_NLAST}, {i}")
        a(f"s_cbranch_scc1 M_pms")
        load(i)
    a.label("M_pms")
    tick(a, 1)
    a(f"""
    ds_read_b64_tr_b16 {vr(V_A[0],2)}, v{V_OH}
    ds_read_b64_tr_b16 {vr(V_A[0]+2,2)}, v{V_OH+1} offset:256
    """)
    meta_reads(a)
    a(f"""
    s_cmp_eq_u32 s{S_FLP}, 0
    s_cbranch_scc1 M_nofls
    """)
    a.label("M_dofl")
    a(f"""
    s_call_b64 {sr(S_RET)}, M_flush
    s_cmp_eq_u32 s{S_B1}, 1024
    s_cbranch_scc1 M_end
    s_cmp_lg_u32 s{S_B1}, {OPT.get("midb", 512)}
    s_cbranch_scc1 M_nofls
    s_cmp_lg_u32 s{S_MORE}, 0
    s_cbranch_scc1 M_nofls
    """)
    mid_stage(a)
    a.label("M_nofls")
    a("s_waitcnt lgkmcnt(0)")
    prep()
    tick(a, 13)
    if OPT.get("prof"):
        a("s_waitcnt vmcnt(0)")
        tick(a, 15)
        a(f"s_add_u32 s{S_ST+8}, s{S_ST+8}, 1")
    a(f"""
    s_cmp_eq_u32 s{S_S1}, 0
    s_mov_b32 s{S_S1}, s{S_S2}
    s_waitcnt vmcnt(0)
    s_cbranch_scc0 M_cns
    """)
    compute(a, 0, True)
    a("s_branch M_cds")
    a.label("M_cns")
    compute(a, 0, False)
    a.label("M_cds")
    tick(a, 3)
    a(f"""
    s_cmp_eq_u32 s{S_S2}, 0
    s_cselect_b32 s{S_FLP}, 256, 0
    s_add_u32 s{S_B1}, s{S_B1}, s{S_FLP}
    s_cmp_eq_u32 s{S_B1}, 1024
    s_cbranch_scc0 M_its
    s_cmp_lg_u32 s{S_MORE}, 0
    s_cbranch_scc1 M_dofl
    """)
    wload(a, V_T+2, [12, 13, 14, 15, 16, 17, 18, 19])
    a("s_branch M_dofl")
    flush_sub(a)
    a.label("M_end")
    a(f"""
    s_cmp_eq_u32 s{S_MORE}, 0
    s_cbranch_scc1 M_gemm
    s_mov_b32 s{S_RND}, 1
    s_waitcnt lgkmcnt(0)
    s_barrier
    s_branch M_init
    """)
    a.label("M_gemm")
    if OPT.get("nogemm"): a("s_endpgm")
    gemm(a)
    a.label("M_done")
    a("s_endpgm")

OACC = {(0, 0): 8, (1, 0): 20, (2, 0): 36}
O1 = [(0, 1), (0, 2), (0, 3), (1, 1), (1, 2), (1, 3), (2, 1), (2, 3)]
for n_, k_ in enumerate(O1): OACC[k_] = 136 + 4*n_

def wflag_spin(a, tag, va, vd):
    a(f"""
    s_sub_u32 s{S_T}, s{S_G}, 4
    s_mul_i32 s{S_T}, s{S_T}, {20*1024}
    s_lshl_b32 s{S_T+1}, s2, 2
    s_add_u32 s{S_T}, s{S_T}, s{S_T+1}
    s_add_u32 s{S_T}, s{S_T}, {WS_WFLAG}
    v_and_b32 v{va}, 63, v0
    v_min_u32 v{va}, 19, v{va}
    v_lshl_add_u32 v{va}, v{va}, 10, s{S_T}
    """)
    a.label(f"M_wfchk{tag}")
    a(f"""
    global_load_dword v{vd}, v{va}, {sr(S_WSB)} sc1
    s_waitcnt vmcnt(0)
    v_cmp_eq_u32 vcc, s{S_NON}, v{vd}
    s_cmp_eq_u64 vcc, -1
    s_cbranch_scc1 M_wfld{tag}
    s_sub_u32 s{S_SPIN}, s{S_SPIN}, 1
    s_cmp_gt_i32 s{S_SPIN}, 0
    s_cbranch_scc1 M_wfchk{tag}
    """)
    a.label(f"M_wfld{tag}")

def mid_stage(a):
    B0 = 7; DL = 19; X0 = 12; X2 = 13; XP = 14; TT = 15
    bufs = [40, 44, 64, 68, 72, 76]
    TR = {k: 48 + 4*n for n, k in enumerate(O1[4:])}
    a(f"""
    s_cmp_lg_u32 s{S_WOK}, 0
    s_cbranch_scc1 M_midw
    """)
    wflag_spin(a, "m", X0, X2)
    wload(a, X0, [0, 1, 2, 3, 8, 9, 10, 11])
    a(f"""
    s_waitcnt vmcnt(0)
    s_mov_b32 s{S_WOK}, 1
    """)
    a.label("M_midw")
    a(f"""
    v_mov_b32 v{XP}, {L_FC0}
    ds_read_b32 v{TT}, v{XP}
    v_and_b32 v{X0}, 15, v0
    v_bfe_u32 v{X2}, v0, 4, 2
    v_mul_u32_u24 v{DL}, {PSTR}, v{X0}
    v_xor_b32 v{B0}, v{X2}, v{X0}
    v_lshl_add_u32 v{B0}, v{B0}, 4, v{DL}
    v_add_u32 v{B0}, {L_P}, v{B0}
    v_lshrrev_b32 v{DL}, 3, v{X0}
    v_mul_i32_i24 v{DL}, {768 - 8*PSTR}, v{DL}
    """)
    a.label("M_midf")
    a(f"""
    s_waitcnt lgkmcnt(0)
    v_readfirstlane_b32 s{S_T}, v{TT}
    s_cmp_ge_u32 s{S_T}, {NG}
    s_cbranch_scc1 M_midg
    s_sleep 1
    ds_read_b32 v{TT}, v{XP}
    s_sub_u32 s{S_SPIN2}, s{S_SPIN2}, 1
    s_cmp_gt_i32 s{S_SPIN2}, 0
    s_cbranch_scc1 M_midf
    s_waitcnt lgkmcnt(0)
    """)
    a.label("M_midg")
    steps = []
    for k4 in range(4):
        for t in range(3): steps.append((t, 0, 0, k4, k4))
    for k4 in range(4):
        for (t, o) in O1[4:] + O1[:4]: steps.append((t, o, comp011(o-1), k4, 8 + k4))
    NBF = len(bufs)
    cur = [None]
    def rd(n):
        t, o, c, k4, ws = steps[n]
        key = (k4, ws >= 8)
        if cur[0] != key:
            cur[0] = key
            a(f"v_xor_b32 v{X0}, {64*k4}, v{B0}")
            a(f"v_add_u32 v{X2}, {32*PSTR}, v{X0}")
            if ws >= 8: a(f"v_add_u32 v{XP}, v{X2}, v{DL}")
        base = X0 if t < 2 else (XP if o == 1 else X2)
        off = c*256 + (16*PSTR if t == 1 else 0)
        a(f"ds_read_b128 {vr(bufs[n % NBF],4)}, v{base} offset:{off}")
    for n in range(NBF - 1): rd(n)
    for n in range(len(steps)):
        t, o, c, k4, ws = steps[n]
        if n + NBF - 1 < len(steps): rd(n + NBF - 1)
        a(f"s_waitcnt lgkmcnt({min(NBF - 1, len(steps) - 1 - n)})")
        acc = vr(TR.get((t, o), OACC[(t, o)]), 4)
        a(f"v_mfma_f32_16x16x32_bf16 {acc}, {vr(WREG[ws],4)}, {vr(bufs[n % NBF],4)}, {'0' if k4 == 0 else acc}")
    for k in O1[4:]:
        for r in range(4): a(f"v_mov_b32 v{OACC[k]+r}, v{TR[k]+r}")

def gemm(a):
    BB = 40; NBB = 6
    PKB = 80; PKO = 0; T2B = 76; LN = 16; OA = 17; WA = 18
    def store_row(rho_s, vb, light):
        a(f"""
        s_mul_i32 s{S_T}, s{rho_s}, {OSTR}
        s_add_u32 s{S_T}, s{S_T}, {L_LIST}
        v_add_u32 v{WA}, s{S_T}, v{LN}
        ds_read_b128 {vr(vb,4)}, v{WA}
        """)
    def row_off(rho_s, dst, light):
        if light:
            a(f"""
            s_sub_u32 s{S_T}, s{rho_s}, 16
            s_lshr_b32 s{S_T+1}, s{S_T}, 3
            s_and_b32 s{S_T}, s{S_T}, 7
            s_add_u32 s{S_T}, s{S_T}, 4
            """)
        else:
            a(f"""
            s_lshr_b32 s{S_T+1}, s{rho_s}, 2
            s_and_b32 s{S_T}, s{rho_s}, 3
            """)
        a(f"""
        s_mul_i32 s{S_T+1}, s{S_T+1}, 12
        s_add_u32 s{S_T}, s{S_T}, s{S_T+1}
        s_lshl_b32 s{S_T}, s{S_T}, 18
        s_lshl_b32 s{S_T+1}, s3, 10
        s_add_u32 s{S_T}, s{S_T}, s{S_T+1}
        v_add_u32 v{dst}, s{S_T}, v{LN}
        """)
    a(f"""
    s_setprio {OPT.get("pg", 0)}
    s_waitcnt lgkmcnt(0)
    v_and_b32 v{LN}, 63, v0
    s_cmp_ge_u32 s{S_G}, 4
    s_cbranch_scc1 M_gw
    v_lshlrev_b32 v{LN}, 4, v{LN}
    """)
    for k in range(6):
        a(f"s_add_u32 s{S_T+3}, s{S_G}, {16 + 4*k}")
        row_off(S_T+3, 40 + k, True)
    a(f"""
    s_mul_i32 s{S_T}, s{S_G}, {OSTR}
    s_add_u32 s{S_T}, s{S_T}, {L_LIST + 16*OSTR}
    v_add_u32 v{WA}, s{S_T}, v{LN}
    s_waitcnt lgkmcnt(0)
    s_barrier
    """)
    for k in range(6):
        a(f"ds_read_b128 {vr(48+4*k,4)}, v{WA} offset:{4*OSTR*k}")
    for k in range(6):
        a(f"s_waitcnt lgkmcnt({5-k})")
        a(f"buffer_store_dwordx4 {vr(48+4*k,4)}, v{40+k}, {sr(S_OUT,4)}, 0 offen {fl('of')}")
    a("s_branch M_st")
    a.label("M_gw")
    a(f"""
    s_waitcnt lgkmcnt(0)
    """)
    late = [12, 13, 14, 15, 16, 17, 18, 19, 4, 5, 6, 7]
    wload(a, WA, [4, 5, 6, 7])
    a(f"""
    v_mov_b32 v14, {L_FC}
    ds_read_b32 v15, v14
    v_and_b32 v12, 15, v{LN}
    v_lshrrev_b32 v13, 4, v{LN}
    v_mul_u32_u24 v{OA}, {PSTR}, v12
    v_xor_b32 v1, v13, v12
    v_lshl_add_u32 v1, v1, 4, v{OA}
    v_add_u32 v1, {L_P}, v1
    v_xor_b32 v2, 64, v1
    v_xor_b32 v3, 128, v1
    v_xor_b32 v4, 192, v1
    """)
    setup = [f"v_add_u32 v{T2B+k4}, {32*PSTR}, v{1+k4}" for k4 in range(4)]
    setup += [f"v_lshrrev_b32 v{PKO}, 3, v12", f"v_mul_i32_i24 v{PKB+3}, {768 - 8*PSTR}, v{PKO}"]
    setup += [f"v_add_u32 v{PKB+k4}, v{T2B+k4}, v{PKB+3}" for k4 in range(4)]
    setup += [f"s_lshl_b32 s{S_T+1}, s{S_G}, 5", f"s_add_u32 s{S_T+1}, s{S_T+1}, {L_LIST - 128}",
              f"v_mul_u32_u24 v{OA}, {OSTR}, v12", f"v_lshl_add_u32 v{OA}, v13, 3, v{OA}", f"v_add_u32 v{OA}, s{S_T+1}, v{OA}",
              f"v_mul_i32_i24 v{PKO}, {256 - 8*OSTR}, v{PKO}", f"v_add_u32 v{PKO}, v{PKO}, v{OA}",
              f"s_mov_b32 s{S_T+2}, 0xbfb8aa3b", f"v_lshlrev_b32 v{LN}, 4, v{LN}"]
    for x in setup: a(x)
    def spin(tag, off, n):
        a.label(f"M_fcw{tag}")
        a(f"""
        s_waitcnt lgkmcnt(0)
        v_readfirstlane_b32 s{S_T}, v15
        s_cmp_ge_u32 s{S_T}, {n}
        s_cbranch_scc1 M_fcok{tag}
        s_sleep 1
        ds_read_b32 v15, v14 offset:{off}
        s_sub_u32 s{S_SPIN2}, s{S_SPIN2}, 1
        s_cmp_gt_i32 s{S_SPIN2}, 0
        s_cbranch_scc1 M_fcw{tag}
        s_waitcnt lgkmcnt(0)
        """)
        a.label(f"M_fcok{tag}")
    spin("a", 0, NG)
    if not OPT.get("pst"): stamp(a, 12)
    st1 = []
    for k4 in range(4):
        for t in range(3):
            st1.append((t, 1, comp101(0), k4, 12 + k4))
            st1.append((t, 2, comp101(1), k4, 12 + k4))
    for k4 in range(4):
        for t in range(3):
            st1.append((t, 3, comp111(2), k4, 16 + k4))
    st1 = [x for x in st1 if not (x[0] == 2 and x[1] == 2)]
    def late_steps(tiles):
        st = []
        for k4 in range(4):
            for t in tiles: st.append((t, 0, 1, k4, 4 + k4))
        for t in tiles:
            for k4 in range(4):
                st.append((t, 3, comp101(2), k4, 12 + k4))
                st.append((t, 1, comp111(0), k4, 16 + k4))
                st.append((t, 2, comp111(1), k4, 16 + k4))
        return [x for x in st if not (x[0] == 2 and x[1] == 2)]
    started = set()
    wmax = [-1]
    def run(steps, fill):
        q = []
        def rd(n):
            t, o, c, k4, ws = steps[n]
            base = (1 + k4) if t < 2 else ((PKB + k4) if o == 1 else (T2B + k4))
            off = c*256 + (16*PSTR if t == 1 else 0)
            a(f"ds_read_b128 {vr(BB+4*(n%NBB),4)}, v{base} offset:{off}")
            q.append(n)
        n_steps = len(steps)
        for n in range(NBB - 1): rd(n)
        for n in range(n_steps):
            t, o, c, k4, ws = steps[n]
            if n + NBB - 1 < n_steps: rd(n + NBB - 1)
            pend = len(q) - 1 - q.index(n)
            assert pend <= 15
            idx = late.index(ws) if ws in late else -1
            w = f"lgkmcnt({pend})"
            if idx > wmax[0]:
                w = f"vmcnt({len(late) - 1 - idx}) " + w
                wmax[0] = idx
            a("s_waitcnt " + w)
            acc = vr(OACC[(t, o)], 4)
            first = False
            a(f"v_mfma_f32_16x16x32_bf16 {acc}, {vr(WREG[ws],4)}, {vr(BB+4*(n%NBB),4)}, {'0' if first else acc}")
            for x in fill.get(n, []):
                a(x)
                if x.startswith("ds_"): q.append(-1)
    GT = 64
    def gate_ops(t):
        A0 = OACC[(t, 0)]; g = GT + 4*t
        o = [f"v_mul_f32 v{g+r}, s{S_T+2}, v{A0+r}" for r in range(4)]
        o += [f"v_exp_f32 v{g+r}, v{g+r}" for r in range(4)]
        o += [f"v_cvt_pk_bf16_f32 v{A0}, v{A0}, v{A0+1}", f"v_cvt_pk_bf16_f32 v{A0+1}, v{A0+2}, v{A0+3}"]
        o += [f"ds_write_b64 v{OA}, {vr(A0,2)} offset:{16*OSTR*t}"]
        o += [f"v_add_f32 v{g+r}, 1.0, v{g+r}" for r in range(4)]
        o += [f"v_rcp_f32 v{g+r}, v{g+r}" for r in range(4)]
        if t == 2:
            o += ["s_nop 1"]
            o += [f"v_mov_b32_dpp v{g+r}, v{g+r} row_shr:8 row_mask:0xf bank_mask:0xc" for r in range(4)]
        return o
    def fin_ops(t):
        o = []
        for i in ([2, 0, 1] if t < 2 else [2, 0]):
            B0 = OACC[(t, 1 + i)]
            o += [f"v_pk_mul_f32 {vr(B0+r,2)}, {vr(B0+r,2)}, {vr(GT+4*t+r,2)}" for r in (0, 2)]
            o += [f"v_cvt_pk_bf16_f32 v{B0}, v{B0}, v{B0+1}", f"v_cvt_pk_bf16_f32 v{B0+1}, v{B0+2}, v{B0+3}"]
            if t == 2 and i == 0: o += [f"ds_write_b64 v{PKO}, {vr(B0,2)} offset:{32*OSTR + 256}"]
            else: o += [f"ds_write_b64 v{OA}, {vr(B0,2)} offset:{16*OSTR*t + 256*(i+1)}"]
        return o
    def spread(fill, ops, n0, n1):
        cnt = n1 - n0
        for j, op in enumerate(ops):
            fill.setdefault(n0 + j * cnt // len(ops), []).append(op)
    f1 = {}
    f1.setdefault(len(st1) - 4, []).append(f"ds_read_b32 v15, v14 offset:4")
    run(st1, f1)
    a("s_setprio 0")
    spin("b", 4, 8)
    f2 = {}
    spread(f2, gate_ops(1) + gate_ops(2), 11, 23)
    spread(f2, fin_ops(1), 23, 27)
    run(late_steps([1, 2]), f2)
    a("s_nop 5")
    for x in fin_ops(2): a(x)
    a("s_waitcnt lgkmcnt(0)")
    if not OPT.get("pst"): stamp(a, 14)
    a("s_barrier")
    stamp(a, 7)
    f3 = {}
    spread(f3, gate_ops(0), 7, 15)
    run(late_steps([0]), f3)
    a("s_nop 5")
    for x in fin_ops(0): a(x)
    a.label("M_st")
    row_off(S_G, 12, False)
    a(f"""
    s_add_u32 s{S_T+3}, s{S_G}, 8
    """)
    row_off(S_T+3, 13, False)
    a(f"""
    s_mul_i32 s{S_T}, s{S_G}, {OSTR}
    s_add_u32 s{S_T}, s{S_T}, {L_LIST}
    v_add_u32 v{WA}, s{S_T}, v{LN}
    s_waitcnt lgkmcnt(0)
    s_barrier
    """)
    stamp(a, 8)
    a(f"""
    ds_read_b128 v[72:75], v{WA}
    s_and_b32 s{S_T}, s{S_G}, 12
    s_cmp_lg_u32 s{S_T}, 4
    s_cbranch_scc1 M_st3
    ds_read_b128 v[76:79], v{WA} offset:{8*OSTR}
    s_waitcnt lgkmcnt(0)
    buffer_store_dwordx4 v[76:79], v13, {sr(S_OUT,4)}, 0 offen {fl('of')}
    """)
    a.label("M_st3")
    a(f"""
    s_waitcnt lgkmcnt(0)
    buffer_store_dwordx4 v[72:75], v12, {sr(S_OUT,4)}, 0 offen {fl('of')}
    """)
    stamp_dump(a)

def kd(a, name, vg, sg):
    acc = (vg + 3) // 4 * 4
    a.raw(f""".p2align 6
.amdhsa_kernel {name}
  .amdhsa_next_free_vgpr {vg}
  .amdhsa_next_free_sgpr {sg}
  .amdhsa_accum_offset {acc}
  .amdhsa_group_segment_fixed_size 0
  .amdhsa_kernarg_size 96
  .amdhsa_user_sgpr_count 2
  .amdhsa_user_sgpr_kernarg_segment_ptr 1
  .amdhsa_system_sgpr_workgroup_id_x 1
  .amdhsa_float_denorm_mode_32 3
.end_amdhsa_kernel""")

DOC = """
; ---------------------------------------------------------------------------------------------
;  the per-node sums T[n][al][be][:] = sum_{e: dst=n} c_e[al] * x[src_e][be][:] carry everything; the five
; ---------------------------------------------------------------------------------------------
"""
def main():
    global DBG
    OPT.update(dict(x.split("=") for x in sys.argv[2:]))
    DBG = bool(int(OPT.get("dbg", 0)))
    a = Asm()
    ref = open(f"cdna_kernels/{NAME}.s.ref").read().split("\n")
    for ln in ref:
        if ln.startswith(";") and "@launch" not in ln and "Override" not in ln and "grid=ceil" not in ln:
            a.raw(ln)
    a.raw(f"; @launch kernel={NAME}_kernel grid=({NB},1,1) block=({NT},1,1) lds={L_TOT}")
    for ln in DOC.strip().split("\n"): a.raw(ln)
    a.raw('.amdgcn_target "amdgcn-amd-amdhsa--gfx950"')
    a.raw(".text")
    gen_main(a)
    a.raw('.section .rodata,"a"')
    kd(a, NAME + "_kernel", NVG, 102 if DBG else (74 if OPT.get('spinat') else 70))
    open(sys.argv[1], "w").write(a.text())

main()
```
